```python
import torch

def _softmax(x, axis=-1):
    return torch.softmax(x, dim=axis)
def _gelu(x):
    return torch.nn.functional.gelu(x, approximate="tanh")
def _silu(x):
    return torch.nn.functional.silu(x)
def _sigmoid(x):
    return torch.sigmoid(x)
def _layernorm(x, axis=-1, eps=1e-5):
    m = x.mean(dim=axis, keepdim=True)
    v = x.var(dim=axis, keepdim=True, unbiased=False)
    return (x - m) / torch.sqrt(v + eps)
def _scatter_add(tgt, idx, src, axis=0):
    return tgt.clone().index_add_(axis, idx, src)
def _segment_sum(src, seg, n):
    out = torch.zeros((n,) + src.shape[1:], dtype=src.dtype)
    return out.index_add_(0, seg, src)
def _pad(x, pw):
    flat = tuple(v for pair in reversed(pw) for v in pair)
    return torch.nn.functional.pad(x, flat)

kernel_name = 'parallel_sum__gqa_block_cached__geglu_ffn__decode'

def setup_inputs():

    _w = (lambda a: (lambda t: t.to(torch.bfloat16) if t.is_floating_point() else t)(torch.as_tensor(a)))
    def _A_setup():
        B, Sq, D = 2, 1, 512
        Hq, Hkv, Sk, Dh = 32, 8, 32768, 128
        assert Hq % Hkv == 0, (Hq, Hkv)
        return {
            "x": _w((lambda *s: torch.randn(*s, dtype=torch.bfloat16) * 0.05)(B, Sq, D)),
            "k_cache": _w((lambda *s: torch.randn(*s, dtype=torch.bfloat16) * 3.2)(B, Hkv, Sk, Dh)),
            "v_cache": _w((lambda *s: torch.randn(*s, dtype=torch.bfloat16) * 1.6)(B, Hkv, Sk, Dh)),
            "wq": _w((lambda *s: torch.randn(*s, dtype=torch.bfloat16) * 3.2)(D, Hq * Dh) * (D ** -0.5)),
            "wo": _w((lambda *s: torch.randn(*s, dtype=torch.bfloat16) * 1.6)(Hq * Dh, D) * ((Hq * Dh) ** -0.5)),
        }
    _A_in = _A_setup()

    def _B_setup():
        B, S, D, F = 2, 1, 512, 1792
        return {
            "x": _w((lambda *s: torch.randn(*s, dtype=torch.bfloat16) * 0.05)(B, S, D)),
            "w_gate": _w((lambda *s: torch.randn(*s, dtype=torch.bfloat16) * 0.05)(D, F)),
            "w_up": _w((lambda *s: torch.randn(*s, dtype=torch.bfloat16) * 0.05)(D, F)),
            "w_down": _w((lambda *s: torch.randn(*s, dtype=torch.bfloat16) * 0.05)(F, D)),
        }
    _B_in = _B_setup()

    return {
        "A_x": _A_in["x"],
        "A_k_cache": _A_in["k_cache"],
        "A_v_cache": _A_in["v_cache"],
        "A_wq": _A_in["wq"],
        "A_wo": _A_in["wo"],
        "B_x": _B_in["x"],
        "B_w_gate": _B_in["w_gate"],
        "B_w_up": _B_in["w_up"],
        "B_w_down": _B_in["w_down"],
    }

def reference(A_x, A_k_cache, A_v_cache, A_wq, A_wo, B_x, B_w_gate, B_w_up, B_w_down):
    def _A_ref(x, k_cache, v_cache, wq, wo):
        B, Sq, D = x.shape
        Hq, Dh = 32, 128
        Hkv = k_cache.shape[1]
        rep = Hq // Hkv
        q = (lambda x, *d: x.permute(*d))((x @ wq).reshape(B, Sq, Hq, Dh), 0, 2, 1, 3)
        k = (lambda x, n, axis: torch.repeat_interleave(x, n, dim=axis))(k_cache, rep, axis=1)
        v = (lambda x, n, axis: torch.repeat_interleave(x, n, dim=axis))(v_cache, rep, axis=1)
        scores = torch.einsum("bhqd,bhkd->bhqk", q, k) * (Dh ** -0.5)
        p = _softmax(scores, axis=-1)
        o = torch.einsum("bhqk,bhkd->bhqd", p, v)
        return (lambda x, *d: x.permute(*d))(o, 0, 2, 1, 3).reshape(B, Sq, Hq * Dh) @ wo

    def _B_ref(x, w_gate, w_up, w_down):
        return (_gelu(x @ w_gate) * (x @ w_up)) @ w_down

    x = A_x
    xn = _layernorm(x, axis=-1)
    return x + _A_ref(xn, A_k_cache, A_v_cache, A_wq, A_wo) + _B_ref(xn, B_w_gate, B_w_up, B_w_down)
```

```python
import sys

KNAME = "parallel_sum__gqa_block_cached__geglu_ffn__decode_kernel"

HEADER = """; Kernarg layout for this problem (96 bytes, ptrs only, base s[0:1]):
; grid=ceil(out_elems/256), lds=0). Harness parses it; keep it on one line."""

L_RING = 0x00000
L_TILE = 0x20000
L_XN = 0x24000
L_Q = 0x24800
L_H = 0x24C00
L_FLAG = 0x24E00
LDS_BYTES = 0x24E40
W_EPOCH = 0x0
W_Q = 0x1000
W_ML = 0xA000
W_O = 0x10000
W_Y = 0x90000
W_STAMP = 0x200000
WS_BYTES = 0x300000

LOG2E = 0x3FB8AA3B
SCALE = 0x3DB504F3
SPIN_MAX = 1 << 22


def gen(NL=20, stamps=False, AUXNL=2):
    L = []
    A = L.append
    uid = [0]

    def lab(p):
        uid[0] += 1
        return f"L_{p}_{uid[0]}"

    def nop(n):
        while n > 0:
            k = min(n, 16)
            A(f"s_nop {k-1}")
            n -= k

    def srd(r, p, nbytes):
        A(f"s_mov_b32 s{r}, s{p}")
        A(f"s_mov_b32 s{r+1}, s{p+1}")
        A(f"s_mov_b32 s{r+2}, {hex(nbytes)}")
        A(f"s_mov_b32 s{r+3}, 0x20000")

    VST = 200

    def stamp(i):
        if not stamps:
            return
        A("s_memrealtime s[98:99]")
        A("s_waitcnt lgkmcnt(0)")
        A(f"v_writelane_b32 v{VST}, s98, {i}")

    def stamp_flush():
        if not stamps:
            return
        A("s_mov_b64 exec, -1")
        srd(92, P_WS, WS_BYTES)
        A("s_lshl_b32 s97, s2, 3")
        A("s_add_u32 s97, s97, s3")
        A("s_lshl_b32 s97, s97, 8")
        A(f"s_add_u32 s97, s97, {hex(W_STAMP)}")
        A(f"v_lshlrev_b32 v{VST+1}, 2, v0")
        A(f"buffer_store_dword v{VST}, v{VST+1}, s[92:95], s97 offen")
        A("s_waitcnt vmcnt(0)")

    def spin_guard():
        A("s_sub_u32 s15, s15, 1")
        A("s_cbranch_scc1 L_abort")

    P_X, P_K, P_V, P_WQ, P_WO, P_BX, P_G, P_U, P_D, P_OUT, P_DBG, P_WS = range(16, 40, 2)
    S_KVH, S_J, S_B, S_S, S_RB, S_CH = 4, 5, 6, 7, 8, 9

    A(HEADER)
    A(f"; @launch grid=(256,1,1) block=(384,1,1) lds={LDS_BYTES}")
    A('.amdgcn_target "amdgcn-amd-amdhsa--gfx950"')
    A(".text")
    A(f".globl {KNAME}")
    A(".p2align 8")
    A(f".type {KNAME},@function")
    A(f"{KNAME}:")
    A("s_cmp_ge_u32 s2, 256")
    A("s_cbranch_scc1 L_abort")
    A("s_load_dwordx16 s[16:31], s[0:1], 0")
    A("s_load_dwordx8 s[32:39], s[0:1], 64")
    if stamps:
        A("s_memrealtime s[98:99]")
        A(f"v_mov_b32 v{VST}, 0")
    A("v_lshrrev_b32 v1, 6, v0")
    A("v_and_b32 v0, 63, v0")
    A("v_readfirstlane_b32 s3, v1")
    A(f"v_mov_b32 v8, {hex(L_FLAG)}")
    A("v_lshl_add_u32 v9, v0, 2, v8")
    A("v_mov_b32 v10, 0")
    A("s_mov_b64 exec, 0xff")
    A("ds_write_b32 v9, v10")
    A("s_mov_b64 exec, -1")
    A(f"s_and_b32 s{S_KVH}, s2, 7")
    A(f"s_lshr_b32 s{S_J}, s2, 3")
    A(f"s_lshr_b32 s{S_B}, s{S_J}, 4")
    A(f"s_and_b32 s{S_S}, s{S_J}, 15")
    A(f"s_lshr_b32 s{S_RB}, s{S_J}, 1")
    A(f"s_and_b32 s{S_CH}, s{S_J}, 1")
    A(f"s_mov_b32 s15, {hex(SPIN_MAX)}")
    A("v_lshrrev_b32 v1, 4, v0")
    A("v_and_b32 v2, 15, v0")
    A("v_lshlrev_b32 v3, 1, v1")
    A("v_xor_b32 v2, v2, v3")
    A("v_lshlrev_b32 v2, 4, v2")
    A("v_lshl_or_b32 v4, v1, 8, v2")
    A("v_xor_b32 v5, 0x80, v4")
    A("v_xor_b32 v6, 16, v4")
    A("v_xor_b32 v7, 0x90, v4")
    A("s_waitcnt lgkmcnt(0)")
    if stamps:
        A(f"v_writelane_b32 v{VST}, s98, 0")
    A("s_barrier")
    A("s_cmp_eq_u32 s3, 1")
    A("s_cbranch_scc1 L_aux")
    A("s_cmp_lg_u32 s3, 0")
    A("s_cbranch_scc1 L_cons")

    SK, SV, SWO, SD = 40, 44, 48, 52
    sKo, sVo, sN, sL, sI, sU, sT, sT2 = 60, 61, 62, 63, 64, 65, 66, 67
    A("s_setprio 3")
    srd(SK, P_K, 0x8000000)
    srd(SV, P_V, 0x8000000)
    A(f"s_lshl_b32 s{sKo}, s{S_B}, 3")
    A(f"s_add_u32 s{sKo}, s{sKo}, s{S_KVH}")
    A(f"s_lshl_b32 s{sKo}, s{sKo}, 4")
    A(f"s_add_u32 s{sKo}, s{sKo}, s{S_S}")
    A(f"s_lshl_b32 s{sKo}, s{sKo}, 19")
    A(f"s_mov_b32 s{sVo}, s{sKo}")
    A(f"s_mov_b32 s{sN}, 0")
    A(f"s_mov_b32 s{sL}, 0")
    A("v_mov_b32 v16, 0"); A("v_mov_b32 v17, 0"); A("v_mov_b32 v18, 0"); A("v_mov_b32 v19, 0")
    pub_i = (NL - 1) % 8
    pub_d = (pub_i - NL + 1) // 8

    def publish(expr_sgpr):
        A(f"v_mov_b32 v21, s{expr_sgpr}")
        A("s_mov_b64 exec, 1")
        A("ds_write_b32 v8, v21")
        A("s_mov_b64 exec, -1")

    def slot(R, so, vo, gstep2):
        lc, lo = lab("chk"), lab("ok")
        A(f"{lc}:")
        A("s_waitcnt lgkmcnt(0)")
        A("v_min3_i32 v20, v16, v17, v18")
        A("v_min_i32 v20, v20, v19")
        A(f"s_mov_b32 m0, s{sL}")
        A(f"v_readfirstlane_b32 s{sT}, v20")
        A("ds_read_b128 v[16:19], v8 offset:16")
        A(f"s_add_u32 s{sT}, s{sT}, 16")
        A(f"s_cmp_lt_i32 s{sN}, s{sT}")
        A(f"s_cbranch_scc1 {lo}")
        spin_guard()
        A(f"s_branch {lc}")
        A(f"{lo}:")
        for i in range(8):
            if i == 4:
                A(f"s_add_u32 m0, s{sL}, 0x1000")
                A(f"s_add_u32 s{so}, s{so}, {hex(gstep2)}")
            A(f"s_waitcnt vmcnt({NL-1})")
            A(f"buffer_load_dwordx4 v{vo+(i&3)}, s[{R}:{R+3}], s{so} offen offset:{(i&3)*1024} nt lds")
            if i == pub_i:
                A(f"s_add_i32 s{sT}, s{sN}, {pub_d}")
                publish(sT)
        A(f"s_add_u32 s{sN}, s{sN}, 1")
        A(f"s_add_u32 s{sL}, s{sL}, 0x2000")
        A(f"s_and_b32 s{sL}, s{sL}, 0x1ffff")

    A("L_ld_k:")
    slot(SK, sKo, 4, 0x1000)
    A(f"s_add_u32 s{sKo}, s{sKo}, 0x1000")
    A(f"s_and_b32 s{sT}, s{sN}, 3")
    A("s_cbranch_scc1 L_ld_k")
    A("L_ld_v:")
    slot(SV, sVo, 4, 0x1000)
    A(f"s_add_u32 s{sVo}, s{sVo}, 0x1000")
    A(f"s_and_b32 s{sT}, s{sN}, 3")
    A("s_cbranch_scc1 L_ld_v")
    A(f"s_cmp_lt_u32 s{sN}, 128")
    A("s_cbranch_scc1 L_ld_k")
    stamp(1)
    srd(SWO, P_WO, 4096 * 512 * 2)
    srd(SD, P_D, 1792 * 512 * 2)
    A("v_lshl_or_b32 v12, v1, 10, v2")
    A("v_xor_b32 v13, 0x80, v12"); A("v_add_u32 v13, 3072, v13")
    A("v_xor_b32 v14, 16, v12"); A("v_add_u32 v14, 6144, v14")
    A("v_xor_b32 v15, 0x90, v12"); A("v_add_u32 v15, 9216, v15")
    A(f"s_lshl_b32 s{sKo}, s{S_KVH}, 4")
    A(f"s_add_u32 s{sKo}, s{sKo}, s{S_RB}")
    A(f"s_lshl_b32 s{sKo}, s{sKo}, 15")
    A(f"s_lshl_b32 s{sT2}, s{S_CH}, 9")
    A(f"s_add_u32 s{sKo}, s{sKo}, s{sT2}")
    A(f"s_mul_i32 s{sVo}, s{S_KVH}, 14")
    A(f"s_add_u32 s{sVo}, s{sVo}, s{S_RB}")
    A(f"s_lshl_b32 s{sVo}, s{sVo}, 14")
    A(f"s_add_u32 s{sVo}, s{sVo}, s{sT2}")
    A(f"s_cmp_lt_u32 s{S_RB}, 14")
    A(f"s_cselect_b32 s{sVo}, s{sVo}, 0")
    A(f"s_cselect_b32 s{SD+2}, s{SD+2}, 0")
    A("L_ld_wo:")
    slot(SWO, sKo, 12, 0x4000)
    A(f"s_sub_u32 s{sKo}, s{sKo}, {0x4000 - 256}")
    A(f"s_cmp_lt_u32 s{sN}, 130")
    A("s_cbranch_scc1 L_ld_wo")
    slot(SD, sVo, 12, 256)
    last_pub = 130 + pub_d
    for x in range(last_pub + 1, 132):
        A(f"s_waitcnt vmcnt({(131 - x) * 8})")
        A(f"s_mov_b32 s{sT}, {x}")
        publish(sT)
    stamp(2)
    stamp_flush()
    A("s_waitcnt lgkmcnt(0)")
    A("s_endpgm")

    SWQ, SX, SWS, SG, SU, SOUT = 40, 44, 48, 52, 56, 60
    sO, sTag, sA, sB2 = 64, 65, 66, 67
    XB = 64
    A("L_aux:")
    srd(SWQ, P_WQ, 512 * 4096 * 2)
    srd(SX, P_X, 2048)
    srd(SWS, P_WS, WS_BYTES)
    A("v_lshlrev_b32 v10, 4, v0")
    A("v_mov_b32 v11, 0")
    A(f"buffer_load_dwordx4 v[16:19], v10, s[{SX}:{SX+3}], 0 offen")
    A(f"buffer_load_dwordx4 v[20:23], v10, s[{SX}:{SX+3}], 0 offen offset:1024")
    A(f"buffer_load_dword v24, v11, s[{SWS}:{SWS+3}], 0 offen sc1")
    A("v_lshrrev_b32 v12, 1, v0")
    A("v_and_b32 v13, 1, v0")
    A("v_lshlrev_b32 v13, 4, v13")
    A("v_lshl_or_b32 v14, v12, 13, v13")
    A(f"s_lshl_b32 s{sO}, s{S_KVH}, 5")
    A(f"s_add_u32 s{sO}, s{sO}, s{S_J}")
    A(f"s_lshl_b32 s{sO}, s{sO}, 5")
    A(f"s_mov_b32 s{sA}, {hex(L_TILE)}")
    lw = lab("wq")
    A(f"{lw}:")
    A(f"s_mov_b32 m0, s{sA}")
    A(f"s_add_u32 s{sA}, s{sA}, 0x400")
    A(f"buffer_load_dwordx4 v14, s[{SWQ}:{SWQ+3}], s{sO} offen nt lds")
    A(f"s_add_u32 s{sO}, s{sO}, 0x40000")
    A(f"s_cmp_lt_u32 s{sA}, {hex(L_TILE + 0x4000)}")
    A(f"s_cbranch_scc1 {lw}")
    for r in range(28, 32):
        A(f"v_mov_b32 v{r}, -1")
    A(f"s_lshl_b32 s{sA}, s{S_KVH}, 5")
    A(f"s_add_u32 s{sA}, s{sA}, s{S_J}")
    A(f"s_lshl_b32 s{sA}, s{sA}, 11")
    A(f"s_add_u32 s{sA}, s{sA}, {hex(W_O)}")
    A(f"buffer_store_dwordx4 v[28:31], v10, s[{SWS}:{SWS+3}], s{sA} offen sc1")
    A(f"buffer_store_dwordx4 v[28:31], v10, s[{SWS}:{SWS+3}], s{sA} offen offset:1024 sc1")
    A(f"s_lshl_b32 s{sA}, s{S_KVH}, 5")
    A(f"s_add_u32 s{sA}, s{sA}, s{S_J}")
    A(f"s_lshl_b32 s{sA}, s{sA}, 10")
    A(f"s_add_u32 s{sA}, s{sA}, {hex(W_Y)}")
    A(f"s_add_u32 s{sB2}, s{sA}, 0x40000")
    A(f"buffer_store_dwordx4 v[28:31], v10, s[{SWS}:{SWS+3}], s{sA} offen sc1")
    A(f"buffer_store_dwordx4 v[28:31], v10, s[{SWS}:{SWS+3}], s{sB2} offen sc1")

    def ml_soff(dst, tmp):
        A(f"s_lshl_b32 s{dst}, s{S_KVH}, 10")
        A(f"s_lshl_b32 s{tmp}, s{S_B}, 7")
        A(f"s_add_u32 s{dst}, s{dst}, s{tmp}")
        A(f"s_and_b32 s{tmp}, s{S_S}, 7")
        A(f"s_lshl_b32 s{tmp}, s{tmp}, 4")
        A(f"s_add_u32 s{dst}, s{dst}, s{tmp}")
        A(f"s_lshr_b32 s{tmp}, s{S_S}, 3")
        A(f"s_lshl_b32 s{tmp}, s{tmp}, 3")
        A(f"s_add_u32 s{dst}, s{dst}, s{tmp}")
        A(f"s_add_u32 s{dst}, s{dst}, {hex(W_ML)}")
    ml_soff(sA, sB2)
    A("v_lshlrev_b32 v15, 8, v0")
    A("s_mov_b64 exec, 0xf")
    A(f"buffer_store_dwordx2 v[28:29], v15, s[{SWS}:{SWS+3}], s{sA} offen sc1")
    A("s_mov_b64 exec, -1")
    stamp(1)
    A("s_waitcnt vmcnt(21)")
    stamp(2)
    A(f"v_readfirstlane_b32 s{sTag}, v24")
    XF = 32
    for b in range(2):
        for i in range(4):
            A(f"v_lshlrev_b32 v{XF+8*b+2*i}, 16, v{16+4*b+i}")
            A(f"v_and_b32 v{XF+8*b+2*i+1}, 0xffff0000, v{16+4*b+i}")
    A(f"s_mul_i32 s{sTag}, s{sTag}, 1664525")
    A(f"s_add_u32 s{sTag}, s{sTag}, 1013904223")

    def allreduce(regs, op, tmps, steps=("x1", "x2", "hm", "m", "p16", "p32")):
        dpp = {"x1": "quad_perm:[1,0,3,2]", "x2": "quad_perm:[2,3,0,1]", "hm": "row_half_mirror", "m": "row_mirror",
               "r4": "row_ror:4", "r8": "row_ror:8"}
        for st in steps:
            if st in dpp:
                nop(max(0, 3 - len(regs)))
                for r in regs:
                    A(f"{op}_dpp v{r}, v{r}, v{r} {dpp[st]} row_mask:0xf bank_mask:0xf")
            else:
                ins = "v_permlane16_swap_b32" if st == "p16" else "v_permlane32_swap_b32"
                for r, t in zip(regs, tmps):
                    A(f"v_mov_b32 v{t}, v{r}")
                nop(max(0, 3 - len(regs)))
                for r, t in zip(regs, tmps):
                    A(f"{ins} v{r}, v{t}")
                nop(1)
                for r, t in zip(regs, tmps):
                    A(f"{op} v{r}, v{r}, v{t}")

    for b in range(2):
        A(f"v_add_f32 v{48+b}, v{XF+8*b}, v{XF+8*b+1}")
        for i in range(2, 8):
            A(f"v_add_f32 v{48+b}, v{48+b}, v{XF+8*b+i}")
    allreduce([48, 49], "v_add_f32", [50, 51])
    for b in range(2):
        A(f"v_mul_f32 v{48+b}, 0x3b000000, v{48+b}")
    for b in range(2):
        A(f"v_sub_f32 v52, v{XF+8*b}, v{48+b}")
        A(f"v_mul_f32 v{54+b}, v52, v52")
        for i in range(1, 8):
            A(f"v_sub_f32 v52, v{XF+8*b+i}, v{48+b}")
            A(f"v_fmac_f32 v{54+b}, v52, v52")
    allreduce([54, 55], "v_add_f32", [50, 51])
    for b in range(2):
        A(f"v_mul_f32 v{54+b}, 0x3b000000, v{54+b}")
    A("v_cvt_pk_bf16_f32 v50, v48, v49")
    A("v_cvt_pk_bf16_f32 v51, v54, v55")
    A("v_lshlrev_b32 v48, 16, v50"); A("v_and_b32 v49, 0xffff0000, v50")
    A("v_lshlrev_b32 v54, 16, v51"); A("v_and_b32 v55, 0xffff0000, v51")
    A("v_add_f32 v54, 0x3727c5ac, v54"); A("v_add_f32 v55, 0x3727c5ac, v55")
    A("v_cvt_pk_bf16_f32 v51, v54, v55")
    A("v_lshlrev_b32 v54, 16, v51"); A("v_and_b32 v55, 0xffff0000, v51")
    A("v_sqrt_f32 v54, v54"); A("v_sqrt_f32 v55, v55")
    nop(1)
    A("v_cvt_pk_bf16_f32 v51, v54, v55")
    A("v_lshlrev_b32 v54, 16, v51"); A("v_and_b32 v55, 0xffff0000, v51")
    A("v_rcp_f32 v54, v54"); A("v_rcp_f32 v55, v55")
    for b in range(2):
        for i in range(8):
            A(f"v_sub_f32 v{XF+8*b+i}, v{XF+8*b+i}, v{48+b}")
        for i in range(4):
            A(f"v_cvt_pk_bf16_f32 v{56+i}, v{XF+8*b+2*i}, v{XF+8*b+2*i+1}")
        for i in range(4):
            A(f"v_lshlrev_b32 v{XF+8*b+2*i}, 16, v{56+i}")
            A(f"v_and_b32 v{XF+8*b+2*i+1}, 0xffff0000, v{56+i}")
        for i in range(8):
            A(f"v_mul_f32 v{XF+8*b+i}, v{XF+8*b+i}, v{54+b}")
        for i in range(4):
            A(f"v_cvt_pk_bf16_f32 v{16+4*b+i}, v{XF+8*b+2*i}, v{XF+8*b+2*i+1}")
    A(f"v_add_u32 v25, {hex(L_XN)}, v10")
    A("ds_write_b128 v25, v[16:19]")
    A("ds_write_b128 v25, v[20:23] offset:1024")
    A("v_bfe_u32 v26, v0, 3, 1")
    A("v_lshlrev_b32 v26, 10, v26")
    A("v_lshl_add_u32 v26, v1, 3, v26")
    A(f"v_add_u32 v26, {hex(L_XN)}, v26")
    A("s_waitcnt lgkmcnt(0)")
    for s in range(16):
        A(f"ds_read2_b64 v[{XB+4*s}:{XB+4*s+3}], v26 offset0:{8*s} offset1:{8*s+4}")
        if s % 8 == 7:
            A("s_waitcnt lgkmcnt(0)")
    A("v_lshlrev_b32 v27, 3, v0")
    A(f"v_add_u32 v27, {hex(L_TILE)}, v27")

    def gemv(D):
        TF = 128
        for h in range(2):
            for s in range(8):
                ss = 8 * h + s
                A(f"ds_read_b64_tr_b16 v[{TF+4*s}:{TF+4*s+1}], v27 offset:{ss*1024}")
                A(f"ds_read_b64_tr_b16 v[{TF+4*s+2}:{TF+4*s+3}], v27 offset:{ss*1024+512}")
                if s == 6:
                    A("s_waitcnt lgkmcnt(6)")
            A("s_waitcnt lgkmcnt(0)")
            for s in range(8):
                ss = 8 * h + s
                c = "0" if ss == 0 else f"v[{D}:{D+3}]"
                A(f"v_mfma_f32_16x16x32_bf16 v[{D}:{D+3}], v[{TF+4*s}:{TF+4*s+3}], v[{XB+4*ss}:{XB+4*ss+3}], {c}")
        nop(8)

    stamp(3)
    A("s_waitcnt vmcnt(0)")
    stamp(4)
    gemv(32)
    A("v_cvt_pk_bf16_f32 v36, v32, v33")
    A(f"v_mov_b32 v37, s{sTag}")
    A("v_cvt_pk_bf16_f32 v38, v34, v35")
    A(f"v_mov_b32 v39, s{sTag}")
    A("v_bfe_u32 v40, v0, 3, 1")
    A("v_lshlrev_b32 v40, 14, v40")
    A("v_lshl_add_u32 v40, v1, 4, v40")
    A(f"s_lshl_b32 s{sA}, s{S_KVH}, 5")
    A(f"s_add_u32 s{sA}, s{sA}, s{S_J}")
    A(f"s_lshl_b32 s{sA}, s{sA}, 6")
    A(f"s_add_u32 s{sA}, s{sA}, {hex(W_Q)}")
    A("s_mov_b32 exec_lo, 0x01010101"); A("s_mov_b32 exec_hi, 0x01010101")
    A(f"buffer_store_dwordx4 v[36:39], v40, s[{SWS}:{SWS+3}], s{sA} offen sc1")
    A("s_mov_b64 exec, -1")
    stamp(5)
    A(f"s_lshl_b32 s{sA}, s{S_B}, 3")
    A(f"s_add_u32 s{sA}, s{sA}, s{S_KVH}")
    A(f"s_lshl_b32 s{sA}, s{sA}, 11")
    A(f"s_add_u32 s{sA}, s{sA}, {hex(W_Q)}")
    A("v_lshlrev_b32 v41, 5, v0")
    lq = lab("qpoll")
    A(f"{lq}:")
    A(f"buffer_load_dwordx4 v[44:47], v41, s[{SWS}:{SWS+3}], s{sA} offen sc1")
    A(f"buffer_load_dwordx4 v[48:51], v41, s[{SWS}:{SWS+3}], s{sA} offen offset:16 sc1")
    spin_guard()
    A("s_waitcnt vmcnt(0)")
    A(f"v_cmp_ne_u32 vcc, s{sTag}, v45")
    A(f"v_cmp_ne_u32 s[68:69], s{sTag}, v47")
    A(f"v_cmp_ne_u32 s[70:71], s{sTag}, v49")
    A(f"v_cmp_ne_u32 s[72:73], s{sTag}, v51")
    A("s_or_b64 s[68:69], s[68:69], vcc")
    A("s_or_b64 s[70:71], s[70:71], s[72:73]")
    A("s_or_b64 s[68:69], s[68:69], s[70:71]")
    A(f"s_cbranch_scc1 {lq}")
    A("v_mov_b32 v45, v46"); A("v_mov_b32 v46, v48"); A("v_mov_b32 v47, v50")
    A(f"v_add_u32 v42, {hex(L_Q)}, v10")
    A("ds_write_b128 v42, v[44:47]")
    A("v_mov_b32 v43, 1")
    A("s_waitcnt lgkmcnt(0)")
    A("s_mov_b64 exec, 1")
    A("ds_write_b32 v8, v43 offset:4")
    A("s_mov_b64 exec, -1")
    stamp(6)
    srd(SG, P_G, 512 * 1792 * 2)
    srd(SU, P_U, 512 * 1792 * 2)
    A("v_mul_u32_u24 v14, 3584, v12")
    A("v_add_u32 v14, v14, v13")
    for R, D in ((SG, 32), (SU, 36)):
        A(f"s_mul_i32 s{sO}, s{S_KVH}, 14")
        A(f"s_add_u32 s{sO}, s{sO}, s{S_RB}")
        A(f"s_lshl_b32 s{sO}, s{sO}, 5")
        A(f"s_cmp_lt_u32 s{S_RB}, 14")
        A(f"s_cselect_b32 s{sO}, s{sO}, 0")
        A(f"s_cselect_b32 s{R+2}, s{R+2}, 0")
        A(f"s_mov_b32 s{sA}, {hex(L_TILE)}")
        lw = lab("ft")
        A(f"{lw}:")
        A(f"s_mov_b32 m0, s{sA}")
        A(f"s_waitcnt vmcnt({AUXNL-1})")
        A(f"buffer_load_dwordx4 v14, s[{R}:{R+3}], s{sO} offen nt lds")
        A(f"s_add_u32 s{sA}, s{sA}, 0x400")
        A(f"s_add_u32 s{sO}, s{sO}, {32*3584}")
        A(f"s_cmp_lt_u32 s{sA}, {hex(L_TILE + 0x4000)}")
        A(f"s_cbranch_scc1 {lw}")
        A("s_waitcnt vmcnt(0)")
        gemv(D)
    for r in (32, 34, 36, 38):
        A(f"v_cvt_pk_bf16_f32 v40, v{r}, v{r+1}")
        A(f"v_lshlrev_b32 v{r}, 16, v40")
        A(f"v_and_b32 v{r+1}, 0xffff0000, v40")
    A("s_mov_b32 s68, 0x3d372713")
    A("s_mov_b32 s69, 0xc0135761")
    for i in range(4):
        A(f"v_mul_f32 v{44+i}, v{32+i}, v{32+i}")
        A(f"v_fma_f32 v{44+i}, v{44+i}, s68, 1.0")
        A(f"v_mul_f32 v{44+i}, v{44+i}, v{32+i}")
        A(f"v_mul_f32 v{44+i}, s69, v{44+i}")
        A(f"v_exp_f32 v{44+i}, v{44+i}")
    nop(1)
    for i in range(4):
        A(f"v_add_f32 v{44+i}, 1.0, v{44+i}")
    for i in range(4):
        A(f"v_rcp_f32 v{44+i}, v{44+i}")
    nop(1)
    for i in range(4):
        A(f"v_mul_f32 v{32+i}, v{32+i}, v{44+i}")
    for r in (32, 34):
        A(f"v_cvt_pk_bf16_f32 v40, v{r}, v{r+1}")
        A(f"v_lshlrev_b32 v{r}, 16, v40")
        A(f"v_and_b32 v{r+1}, 0xffff0000, v40")
    for i in range(4):
        A(f"v_mul_f32 v{32+i}, v{32+i}, v{36+i}")
    A("v_cvt_pk_bf16_f32 v40, v32, v33")
    A("v_cvt_pk_bf16_f32 v41, v34, v35")
    A("v_lshlrev_b32 v42, 3, v0")
    A(f"v_add_u32 v42, {hex(L_H)}, v42")
    A("ds_write_b64 v42, v[40:41]")
    A("s_waitcnt lgkmcnt(0)")
    A("s_mov_b64 exec, 1")
    A("ds_write_b32 v8, v43 offset:8")
    A("s_mov_b64 exec, -1")
    stamp(7)
    A("v_lshlrev_b32 v41, 6, v0")
    A(f"s_mov_b32 s{sA}, {hex(W_Q)}")
    A(f"s_mov_b32 s{sB2}, {hex(W_Q + 0x2000)}")
    A("v_add_u32 v42, 0x1000, v41")
    lq = lab("cpoll")
    A(f"{lq}:")
    A(f"buffer_load_dword v44, v41, s[{SWS}:{SWS+3}], s{sA} offen offset:4 sc1")
    A(f"buffer_load_dword v45, v42, s[{SWS}:{SWS+3}], s{sA} offen offset:4 sc1")
    A(f"buffer_load_dword v46, v41, s[{SWS}:{SWS+3}], s{sB2} offen offset:4 sc1")
    A(f"buffer_load_dword v47, v42, s[{SWS}:{SWS+3}], s{sB2} offen offset:4 sc1")
    spin_guard()
    A("s_waitcnt vmcnt(0)")
    A(f"v_cmp_ne_u32 vcc, s{sTag}, v44")
    A(f"v_cmp_ne_u32 s[68:69], s{sTag}, v45")
    A(f"v_cmp_ne_u32 s[70:71], s{sTag}, v46")
    A(f"v_cmp_ne_u32 s[72:73], s{sTag}, v47")
    A("s_or_b64 s[68:69], s[68:69], vcc")
    A("s_or_b64 s[70:71], s[70:71], s[72:73]")
    A("s_or_b64 s[68:69], s[68:69], s[70:71]")
    A(f"s_cbranch_scc1 {lq}")
    srd(SOUT, P_OUT, 2048)
    A(f"s_lshl_b32 s{sO}, s{S_KVH}, 5")
    A(f"s_add_u32 s{sO}, s{sO}, s{S_J}")
    A(f"s_lshl_b32 s{sO}, s{sO}, 3")
    A(f"buffer_load_dwordx2 v[52:53], v11, s[{SX}:{SX+3}], s{sO} offen")
    A(f"s_lshr_b32 s{sA}, s{S_KVH}, 2")
    A(f"s_lshl_b32 s{sA}, s{sA}, 18")
    A(f"s_and_b32 s{sB2}, s{S_KVH}, 3")
    A(f"s_lshl_b32 s{sB2}, s{sB2}, 9")
    A(f"s_add_u32 s{sA}, s{sA}, s{sB2}")
    A(f"s_lshl_b32 s{sB2}, s{S_J}, 4")
    A(f"s_add_u32 s{sA}, s{sA}, s{sB2}")
    A(f"s_add_u32 s{sA}, s{sA}, {hex(W_Y)}")
    A(f"s_add_u32 s{sB2}, s{sA}, 0x20000")
    A("v_lshlrev_b32 v41, 11, v0")
    A("s_waitcnt vmcnt(0)")
    A("v_lshlrev_b32 v56, 16, v52"); A("v_and_b32 v57, 0xffff0000, v52")
    A("v_lshlrev_b32 v58, 16, v53"); A("v_and_b32 v59, 0xffff0000, v53")
    stamp(8)
    lq = lab("endwait")
    A(f"{lq}:")
    A("ds_read_b32 v44, v8")
    spin_guard()
    A("s_waitcnt lgkmcnt(0)")
    A("v_readfirstlane_b32 s68, v44")
    A("s_cmp_ge_i32 s68, 131")
    A(f"s_cbranch_scc0 {lq}")
    stamp(9)
    lq = lab("ypoll")
    A(f"{lq}:")
    A(f"buffer_load_dwordx4 v[44:47], v41, s[{SWS}:{SWS+3}], s{sA} offen sc1")
    A(f"buffer_load_dwordx4 v[48:51], v41, s[{SWS}:{SWS+3}], s{sB2} offen sc1")
    spin_guard()
    A("s_waitcnt vmcnt(0)")
    A("v_max3_u32 v52, v44, v45, v46")
    A("v_max3_u32 v53, v47, v48, v49")
    A("v_max3_u32 v52, v52, v50, v51")
    A("v_max_u32 v52, v52, v53")
    A("v_cmp_eq_u32 vcc, -1, v52")
    A(f"s_cbranch_vccnz {lq}")
    stamp(10)
    for i in range(4):
        A(f"v_add_f32 v{44+i}, v{44+i}, v{48+i}")
    allreduce([44, 45, 46, 47], "v_add_f32", [48, 49, 50, 51])
    for i in range(4):
        A(f"v_add_f32 v{44+i}, v{44+i}, v{56+i}")
    A("v_cvt_pk_bf16_f32 v48, v44, v45")
    A("v_cvt_pk_bf16_f32 v49, v46, v47")
    A("s_mov_b64 exec, 1")
    A(f"buffer_store_dwordx2 v[48:49], v11, s[{SOUT}:{SOUT+3}], s{sO} offen")
    le = lab("noep")
    A("s_cmp_lg_u32 s2, 0")
    A(f"s_cbranch_scc1 {le}")
    A(f"v_mov_b32 v50, s{sTag}")
    A(f"buffer_store_dword v50, v11, s[{SWS}:{SWS+3}], 0 offen sc1")
    A(f"{le}:")
    stamp(11)
    stamp_flush()
    A("s_endpgm")

    SWS = 48
    sC, sLd, sTg, sL2E, sSc, sA, sB2, sU = 60, 61, 62, 63, 64, 65, 66, 67
    AK, AV, VDN = 2, 6, 9
    S, O, KF, Q, VF, P = 16, 24, 32, 64, 128, 136
    vM, vNM, vL, vT, vT2, vAl = 152, 153, 154, 155, 156, 157
    A("L_cons:")
    A(f"s_sub_u32 s{sC}, s3, 2")
    srd(SWS, P_WS, WS_BYTES)
    A(f"s_mov_b32 s{sL2E}, {hex(LOG2E)}")
    A(f"s_mov_b32 s{sSc}, {hex(SCALE)}")
    A(f"s_mov_b32 s{sLd}, 0")
    A(f"s_lshl_b32 s{sA}, s{sC}, 2")
    A(f"s_add_u32 s{sA}, s{sA}, {hex(L_FLAG + 16)}")
    A(f"v_mov_b32 v{VDN}, s{sA}")
    A("v_and_b32 v10, 15, v0")
    A("v_and_b32 v11, 7, v0")
    A("v_lshlrev_b32 v11, 1, v11")
    A("v_bfe_u32 v12, v0, 3, 1")
    A("v_or_b32 v11, v11, v12")
    A("v_lshlrev_b32 v12, 2, v1")
    A("v_xor_b32 v11, v11, v12")
    A("v_lshlrev_b32 v11, 4, v11")
    A(f"v_lshl_or_b32 v{AK}, v10, 8, v11")
    for s in range(1, 4):
        A(f"v_xor_b32 v{AK+s}, {16*s}, v{AK}")
    A("v_lshrrev_b32 v10, 2, v0")
    A("v_and_b32 v11, 7, v10")
    A("v_lshlrev_b32 v11, 1, v11")
    A("v_lshrrev_b32 v12, 5, v0")
    A("v_or_b32 v11, v11, v12")
    A("v_bfe_u32 v12, v0, 1, 1")
    A("v_xor_b32 v11, v11, v12")
    A("v_lshlrev_b32 v11, 4, v11")
    A("v_lshl_or_b32 v13, v10, 8, v11")
    A("v_and_b32 v12, 1, v0")
    A("v_lshl_or_b32 v13, v12, 3, v13")
    A(f"s_lshl_b32 s{sA}, s{sC}, 6")
    A(f"v_xor_b32 v{AV}, s{sA}, v13")
    A(f"v_xor_b32 v{AV+1}, 32, v{AV}")
    A(f"v_mov_b32 v{vM}, 0xff800000")
    A(f"v_mov_b32 v{vNM}, 0x7f800000")
    A(f"v_mov_b32 v{vL}, 0")
    for i in range(8):
        A(f"v_mov_b32 v{O+i}, 0")
    A("v_and_b32 v160, 3, v0")
    A("v_lshlrev_b32 v160, 9, v160")
    A(f"v_bfe_u32 v{vT2}, v0, 2, 1")
    A(f"v_lshl_or_b32 v160, v{vT2}, 6, v160")
    A("v_lshl_or_b32 v160, v1, 4, v160")
    A(f"s_lshl_b32 s68, s{S_KVH}, 5")
    A(f"s_add_u32 s68, s68, s{S_J}")
    A("s_lshl_b32 s68, s68, 11")
    A(f"s_lshl_b32 s{sA}, s{sC}, 7")
    A(f"s_add_u32 s68, s68, s{sA}")
    A(f"s_add_u32 s68, s68, {hex(W_O)}")
    A("v_and_b32 v161, 15, v0")
    A("v_lshlrev_b32 v161, 4, v161")
    A(f"s_lshl_b32 s69, s{S_KVH}, 2")
    A(f"s_lshr_b32 s{sA}, s{S_RB}, 2")
    A(f"s_add_u32 s69, s69, s{sA}")
    A("s_lshl_b32 s69, s69, 8")
    A(f"s_add_u32 s69, s69, {hex(W_ML)}")
    A("v_and_b32 v162, 7, v0")
    A("v_lshlrev_b32 v162, 11, v162")
    A(f"v_bfe_u32 v{vT}, v0, 3, 1")
    A(f"v_lshl_or_b32 v162, v{vT}, 15, v162")
    A("v_lshl_or_b32 v162, v1, 4, v162")
    A(f"s_lshl_b32 s70, s{S_KVH}, 16")
    A(f"s_lshl_b32 s{sA}, s{S_RB}, 7")
    A(f"s_add_u32 s70, s70, s{sA}")
    A(f"s_add_u32 s70, s70, {hex(W_O)}")
    A("s_add_u32 s71, s70, 0x4000")
    A(f"v_lshlrev_b32 v163, 18, v{vT}")
    A(f"v_lshl_or_b32 v163, v{vT2}, 6, v163")
    A("v_lshl_or_b32 v163, v1, 4, v163")
    A(f"s_lshl_b32 s72, s{S_KVH}, 5")
    A(f"s_add_u32 s72, s72, s{S_J}")
    A("s_lshl_b32 s72, s72, 10")
    A(f"s_lshl_b32 s{sA}, s{sC}, 8")
    A(f"s_add_u32 s72, s72, s{sA}")
    A(f"s_add_u32 s72, s72, {hex(W_Y)}")
    ml_soff(73, sB2)
    A("v_and_b32 v10, 3, v0")
    A("v_lshlrev_b32 v10, 8, v10")
    A("v_lshl_add_u32 v10, v1, 6, v10")
    A(f"v_add_u32 v10, {hex(L_Q)}, v10")
    A("v_bfe_u32 v11, v0, 2, 2")
    stamp(1)
    lq = lab("qw")
    A(f"{lq}:")
    A(f"ds_read_b32 v{vT}, v8 offset:4")
    spin_guard()
    A("s_waitcnt lgkmcnt(0)")
    A(f"v_readfirstlane_b32 s{sA}, v{vT}")
    A(f"s_cmp_eq_u32 s{sA}, 0")
    A(f"s_cbranch_scc1 {lq}")
    for s in range(4):
        A(f"ds_read_b128 v[{KF+4*s}:{KF+4*s+3}], v10 offset:{16*s}")
    A("s_waitcnt lgkmcnt(0)")
    for g in range(4):
        A(f"v_cmp_eq_u32 vcc, {g}, v11")
        nop(2)
        for i in range(16):
            A(f"v_cndmask_b32 v{Q+16*g+i}, 0, v{KF+i}, vcc")
    A(f"s_mov_b32 s{sTg}, 0")
    stamp(2)

    def wait_landed(tgt):
        lo, ls = lab("lo"), lab("ls")
        A(f"s_cmp_ge_i32 s{sLd}, {tgt}")
        A(f"s_cbranch_scc1 {lo}")
        A(f"{ls}:")
        A(f"ds_read_b32 v{vT}, v8")
        spin_guard()
        A("s_waitcnt lgkmcnt(0)")
        A(f"v_readfirstlane_b32 s{sLd}, v{vT}")
        A(f"s_cmp_ge_i32 s{sLd}, {tgt}")
        A(f"s_cbranch_scc0 {ls}")
        A(f"{lo}:")

    def done():
        A("s_mov_b64 exec, 1")
        A(f"ds_write_b32 v{VDN}, v{vT2}")
        A("s_mov_b64 exec, -1")

    A("L_unit:")
    for g in range(4):
        A(f"s_add_u32 s{sTg}, s{sTg}, 1")
        wait_landed(f"s{sTg}")
        for t in range(2):
            for s in range(4):
                r = KF + 16 * t + 4 * s
                A(f"ds_read_b128 v[{r}:{r+3}], v{AK+s} offset:{g*8192 + t*4096}")
        A(f"v_mov_b32 v{vT2}, s{sTg}")
        for t in range(2):
            A(f"s_waitcnt lgkmcnt({4 if t == 0 else 0})")
            if t == 1:
                done()
            for s in range(4):
                r = KF + 16 * t + 4 * s
                c = "0" if (g == 0 and s == 0) else f"v[{S+4*t}:{S+4*t+3}]"
                q = Q + 16 * g + 4 * s
                A(f"v_mfma_f32_16x16x32_bf16 v[{S+4*t}:{S+4*t+3}], v[{r}:{r+3}], v[{q}:{q+3}], {c}")
    for s in range(4):
        A(f"v_xor_b32 v{AK+s}, 0x10000, v{AK+s}")
    nop(4)

    def round_bf16(base):
        for i in range(4):
            A(f"v_cvt_pk_bf16_f32 v{P+i}, v{base+2*i}, v{base+2*i+1}")
        for i in range(4):
            A(f"v_lshlrev_b32 v{base+2*i}, 16, v{P+i}")
            A(f"v_and_b32 v{base+2*i+1}, 0xffff0000, v{P+i}")
    round_bf16(S)
    for i in range(8):
        A(f"v_mul_f32 v{S+i}, s{sSc}, v{S+i}")
    round_bf16(S)
    A(f"v_max3_f32 v{vM}, v{vM}, v{S}, v{S+1}")
    A(f"v_max3_f32 v{vT}, v{S+2}, v{S+3}, v{S+4}")
    A(f"v_max3_f32 v{vM}, v{vM}, v{S+5}, v{S+6}")
    A(f"v_max3_f32 v{vM}, v{vM}, v{vT}, v{S+7}")
    allreduce([vM], "v_max_f32", [vT], steps=("r4", "r8", "p16", "p32"))
    A(f"v_mul_f32 v{vT}, s{sL2E}, v{vM}")
    A(f"v_sub_f32 v{vAl}, -v{vT}, v{vNM}".replace("v_sub_f32", "v_sub_f32_e64"))
    A(f"v_sub_f32 v{vNM}, 0, v{vT}")
    A(f"v_exp_f32 v{vAl}, v{vAl}")
    for i in range(8):
        A(f"v_fma_f32 v{S+i}, v{S+i}, s{sL2E}, v{vNM}")
    for i in range(8):
        A(f"v_exp_f32 v{S+i}, v{S+i}")
    A(f"v_mul_f32 v{vL}, v{vL}, v{vAl}")
    for i in range(4):
        A(f"v_cvt_pk_bf16_f32 v{P+i}, v{S+2*i}, v{S+2*i+1}")
    for i in range(8):
        A(f"v_mul_f32 v{O+i}, v{O+i}, v{vAl}")
    for g in range(1, 4):
        for i in range(4):
            A(f"v_mov_b32_dpp v{P+4*g+i}, v{P+i} row_ror:{16-4*g} row_mask:0xf bank_mask:0xf")
    for i in range(8):
        A(f"v_add_f32 v{vL}, v{vL}, v{S+i}")
    A(f"s_cmp_eq_u32 s{sTg}, 124")
    A("s_cbranch_scc1 L_pub_ml")
    A("L_pv:")
    for g in range(4):
        A(f"s_add_u32 s{sTg}, s{sTg}, 1")
        wait_landed(f"s{sTg}")
        for tt in range(2):
            for h in range(2):
                r = VF + 4 * tt + 2 * h
                A(f"ds_read_b64_tr_b16 v[{r}:{r+1}], v{AV+tt} offset:{0x8000 + g*8192 + h*4096}")
        A(f"v_mov_b32 v{vT2}, s{sTg}")
        for tt in range(2):
            A(f"s_waitcnt lgkmcnt({2 if tt == 0 else 0})")
            A(f"v_mfma_f32_16x16x32_bf16 v[{O+4*tt}:{O+4*tt+3}], v[{VF+4*tt}:{VF+4*tt+3}], v[{P+4*g}:{P+4*g+3}], v[{O+4*tt}:{O+4*tt+3}]")
        done()
    A(f"v_xor_b32 v{AV}, 0x10000, v{AV}")
    A(f"v_xor_b32 v{AV+1}, 0x10000, v{AV+1}")
    A(f"s_cmp_lt_u32 s{sTg}, 128")
    A("s_cbranch_scc1 L_unit")
    nop(3)
    for i in range(4):
        A(f"v_mov_b32_dpp v{O+i}, v{O+4+i} row_shr:4 row_mask:0xf bank_mask:0x2")
    A("s_mov_b32 exec_lo, 0x00ff00ff"); A("s_mov_b32 exec_hi, 0x00ff00ff")
    A(f"buffer_store_dwordx4 v[{O}:{O+3}], v160, s[{SWS}:{SWS+3}], s68 offen sc1")
    A("s_mov_b64 exec, -1")
    stamp(4)
    lq = lab("mlpoll")
    A(f"{lq}:")
    A(f"buffer_load_dwordx4 v[16:19], v161, s[{SWS}:{SWS+3}], s69 offen sc1")
    spin_guard()
    A("s_waitcnt vmcnt(0)")
    A("v_max3_u32 v20, v16, v17, v18")
    A("v_max_u32 v20, v20, v19")
    A("v_cmp_eq_u32 vcc, -1, v20")
    A(f"s_cbranch_vccnz {lq}")
    stamp(5)
    GO = 32

    def o_loads():
        A(f"buffer_load_dwordx4 v[{GO}:{GO+3}], v162, s[{SWS}:{SWS+3}], s70 offen sc1")
        A(f"buffer_load_dwordx4 v[{GO+4}:{GO+7}], v162, s[{SWS}:{SWS+3}], s70 offen offset:64 sc1")
        A(f"buffer_load_dwordx4 v[{GO+8}:{GO+11}], v162, s[{SWS}:{SWS+3}], s71 offen sc1")
        A(f"buffer_load_dwordx4 v[{GO+12}:{GO+15}], v162, s[{SWS}:{SWS+3}], s71 offen offset:64 sc1")
    o_loads()
    A("v_max_f32 v20, v16, v18")
    allreduce([20], "v_max_f32", [21], steps=("x1", "x2", "hm"))
    A("v_sub_f32 v16, v16, v20")
    A("v_sub_f32 v18, v18, v20")
    A("v_exp_f32 v16, v16")
    A("v_exp_f32 v18, v18")
    nop(1)
    A("v_mul_f32 v21, v16, v17")
    A("v_fmac_f32 v21, v18, v19")
    allreduce([21], "v_add_f32", [22], steps=("x1", "x2", "hm"))
    A("v_rcp_f32 v21, v21")
    nop(1)
    A("v_mul_f32 v16, v16, v21")
    A("v_mul_f32 v18, v18, v21")
    WF, DF, Y = 64, 80, 96
    wait_landed(131)
    A(f"s_and_b32 s{sA}, s{sC}, 1")
    A(f"s_lshl_b32 s{sA}, s{sA}, 7")
    A(f"v_xor_b32 v10, s{sA}, v13")
    A(f"s_lshr_b32 s{sA}, s{sC}, 1")
    A(f"s_lshl_b32 s{sB2}, s{sA}, 12")
    A(f"s_add_u32 s{sB2}, s{sB2}, 0x4000")
    A(f"s_lshl_b32 s{sA}, s{sA}, 13")
    for tt in range(4):
        A(f"v_xor_b32 v11, {32*tt}, v10")
        A(f"v_add_u32 v12, s{sB2}, v11")
        A(f"v_add_u32 v11, s{sA}, v11")
        A(f"ds_read_b64_tr_b16 v[{DF+2*tt}:{DF+2*tt+1}], v12")
        A(f"ds_read_b64_tr_b16 v[{WF+4*tt}:{WF+4*tt+1}], v11")
        A(f"ds_read_b64_tr_b16 v[{WF+4*tt+2}:{WF+4*tt+3}], v11 offset:4096")
    lq = lab("hw")
    A(f"{lq}:")
    A(f"ds_read_b32 v{vT}, v8 offset:8")
    spin_guard()
    A("s_waitcnt lgkmcnt(0)")
    A(f"v_readfirstlane_b32 s{sA}, v{vT}")
    A(f"s_cmp_eq_u32 s{sA}, 0")
    A(f"s_cbranch_scc1 {lq}")
    A("v_lshlrev_b32 v11, 3, v0")
    A(f"v_add_u32 v11, {hex(L_H)}, v11")
    A("ds_read_b64 v[88:89], v11")
    A("s_waitcnt lgkmcnt(0)")
    for tt in range(4):
        A(f"v_mfma_f32_16x16x16_bf16 v[{Y+4*tt}:{Y+4*tt+3}], v[{DF+2*tt}:{DF+2*tt+1}], v[88:89], 0")
    stamp(6)
    lq, lq2 = lab("opoll"), lab("ochk")
    A(f"s_branch {lq2}")
    A(f"{lq}:")
    o_loads()
    spin_guard()
    A(f"{lq2}:")
    A("s_waitcnt vmcnt(0)")
    A(f"v_max3_u32 v20, v{GO}, v{GO+1}, v{GO+2}")
    A(f"v_max3_u32 v21, v{GO+3}, v{GO+4}, v{GO+5}")
    A(f"v_max3_u32 v22, v{GO+6}, v{GO+7}, v{GO+8}")
    A(f"v_max3_u32 v20, v20, v{GO+9}, v{GO+10}")
    A(f"v_max3_u32 v21, v21, v{GO+11}, v{GO+12}")
    A(f"v_max3_u32 v22, v22, v{GO+13}, v{GO+14}")
    A(f"v_max3_u32 v20, v20, v21, v{GO+15}")
    A("v_max_u32 v20, v20, v22")
    A("v_cmp_eq_u32 vcc, -1, v20")
    A(f"s_cbranch_vccnz {lq}")
    stamp(7)
    for i in range(8):
        A(f"v_mul_f32 v{GO+i}, v{GO+i}, v16")
    for i in range(8):
        A(f"v_fmac_f32 v{GO+i}, v{GO+8+i}, v18")
    allreduce([GO + i for i in range(8)], "v_add_f32", [], steps=("x1", "x2", "hm"))
    for i in range(4):
        A(f"v_cvt_pk_bf16_f32 v{48+i}, v{GO+2*i}, v{GO+2*i+1}")
    nop(2)
    for tt in range(4):
        A(f"v_mfma_f32_16x16x32_bf16 v[{Y+4*tt}:{Y+4*tt+3}], v[{WF+4*tt}:{WF+4*tt+3}], v[48:51], v[{Y+4*tt}:{Y+4*tt+3}]")
    nop(7)
    for u in range(2):
        if u == 1:
            nop(2)
        for i in range(4):
            A(f"v_mov_b32_dpp v{Y+8*u+i}, v{Y+8*u+4+i} quad_perm:[0,1,2,3] row_mask:0xf bank_mask:0xa")
    A("s_mov_b32 exec_lo, 0x11111111"); A("s_mov_b32 exec_hi, 0x11111111")
    A(f"buffer_store_dwordx4 v[{Y}:{Y+3}], v163, s[{SWS}:{SWS+3}], s72 offen sc1")
    A(f"buffer_store_dwordx4 v[{Y+8}:{Y+11}], v163, s[{SWS}:{SWS+3}], s72 offen offset:128 sc1")
    stamp(8)
    stamp_flush()
    A("s_endpgm")

    A("L_pub_ml:")
    stamp(3)
    A(f"v_mov_b32 v159, v{vL}")
    allreduce([159], "v_add_f32", [vT], steps=("r4", "r8", "p16", "p32"))
    A(f"v_sub_f32 v158, 0, v{vNM}")
    A(f"v_lshlrev_b32 v{vT}, 8, v0")
    A(f"s_lshl_b64 exec, 1, s{sC}")
    A(f"buffer_store_dwordx2 v[158:159], v{vT}, s[{SWS}:{SWS+3}], s73 offen sc1")
    A("s_mov_b64 exec, -1")
    A("s_branch L_pv")

    A("L_abort:")
    A("s_endpgm")
    nv = 208 if stamps else 168
    A('.section .rodata,"a"')
    A(".p2align 6")
    A(f".amdhsa_kernel {KNAME}")
    A(f"  .amdhsa_next_free_vgpr {nv}")
    A("  .amdhsa_next_free_sgpr 102")
    A(f"  .amdhsa_accum_offset {nv}")
    A("  .amdhsa_group_segment_fixed_size 0")
    A("  .amdhsa_kernarg_size 96")
    A("  .amdhsa_user_sgpr_count 2")
    A("  .amdhsa_user_sgpr_kernarg_segment_ptr 1")
    A("  .amdhsa_system_sgpr_workgroup_id_x 1")
    A(".end_amdhsa_kernel")
    out = []
    for ln in L:
        if ln.startswith((";", ".", " ")) or ln.endswith(":") or "\n" in ln:
            out.append(ln)
        else:
            out.append("    " + ln)
    return "\n".join(out) + "\n"


if __name__ == "__main__":
    kw = eval("dict(" + (sys.argv[2] if len(sys.argv) > 2 else "") + ")")
    open(sys.argv[1], "w").write(gen(**kw))
```

```python
import sys

KNAME = "parallel_sum__gqa_block_cached__geglu_ffn__decode_kernel"

HEADER = """; Kernarg layout for this problem (96 bytes, ptrs only, base s[0:1]):
; grid=ceil(out_elems/256), lds=0). Harness parses it; keep it on one line."""

L_RING = 0x00000
L_TILE = 0x20000
L_XN = 0x24000
L_Q = 0x24800
L_H = 0x24C00
L_FLAG = 0x24E00
LDS_BYTES = 0x24E40
W_EPOCH = 0x0
W_Q = 0x1000
W_ML = 0xA000
W_O = 0x10000
W_Y = 0x90000
W_STAMP = 0x200000
WS_BYTES = 0x300000

LOG2E = 0x3FB8AA3B
SCALE = 0x3DB504F3
SPIN_MAX = 1 << 22


def gen(NL=20, stamps=False, AUXNL=2, pK="nt", pV="nt", pW="nt", diag=None):
    L = []
    A = L.append
    uid = [0]

    def lab(p):
        uid[0] += 1
        return f"L_{p}_{uid[0]}"

    def nop(n):
        while n > 0:
            k = min(n, 16)
            A(f"s_nop {k-1}")
            n -= k

    def srd(r, p, nbytes):
        A(f"s_mov_b32 s{r}, s{p}")
        A(f"s_mov_b32 s{r+1}, s{p+1}")
        A(f"s_mov_b32 s{r+2}, {hex(nbytes)}")
        A(f"s_mov_b32 s{r+3}, 0x20000")

    VST = 200

    role = ["pro"]

    def stamp(i):
        if diag is not None and role[0] == "aux" and diag == i:
            A("s_memrealtime s[88:89]")
            A("s_waitcnt lgkmcnt(0)")
        if not stamps:
            return
        A("s_memrealtime s[98:99]")
        A("s_waitcnt lgkmcnt(0)")
        A(f"v_writelane_b32 v{VST}, s98, {i}")

    def stamp_flush():
        if not stamps:
            return
        A("s_mov_b64 exec, -1")
        srd(92, P_WS, WS_BYTES)
        A("s_lshl_b32 s97, s2, 3")
        A("s_add_u32 s97, s97, s3")
        A("s_lshl_b32 s97, s97, 8")
        A(f"s_add_u32 s97, s97, {hex(W_STAMP)}")
        A(f"v_lshlrev_b32 v{VST+1}, 2, v0")
        A(f"buffer_store_dword v{VST}, v{VST+1}, s[92:95], s97 offen")
        A("s_waitcnt vmcnt(0)")

    def spin_guard():
        A("s_sub_u32 s15, s15, 1")
        A("s_cbranch_scc1 L_abort")

    P_X, P_K, P_V, P_WQ, P_WO, P_BX, P_G, P_U, P_D, P_OUT, P_DBG, P_WS = range(16, 40, 2)
    S_KVH, S_J, S_B, S_S, S_RB, S_CH = 4, 5, 6, 7, 8, 9

    A(HEADER)
    A(f"; @launch grid=(256,1,1) block=(384,1,1) lds={LDS_BYTES}")
    A('.amdgcn_target "amdgcn-amd-amdhsa--gfx950"')
    A(".text")
    A(f".globl {KNAME}")
    A(".p2align 8")
    A(f".type {KNAME},@function")
    A(f"{KNAME}:")
    A("s_cmp_ge_u32 s2, 256")
    A("s_cbranch_scc1 L_abort")
    A("s_load_dwordx16 s[16:31], s[0:1], 0")
    A("s_load_dwordx8 s[32:39], s[0:1], 64")
    if stamps:
        A("s_memrealtime s[98:99]")
        A(f"v_mov_b32 v{VST}, 0")
    if diag is not None:
        A("s_memrealtime s[90:91]")
    A("v_lshrrev_b32 v1, 6, v0")
    A("v_and_b32 v0, 63, v0")
    A("v_readfirstlane_b32 s3, v1")
    A(f"v_mov_b32 v8, {hex(L_FLAG)}")
    A("v_lshl_add_u32 v9, v0, 2, v8")
    A("v_mov_b32 v10, 0")
    A("s_mov_b64 exec, 0xff")
    A("ds_write_b32 v9, v10")
    A("s_mov_b64 exec, -1")
    A(f"s_and_b32 s{S_KVH}, s2, 7")
    A(f"s_lshr_b32 s{S_J}, s2, 3")
    A(f"s_lshr_b32 s{S_B}, s{S_J}, 4")
    A(f"s_and_b32 s{S_S}, s{S_J}, 15")
    A(f"s_lshr_b32 s{S_RB}, s{S_J}, 1")
    A(f"s_and_b32 s{S_CH}, s{S_J}, 1")
    A(f"s_mov_b32 s15, {hex(SPIN_MAX)}")
    A("v_lshrrev_b32 v1, 4, v0")
    A("v_and_b32 v2, 15, v0")
    A("v_lshlrev_b32 v3, 1, v1")
    A("v_xor_b32 v2, v2, v3")
    A("v_lshlrev_b32 v2, 4, v2")
    A("v_lshl_or_b32 v4, v1, 8, v2")
    A("v_xor_b32 v5, 0x80, v4")
    A("v_xor_b32 v6, 16, v4")
    A("v_xor_b32 v7, 0x90, v4")
    A("s_waitcnt lgkmcnt(0)")
    if stamps:
        A(f"v_writelane_b32 v{VST}, s98, 0")
    A("s_barrier")
    A("s_cmp_eq_u32 s3, 1")
    A("s_cbranch_scc1 L_aux")
    A("s_cmp_lg_u32 s3, 0")
    A("s_cbranch_scc1 L_cons")

    SK, SV, SWO, SD = 40, 44, 48, 52
    sKo, sVo, sN, sL, sI, sU, sT, sT2 = 60, 61, 62, 63, 64, 65, 66, 67
    A("s_setprio 3")
    srd(SK, P_K, 0x8000000)
    srd(SV, P_V, 0x8000000)
    A(f"s_lshl_b32 s{sKo}, s{S_B}, 3")
    A(f"s_add_u32 s{sKo}, s{sKo}, s{S_KVH}")
    A(f"s_lshl_b32 s{sKo}, s{sKo}, 4")
    A(f"s_add_u32 s{sKo}, s{sKo}, s{S_S}")
    A(f"s_lshl_b32 s{sKo}, s{sKo}, 19")
    A(f"s_mov_b32 s{sVo}, s{sKo}")
    A(f"s_mov_b32 s{sN}, 0")
    A(f"s_mov_b32 s{sL}, 0")
    A("v_mov_b32 v16, 0"); A("v_mov_b32 v17, 0"); A("v_mov_b32 v18, 0"); A("v_mov_b32 v19, 0")
    pub_i = (NL - 1) % 8
    pub_d = (pub_i - NL + 1) // 8

    def publish(expr_sgpr):
        A(f"v_mov_b32 v21, s{expr_sgpr}")
        A("s_mov_b64 exec, 1")
        A("ds_write_b32 v8, v21")
        A("s_mov_b64 exec, -1")

    def slot(R, so, vo, gstep2, pol):
        lc, lo = lab("chk"), lab("ok")
        A(f"{lc}:")
        A("s_waitcnt lgkmcnt(0)")
        A("v_min3_i32 v20, v16, v17, v18")
        A("v_min_i32 v20, v20, v19")
        A(f"s_mov_b32 m0, s{sL}")
        A(f"v_readfirstlane_b32 s{sT}, v20")
        A("ds_read_b128 v[16:19], v8 offset:16")
        A(f"s_add_u32 s{sT}, s{sT}, 16")
        A(f"s_cmp_lt_i32 s{sN}, s{sT}")
        A(f"s_cbranch_scc1 {lo}")
        spin_guard()
        A(f"s_branch {lc}")
        A(f"{lo}:")
        for i in range(8):
            if i == 4:
                A(f"s_add_u32 m0, s{sL}, 0x1000")
                A(f"s_add_u32 s{so}, s{so}, {hex(gstep2)}")
            A(f"s_waitcnt vmcnt({NL-1})")
            A(f"buffer_load_dwordx4 v{vo+(i&3)}, s[{R}:{R+3}], s{so} offen offset:{(i&3)*1024} {pol} lds")
            if i == pub_i:
                A(f"s_add_i32 s{sT}, s{sN}, {pub_d}")
                publish(sT)
        A(f"s_add_u32 s{sN}, s{sN}, 1")
        A(f"s_add_u32 s{sL}, s{sL}, 0x2000")
        A(f"s_and_b32 s{sL}, s{sL}, 0x1ffff")

    A("L_ld_k:")
    slot(SK, sKo, 4, 0x1000, pK)
    A(f"s_add_u32 s{sKo}, s{sKo}, 0x1000")
    A(f"s_and_b32 s{sT}, s{sN}, 3")
    A("s_cbranch_scc1 L_ld_k")
    A("L_ld_v:")
    slot(SV, sVo, 4, 0x1000, pV)
    A(f"s_add_u32 s{sVo}, s{sVo}, 0x1000")
    A(f"s_and_b32 s{sT}, s{sN}, 3")
    A("s_cbranch_scc1 L_ld_v")
    A(f"s_cmp_lt_u32 s{sN}, 128")
    A("s_cbranch_scc1 L_ld_k")
    stamp(1)
    srd(SWO, P_WO, 4096 * 512 * 2)
    srd(SD, P_D, 1792 * 512 * 2)
    A("v_lshl_or_b32 v12, v1, 10, v2")
    A("v_xor_b32 v13, 0x80, v12"); A("v_add_u32 v13, 3072, v13")
    A("v_xor_b32 v14, 16, v12"); A("v_add_u32 v14, 6144, v14")
    A("v_xor_b32 v15, 0x90, v12"); A("v_add_u32 v15, 9216, v15")
    A(f"s_lshl_b32 s{sKo}, s{S_KVH}, 4")
    A(f"s_add_u32 s{sKo}, s{sKo}, s{S_RB}")
    A(f"s_lshl_b32 s{sKo}, s{sKo}, 15")
    A(f"s_lshl_b32 s{sT2}, s{S_CH}, 9")
    A(f"s_add_u32 s{sKo}, s{sKo}, s{sT2}")
    A(f"s_mul_i32 s{sVo}, s{S_KVH}, 14")
    A(f"s_add_u32 s{sVo}, s{sVo}, s{S_RB}")
    A(f"s_lshl_b32 s{sVo}, s{sVo}, 14")
    A(f"s_add_u32 s{sVo}, s{sVo}, s{sT2}")
    A(f"s_cmp_lt_u32 s{S_RB}, 14")
    A(f"s_cselect_b32 s{sVo}, s{sVo}, 0")
    A(f"s_cselect_b32 s{SD+2}, s{SD+2}, 0")
    A("L_ld_wo:")
    slot(SWO, sKo, 12, 0x4000, pW)
    A(f"s_sub_u32 s{sKo}, s{sKo}, {0x4000 - 256}")
    A(f"s_cmp_lt_u32 s{sN}, 130")
    A("s_cbranch_scc1 L_ld_wo")
    slot(SD, sVo, 12, 256, pW)
    last_pub = 130 + pub_d
    for x in range(last_pub + 1, 132):
        A(f"s_waitcnt vmcnt({(131 - x) * 8})")
        A(f"s_mov_b32 s{sT}, {x}")
        publish(sT)
    stamp(2)
    stamp_flush()
    A("s_waitcnt lgkmcnt(0)")
    A("s_endpgm")

    SWQ, SX, SWS, SG, SU, SOUT = 40, 44, 48, 52, 56, 60
    sO, sTag, sA, sB2 = 64, 65, 66, 67
    XB = 64
    A("L_aux:")
    role[0] = "aux"
    if diag is not None:
        A("s_mov_b32 s88, s90")
    srd(SWQ, P_WQ, 512 * 4096 * 2)
    srd(SX, P_X, 2048)
    srd(SWS, P_WS, WS_BYTES)
    A("v_lshlrev_b32 v10, 4, v0")
    A("v_mov_b32 v11, 0")
    A(f"buffer_load_dwordx4 v[16:19], v10, s[{SX}:{SX+3}], 0 offen")
    A(f"buffer_load_dwordx4 v[20:23], v10, s[{SX}:{SX+3}], 0 offen offset:1024")
    A(f"buffer_load_dword v24, v11, s[{SWS}:{SWS+3}], 0 offen sc1")
    A("v_lshrrev_b32 v12, 1, v0")
    A("v_and_b32 v13, 1, v0")
    A("v_lshlrev_b32 v13, 4, v13")
    A("v_lshl_or_b32 v14, v12, 13, v13")
    A(f"s_lshl_b32 s{sO}, s{S_KVH}, 5")
    A(f"s_add_u32 s{sO}, s{sO}, s{S_J}")
    A(f"s_lshl_b32 s{sO}, s{sO}, 5")
    A(f"s_mov_b32 s{sA}, {hex(L_TILE)}")
    lw = lab("wq")
    A(f"{lw}:")
    A(f"s_mov_b32 m0, s{sA}")
    A(f"s_add_u32 s{sA}, s{sA}, 0x400")
    A(f"buffer_load_dwordx4 v14, s[{SWQ}:{SWQ+3}], s{sO} offen {pW} lds")
    A(f"s_add_u32 s{sO}, s{sO}, 0x40000")
    A(f"s_cmp_lt_u32 s{sA}, {hex(L_TILE + 0x4000)}")
    A(f"s_cbranch_scc1 {lw}")
    for r in range(28, 32):
        A(f"v_mov_b32 v{r}, -1")
    A(f"s_lshl_b32 s{sA}, s{S_KVH}, 5")
    A(f"s_add_u32 s{sA}, s{sA}, s{S_J}")
    A(f"s_lshl_b32 s{sA}, s{sA}, 11")
    A(f"s_add_u32 s{sA}, s{sA}, {hex(W_O)}")
    A(f"buffer_store_dwordx4 v[28:31], v10, s[{SWS}:{SWS+3}], s{sA} offen sc1")
    A(f"buffer_store_dwordx4 v[28:31], v10, s[{SWS}:{SWS+3}], s{sA} offen offset:1024 sc1")
    A(f"s_lshl_b32 s{sA}, s{S_KVH}, 5")
    A(f"s_add_u32 s{sA}, s{sA}, s{S_J}")
    A(f"s_lshl_b32 s{sA}, s{sA}, 10")
    A(f"s_add_u32 s{sA}, s{sA}, {hex(W_Y)}")
    A(f"s_add_u32 s{sB2}, s{sA}, 0x40000")
    A(f"buffer_store_dwordx4 v[28:31], v10, s[{SWS}:{SWS+3}], s{sA} offen sc1")
    A(f"buffer_store_dwordx4 v[28:31], v10, s[{SWS}:{SWS+3}], s{sB2} offen sc1")

    def ml_soff(dst, tmp):
        A(f"s_lshl_b32 s{dst}, s{S_KVH}, 10")
        A(f"s_lshl_b32 s{tmp}, s{S_B}, 7")
        A(f"s_add_u32 s{dst}, s{dst}, s{tmp}")
        A(f"s_and_b32 s{tmp}, s{S_S}, 7")
        A(f"s_lshl_b32 s{tmp}, s{tmp}, 4")
        A(f"s_add_u32 s{dst}, s{dst}, s{tmp}")
        A(f"s_lshr_b32 s{tmp}, s{S_S}, 3")
        A(f"s_lshl_b32 s{tmp}, s{tmp}, 3")
        A(f"s_add_u32 s{dst}, s{dst}, s{tmp}")
        A(f"s_add_u32 s{dst}, s{dst}, {hex(W_ML)}")
    ml_soff(sA, sB2)
    A("v_lshlrev_b32 v15, 8, v0")
    A("s_mov_b64 exec, 0xf")
    A(f"buffer_store_dwordx2 v[28:29], v15, s[{SWS}:{SWS+3}], s{sA} offen sc1")
    A("s_mov_b64 exec, -1")
    stamp(1)
    A("s_waitcnt vmcnt(21)")
    stamp(2)
    A(f"v_readfirstlane_b32 s{sTag}, v24")
    XF = 32
    for b in range(2):
        for i in range(4):
            A(f"v_lshlrev_b32 v{XF+8*b+2*i}, 16, v{16+4*b+i}")
            A(f"v_and_b32 v{XF+8*b+2*i+1}, 0xffff0000, v{16+4*b+i}")
    A(f"s_mul_i32 s{sTag}, s{sTag}, 1664525")
    A(f"s_add_u32 s{sTag}, s{sTag}, 1013904223")

    def allreduce(regs, op, tmps, steps=("x1", "x2", "hm", "m", "p16", "p32")):
        dpp = {"x1": "quad_perm:[1,0,3,2]", "x2": "quad_perm:[2,3,0,1]", "hm": "row_half_mirror", "m": "row_mirror",
               "r4": "row_ror:4", "r8": "row_ror:8"}
        for st in steps:
            if st in dpp:
                nop(max(0, 3 - len(regs)))
                for r in regs:
                    A(f"{op}_dpp v{r}, v{r}, v{r} {dpp[st]} row_mask:0xf bank_mask:0xf")
            else:
                ins = "v_permlane16_swap_b32" if st == "p16" else "v_permlane32_swap_b32"
                for r, t in zip(regs, tmps):
                    A(f"v_mov_b32 v{t}, v{r}")
                nop(max(0, 3 - len(regs)))
                for r, t in zip(regs, tmps):
                    A(f"{ins} v{r}, v{t}")
                nop(1)
                for r, t in zip(regs, tmps):
                    A(f"{op} v{r}, v{r}, v{t}")

    for b in range(2):
        A(f"v_add_f32 v{48+b}, v{XF+8*b}, v{XF+8*b+1}")
        for i in range(2, 8):
            A(f"v_add_f32 v{48+b}, v{48+b}, v{XF+8*b+i}")
    allreduce([48, 49], "v_add_f32", [50, 51])
    for b in range(2):
        A(f"v_mul_f32 v{48+b}, 0x3b000000, v{48+b}")
    for b in range(2):
        A(f"v_sub_f32 v52, v{XF+8*b}, v{48+b}")
        A(f"v_mul_f32 v{54+b}, v52, v52")
        for i in range(1, 8):
            A(f"v_sub_f32 v52, v{XF+8*b+i}, v{48+b}")
            A(f"v_fmac_f32 v{54+b}, v52, v52")
    allreduce([54, 55], "v_add_f32", [50, 51])
    for b in range(2):
        A(f"v_mul_f32 v{54+b}, 0x3b000000, v{54+b}")
    A("v_cvt_pk_bf16_f32 v50, v48, v49")
    A("v_cvt_pk_bf16_f32 v51, v54, v55")
    A("v_lshlrev_b32 v48, 16, v50"); A("v_and_b32 v49, 0xffff0000, v50")
    A("v_lshlrev_b32 v54, 16, v51"); A("v_and_b32 v55, 0xffff0000, v51")
    A("v_add_f32 v54, 0x3727c5ac, v54"); A("v_add_f32 v55, 0x3727c5ac, v55")
    A("v_cvt_pk_bf16_f32 v51, v54, v55")
    A("v_lshlrev_b32 v54, 16, v51"); A("v_and_b32 v55, 0xffff0000, v51")
    A("v_sqrt_f32 v54, v54"); A("v_sqrt_f32 v55, v55")
    nop(1)
    A("v_cvt_pk_bf16_f32 v51, v54, v55")
    A("v_lshlrev_b32 v54, 16, v51"); A("v_and_b32 v55, 0xffff0000, v51")
    A("v_rcp_f32 v54, v54"); A("v_rcp_f32 v55, v55")
    for b in range(2):
        for i in range(8):
            A(f"v_sub_f32 v{XF+8*b+i}, v{XF+8*b+i}, v{48+b}")
        for i in range(4):
            A(f"v_cvt_pk_bf16_f32 v{56+i}, v{XF+8*b+2*i}, v{XF+8*b+2*i+1}")
        for i in range(4):
            A(f"v_lshlrev_b32 v{XF+8*b+2*i}, 16, v{56+i}")
            A(f"v_and_b32 v{XF+8*b+2*i+1}, 0xffff0000, v{56+i}")
        for i in range(8):
            A(f"v_mul_f32 v{XF+8*b+i}, v{XF+8*b+i}, v{54+b}")
        for i in range(4):
            A(f"v_cvt_pk_bf16_f32 v{16+4*b+i}, v{XF+8*b+2*i}, v{XF+8*b+2*i+1}")
    A(f"v_add_u32 v25, {hex(L_XN)}, v10")
    A("ds_write_b128 v25, v[16:19]")
    A("ds_write_b128 v25, v[20:23] offset:1024")
    A("v_bfe_u32 v26, v0, 3, 1")
    A("v_lshlrev_b32 v26, 10, v26")
    A("v_lshl_add_u32 v26, v1, 3, v26")
    A(f"v_add_u32 v26, {hex(L_XN)}, v26")
    A("s_waitcnt lgkmcnt(0)")
    for s in range(16):
        A(f"ds_read2_b64 v[{XB+4*s}:{XB+4*s+3}], v26 offset0:{8*s} offset1:{8*s+4}")
        if s % 8 == 7:
            A("s_waitcnt lgkmcnt(0)")
    A("v_lshlrev_b32 v27, 3, v0")
    A(f"v_add_u32 v27, {hex(L_TILE)}, v27")

    def gemv(D):
        TF = 128
        for h in range(2):
            for s in range(8):
                ss = 8 * h + s
                A(f"ds_read_b64_tr_b16 v[{TF+4*s}:{TF+4*s+1}], v27 offset:{ss*1024}")
                A(f"ds_read_b64_tr_b16 v[{TF+4*s+2}:{TF+4*s+3}], v27 offset:{ss*1024+512}")
                if s == 6:
                    A("s_waitcnt lgkmcnt(6)")
            A("s_waitcnt lgkmcnt(0)")
            for s in range(8):
                ss = 8 * h + s
                c = "0" if ss == 0 else f"v[{D}:{D+3}]"
                A(f"v_mfma_f32_16x16x32_bf16 v[{D}:{D+3}], v[{TF+4*s}:{TF+4*s+3}], v[{XB+4*ss}:{XB+4*ss+3}], {c}")
        nop(8)

    stamp(3)
    A("s_waitcnt vmcnt(0)")
    stamp(4)
    gemv(32)
    A("v_cvt_pk_bf16_f32 v36, v32, v33")
    A(f"v_mov_b32 v37, s{sTag}")
    A("v_cvt_pk_bf16_f32 v38, v34, v35")
    A(f"v_mov_b32 v39, s{sTag}")
    A("v_bfe_u32 v40, v0, 3, 1")
    A("v_lshlrev_b32 v40, 14, v40")
    A("v_lshl_add_u32 v40, v1, 4, v40")
    A(f"s_lshl_b32 s{sA}, s{S_KVH}, 5")
    A(f"s_add_u32 s{sA}, s{sA}, s{S_J}")
    A(f"s_lshl_b32 s{sA}, s{sA}, 6")
    A(f"s_add_u32 s{sA}, s{sA}, {hex(W_Q)}")
    A("s_mov_b32 exec_lo, 0x01010101"); A("s_mov_b32 exec_hi, 0x01010101")
    A(f"buffer_store_dwordx4 v[36:39], v40, s[{SWS}:{SWS+3}], s{sA} offen sc1")
    A("s_mov_b64 exec, -1")
    stamp(5)
    A(f"s_lshl_b32 s{sA}, s{S_B}, 3")
    A(f"s_add_u32 s{sA}, s{sA}, s{S_KVH}")
    A(f"s_lshl_b32 s{sA}, s{sA}, 11")
    A(f"s_add_u32 s{sA}, s{sA}, {hex(W_Q)}")
    A("v_lshlrev_b32 v41, 5, v0")
    lq = lab("qpoll")
    A(f"{lq}:")
    A(f"buffer_load_dwordx4 v[44:47], v41, s[{SWS}:{SWS+3}], s{sA} offen sc1")
    A(f"buffer_load_dwordx4 v[48:51], v41, s[{SWS}:{SWS+3}], s{sA} offen offset:16 sc1")
    spin_guard()
    A("s_waitcnt vmcnt(0)")
    A(f"v_cmp_ne_u32 vcc, s{sTag}, v45")
    A(f"v_cmp_ne_u32 s[68:69], s{sTag}, v47")
    A(f"v_cmp_ne_u32 s[70:71], s{sTag}, v49")
    A(f"v_cmp_ne_u32 s[72:73], s{sTag}, v51")
    A("s_or_b64 s[68:69], s[68:69], vcc")
    A("s_or_b64 s[70:71], s[70:71], s[72:73]")
    A("s_or_b64 s[68:69], s[68:69], s[70:71]")
    A(f"s_cbranch_scc1 {lq}")
    A("v_mov_b32 v45, v46"); A("v_mov_b32 v46, v48"); A("v_mov_b32 v47, v50")
    A(f"v_add_u32 v42, {hex(L_Q)}, v10")
    A("ds_write_b128 v42, v[44:47]")
    A("v_mov_b32 v43, 1")
    A("s_waitcnt lgkmcnt(0)")
    A("s_mov_b64 exec, 1")
    A("ds_write_b32 v8, v43 offset:4")
    A("s_mov_b64 exec, -1")
    stamp(6)
    srd(SG, P_G, 512 * 1792 * 2)
    srd(SU, P_U, 512 * 1792 * 2)
    A("v_mul_u32_u24 v14, 3584, v12")
    A("v_add_u32 v14, v14, v13")
    for R, D in ((SG, 32), (SU, 36)):
        A(f"s_mul_i32 s{sO}, s{S_KVH}, 14")
        A(f"s_add_u32 s{sO}, s{sO}, s{S_RB}")
        A(f"s_lshl_b32 s{sO}, s{sO}, 5")
        A(f"s_cmp_lt_u32 s{S_RB}, 14")
        A(f"s_cselect_b32 s{sO}, s{sO}, 0")
        A(f"s_cselect_b32 s{R+2}, s{R+2}, 0")
        A(f"s_mov_b32 s{sA}, {hex(L_TILE)}")
        lw = lab("ft")
        A(f"{lw}:")
        A(f"s_mov_b32 m0, s{sA}")
        A(f"s_waitcnt vmcnt({AUXNL-1})")
        A(f"buffer_load_dwordx4 v14, s[{R}:{R+3}], s{sO} offen {pW} lds")
        A(f"s_add_u32 s{sA}, s{sA}, 0x400")
        A(f"s_add_u32 s{sO}, s{sO}, {32*3584}")
        A(f"s_cmp_lt_u32 s{sA}, {hex(L_TILE + 0x4000)}")
        A(f"s_cbranch_scc1 {lw}")
        A("s_waitcnt vmcnt(0)")
        gemv(D)
    for r in (32, 34, 36, 38):
        A(f"v_cvt_pk_bf16_f32 v40, v{r}, v{r+1}")
        A(f"v_lshlrev_b32 v{r}, 16, v40")
        A(f"v_and_b32 v{r+1}, 0xffff0000, v40")
    A("s_mov_b32 s68, 0x3d372713")
    A("s_mov_b32 s69, 0xc0135761")
    for i in range(4):
        A(f"v_mul_f32 v{44+i}, v{32+i}, v{32+i}")
        A(f"v_fma_f32 v{44+i}, v{44+i}, s68, 1.0")
        A(f"v_mul_f32 v{44+i}, v{44+i}, v{32+i}")
        A(f"v_mul_f32 v{44+i}, s69, v{44+i}")
        A(f"v_exp_f32 v{44+i}, v{44+i}")
    nop(1)
    for i in range(4):
        A(f"v_add_f32 v{44+i}, 1.0, v{44+i}")
    for i in range(4):
        A(f"v_rcp_f32 v{44+i}, v{44+i}")
    nop(1)
    for i in range(4):
        A(f"v_mul_f32 v{32+i}, v{32+i}, v{44+i}")
    for r in (32, 34):
        A(f"v_cvt_pk_bf16_f32 v40, v{r}, v{r+1}")
        A(f"v_lshlrev_b32 v{r}, 16, v40")
        A(f"v_and_b32 v{r+1}, 0xffff0000, v40")
    for i in range(4):
        A(f"v_mul_f32 v{32+i}, v{32+i}, v{36+i}")
    A("v_cvt_pk_bf16_f32 v40, v32, v33")
    A("v_cvt_pk_bf16_f32 v41, v34, v35")
    A("v_lshlrev_b32 v42, 3, v0")
    A(f"v_add_u32 v42, {hex(L_H)}, v42")
    A("ds_write_b64 v42, v[40:41]")
    A("s_waitcnt lgkmcnt(0)")
    A("s_mov_b64 exec, 1")
    A("ds_write_b32 v8, v43 offset:8")
    A("s_mov_b64 exec, -1")
    stamp(7)
    A("v_lshlrev_b32 v41, 6, v0")
    A(f"s_mov_b32 s{sA}, {hex(W_Q)}")
    A(f"s_mov_b32 s{sB2}, {hex(W_Q + 0x2000)}")
    A("v_add_u32 v42, 0x1000, v41")
    lq = lab("cpoll")
    A(f"{lq}:")
    A(f"buffer_load_dword v44, v41, s[{SWS}:{SWS+3}], s{sA} offen offset:4 sc1")
    A(f"buffer_load_dword v45, v42, s[{SWS}:{SWS+3}], s{sA} offen offset:4 sc1")
    A(f"buffer_load_dword v46, v41, s[{SWS}:{SWS+3}], s{sB2} offen offset:4 sc1")
    A(f"buffer_load_dword v47, v42, s[{SWS}:{SWS+3}], s{sB2} offen offset:4 sc1")
    spin_guard()
    A("s_waitcnt vmcnt(0)")
    A(f"v_cmp_ne_u32 vcc, s{sTag}, v44")
    A(f"v_cmp_ne_u32 s[68:69], s{sTag}, v45")
    A(f"v_cmp_ne_u32 s[70:71], s{sTag}, v46")
    A(f"v_cmp_ne_u32 s[72:73], s{sTag}, v47")
    A("s_or_b64 s[68:69], s[68:69], vcc")
    A("s_or_b64 s[70:71], s[70:71], s[72:73]")
    A("s_or_b64 s[68:69], s[68:69], s[70:71]")
    A(f"s_cbranch_scc1 {lq}")
    srd(SOUT, P_OUT, 2048)
    A(f"s_lshl_b32 s{sO}, s{S_KVH}, 5")
    A(f"s_add_u32 s{sO}, s{sO}, s{S_J}")
    A(f"s_lshl_b32 s{sO}, s{sO}, 3")
    A(f"buffer_load_dwordx2 v[52:53], v11, s[{SX}:{SX+3}], s{sO} offen")
    A(f"s_lshr_b32 s{sA}, s{S_KVH}, 2")
    A(f"s_lshl_b32 s{sA}, s{sA}, 18")
    A(f"s_and_b32 s{sB2}, s{S_KVH}, 3")
    A(f"s_lshl_b32 s{sB2}, s{sB2}, 9")
    A(f"s_add_u32 s{sA}, s{sA}, s{sB2}")
    A(f"s_lshl_b32 s{sB2}, s{S_J}, 4")
    A(f"s_add_u32 s{sA}, s{sA}, s{sB2}")
    A(f"s_add_u32 s{sA}, s{sA}, {hex(W_Y)}")
    A(f"s_add_u32 s{sB2}, s{sA}, 0x20000")
    A("v_lshlrev_b32 v41, 11, v0")
    A("s_waitcnt vmcnt(0)")
    A("v_lshlrev_b32 v56, 16, v52"); A("v_and_b32 v57, 0xffff0000, v52")
    A("v_lshlrev_b32 v58, 16, v53"); A("v_and_b32 v59, 0xffff0000, v53")
    stamp(8)
    lq = lab("endwait")
    A(f"{lq}:")
    A("ds_read_b32 v44, v8")
    spin_guard()
    A("s_waitcnt lgkmcnt(0)")
    A("v_readfirstlane_b32 s68, v44")
    A("s_cmp_ge_i32 s68, 131")
    A(f"s_cbranch_scc0 {lq}")
    stamp(9)
    lq = lab("ypoll")
    A(f"{lq}:")
    A(f"buffer_load_dwordx4 v[44:47], v41, s[{SWS}:{SWS+3}], s{sA} offen sc1")
    A(f"buffer_load_dwordx4 v[48:51], v41, s[{SWS}:{SWS+3}], s{sB2} offen sc1")
    spin_guard()
    A("s_waitcnt vmcnt(0)")
    A("v_max3_u32 v52, v44, v45, v46")
    A("v_max3_u32 v53, v47, v48, v49")
    A("v_max3_u32 v52, v52, v50, v51")
    A("v_max_u32 v52, v52, v53")
    A("v_cmp_eq_u32 vcc, -1, v52")
    A(f"s_cbranch_vccnz {lq}")
    stamp(10)
    for i in range(4):
        A(f"v_add_f32 v{44+i}, v{44+i}, v{48+i}")
    allreduce([44, 45, 46, 47], "v_add_f32", [48, 49, 50, 51])
    for i in range(4):
        A(f"v_add_f32 v{44+i}, v{44+i}, v{56+i}")
    A("v_cvt_pk_bf16_f32 v48, v44, v45")
    A("v_cvt_pk_bf16_f32 v49, v46, v47")
    A("s_mov_b64 exec, 1")
    A(f"buffer_store_dwordx2 v[48:49], v11, s[{SOUT}:{SOUT+3}], s{sO} offen")
    le = lab("noep")
    A("s_cmp_lg_u32 s2, 0")
    A(f"s_cbranch_scc1 {le}")
    A(f"v_mov_b32 v50, s{sTag}")
    A(f"buffer_store_dword v50, v11, s[{SWS}:{SWS+3}], 0 offen sc1")
    A(f"{le}:")
    stamp(11)
    stamp_flush()
    if diag is not None:
        A("s_sub_u32 s88, s88, s90")
        A("s_add_u32 s88, s88, 10000")
        A("L_diag:")
        A("s_memrealtime s[86:87]")
        A("s_waitcnt lgkmcnt(0)")
        A("s_sub_u32 s86, s86, s90")
        A("s_cmp_lt_u32 s86, s88")
        A("s_cbranch_scc1 L_diag")
    role[0] = "cons"
    A("s_endpgm")

    SWS = 48
    sC, sLd, sTg, sL2E, sSc, sA, sB2, sU = 60, 61, 62, 63, 64, 65, 66, 67
    AK, AV, VDN = 2, 6, 9
    S, O, KF, Q, VF, P = 16, 24, 32, 64, 128, 136
    vM, vNM, vL, vT, vT2, vAl = 152, 153, 154, 155, 156, 157
    A("L_cons:")
    A(f"s_sub_u32 s{sC}, s3, 2")
    srd(SWS, P_WS, WS_BYTES)
    A(f"s_mov_b32 s{sL2E}, {hex(LOG2E)}")
    A(f"s_mov_b32 s{sSc}, {hex(SCALE)}")
    A(f"s_mov_b32 s{sLd}, 0")
    A(f"s_lshl_b32 s{sA}, s{sC}, 2")
    A(f"s_add_u32 s{sA}, s{sA}, {hex(L_FLAG + 16)}")
    A(f"v_mov_b32 v{VDN}, s{sA}")
    A("v_and_b32 v10, 15, v0")
    A("v_and_b32 v11, 7, v0")
    A("v_lshlrev_b32 v11, 1, v11")
    A("v_bfe_u32 v12, v0, 3, 1")
    A("v_or_b32 v11, v11, v12")
    A("v_lshlrev_b32 v12, 2, v1")
    A("v_xor_b32 v11, v11, v12")
    A("v_lshlrev_b32 v11, 4, v11")
    A(f"v_lshl_or_b32 v{AK}, v10, 8, v11")
    for s in range(1, 4):
        A(f"v_xor_b32 v{AK+s}, {16*s}, v{AK}")
    A("v_lshrrev_b32 v10, 2, v0")
    A("v_and_b32 v11, 7, v10")
    A("v_lshlrev_b32 v11, 1, v11")
    A("v_lshrrev_b32 v12, 5, v0")
    A("v_or_b32 v11, v11, v12")
    A("v_bfe_u32 v12, v0, 1, 1")
    A("v_xor_b32 v11, v11, v12")
    A("v_lshlrev_b32 v11, 4, v11")
    A("v_lshl_or_b32 v13, v10, 8, v11")
    A("v_and_b32 v12, 1, v0")
    A("v_lshl_or_b32 v13, v12, 3, v13")
    A(f"s_lshl_b32 s{sA}, s{sC}, 6")
    A(f"v_xor_b32 v{AV}, s{sA}, v13")
    A(f"v_xor_b32 v{AV+1}, 32, v{AV}")
    A(f"v_mov_b32 v{vM}, 0xff800000")
    A(f"v_mov_b32 v{vNM}, 0x7f800000")
    A(f"v_mov_b32 v{vL}, 0")
    for i in range(8):
        A(f"v_mov_b32 v{O+i}, 0")
    A("v_and_b32 v160, 3, v0")
    A("v_lshlrev_b32 v160, 9, v160")
    A(f"v_bfe_u32 v{vT2}, v0, 2, 1")
    A(f"v_lshl_or_b32 v160, v{vT2}, 6, v160")
    A("v_lshl_or_b32 v160, v1, 4, v160")
    A(f"s_lshl_b32 s68, s{S_KVH}, 5")
    A(f"s_add_u32 s68, s68, s{S_J}")
    A("s_lshl_b32 s68, s68, 11")
    A(f"s_lshl_b32 s{sA}, s{sC}, 7")
    A(f"s_add_u32 s68, s68, s{sA}")
    A(f"s_add_u32 s68, s68, {hex(W_O)}")
    A("v_and_b32 v161, 15, v0")
    A("v_lshlrev_b32 v161, 4, v161")
    A(f"s_lshl_b32 s69, s{S_KVH}, 2")
    A(f"s_lshr_b32 s{sA}, s{S_RB}, 2")
    A(f"s_add_u32 s69, s69, s{sA}")
    A("s_lshl_b32 s69, s69, 8")
    A(f"s_add_u32 s69, s69, {hex(W_ML)}")
    A("v_and_b32 v162, 7, v0")
    A("v_lshlrev_b32 v162, 11, v162")
    A(f"v_bfe_u32 v{vT}, v0, 3, 1")
    A(f"v_lshl_or_b32 v162, v{vT}, 15, v162")
    A("v_lshl_or_b32 v162, v1, 4, v162")
    A(f"s_lshl_b32 s70, s{S_KVH}, 16")
    A(f"s_lshl_b32 s{sA}, s{S_RB}, 7")
    A(f"s_add_u32 s70, s70, s{sA}")
    A(f"s_add_u32 s70, s70, {hex(W_O)}")
    A("s_add_u32 s71, s70, 0x4000")
    A(f"v_lshlrev_b32 v163, 18, v{vT}")
    A(f"v_lshl_or_b32 v163, v{vT2}, 6, v163")
    A("v_lshl_or_b32 v163, v1, 4, v163")
    A(f"s_lshl_b32 s72, s{S_KVH}, 5")
    A(f"s_add_u32 s72, s72, s{S_J}")
    A("s_lshl_b32 s72, s72, 10")
    A(f"s_lshl_b32 s{sA}, s{sC}, 8")
    A(f"s_add_u32 s72, s72, s{sA}")
    A(f"s_add_u32 s72, s72, {hex(W_Y)}")
    ml_soff(73, sB2)
    A("v_and_b32 v10, 3, v0")
    A("v_lshlrev_b32 v10, 8, v10")
    A("v_lshl_add_u32 v10, v1, 6, v10")
    A(f"v_add_u32 v10, {hex(L_Q)}, v10")
    A("v_bfe_u32 v11, v0, 2, 2")
    stamp(1)
    lq = lab("qw")
    A(f"{lq}:")
    A(f"ds_read_b32 v{vT}, v8 offset:4")
    spin_guard()
    A("s_waitcnt lgkmcnt(0)")
    A(f"v_readfirstlane_b32 s{sA}, v{vT}")
    A(f"s_cmp_eq_u32 s{sA}, 0")
    A(f"s_cbranch_scc1 {lq}")
    for s in range(4):
        A(f"ds_read_b128 v[{KF+4*s}:{KF+4*s+3}], v10 offset:{16*s}")
    A("s_waitcnt lgkmcnt(0)")
    for g in range(4):
        A(f"v_cmp_eq_u32 vcc, {g}, v11")
        nop(2)
        for i in range(16):
            A(f"v_cndmask_b32 v{Q+16*g+i}, 0, v{KF+i}, vcc")
    A(f"s_mov_b32 s{sTg}, 0")
    stamp(2)

    def wait_landed(tgt):
        lo, ls = lab("lo"), lab("ls")
        A(f"s_cmp_ge_i32 s{sLd}, {tgt}")
        A(f"s_cbranch_scc1 {lo}")
        A(f"{ls}:")
        A(f"ds_read_b32 v{vT}, v8")
        spin_guard()
        A("s_waitcnt lgkmcnt(0)")
        A(f"v_readfirstlane_b32 s{sLd}, v{vT}")
        A(f"s_cmp_ge_i32 s{sLd}, {tgt}")
        A(f"s_cbranch_scc0 {ls}")
        A(f"{lo}:")

    def done():
        A("s_mov_b64 exec, 1")
        A(f"ds_write_b32 v{VDN}, v{vT2}")
        A("s_mov_b64 exec, -1")

    A("L_unit:")
    for g in range(4):
        A(f"s_add_u32 s{sTg}, s{sTg}, 1")
        wait_landed(f"s{sTg}")
        for t in range(2):
            for s in range(4):
                r = KF + 16 * t + 4 * s
                A(f"ds_read_b128 v[{r}:{r+3}], v{AK+s} offset:{g*8192 + t*4096}")
        A(f"v_mov_b32 v{vT2}, s{sTg}")
        for t in range(2):
            A(f"s_waitcnt lgkmcnt({4 if t == 0 else 0})")
            if t == 1:
                done()
            for s in range(4):
                r = KF + 16 * t + 4 * s
                c = "0" if (g == 0 and s == 0) else f"v[{S+4*t}:{S+4*t+3}]"
                q = Q + 16 * g + 4 * s
                A(f"v_mfma_f32_16x16x32_bf16 v[{S+4*t}:{S+4*t+3}], v[{r}:{r+3}], v[{q}:{q+3}], {c}")
    for s in range(4):
        A(f"v_xor_b32 v{AK+s}, 0x10000, v{AK+s}")
    nop(4)

    def round_bf16(base):
        for i in range(4):
            A(f"v_cvt_pk_bf16_f32 v{P+i}, v{base+2*i}, v{base+2*i+1}")
        for i in range(4):
            A(f"v_lshlrev_b32 v{base+2*i}, 16, v{P+i}")
            A(f"v_and_b32 v{base+2*i+1}, 0xffff0000, v{P+i}")
    round_bf16(S)
    for i in range(8):
        A(f"v_mul_f32 v{S+i}, s{sSc}, v{S+i}")
    round_bf16(S)
    A(f"v_max3_f32 v{vM}, v{vM}, v{S}, v{S+1}")
    A(f"v_max3_f32 v{vT}, v{S+2}, v{S+3}, v{S+4}")
    A(f"v_max3_f32 v{vM}, v{vM}, v{S+5}, v{S+6}")
    A(f"v_max3_f32 v{vM}, v{vM}, v{vT}, v{S+7}")
    allreduce([vM], "v_max_f32", [vT], steps=("r4", "r8", "p16", "p32"))
    A(f"v_mul_f32 v{vT}, s{sL2E}, v{vM}")
    A(f"v_sub_f32 v{vAl}, -v{vT}, v{vNM}".replace("v_sub_f32", "v_sub_f32_e64"))
    A(f"v_sub_f32 v{vNM}, 0, v{vT}")
    A(f"v_exp_f32 v{vAl}, v{vAl}")
    for i in range(8):
        A(f"v_fma_f32 v{S+i}, v{S+i}, s{sL2E}, v{vNM}")
    for i in range(8):
        A(f"v_exp_f32 v{S+i}, v{S+i}")
    A(f"v_mul_f32 v{vL}, v{vL}, v{vAl}")
    for i in range(4):
        A(f"v_cvt_pk_bf16_f32 v{P+i}, v{S+2*i}, v{S+2*i+1}")
    for i in range(8):
        A(f"v_mul_f32 v{O+i}, v{O+i}, v{vAl}")
    for g in range(1, 4):
        for i in range(4):
            A(f"v_mov_b32_dpp v{P+4*g+i}, v{P+i} row_ror:{16-4*g} row_mask:0xf bank_mask:0xf")
    for i in range(8):
        A(f"v_add_f32 v{vL}, v{vL}, v{S+i}")
    A(f"s_cmp_eq_u32 s{sTg}, 124")
    A("s_cbranch_scc1 L_pub_ml")
    A("L_pv:")
    for g in range(4):
        A(f"s_add_u32 s{sTg}, s{sTg}, 1")
        wait_landed(f"s{sTg}")
        for tt in range(2):
            for h in range(2):
                r = VF + 4 * tt + 2 * h
                A(f"ds_read_b64_tr_b16 v[{r}:{r+1}], v{AV+tt} offset:{0x8000 + g*8192 + h*4096}")
        A(f"v_mov_b32 v{vT2}, s{sTg}")
        for tt in range(2):
            A(f"s_waitcnt lgkmcnt({2 if tt == 0 else 0})")
            A(f"v_mfma_f32_16x16x32_bf16 v[{O+4*tt}:{O+4*tt+3}], v[{VF+4*tt}:{VF+4*tt+3}], v[{P+4*g}:{P+4*g+3}], v[{O+4*tt}:{O+4*tt+3}]")
        done()
    A(f"v_xor_b32 v{AV}, 0x10000, v{AV}")
    A(f"v_xor_b32 v{AV+1}, 0x10000, v{AV+1}")
    A(f"s_cmp_lt_u32 s{sTg}, 128")
    A("s_cbranch_scc1 L_unit")
    nop(3)
    for i in range(4):
        A(f"v_mov_b32_dpp v{O+i}, v{O+4+i} row_shr:4 row_mask:0xf bank_mask:0x2")
    A("s_mov_b32 exec_lo, 0x00ff00ff"); A("s_mov_b32 exec_hi, 0x00ff00ff")
    A(f"buffer_store_dwordx4 v[{O}:{O+3}], v160, s[{SWS}:{SWS+3}], s68 offen sc1")
    A("s_mov_b64 exec, -1")
    stamp(4)
    lq = lab("mlpoll")
    A(f"{lq}:")
    A(f"buffer_load_dwordx4 v[16:19], v161, s[{SWS}:{SWS+3}], s69 offen sc1")
    spin_guard()
    A("s_waitcnt vmcnt(0)")
    A("v_max3_u32 v20, v16, v17, v18")
    A("v_max_u32 v20, v20, v19")
    A("v_cmp_eq_u32 vcc, -1, v20")
    A(f"s_cbranch_vccnz {lq}")
    stamp(5)
    GO = 32

    def o_loads():
        A(f"buffer_load_dwordx4 v[{GO}:{GO+3}], v162, s[{SWS}:{SWS+3}], s70 offen sc1")
        A(f"buffer_load_dwordx4 v[{GO+4}:{GO+7}], v162, s[{SWS}:{SWS+3}], s70 offen offset:64 sc1")
        A(f"buffer_load_dwordx4 v[{GO+8}:{GO+11}], v162, s[{SWS}:{SWS+3}], s71 offen sc1")
        A(f"buffer_load_dwordx4 v[{GO+12}:{GO+15}], v162, s[{SWS}:{SWS+3}], s71 offen offset:64 sc1")
    o_loads()
    A("v_max_f32 v20, v16, v18")
    allreduce([20], "v_max_f32", [21], steps=("x1", "x2", "hm"))
    A("v_sub_f32 v16, v16, v20")
    A("v_sub_f32 v18, v18, v20")
    A("v_exp_f32 v16, v16")
    A("v_exp_f32 v18, v18")
    nop(1)
    A("v_mul_f32 v21, v16, v17")
    A("v_fmac_f32 v21, v18, v19")
    allreduce([21], "v_add_f32", [22], steps=("x1", "x2", "hm"))
    A("v_rcp_f32 v21, v21")
    nop(1)
    A("v_mul_f32 v16, v16, v21")
    A("v_mul_f32 v18, v18, v21")
    WF, DF, Y = 64, 80, 96
    wait_landed(131)
    A(f"s_and_b32 s{sA}, s{sC}, 1")
    A(f"s_lshl_b32 s{sA}, s{sA}, 7")
    A(f"v_xor_b32 v10, s{sA}, v13")
    A(f"s_lshr_b32 s{sA}, s{sC}, 1")
    A(f"s_lshl_b32 s{sB2}, s{sA}, 12")
    A(f"s_add_u32 s{sB2}, s{sB2}, 0x4000")
    A(f"s_lshl_b32 s{sA}, s{sA}, 13")
    for tt in range(4):
        A(f"v_xor_b32 v11, {32*tt}, v10")
        A(f"v_add_u32 v12, s{sB2}, v11")
        A(f"v_add_u32 v11, s{sA}, v11")
        A(f"ds_read_b64_tr_b16 v[{DF+2*tt}:{DF+2*tt+1}], v12")
        A(f"ds_read_b64_tr_b16 v[{WF+4*tt}:{WF+4*tt+1}], v11")
        A(f"ds_read_b64_tr_b16 v[{WF+4*tt+2}:{WF+4*tt+3}], v11 offset:4096")
    lq = lab("hw")
    A(f"{lq}:")
    A(f"ds_read_b32 v{vT}, v8 offset:8")
    spin_guard()
    A("s_waitcnt lgkmcnt(0)")
    A(f"v_readfirstlane_b32 s{sA}, v{vT}")
    A(f"s_cmp_eq_u32 s{sA}, 0")
    A(f"s_cbranch_scc1 {lq}")
    A("v_lshlrev_b32 v11, 3, v0")
    A(f"v_add_u32 v11, {hex(L_H)}, v11")
    A("ds_read_b64 v[88:89], v11")
    A("s_waitcnt lgkmcnt(0)")
    for tt in range(4):
        A(f"v_mfma_f32_16x16x16_bf16 v[{Y+4*tt}:{Y+4*tt+3}], v[{DF+2*tt}:{DF+2*tt+1}], v[88:89], 0")
    stamp(6)
    lq, lq2 = lab("opoll"), lab("ochk")
    A(f"s_branch {lq2}")
    A(f"{lq}:")
    o_loads()
    spin_guard()
    A(f"{lq2}:")
    A("s_waitcnt vmcnt(0)")
    A(f"v_max3_u32 v20, v{GO}, v{GO+1}, v{GO+2}")
    A(f"v_max3_u32 v21, v{GO+3}, v{GO+4}, v{GO+5}")
    A(f"v_max3_u32 v22, v{GO+6}, v{GO+7}, v{GO+8}")
    A(f"v_max3_u32 v20, v20, v{GO+9}, v{GO+10}")
    A(f"v_max3_u32 v21, v21, v{GO+11}, v{GO+12}")
    A(f"v_max3_u32 v22, v22, v{GO+13}, v{GO+14}")
    A(f"v_max3_u32 v20, v20, v21, v{GO+15}")
    A("v_max_u32 v20, v20, v22")
    A("v_cmp_eq_u32 vcc, -1, v20")
    A(f"s_cbranch_vccnz {lq}")
    stamp(7)
    for i in range(8):
        A(f"v_mul_f32 v{GO+i}, v{GO+i}, v16")
    for i in range(8):
        A(f"v_fmac_f32 v{GO+i}, v{GO+8+i}, v18")
    allreduce([GO + i for i in range(8)], "v_add_f32", [], steps=("x1", "x2", "hm"))
    for i in range(4):
        A(f"v_cvt_pk_bf16_f32 v{48+i}, v{GO+2*i}, v{GO+2*i+1}")
    nop(2)
    for tt in range(4):
        A(f"v_mfma_f32_16x16x32_bf16 v[{Y+4*tt}:{Y+4*tt+3}], v[{WF+4*tt}:{WF+4*tt+3}], v[48:51], v[{Y+4*tt}:{Y+4*tt+3}]")
    nop(7)
    for u in range(2):
        if u == 1:
            nop(2)
        for i in range(4):
            A(f"v_mov_b32_dpp v{Y+8*u+i}, v{Y+8*u+4+i} quad_perm:[0,1,2,3] row_mask:0xf bank_mask:0xa")
    A("s_mov_b32 exec_lo, 0x11111111"); A("s_mov_b32 exec_hi, 0x11111111")
    A(f"buffer_store_dwordx4 v[{Y}:{Y+3}], v163, s[{SWS}:{SWS+3}], s72 offen sc1")
    A(f"buffer_store_dwordx4 v[{Y+8}:{Y+11}], v163, s[{SWS}:{SWS+3}], s72 offen offset:128 sc1")
    stamp(8)
    stamp_flush()
    A("s_endpgm")

    A("L_pub_ml:")
    stamp(3)
    A(f"v_mov_b32 v159, v{vL}")
    allreduce([159], "v_add_f32", [vT], steps=("r4", "r8", "p16", "p32"))
    A(f"v_sub_f32 v158, 0, v{vNM}")
    A(f"v_lshlrev_b32 v{vT}, 8, v0")
    A(f"s_lshl_b64 exec, 1, s{sC}")
    A(f"buffer_store_dwordx2 v[158:159], v{vT}, s[{SWS}:{SWS+3}], s73 offen sc1")
    A("s_mov_b64 exec, -1")
    A("s_branch L_pv")

    A("L_abort:")
    A("s_endpgm")
    nv = 208 if stamps else 168
    A('.section .rodata,"a"')
    A(".p2align 6")
    A(f".amdhsa_kernel {KNAME}")
    A(f"  .amdhsa_next_free_vgpr {nv}")
    A("  .amdhsa_next_free_sgpr 102")
    A(f"  .amdhsa_accum_offset {nv}")
    A("  .amdhsa_group_segment_fixed_size 0")
    A("  .amdhsa_kernarg_size 96")
    A("  .amdhsa_user_sgpr_count 2")
    A("  .amdhsa_user_sgpr_kernarg_segment_ptr 1")
    A("  .amdhsa_system_sgpr_workgroup_id_x 1")
    A(".end_amdhsa_kernel")
    out = []
    for ln in L:
        if ln.startswith((";", ".", " ")) or ln.endswith(":") or "\n" in ln:
            out.append(ln)
        else:
            out.append("    " + ln)
    return "\n".join(out) + "\n"


if __name__ == "__main__":
    kw = eval("dict(" + (sys.argv[2] if len(sys.argv) > 2 else "") + ")")
    open(sys.argv[1], "w").write(gen(**kw))
```

```python
import sys
from gen_kernel import HEADER, KNAME

L_TILE = 0x20000
L_DN = 0x24000
L_XN = 0x26000
L_Q = 0x26800
L_H = 0x26C00
L_FLAG = 0x26E00
LDS_BYTES = 0x26E40
W_EPOCH = 0x0
W_CLR = 0x1000
W_ML = 0x4000
W_O = 0x10000
W_Y = 0x90000
W_Q = 0x110000
W_QB = 0x150000
W_STAMP = 0x200000
WS_BYTES = 0x300000

LOG2E = 0x3FB8AA3B
SCALE = 0x3DB504F3
SPIN_MAX = 1 << 22


def gen(NL=20, stamps=False, AUXNL=2, pK="nt", pV="nt", pW="nt", diag=None, TRIG=125, codepf=True, consdry=True, auxdry=False, findry=True, noffn=False, fine=False, fastq=True, fasto=True, QB_EVERY=8, CLR_AT=24):
    L = []
    A = L.append
    uid = [0]
    role = ["pro"]

    def lab(p):
        uid[0] += 1
        return f"L_{p}_{uid[0]}"

    def nop(n):
        while n > 0:
            k = min(n, 16)
            A(f"s_nop {k-1}")
            n -= k

    def srd(r, p, nbytes):
        A(f"s_mov_b32 s{r}, s{p}")
        A(f"s_mov_b32 s{r+1}, s{p+1}")
        A(f"s_mov_b32 s{r+2}, {hex(nbytes)}")
        A(f"s_mov_b32 s{r+3}, 0x20000")

    VST = 200

    def stamp(i):
        if diag is not None and role[0] == "aux" and diag == i:
            A("s_memrealtime s[88:89]")
            A("s_waitcnt lgkmcnt(0)")
        if not stamps:
            return
        A("s_memrealtime s[98:99]")
        A("s_waitcnt lgkmcnt(0)")
        A(f"v_writelane_b32 v{VST}, s98, {i}")

    def stamp_flush():
        if not stamps:
            return
        A("s_mov_b64 exec, -1")
        A(f"s_sub_u32 s97, {hex(SPIN_MAX)}, s15")
        A(f"v_writelane_b32 v{VST}, s97, 16")
        srd(92, P_WS, WS_BYTES)
        A("s_lshl_b32 s97, s2, 3")
        A("s_add_u32 s97, s97, s3")
        A("s_lshl_b32 s97, s97, 8")
        A(f"s_add_u32 s97, s97, {hex(W_STAMP)}")
        A(f"v_lshlrev_b32 v{VST+1}, 2, v0")
        A(f"buffer_store_dword v{VST}, v{VST+1}, s[92:95], s97 offen")
        A("s_waitcnt vmcnt(0)")

    def spin_guard():
        A("s_sub_u32 s15, s15, 1")
        A("s_cbranch_scc1 L_abort")

    def lds_wait(off, thr, vt, st):
        l = lab("w")
        A(f"{l}:")
        A(f"ds_read_b32 v{vt}, v8 offset:{off}")
        spin_guard()
        A("s_waitcnt lgkmcnt(0)")
        A(f"v_readfirstlane_b32 s{st}, v{vt}")
        A(f"s_cmp_ge_i32 s{st}, {thr}")
        A(f"s_cbranch_scc0 {l}")

    def lds_set(addr_v, off, val_v):
        A("s_mov_b64 exec, 1")
        A(f"ds_write_b32 v{addr_v}, v{val_v} offset:{off}")
        A("s_mov_b64 exec, -1")

    def allreduce(regs, op, tmps, steps=("x1", "x2", "hm", "m", "p16", "p32")):
        dpp = {"x1": "quad_perm:[1,0,3,2]", "x2": "quad_perm:[2,3,0,1]", "hm": "row_half_mirror", "m": "row_mirror",
               "r4": "row_ror:4", "r8": "row_ror:8"}
        for st in steps:
            if st in dpp:
                nop(max(0, 3 - len(regs)))
                for r in regs:
                    A(f"{op}_dpp v{r}, v{r}, v{r} {dpp[st]} row_mask:0xf bank_mask:0xf")
            else:
                ins = "v_permlane16_swap_b32" if st == "p16" else "v_permlane32_swap_b32"
                for r, t in zip(regs, tmps):
                    A(f"v_mov_b32 v{t}, v{r}")
                nop(max(0, 3 - len(regs)))
                for r, t in zip(regs, tmps):
                    A(f"{ins} v{r}, v{t}")
                nop(1)
                for r, t in zip(regs, tmps):
                    A(f"{op} v{r}, v{r}, v{t}")

    def make_tag(s, v):
        A(f"v_readfirstlane_b32 s{s}, v{v}")
        A(f"s_mul_i32 s{s}, s{s}, 1664525")
        A(f"s_add_u32 s{s}, s{s}, 1013904223")

    def ml_soff(dst, tmp):
        A(f"s_lshl_b32 s{dst}, s{S_KVH}, 10")
        A(f"s_lshl_b32 s{tmp}, s{S_B}, 7")
        A(f"s_add_u32 s{dst}, s{dst}, s{tmp}")
        A(f"s_and_b32 s{tmp}, s{S_S}, 7")
        A(f"s_lshl_b32 s{tmp}, s{tmp}, 4")
        A(f"s_add_u32 s{dst}, s{dst}, s{tmp}")
        A(f"s_lshr_b32 s{tmp}, s{S_S}, 3")
        A(f"s_lshl_b32 s{tmp}, s{tmp}, 3")
        A(f"s_add_u32 s{dst}, s{dst}, s{tmp}")
        A(f"s_add_u32 s{dst}, s{dst}, {hex(W_ML)}")

    def vaddr_T0(dst, t1, t2, t3):
        A(f"v_lshrrev_b32 v{t1}, 2, v0")
        A(f"v_and_b32 v{t2}, 7, v{t1}")
        A(f"v_lshlrev_b32 v{t2}, 1, v{t2}")
        A(f"v_lshrrev_b32 v{t3}, 5, v0")
        A(f"v_or_b32 v{t2}, v{t2}, v{t3}")
        A(f"v_bfe_u32 v{t3}, v0, 1, 1")
        A(f"v_xor_b32 v{t2}, v{t2}, v{t3}")
        A(f"v_lshlrev_b32 v{t2}, 4, v{t2}")
        A(f"v_lshl_or_b32 v{dst}, v{t1}, 8, v{t2}")
        A(f"v_and_b32 v{t3}, 1, v0")
        A(f"v_lshl_or_b32 v{dst}, v{t3}, 3, v{dst}")

    P_X, P_K, P_V, P_WQ, P_WO, P_BX, P_G, P_U, P_D, P_OUT, P_DBG, P_WS = range(16, 40, 2)
    S_KVH, S_J, S_B, S_S, S_RB, S_CH, S_W = 4, 5, 6, 7, 8, 9, 10

    A(HEADER)
    A(f"; @launch grid=(256,1,1) block=(512,1,1) lds={LDS_BYTES}")
    A('.amdgcn_target "amdgcn-amd-amdhsa--gfx950"')
    A(".text")
    A(f".globl {KNAME}")
    A(".p2align 8")
    A(f".type {KNAME},@function")
    A(f"{KNAME}:")
    A("s_cmp_ge_u32 s2, 256")
    A("s_cbranch_scc1 L_abort")
    A("s_load_dwordx16 s[16:31], s[0:1], 0")
    A("s_load_dwordx8 s[32:39], s[0:1], 64")
    if stamps:
        A("s_memrealtime s[98:99]")
        A(f"v_mov_b32 v{VST}, 0")
    if diag is not None:
        A("s_memrealtime s[90:91]")
    if codepf:
        A("s_getpc_b64 s[80:81]")
        A("s_lshr_b32 s5, s2, 3")
        A("s_lshl_b32 s5, s5, 9")
        A("v_subrev_u32 v2, 448, v0")
        A("v_cmp_gt_u32 vcc, 4, v2")
        A("v_lshl_add_u32 v2, v2, 7, s5")
        A(f"v_min_u32 v2, L_end-{KNAME}-64, v2")
        A("s_and_b64 exec, exec, vcc")
        A("s_cbranch_execz L_nopf")
        A("global_load_dword v165, v2, s[80:81]")
        A("L_nopf:")
        A("s_mov_b64 exec, -1")
    A("v_lshrrev_b32 v1, 6, v0")
    A("v_and_b32 v0, 63, v0")
    A("v_readfirstlane_b32 s3, v1")
    A(f"v_mov_b32 v8, {hex(L_FLAG)}")
    A("v_lshl_add_u32 v9, v0, 2, v8")
    A("v_mov_b32 v11, 0")
    A("s_mov_b64 exec, 0xffff")
    A("ds_write_b32 v9, v11")
    A("s_mov_b64 exec, -1")
    A(f"s_and_b32 s{S_KVH}, s2, 7")
    A(f"s_lshr_b32 s{S_J}, s2, 3")
    A(f"s_lshr_b32 s{S_B}, s{S_J}, 4")
    A(f"s_and_b32 s{S_S}, s{S_J}, 15")
    A(f"s_lshr_b32 s{S_RB}, s{S_J}, 1")
    A(f"s_and_b32 s{S_CH}, s{S_J}, 1")
    A(f"s_lshl_b32 s{S_W}, s{S_KVH}, 5")
    A(f"s_add_u32 s{S_W}, s{S_W}, s{S_J}")
    A(f"s_mov_b32 s15, {hex(SPIN_MAX)}")
    A("v_lshrrev_b32 v1, 4, v0")
    A("v_and_b32 v2, 15, v0")
    A("v_lshlrev_b32 v3, 1, v1")
    A("v_xor_b32 v2, v2, v3")
    A("v_lshlrev_b32 v2, 4, v2")
    A("v_lshl_or_b32 v4, v1, 8, v2")
    A("v_xor_b32 v5, 0x80, v4")
    A("v_xor_b32 v6, 16, v4")
    A("v_xor_b32 v7, 0x90, v4")
    A("v_lshlrev_b32 v10, 4, v0")
    sKo, sVo, sN, sL, sT = 60, 61, 62, 63, 66
    A(f"s_lshl_b32 s{sKo}, s{S_B}, 3")
    A(f"s_add_u32 s{sKo}, s{sKo}, s{S_KVH}")
    A(f"s_lshl_b32 s{sKo}, s{sKo}, 4")
    A(f"s_add_u32 s{sKo}, s{sKo}, s{S_S}")
    A(f"s_lshl_b32 s{sKo}, s{sKo}, 19")
    A("s_mov_b32 s42, 0x8000000")
    A("s_mov_b32 s43, 0x20000")
    A("s_waitcnt lgkmcnt(0)")
    if stamps:
        A(f"v_writelane_b32 v{VST}, s98, 0")
    if fine: stamp(12)
    A("s_barrier")
    if fine: stamp(13)
    A("s_cmp_eq_u32 s3, 1")
    A("s_cbranch_scc1 L_aux")
    A("s_cmp_lg_u32 s3, 0")
    A("s_cbranch_scc1 L_other")

    role[0] = "ld"
    SK, SV = 40, 44
    A("s_setprio 3")
    A(f"s_mov_b32 s{SK}, s{P_K}")
    A(f"s_mov_b32 s{SK+1}, s{P_K+1}")
    srd(SV, P_V, 0x8000000)
    A(f"s_mov_b32 s{sVo}, s{sKo}")
    A(f"s_mov_b32 s{sN}, 0")
    A(f"s_mov_b32 s{sL}, 0")
    A("v_mov_b32 v16, 0"); A("v_mov_b32 v17, 0"); A("v_mov_b32 v18, 0"); A("v_mov_b32 v19, 0")
    if fine: stamp(14)
    pub_i = (NL - 1) % 8
    pub_d = (pub_i - NL + 1) // 8

    def publish(sg):
        A(f"v_mov_b32 v21, {sg}")
        lds_set(8, 0, 21)

    def slot(R, so, pol):
        lc, lo = lab("chk"), lab("ok")
        A(f"{lc}:")
        A("s_waitcnt lgkmcnt(0)")
        A("v_min3_i32 v20, v16, v17, v18")
        A("v_min_i32 v20, v20, v19")
        A(f"s_mov_b32 m0, s{sL}")
        A(f"v_readfirstlane_b32 s{sT}, v20")
        A("ds_read_b128 v[16:19], v8 offset:16")
        A(f"s_add_u32 s{sT}, s{sT}, 16")
        A(f"s_cmp_lt_i32 s{sN}, s{sT}")
        A(f"s_cbranch_scc1 {lo}")
        spin_guard()
        A(f"s_branch {lc}")
        A(f"{lo}:")
        for i in range(8):
            if i == 4:
                A(f"s_add_u32 m0, s{sL}, 0x1000")
                A(f"s_add_u32 s{so}, s{so}, 0x1000")
            A(f"s_waitcnt vmcnt({NL-1})")
            A(f"buffer_load_dwordx4 v{4+(i&3)}, s[{R}:{R+3}], s{so} offen offset:{(i&3)*1024} {pol} lds")
            if i == pub_i:
                A(f"s_add_i32 s{sT}, s{sN}, {pub_d}")
                publish(f"s{sT}")
        A(f"s_add_u32 s{so}, s{so}, 0x1000")
        A(f"s_add_u32 s{sN}, s{sN}, 1")
        A(f"s_add_u32 s{sL}, s{sL}, 0x2000")
        A(f"s_and_b32 s{sL}, s{sL}, 0x1ffff")

    A("L_ld_k:")
    slot(SK, sKo, pK)
    if stamps:
        l = lab("st")
        A(f"s_cmp_lg_u32 s{sN}, 1"); A(f"s_cbranch_scc1 {l}"); stamp(3); A(f"{l}:")
        l = lab("st")
        A(f"s_cmp_lg_u32 s{sN}, 17"); A(f"s_cbranch_scc1 {l}"); stamp(5); A(f"{l}:")
        l = lab("st")
        A(f"s_cmp_lg_u32 s{sN}, 33"); A(f"s_cbranch_scc1 {l}"); stamp(6); A(f"{l}:")
        l = lab("st")
        A(f"s_cmp_lg_u32 s{sN}, 65"); A(f"s_cbranch_scc1 {l}"); stamp(7); A(f"{l}:")
    A(f"s_and_b32 s{sT}, s{sN}, 3")
    A("s_cbranch_scc1 L_ld_k")
    A("L_ld_v:")
    slot(SV, sVo, pV)
    if stamps:
        l = lab("st")
        A(f"s_cmp_lg_u32 s{sN}, 16"); A(f"s_cbranch_scc1 {l}"); stamp(4); A(f"{l}:")
    A(f"s_and_b32 s{sT}, s{sN}, 3")
    A("s_cbranch_scc1 L_ld_v")
    A(f"s_cmp_lt_u32 s{sN}, 128")
    A("s_cbranch_scc1 L_ld_k")
    stamp(1)
    for x in range(127 + pub_d + 1, 129):
        A(f"v_mov_b32 v21, {x}")
        A("s_mov_b64 exec, 1")
        A(f"s_waitcnt vmcnt({(128 - x) * 8})")
        A("ds_write_b32 v8, v21")
    stamp(2)
    stamp_flush()
    A("s_endpgm")

    role[0] = "aux"
    SWQ, SX, SWS, SG, SU, SOUT = 40, 44, 48, 52, 56, 60
    sO, sTag, sA, sB2, sDry, sThr = 64, 65, 66, 67, 74, 75
    XB = 64
    A("L_aux:")
    if diag is not None:
        A("s_mov_b32 s88, s90")
    A("s_setprio 2")
    srd(SX, P_X, 2048)
    A(f"buffer_load_dwordx4 v[16:19], v10, s[{SX}:{SX+3}], 0 offen")
    A(f"buffer_load_dwordx4 v[20:23], v10, s[{SX}:{SX+3}], 0 offen offset:1024")
    srd(SWQ, P_WQ, 512 * 4096 * 2)
    A("v_lshrrev_b32 v12, 3, v0")
    A("v_and_b32 v13, 7, v0")
    A("v_xor_b32 v13, v13, v3")
    A("v_lshlrev_b32 v13, 4, v13")
    A("v_lshl_or_b32 v14, v12, 13, v13")
    A(f"s_lshr_b32 s{sB2}, s{S_J}, 3")
    A(f"s_lshl_b32 s{sO}, s{sB2}, 20")
    A(f"s_lshl_b32 s{sA}, s{S_KVH}, 10")
    A(f"s_add_u32 s{sO}, s{sO}, s{sA}")
    A(f"s_and_b32 s{sA}, s{S_J}, 7")
    A(f"s_lshl_b32 s{sA}, s{sA}, 7")
    A(f"s_add_u32 s{sO}, s{sO}, s{sA}")
    A(f"s_mov_b32 s{sA}, {hex(L_TILE)}")
    lw = lab("wq")
    A(f"{lw}:")
    A(f"s_mov_b32 m0, s{sA}")
    A(f"s_add_u32 s{sA}, s{sA}, 0x400")
    A(f"buffer_load_dwordx4 v14, s[{SWQ}:{SWQ+3}], s{sO} offen {pW} lds")
    A(f"s_add_u32 s{sO}, s{sO}, 0x10000")
    A(f"s_cmp_lt_u32 s{sA}, {hex(L_TILE + 0x4000)}")
    A(f"s_cbranch_scc1 {lw}")
    srd(SWS, P_WS, WS_BYTES)
    A(f"buffer_load_dword v24, v11, s[{SWS}:{SWS+3}], 0 offen sc1")
    stamp(1)
    A(f"v_add_u32 v25, {hex(L_XN)}, v10")
    A("v_bfe_u32 v15, v0, 3, 1")
    A("v_lshlrev_b32 v26, 10, v15")
    A("v_lshl_add_u32 v26, v1, 3, v26")
    A(f"v_add_u32 v26, {hex(L_XN)}, v26")
    A(f"s_lshl_b32 s{sA}, s{sB2}, 8")
    A(f"v_add_u32 v28, s{sA}, v26")
    A("v_lshrrev_b32 v29, 2, v0")
    A("v_lshlrev_b32 v29, 7, v29")
    A("v_bfe_u32 v30, v0, 3, 2")
    A("v_lshl_or_b32 v29, v30, 5, v29")
    A("v_and_b32 v30, 3, v0")
    A("v_lshl_or_b32 v29, v30, 3, v29")
    A(f"v_add_u32 v29, {hex(L_TILE)}, v29")
    for T in range(1, 4):
        A(f"v_xor_b32 v{160+T}, {32*T}, v29")
    A("v_mov_b32 v160, v29")
    A("v_lshlrev_b32 v31, 14, v15")
    A("v_bfe_u32 v30, v0, 1, 2")
    A("v_lshl_or_b32 v31, v30, 7, v31")
    A("v_lshl_or_b32 v31, v1, 5, v31")
    A("v_and_b32 v30, 1, v0")
    A("v_lshl_or_b32 v31, v30, 4, v31")
    A(f"s_lshl_b32 s{sO}, s{S_KVH}, 15")
    A(f"s_lshl_b32 s{sA}, s{S_J}, 9")
    A(f"s_add_u32 s{sO}, s{sO}, s{sA}")
    A(f"s_add_u32 s{sO}, s{sO}, {hex(W_Q)}")
    A("s_mov_b32 s68, 0xaaaaaaaa"); A("s_mov_b32 s69, 0xaaaaaaaa")
    A("s_mov_b32 s70, 0xcccccccc"); A("s_mov_b32 s71, 0xcccccccc")
    A("s_mov_b32 s72, 0xf0f0f0f0"); A("s_mov_b32 s73, 0xf0f0f0f0")
    A(f"s_mov_b32 s{sDry}, {1 if auxdry else 0}")
    if auxdry:
        A("s_branch L_ln")
    A("L_ln_real:")
    A("s_waitcnt vmcnt(17)")
    stamp(2)
    A("L_ln:")
    XF = 32
    for b in range(2):
        for i in range(4):
            A(f"v_lshlrev_b32 v{XF+8*b+2*i}, 16, v{16+4*b+i}")
            A(f"v_and_b32 v{XF+8*b+2*i+1}, 0xffff0000, v{16+4*b+i}")
    for b in range(2):
        A(f"v_add_f32 v{48+b}, v{XF+8*b}, v{XF+8*b+1}")
    for i in range(2, 8):
        for b in range(2):
            A(f"v_add_f32 v{48+b}, v{48+b}, v{XF+8*b+i}")
    allreduce([48, 49], "v_add_f32", [50, 51])
    for b in range(2):
        A(f"v_mul_f32 v{48+b}, 0x3b000000, v{48+b}")
    for i in range(8):
        for b in range(2):
            A(f"v_sub_f32 v{52+b}, v{XF+8*b+i}, v{48+b}")
        for b in range(2):
            A(f"{'v_mul_f32' if i == 0 else 'v_fmac_f32'} v{54+b}, v{52+b}, v{52+b}")
    allreduce([54, 55], "v_add_f32", [50, 51])
    for b in range(2):
        A(f"v_mul_f32 v{54+b}, 0x3b000000, v{54+b}")
    A("v_cvt_pk_bf16_f32 v50, v48, v49")
    A("v_cvt_pk_bf16_f32 v51, v54, v55")
    A("v_lshlrev_b32 v48, 16, v50"); A("v_and_b32 v49, 0xffff0000, v50")
    A("v_lshlrev_b32 v54, 16, v51"); A("v_and_b32 v55, 0xffff0000, v51")
    A("v_add_f32 v54, 0x3727c5ac, v54"); A("v_add_f32 v55, 0x3727c5ac, v55")
    A("v_cvt_pk_bf16_f32 v51, v54, v55")
    A("v_lshlrev_b32 v54, 16, v51"); A("v_and_b32 v55, 0xffff0000, v51")
    A("v_sqrt_f32 v54, v54"); A("v_sqrt_f32 v55, v55")
    nop(1)
    A("v_cvt_pk_bf16_f32 v51, v54, v55")
    A("v_lshlrev_b32 v54, 16, v51"); A("v_and_b32 v55, 0xffff0000, v51")
    A("v_rcp_f32 v54, v54"); A("v_rcp_f32 v55, v55")
    for b in range(2):
        for i in range(8):
            A(f"v_sub_f32 v{XF+8*b+i}, v{XF+8*b+i}, v{48+b}")
        for i in range(4):
            A(f"v_cvt_pk_bf16_f32 v{56+4*b+i}, v{XF+8*b+2*i}, v{XF+8*b+2*i+1}")
        for i in range(4):
            A(f"v_lshlrev_b32 v{XF+8*b+2*i}, 16, v{56+4*b+i}")
            A(f"v_and_b32 v{XF+8*b+2*i+1}, 0xffff0000, v{56+4*b+i}")
        for i in range(8):
            A(f"v_mul_f32 v{XF+8*b+i}, v{XF+8*b+i}, v{54+b}")
        for i in range(4):
            A(f"v_cvt_pk_bf16_f32 v{56+4*b+i}, v{XF+8*b+2*i}, v{XF+8*b+2*i+1}")
        A(f"ds_write_b128 v25, v[{56+4*b}:{59+4*b}] offset:{1024*b}")
    A("s_waitcnt lgkmcnt(0)")
    for s in range(4):
        A(f"ds_read2_b64 v[{XB+4*s}:{XB+4*s+3}], v28 offset0:{8*s} offset1:{8*s+4}")
    stamp(3)
    l = lab("nw")
    A(f"s_cmp_lg_u32 s{sDry}, 0")
    A(f"s_cbranch_scc1 {l}")
    A("s_waitcnt vmcnt(0)")
    A(f"{l}:")
    stamp(4)
    TF = 96
    for hf in range(2):
        for s in range(2 * hf, 2 * hf + 2):
            for T in range(4):
                r = TF + 16 * s + 4 * T
                A(f"ds_read_b64_tr_b16 v[{r}:{r+1}], v{160+T} offset:{s*4096}")
                A(f"ds_read_b64_tr_b16 v[{r+2}:{r+3}], v{160+T} offset:{s*4096+2048}")
            if s == 2 * hf:
                A("s_waitcnt lgkmcnt(4)")
        A("s_waitcnt lgkmcnt(0)")
        for s in range(2 * hf, 2 * hf + 2):
            for T in range(4):
                r = TF + 16 * s + 4 * T
                c = "0" if s == 0 else f"v[{32+4*T}:{35+4*T}]"
                A(f"v_mfma_f32_16x16x32_bf16 v[{32+4*T}:{35+4*T}], v[{r}:{r+3}], v[{XB+4*s}:{XB+4*s+3}], {c}")
    make_tag(sTag, 24)
    nop(2)
    for T in range(4):
        A(f"v_cndmask_b32 v{32+4*T}, v{32+4*T}, v{34+4*T}, s[68:69]")
        A(f"v_cndmask_b32 v{33+4*T}, v{33+4*T}, v{35+4*T}, s[68:69]")
    for T in (0, 2):
        A(f"v_cndmask_b32 v{32+4*T}, v{32+4*T}, v{36+4*T}, s[70:71]")
        A(f"v_cndmask_b32 v{33+4*T}, v{33+4*T}, v{37+4*T}, s[70:71]")
    A("v_cndmask_b32 v48, v32, v40, s[72:73]")
    A("v_cndmask_b32 v50, v33, v41, s[72:73]")
    A(f"v_mov_b32 v49, s{sTag}")
    A(f"v_mov_b32 v51, s{sTag}")
    l = lab("real")
    A(f"s_cmp_eq_u32 s{sDry}, 0")
    A(f"s_cbranch_scc1 {l}")
    A(f"s_mov_b32 s{sDry}, 0")
    A("s_branch L_ln_real")
    A(f"{l}:")
    A(f"buffer_store_dwordx4 v[48:51], v31, s[{SWS}:{SWS+3}], s{sO} offen {'' if fastq else 'sc1'}")
    A(f"s_add_u32 s{sO}, s{sO}, {hex(W_QB - W_Q)}")
    A("v_mov_b32 v43, 1")
    lds_set(8, 4, 43)
    if fastq:
        A(f"buffer_store_dwordx4 v[48:51], v31, s[{SWS}:{SWS+3}], s{sO} offen sc1")
    A("s_setprio 0")
    stamp(5)
    for s in range(16):
        A(f"ds_read2_b64 v[{XB+4*s}:{XB+4*s+3}], v26 offset0:{8*s} offset1:{8*s+4}")
        if s % 8 == 7:
            A("s_waitcnt lgkmcnt(0)")
    A("v_lshlrev_b32 v27, 3, v0")
    A(f"v_add_u32 v27, {hex(L_TILE)}, v27")
    srd(SG, P_G, 512 * 1792 * 2)
    srd(SU, P_U, 512 * 1792 * 2)
    A("v_lshrrev_b32 v12, 1, v0")
    A("v_and_b32 v13, 1, v0")
    A("v_lshlrev_b32 v13, 4, v13")
    A("v_mul_u32_u24 v14, 3584, v12")
    A("v_add_u32 v14, v14, v13")
    lds_wait(16, 16, 44, sA)

    def gemv(D):
        TF = 128
        for h in range(2):
            for s in range(8):
                ss = 8 * h + s
                A(f"ds_read_b64_tr_b16 v[{TF+4*s}:{TF+4*s+1}], v27 offset:{ss*1024}")
                A(f"ds_read_b64_tr_b16 v[{TF+4*s+2}:{TF+4*s+3}], v27 offset:{ss*1024+512}")
                if s == 6:
                    A("s_waitcnt lgkmcnt(6)")
            A("s_waitcnt lgkmcnt(0)")
            for s in range(8):
                ss = 8 * h + s
                c = "0" if ss == 0 else f"v[{D}:{D+3}]"
                A(f"v_mfma_f32_16x16x32_bf16 v[{D}:{D+3}], v[{TF+4*s}:{TF+4*s+3}], v[{XB+4*ss}:{XB+4*ss+3}], {c}")
        nop(8)

    stamp(6)
    for R, D in ((SG, 32), (SU, 36)):
        A(f"s_mul_i32 s{sO}, s{S_KVH}, 14")
        A(f"s_add_u32 s{sO}, s{sO}, s{S_RB}")
        A(f"s_lshl_b32 s{sO}, s{sO}, 5")
        A(f"s_cmp_lt_u32 s{S_RB}, 14")
        A(f"s_cselect_b32 s{sO}, s{sO}, 0")
        A(f"s_cselect_b32 s{R+2}, s{R+2}, 0")
        if noffn: A(f"s_mov_b32 s{R+2}, 0")
        A(f"s_mov_b32 s{sA}, {hex(L_TILE)}")
        lw = lab("ft")
        A(f"{lw}:")
        A(f"s_mov_b32 m0, s{sA}")
        A(f"s_waitcnt vmcnt({AUXNL-1})")
        A(f"buffer_load_dwordx4 v14, s[{R}:{R+3}], s{sO} offen {pW} lds")
        A(f"s_add_u32 s{sA}, s{sA}, 0x400")
        A(f"s_add_u32 s{sO}, s{sO}, {32*3584}")
        A(f"s_cmp_lt_u32 s{sA}, {hex(L_TILE + 0x4000)}")
        A(f"s_cbranch_scc1 {lw}")
        A("s_waitcnt vmcnt(0)")
        gemv(D)
    for r in (32, 34, 36, 38):
        A(f"v_cvt_pk_bf16_f32 v40, v{r}, v{r+1}")
        A(f"v_lshlrev_b32 v{r}, 16, v40")
        A(f"v_and_b32 v{r+1}, 0xffff0000, v40")
    A("s_mov_b32 s68, 0x3d372713")
    A("s_mov_b32 s69, 0xc0135761")
    for i in range(4):
        A(f"v_mul_f32 v{44+i}, v{32+i}, v{32+i}")
        A(f"v_fma_f32 v{44+i}, v{44+i}, s68, 1.0")
        A(f"v_mul_f32 v{44+i}, v{44+i}, v{32+i}")
        A(f"v_mul_f32 v{44+i}, s69, v{44+i}")
        A(f"v_exp_f32 v{44+i}, v{44+i}")
    nop(1)
    for i in range(4):
        A(f"v_add_f32 v{44+i}, 1.0, v{44+i}")
    for i in range(4):
        A(f"v_rcp_f32 v{44+i}, v{44+i}")
    nop(1)
    for i in range(4):
        A(f"v_mul_f32 v{32+i}, v{32+i}, v{44+i}")
    for r in (32, 34):
        A(f"v_cvt_pk_bf16_f32 v40, v{r}, v{r+1}")
        A(f"v_lshlrev_b32 v{r}, 16, v40")
        A(f"v_and_b32 v{r+1}, 0xffff0000, v40")
    for i in range(4):
        A(f"v_mul_f32 v{32+i}, v{32+i}, v{36+i}")
    A("v_cvt_pk_bf16_f32 v40, v32, v33")
    A("v_cvt_pk_bf16_f32 v41, v34, v35")
    A("v_lshlrev_b32 v42, 3, v0")
    A(f"v_add_u32 v42, {hex(L_H)}, v42")
    A("ds_write_b64 v42, v[40:41]")
    stamp(7)
    A(f"s_mov_b32 s{sA}, {hex(W_CLR)}")
    lq = lab("cpoll")
    A(f"{lq}:")
    for i in range(4):
        A(f"buffer_load_dwordx4 v[{44+4*i}:{47+4*i}], v10, s[{SWS}:{SWS+3}], s{sA} offen offset:{1024*i} sc1")
    spin_guard()
    A("s_waitcnt vmcnt(0)")
    for i in range(8):
        A(f"v_xor_b32 v{45+2*i}, s{sTag}, v{45+2*i}")
    A("v_or3_b32 v45, v45, v47, v49")
    A("v_or3_b32 v51, v51, v53, v55")
    A("v_or3_b32 v45, v45, v57, v59")
    A("v_or_b32 v45, v45, v51")
    A("v_cmp_ne_u32 vcc, 0, v45")
    A(f"s_cbranch_vccnz {lq}")
    A(f"s_lshl_b32 s{sB2}, s{S_KVH}, 9")
    A(f"s_add_u32 s{sA}, s{sA}, s{sB2}")
    A("v_lshlrev_b32 v44, 3, v0")
    A(f"buffer_load_dword v45, v44, s[{SWS}:{SWS+3}], s{sA} offen sc1")
    A(f"s_getreg_b32 s{sB2}, hwreg(HW_REG_XCC_ID, 0, 4)")
    A("s_waitcnt vmcnt(0) lgkmcnt(0)")
    A(f"v_cmp_ne_u32 vcc, s{sB2}, v45")
    A("s_cmp_eq_u64 vcc, 0")
    A(f"s_cselect_b32 s{sB2}, {2 if fasto else 1}, 1")
    A(f"v_mov_b32 v44, s{sB2}")
    lds_set(8, 8, 44)
    srd(SOUT, P_OUT, 2048)
    A(f"s_lshl_b32 s{sO}, s{S_W}, 3")
    A(f"buffer_load_dwordx2 v[52:53], v11, s[{SX}:{SX+3}], s{sO} offen")
    A(f"s_lshr_b32 s{sA}, s{S_KVH}, 2")
    A(f"s_lshl_b32 s{sA}, s{sA}, 18")
    A(f"s_and_b32 s{sB2}, s{S_KVH}, 3")
    A(f"s_lshl_b32 s{sB2}, s{sB2}, 9")
    A(f"s_add_u32 s{sA}, s{sA}, s{sB2}")
    A(f"s_lshl_b32 s{sB2}, s{S_J}, 4")
    A(f"s_add_u32 s{sA}, s{sA}, s{sB2}")
    A(f"s_add_u32 s{sA}, s{sA}, {hex(W_Y)}")
    A(f"s_add_u32 s{sB2}, s{sA}, 0x20000")
    A("v_lshlrev_b32 v41, 11, v0")
    A("s_waitcnt vmcnt(0)")
    A("v_lshlrev_b32 v56, 16, v52"); A("v_and_b32 v57, 0xffff0000, v52")
    A("v_lshlrev_b32 v58, 16, v53"); A("v_and_b32 v59, 0xffff0000, v53")
    A(f"v_mov_b32 v60, s{sTag}")
    stamp(8)
    A(f"s_mov_b32 s{sThr}, -1")
    A("s_cmp_eq_u32 s2, 0")
    A("s_cselect_b32 s78, 1, 0")
    A("s_mov_b32 s79, 0")
    A("s_mov_b64 vcc, -1")
    if findry:
        A("s_branch L_ypoll")
    A("L_fin_real:")
    A(f"s_mov_b32 s{sThr}, -2")
    A("s_waitcnt vmcnt(0)")
    A("s_mov_b64 exec, -1")
    lds_wait(12, 1, 44, 68)
    A("s_setprio 3")
    A("s_mov_b64 vcc, -1")
    stamp(9)
    A("L_ypoll:")
    A("s_mov_b64 exec, vcc")
    A(f"buffer_load_dwordx4 v[44:47], v41, s[{SWS}:{SWS+3}], s{sA} offen sc1")
    A(f"buffer_load_dwordx4 v[48:51], v41, s[{SWS}:{SWS+3}], s{sB2} offen sc1")
    spin_guard()
    A("s_waitcnt vmcnt(0)")
    A("v_max3_u32 v52, v44, v45, v46")
    A("v_max3_u32 v53, v47, v48, v49")
    A("v_max3_u32 v52, v52, v50, v51")
    A("v_max_u32 v52, v52, v53")
    A(f"v_cmp_lt_u32 vcc, s{sThr}, v52")
    A("s_cbranch_vccnz L_ypoll")
    A("s_mov_b64 exec, -1")
    stamp(10)
    for i in range(4):
        A(f"v_add_f32 v{44+i}, v{44+i}, v{48+i}")
    allreduce([44, 45, 46, 47], "v_add_f32", [48, 49, 50, 51])
    for i in range(4):
        A(f"v_add_f32 v{44+i}, v{44+i}, v{56+i}")
    A("v_cvt_pk_bf16_f32 v48, v44, v45")
    A("v_cvt_pk_bf16_f32 v49, v46, v47")
    A("s_mov_b64 exec, 1")
    A(f"buffer_store_dwordx2 v[48:49], v11, s[{SOUT}:{SOUT+3}], s{sO} offen")
    A(f"s_cmp_eq_u32 s{sThr}, -1")
    A("s_cbranch_scc1 L_fin_real")
    le = lab("noep")
    A("s_mov_b64 exec, s[78:79]")
    A(f"s_cbranch_execz {le}")
    A(f"buffer_store_dword v60, v11, s[{SWS}:{SWS+3}], 0 offen sc1")
    A(f"{le}:")
    stamp(11)
    stamp_flush()
    if diag is not None:
        A("s_sub_u32 s88, s88, s90")
        A("s_add_u32 s88, s88, 10000")
        A("L_diag:")
        A("s_memrealtime s[86:87]")
        A("s_waitcnt lgkmcnt(0)")
        A("s_sub_u32 s86, s86, s90")
        A("s_cmp_lt_u32 s86, s88")
        A("s_cbranch_scc1 L_diag")
    A("s_endpgm")

    role[0] = "cons"
    SWS = 48
    sC, sLd, sTg, sL2E, sSc, sA, sB2, sTag, sLim, sPub = 60, 61, 62, 63, 64, 65, 66, 67, 74, 75
    AK, AV, VDN = 2, 6, 9
    S, O, KF, Q, VF, P = 16, 24, 32, 64, 128, 136
    vM, vNM, vL, vT, vT2, vAl = 152, 153, 154, 155, 156, 157
    A("L_other:")
    srd(SWS, P_WS, WS_BYTES)
    A(f"buffer_load_dword v164, v11, s[{SWS}:{SWS+3}], 0 offen sc1")
    A("s_cmp_ge_u32 s3, 6")
    A("s_cbranch_scc1 L_tail")
    A("s_setprio 1")
    A(f"s_sub_u32 s{sC}, s3, 2")
    A(f"s_lshl_b32 s69, s{S_KVH}, 1")
    A(f"s_add_u32 s69, s69, s{S_B}")
    A("s_lshl_b32 s69, s69, 14")
    A(f"s_lshl_b32 s{sA}, s{sC}, 10")
    A(f"s_add_u32 s69, s69, s{sA}")
    A(f"s_add_u32 s69, s69, {hex(W_Q)}")
    A("s_add_u32 s70, s69, 0x1000")
    A("s_add_u32 s71, s69, 0x2000")
    A("s_add_u32 s72, s69, 0x3000")
    if fastq:
        A("v_lshrrev_b32 v12, 3, v0")
        A("v_and_b32 v13, 7, v0")
        A("v_lshlrev_b32 v13, 7, v13")
        A("v_lshl_or_b32 v12, v12, 12, v13")
        A("s_mov_b64 exec, 0xffffffff")
        A(f"buffer_load_dword v166, v12, s[{SWS}:{SWS+3}], s69 offen sc1")
        A("s_mov_b64 exec, -1")
    A(f"s_mov_b32 s{sL2E}, {hex(LOG2E)}")
    A(f"s_mov_b32 s{sSc}, {hex(SCALE)}")
    A("v_and_b32 v160, 3, v0")
    A("v_lshlrev_b32 v160, 9, v160")
    A(f"v_bfe_u32 v{vT2}, v0, 2, 1")
    A(f"v_lshl_or_b32 v160, v{vT2}, 6, v160")
    A("v_lshl_or_b32 v160, v1, 4, v160")
    A(f"s_lshl_b32 s68, s{S_W}, 11")
    A(f"s_lshl_b32 s{sA}, s{sC}, 7")
    A(f"s_add_u32 s68, s68, s{sA}")
    A(f"s_add_u32 s68, s68, {hex(W_O)}")
    ml_soff(73, sB2)
    A("v_lshlrev_b32 v161, 8, v0")
    A("v_and_b32 v14, 15, v0")
    A("v_and_b32 v12, 7, v0")
    A("v_lshlrev_b32 v12, 1, v12")
    A("v_bfe_u32 v13, v0, 3, 1")
    A("v_or_b32 v12, v12, v13")
    A("v_lshlrev_b32 v13, 2, v1")
    A("v_xor_b32 v12, v12, v13")
    A("v_lshlrev_b32 v12, 4, v12")
    A(f"v_lshl_or_b32 v{AK}, v14, 8, v12")
    for s in range(1, 4):
        A(f"v_xor_b32 v{AK+s}, {16*s}, v{AK}")
    vaddr_T0(13, 12, 14, 15)
    A(f"s_lshl_b32 s{sA}, s{sC}, 6")
    A(f"v_xor_b32 v{AV}, s{sA}, v13")
    A(f"v_xor_b32 v{AV+1}, 32, v{AV}")
    if consdry:
        A(f"v_mov_b32 v{VDN}, {hex(L_FLAG + 48)}")
        A(f"s_mov_b32 s{sLd}, 0x10000")
        A(f"s_mov_b32 s{sTg}, 0")
        A(f"s_mov_b32 s{sLim}, 8")
        A(f"s_mov_b32 s{sPub}, -1")
        A("s_branch L_unit")
        A("L_cons_go:")
        for s in range(4):
            A(f"v_xor_b32 v{AK+s}, 0x10000, v{AK+s}")
        A(f"v_xor_b32 v{AV}, 0x10000, v{AV}")
        A(f"v_xor_b32 v{AV+1}, 0x10000, v{AV+1}")
    A(f"s_mov_b32 s{sLd}, 0")
    A(f"s_mov_b32 s{sTg}, 0")
    A(f"s_mov_b32 s{sLim}, 128")
    A(f"s_mov_b32 s{sPub}, 124")
    A("s_mov_b32 s84, 1")
    A(f"s_lshl_b32 s{sA}, s{sC}, 2")
    A(f"s_add_u32 s{sA}, s{sA}, {hex(L_FLAG + 16)}")
    A(f"v_mov_b32 v{VDN}, s{sA}")
    A(f"v_mov_b32 v{vM}, 0xff800000")
    A(f"v_mov_b32 v{vNM}, 0x7f800000")
    A(f"v_mov_b32 v{vL}, 0")
    for i in range(8):
        A(f"v_mov_b32 v{O+i}, 0")
    A(f"s_lshl_b32 s{sA}, s{sC}, 8")
    A(f"s_add_u32 s{sA}, s{sA}, {hex(L_Q)}")
    A(f"v_lshl_add_u32 v12, v0, 2, s{sA}")
    A("v_and_b32 v14, 3, v0")
    A("v_lshlrev_b32 v14, 8, v14")
    A("v_lshl_add_u32 v14, v1, 6, v14")
    A(f"v_add_u32 v14, {hex(L_Q)}, v14")
    A("s_waitcnt vmcnt(0)")
    make_tag(sTag, 164)
    stamp(1)
    lds_wait(4, 1, vT, sA)
    stamp(5)
    A("s_mov_b64 vcc, -1")
    A(f"s_mov_b32 s{sB2}, 0")
    A("L_qpoll:")
    A("s_mov_b64 exec, vcc")
    A(f"s_add_u32 s{sB2}, s{sB2}, 1")
    A(f"s_and_b32 s{sA}, s{sB2}, {QB_EVERY-1}")
    A(f"s_cselect_b32 s{sA}, 0, {hex(W_QB - W_Q) if fastq else 0}")
    A(f"v_add_u32 v15, s{sA}, v10")
    for kb in range(4):
        A(f"buffer_load_dwordx4 v[{KF+4*kb}:{KF+4*kb+3}], v15, s[{SWS}:{SWS+3}], s{69+kb} offen sc1")
    spin_guard()
    A("s_waitcnt vmcnt(0)")
    for i in range(8):
        A(f"v_xor_b32 v{KF+1+2*i}, s{sTag}, v{KF+1+2*i}")
    A(f"v_or3_b32 v{vT}, v{KF+1}, v{KF+3}, v{KF+5}")
    A(f"v_or3_b32 v{vT2}, v{KF+7}, v{KF+9}, v{KF+11}")
    A(f"v_or3_b32 v{vT}, v{vT}, v{KF+13}, v{KF+15}")
    A(f"v_or_b32 v{vT}, v{vT}, v{vT2}")
    A(f"v_cmp_ne_u32 vcc, 0, v{vT}")
    A("s_cbranch_vccnz L_qpoll")
    A("s_mov_b64 exec, -1")
    stamp(6)
    for kb in range(1, 4):
        A(f"v_add_f32 v{KF}, v{KF}, v{KF+4*kb}")
        A(f"v_add_f32 v{KF+2}, v{KF+2}, v{KF+4*kb+2}")
    A(f"v_cvt_pk_bf16_f32 v{vT}, v{KF}, v{KF+2}")
    A(f"ds_write_b32 v12, v{vT}")
    A(f"v_mov_b32 v{vT2}, 1")
    A("s_waitcnt lgkmcnt(0)")
    lds_set(VDN, 16, vT2)
    A("s_mov_b32 s76, 0x000f000f"); A("s_mov_b32 s77, s76")
    for g in range(1, 4):
        A(f"s_lshl_b64 s[{76+2*g}:{77+2*g}], s[76:77], {4*g}")
    lq = lab("qw")
    A(f"{lq}:")
    A(f"ds_read_b128 v[{S}:{S+3}], v8 offset:32")
    for s in range(4):
        A(f"ds_read_b128 v[{KF+4*s}:{KF+4*s+3}], v14 offset:{16*s}")
    spin_guard()
    A("s_waitcnt lgkmcnt(4)")
    A(f"v_min3_i32 v{vT}, v{S}, v{S+1}, v{S+2}")
    A(f"v_min_i32 v{vT}, v{vT}, v{S+3}")
    A(f"v_cmp_eq_u32 vcc, 0, v{vT}")
    A("s_waitcnt lgkmcnt(0)")
    A(f"s_cbranch_vccnz {lq}")
    for g in range(4):
        for i in range(16):
            A(f"v_cndmask_b32 v{Q+16*g+i}, 0, v{KF+i}, s[{76+2*g}:{77+2*g}]")
    stamp(2)

    def wait_landed(tgt):
        lo, ls = lab("lo"), lab("ls")
        A(f"s_cmp_ge_i32 s{sLd}, {tgt}")
        A(f"s_cbranch_scc1 {lo}")
        A(f"{ls}:")
        A(f"ds_read_b32 v{vT}, v8")
        spin_guard()
        A("s_waitcnt lgkmcnt(0)")
        A(f"v_readfirstlane_b32 s{sLd}, v{vT}")
        A(f"s_cmp_ge_i32 s{sLd}, {tgt}")
        A(f"s_cbranch_scc0 {ls}")
        A(f"{lo}:")

    A("L_unit:")
    for g in range(4):
        A(f"s_add_u32 s{sTg}, s{sTg}, 1")
        wait_landed(f"s{sTg}")
        for t in range(2):
            for s in range(4):
                r = KF + 16 * t + 4 * s
                A(f"ds_read_b128 v[{r}:{r+3}], v{AK+s} offset:{g*8192 + t*4096}")
        A(f"v_mov_b32 v{vT2}, s{sTg}")
        for t in range(2):
            A(f"s_waitcnt lgkmcnt({4 if t == 0 else 0})")
            if t == 1:
                lds_set(VDN, 0, vT2)
            for s in range(4):
                r = KF + 16 * t + 4 * s
                c = "0" if (g == 0 and s == 0) else f"v[{S+4*t}:{S+4*t+3}]"
                q = Q + 16 * g + 4 * s
                A(f"v_mfma_f32_16x16x32_bf16 v[{S+4*t}:{S+4*t+3}], v[{r}:{r+3}], v[{q}:{q+3}], {c}")
    for s in range(4):
        A(f"v_xor_b32 v{AK+s}, 0x10000, v{AK+s}")
    nop(4)

    def round_bf16(base):
        for i in range(4):
            A(f"v_cvt_pk_bf16_f32 v{P+i}, v{base+2*i}, v{base+2*i+1}")
        for i in range(4):
            A(f"v_lshlrev_b32 v{base+2*i}, 16, v{P+i}")
            A(f"v_and_b32 v{base+2*i+1}, 0xffff0000, v{P+i}")
    round_bf16(S)
    for i in range(8):
        A(f"v_mul_f32 v{S+i}, s{sSc}, v{S+i}")
    round_bf16(S)
    A(f"v_max3_f32 v{vM}, v{vM}, v{S}, v{S+1}")
    A(f"v_max3_f32 v{vT}, v{S+2}, v{S+3}, v{S+4}")
    A(f"v_max3_f32 v{vM}, v{vM}, v{S+5}, v{S+6}")
    A(f"v_max3_f32 v{vM}, v{vM}, v{vT}, v{S+7}")
    allreduce([vM], "v_max_f32", [vT], steps=("r4", "r8", "p16", "p32"))
    A(f"v_mul_f32 v{vT}, s{sL2E}, v{vM}")
    A(f"v_sub_f32_e64 v{vAl}, -v{vT}, v{vNM}")
    A(f"v_sub_f32 v{vNM}, 0, v{vT}")
    A(f"v_exp_f32 v{vAl}, v{vAl}")
    for i in range(8):
        A(f"v_fma_f32 v{S+i}, v{S+i}, s{sL2E}, v{vNM}")
    for i in range(8):
        A(f"v_exp_f32 v{S+i}, v{S+i}")
    A(f"v_mul_f32 v{vL}, v{vL}, v{vAl}")
    for i in range(4):
        A(f"v_cvt_pk_bf16_f32 v{P+i}, v{S+2*i}, v{S+2*i+1}")
    for i in range(8):
        A(f"v_mul_f32 v{O+i}, v{O+i}, v{vAl}")
    for g in range(1, 4):
        for i in range(4):
            A(f"v_mov_b32_dpp v{P+4*g+i}, v{P+i} row_ror:{16-4*g} row_mask:0xf bank_mask:0xf")
    for i in range(8):
        A(f"v_add_f32 v{vL}, v{vL}, v{S+i}")
    A(f"s_cmp_lg_u32 s{sTg}, s{sPub}")
    A("s_cbranch_scc1 L_pv")
    stamp(3)
    lds_wait(8, 1, vT, 84)
    A(f"v_mov_b32 v159, v{vL}")
    allreduce([159], "v_add_f32", [vT], steps=("r4", "r8", "p16", "p32"))
    A(f"v_sub_f32 v158, 0, v{vNM}")
    A(f"s_lshl_b64 exec, 1, s{sC}")
    A("s_cmp_eq_u32 s84, 2")
    A("s_cbranch_scc1 L_ml_loc")
    A(f"buffer_store_dwordx2 v[158:159], v161, s[{SWS}:{SWS+3}], s73 offen sc1")
    A("s_branch L_ml_end")
    A("L_ml_loc:")
    A(f"buffer_store_dwordx2 v[158:159], v161, s[{SWS}:{SWS+3}], s73 offen")
    A("L_ml_end:")
    A("s_mov_b64 exec, -1")
    A("L_pv:")
    for g in range(4):
        A(f"s_add_u32 s{sTg}, s{sTg}, 1")
        wait_landed(f"s{sTg}")
        for tt in range(2):
            for h in range(2):
                r = VF + 4 * tt + 2 * h
                A(f"ds_read_b64_tr_b16 v[{r}:{r+1}], v{AV+tt} offset:{0x8000 + g*8192 + h*4096}")
        A(f"v_mov_b32 v{vT2}, s{sTg}")
        for tt in range(2):
            A(f"s_waitcnt lgkmcnt({2 if tt == 0 else 0})")
            A(f"v_mfma_f32_16x16x32_bf16 v[{O+4*tt}:{O+4*tt+3}], v[{VF+4*tt}:{VF+4*tt+3}], v[{P+4*g}:{P+4*g+3}], v[{O+4*tt}:{O+4*tt+3}]")
        lds_set(VDN, 0, vT2)
    A(f"v_xor_b32 v{AV}, 0x10000, v{AV}")
    A(f"v_xor_b32 v{AV+1}, 0x10000, v{AV+1}")
    A(f"s_cmp_lt_u32 s{sTg}, s{sLim}")
    A("s_cbranch_scc1 L_unit")
    if consdry:
        A(f"s_cmp_eq_u32 s{sTg}, 8")
        A("s_cbranch_scc1 L_cons_go")
    else:
        nop(1)
    A("s_cmp_eq_u32 s84, 2")
    for i in range(4):
        A(f"v_mov_b32_dpp v{O+i}, v{O+4+i} row_shr:4 row_mask:0xf bank_mask:0x2")
    A("s_mov_b32 exec_lo, 0x00ff00ff"); A("s_mov_b32 exec_hi, 0x00ff00ff")
    A("s_cbranch_scc0 L_o_far")
    A(f"buffer_store_dwordx4 v[{O}:{O+3}], v160, s[{SWS}:{SWS+3}], s68 offen")
    A("L_o_end:")
    stamp(4)
    stamp_flush()
    A("s_endpgm")
    A("L_o_far:")
    A(f"buffer_store_dwordx4 v[{O}:{O+3}], v160, s[{SWS}:{SWS+3}], s68 offen sc1")
    A("s_branch L_o_end")

    role[0] = "tail"
    SWO, SD = 40, 44
    sTw, sThr, sDry, sA, sB2, sTag, sWo, sDo = 60, 61, 62, 65, 66, 67, 63, 64
    GO, WF, DF, Y = 32, 64, 96, 112
    A("L_tail:")
    A(f"s_sub_u32 s{sTw}, s3, 6")
    srd(SWO, P_WO, 4096 * 512 * 2)
    srd(SD, P_D, 1792 * 512 * 2)
    A("v_lshl_or_b32 v4, v1, 10, v2")
    A("v_xor_b32 v5, 0x80, v4"); A("v_add_u32 v5, 3072, v5")
    A("v_xor_b32 v6, 16, v4"); A("v_add_u32 v6, 6144, v6")
    A("v_xor_b32 v7, 0x90, v4"); A("v_add_u32 v7, 9216, v7")
    A(f"s_lshl_b32 s{sB2}, s{S_CH}, 1")
    A(f"s_add_u32 s{sB2}, s{sB2}, s{sTw}")
    A(f"s_lshl_b32 s{sB2}, s{sB2}, 8")
    A(f"s_lshr_b32 s{sWo}, s{S_W}, 1")
    A(f"s_lshl_b32 s{sWo}, s{sWo}, 15")
    A(f"s_add_u32 s{sWo}, s{sWo}, s{sB2}")
    A(f"s_add_u32 s82, s{sWo}, 0x4000")
    A(f"s_mul_i32 s{sDo}, s{S_KVH}, 14")
    A(f"s_add_u32 s{sDo}, s{sDo}, s{S_RB}")
    A(f"s_lshl_b32 s{sDo}, s{sDo}, 14")
    A(f"s_add_u32 s{sDo}, s{sDo}, s{sB2}")
    A(f"s_cmp_lt_u32 s{S_RB}, 14")
    A(f"s_cselect_b32 s{sDo}, s{sDo}, 0")
    A(f"s_cselect_b32 s{SD+2}, s{SD+2}, 0")
    A(f"s_lshl_b32 s83, s{sTw}, 13")
    A(f"s_add_u32 s83, s83, {hex(L_TILE)}")
    A(f"s_lshl_b32 s84, s{sTw}, 12")
    A(f"s_add_u32 s84, s84, {hex(L_DN)}")
    vaddr_T0(13, 12, 14, 15)
    for T in range(8):
        A(f"v_xor_b32 v12, {32*T}, v13")
        A(f"v_add_u32 v{144+T}, s83, v12")
        A(f"v_add_u32 v{152+T}, s84, v12")
    A("v_lshlrev_b32 v14, 3, v0")
    A(f"v_add_u32 v14, {hex(L_H)}, v14")
    A("v_and_b32 v161, 15, v0")
    A("v_lshlrev_b32 v161, 4, v161")
    A(f"s_lshr_b32 s69, s{S_W}, 3")
    A("s_lshl_b32 s69, s69, 8")
    A(f"s_add_u32 s69, s69, {hex(W_ML)}")
    A("v_and_b32 v162, 7, v0")
    A("v_lshlrev_b32 v162, 11, v162")
    A("v_bfe_u32 v12, v0, 3, 1")
    A("v_lshl_or_b32 v162, v12, 15, v162")
    A("v_lshl_or_b32 v162, v1, 4, v162")
    A(f"s_lshl_b32 s70, s{S_KVH}, 16")
    A(f"s_lshl_b32 s{sA}, s{S_RB}, 7")
    A(f"s_add_u32 s70, s70, s{sA}")
    A(f"s_add_u32 s70, s70, {hex(W_O)}")
    A("s_add_u32 s71, s70, 0x4000")
    A("v_lshlrev_b32 v163, 18, v12")
    A("v_bfe_u32 v12, v0, 2, 1")
    A("v_lshl_or_b32 v163, v12, 6, v163")
    A("v_lshl_or_b32 v163, v1, 4, v163")
    A(f"s_lshl_b32 s72, s{S_W}, 10")
    A(f"s_lshl_b32 s{sA}, s{sTw}, 9")
    A(f"s_add_u32 s72, s72, s{sA}")
    A(f"s_add_u32 s72, s72, {hex(W_Y)}")
    stamp(1)
    lds_wait(16, CLR_AT, 16, sA)
    for r in range(28, 32):
        A(f"v_mov_b32 v{r}, -1")
    A(f"s_lshl_b32 s{sA}, s{S_W}, 1")
    A(f"s_add_u32 s{sA}, s{sA}, s{sTw}")
    A(f"s_lshl_b32 s85, s{sA}, 3")
    A(f"s_add_u32 s85, s85, {hex(W_CLR)}")
    A(f"s_lshl_b32 s{sA}, s{sA}, 10")
    A(f"s_add_u32 s{sA}, s{sA}, {hex(W_O)}")
    A(f"buffer_store_dwordx4 v[28:31], v10, s[{SWS}:{SWS+3}], s{sA} offen sc1")
    ml_soff(sA, sB2)
    A("v_lshlrev_b32 v12, 8, v0")
    A(f"s_lshl_b32 s{sB2}, s{sTw}, 1")
    A(f"s_lshl_b64 exec, 3, s{sB2}")
    A(f"buffer_store_dwordx2 v[28:29], v12, s[{SWS}:{SWS+3}], s{sA} offen sc1")
    A("s_mov_b64 exec, -1")
    A("v_lshrrev_b32 v12, 5, v0")
    A("v_and_b32 v15, 31, v0")
    A("v_lshlrev_b32 v15, 4, v15")
    A("v_lshl_or_b32 v12, v12, 18, v15")
    A(f"buffer_store_dwordx4 v[28:31], v12, s[{SWS}:{SWS+3}], s72 offen sc1")
    A("s_waitcnt vmcnt(0)")
    make_tag(sTag, 164)
    A("s_mov_b64 exec, 1")
    A("s_getreg_b32 s76, hwreg(HW_REG_XCC_ID, 0, 4)")
    A("v_mov_b32 v16, s76")
    A(f"v_mov_b32 v17, s{sTag}")
    A(f"buffer_store_dwordx2 v[16:17], v11, s[{SWS}:{SWS+3}], s85 offen sc1")
    A(f"buffer_load_dword v18, v11, s[{SWO}:{SWO+3}], s{sWo} offen {pW}")
    A(f"buffer_load_dword v19, v11, s[{SD}:{SD+3}], s{sDo} offen {pW}")
    A("s_mov_b64 exec, -1")
    stamp(2)
    lds_wait(8, 1, 20, sA)
    A("s_waitcnt vmcnt(0)")
    A(f"s_mov_b32 s{sDry}, 1")
    A(f"s_mov_b32 s{sThr}, -1")
    A("s_branch L_t_ml")
    A("L_tail_real:")
    A(f"s_mov_b32 s{sDry}, 0")
    A(f"s_mov_b32 s{sThr}, -2")
    stamp(9)
    lds_wait(0, TRIG, 18, sA)
    A("s_setprio 2")
    stamp(3)
    A("s_mov_b32 m0, s83")
    nop(1)
    for i in range(4):
        A(f"buffer_load_dwordx4 v{4+i}, s[{SWO}:{SWO+3}], s{sWo} offen offset:{i*1024} {pW} lds")
    A("s_add_u32 m0, s83, 0x1000")
    nop(1)
    for i in range(4):
        A(f"buffer_load_dwordx4 v{4+i}, s[{SWO}:{SWO+3}], s82 offen offset:{i*1024} {pW} lds")
    A("s_mov_b32 m0, s84")
    nop(1)
    for i in range(4):
        A(f"buffer_load_dwordx4 v{4+i}, s[{SD}:{SD+3}], s{sDo} offen offset:{i*1024} {pW} lds")
    A("L_t_ml:")
    A(f"buffer_load_dwordx4 v[16:19], v161, s[{SWS}:{SWS+3}], s69 offen sc1")
    A("ds_read_b64 v[24:25], v14")
    A("s_waitcnt vmcnt(1)")
    stamp(4)
    for T in range(8):
        A(f"ds_read_b64_tr_b16 v[{DF+2*T}:{DF+2*T+1}], v{152+T}")
    for T in range(3):
        A(f"ds_read_b64_tr_b16 v[{WF+4*T}:{WF+4*T+1}], v{144+T}")
        A(f"ds_read_b64_tr_b16 v[{WF+4*T+2}:{WF+4*T+3}], v{144+T} offset:4096")
    A("s_waitcnt lgkmcnt(5)")
    for T in range(3, 8):
        A(f"ds_read_b64_tr_b16 v[{WF+4*T}:{WF+4*T+1}], v{144+T}")
        A(f"ds_read_b64_tr_b16 v[{WF+4*T+2}:{WF+4*T+3}], v{144+T} offset:4096")
    for T in range(8):
        A(f"v_mfma_f32_16x16x16_bf16 v[{Y+4*T}:{Y+4*T+3}], v[{DF+2*T}:{DF+2*T+1}], v[24:25], 0")
    lq, lq2 = lab("mlpoll"), lab("mlchk")
    A(f"s_branch {lq2}")
    A(f"{lq}:")
    A(f"buffer_load_dwordx4 v[16:19], v161, s[{SWS}:{SWS+3}], s69 offen sc1")
    spin_guard()
    A(f"{lq2}:")
    A("s_waitcnt vmcnt(0)")
    A("v_max3_u32 v20, v16, v17, v18")
    A("v_max_u32 v20, v20, v19")
    A(f"v_cmp_lt_u32 vcc, s{sThr}, v20")
    A(f"s_cbranch_vccnz {lq}")
    stamp(5)

    def o_loads():
        A(f"buffer_load_dwordx4 v[{GO}:{GO+3}], v162, s[{SWS}:{SWS+3}], s70 offen sc1")
        A(f"buffer_load_dwordx4 v[{GO+4}:{GO+7}], v162, s[{SWS}:{SWS+3}], s70 offen offset:64 sc1")
        A(f"buffer_load_dwordx4 v[{GO+8}:{GO+11}], v162, s[{SWS}:{SWS+3}], s71 offen sc1")
        A(f"buffer_load_dwordx4 v[{GO+12}:{GO+15}], v162, s[{SWS}:{SWS+3}], s71 offen offset:64 sc1")
    o_loads()
    A("v_max_f32 v20, v16, v18")
    allreduce([20], "v_max_f32", [21], steps=("x1", "x2", "hm"))
    A("v_sub_f32 v16, v16, v20")
    A("v_sub_f32 v18, v18, v20")
    A("v_exp_f32 v16, v16")
    A("v_exp_f32 v18, v18")
    nop(1)
    A("v_mul_f32 v21, v16, v17")
    A("v_fmac_f32 v21, v18, v19")
    allreduce([21], "v_add_f32", [22], steps=("x1", "x2", "hm"))
    A("v_rcp_f32 v21, v21")
    A("s_waitcnt lgkmcnt(0)")
    A("v_mul_f32 v16, v16, v21")
    A("v_mul_f32 v18, v18, v21")
    stamp(6)
    lq, lq2 = lab("opoll"), lab("ochk")
    A(f"s_branch {lq2}")
    A(f"{lq}:")
    A("s_mov_b64 exec, vcc")
    o_loads()
    spin_guard()
    A(f"{lq2}:")
    A("s_waitcnt vmcnt(0)")
    A(f"v_max3_u32 v20, v{GO}, v{GO+1}, v{GO+2}")
    A(f"v_max3_u32 v21, v{GO+3}, v{GO+4}, v{GO+5}")
    A(f"v_max3_u32 v22, v{GO+6}, v{GO+7}, v{GO+8}")
    A(f"v_max3_u32 v20, v20, v{GO+9}, v{GO+10}")
    A(f"v_max3_u32 v21, v21, v{GO+11}, v{GO+12}")
    A(f"v_max3_u32 v22, v22, v{GO+13}, v{GO+14}")
    A(f"v_max3_u32 v20, v20, v21, v{GO+15}")
    A("v_max_u32 v20, v20, v22")
    A(f"v_cmp_lt_u32 vcc, s{sThr}, v20")
    A(f"s_cbranch_vccnz {lq}")
    A("s_mov_b64 exec, -1")
    stamp(7)
    for i in range(8):
        A(f"v_mul_f32 v{GO+i}, v{GO+i}, v16")
    for i in range(8):
        A(f"v_fmac_f32 v{GO+i}, v{GO+8+i}, v18")
    allreduce([GO + i for i in range(8)], "v_add_f32", [], steps=("x1", "x2", "hm"))
    for i in range(4):
        A(f"v_cvt_pk_bf16_f32 v{48+i}, v{GO+2*i}, v{GO+2*i+1}")
    A(f"s_cmp_lg_u32 s{sDry}, 0")
    A("v_mov_b32 v23, 1")
    for T in range(8):
        A(f"v_mfma_f32_16x16x32_bf16 v[{Y+4*T}:{Y+4*T+3}], v[{WF+4*T}:{WF+4*T+3}], v[48:51], v[{Y+4*T}:{Y+4*T+3}]")
    A("s_cbranch_scc1 L_tail_real")
    A("s_mov_b32 exec_lo, 0x11111111"); A("s_mov_b32 exec_hi, 0x11111111")
    for u in range(4):
        for i in range(4):
            A(f"v_mov_b32_dpp v{Y+8*u+i}, v{Y+8*u+4+i} quad_perm:[0,1,2,3] row_mask:0xf bank_mask:0xa")
        A(f"buffer_store_dwordx4 v[{Y+8*u}:{Y+8*u+3}], v163, s[{SWS}:{SWS+3}], s72 offen offset:{128*u} sc1")
    A("s_mov_b64 exec, 1")
    A("ds_write_b32 v8, v23 offset:12")
    stamp(8)
    stamp_flush()
    A("s_endpgm")

    A("L_abort:")
    A("s_endpgm")
    A("L_end:")
    nv = 208 if stamps else 168
    A('.section .rodata,"a"')
    A(".p2align 6")
    A(f".amdhsa_kernel {KNAME}")
    A(f"  .amdhsa_next_free_vgpr {nv}")
    A("  .amdhsa_next_free_sgpr 102")
    A(f"  .amdhsa_accum_offset {nv}")
    A("  .amdhsa_group_segment_fixed_size 0")
    A("  .amdhsa_kernarg_size 96")
    A("  .amdhsa_user_sgpr_count 2")
    A("  .amdhsa_user_sgpr_kernarg_segment_ptr 1")
    A("  .amdhsa_system_sgpr_workgroup_id_x 1")
    A(".end_amdhsa_kernel")
    out = []
    for ln in L:
        if ln.startswith((";", ".", " ")) or ln.endswith(":") or "\n" in ln:
            out.append(ln)
        else:
            out.append("    " + ln)
    return "\n".join(out) + "\n"


if __name__ == "__main__":
    kw = eval("dict(" + (sys.argv[2] if len(sys.argv) > 2 else "") + ")")
    open(sys.argv[1], "w").write(gen(**kw))
```

```python
import sys
from gen_kernel import HEADER, KNAME

L_TILE = 0x20000
L_XN = 0x24000
L_Q = 0x24800
L_H = 0x24C00
L_FLAG = 0x24E00
F_LANDED, F_QPUB, F_HRDY, F_YDONE, F_DONE, F_QRDY, F_MRDY, F_PRDY, F_TILE = 0, 4, 8, 12, 16, 32, 48, 64, 80
F_BREQ = 84
L_M = L_FLAG + 128
L_L = L_FLAG + 192
LDS_BYTES = 0x24F00
W_EPOCH = 0x0
W_ML = 0x4000
W_O = 0x10000
W_Y = 0x90000
W_Q = 0x110000
W_QB = 0x150000
W_F = 0x190000
W_STAMP = 0x200000
WS_BYTES = 0x300000

LOG2E = 0x3FB8AA3B
SCALE = 0x3DB504F3
SPIN_MAX = 1 << 22


def gen(NL=20, stamps=False, AUXNL=2, pK="nt", pW="nt", diag=None, TRIG=124, codepf=True, findry=True,
        fast=True, QB_EVERY=8, FFN_AT=20, GATH_AT=52, ML_AT=88, noffn=False, taildry=True, nowt=False, yearly=True, nogu=False, pF=None):
    L = []
    A = L.append
    uid = [0]
    role = ["pro"]

    def lab(p):
        uid[0] += 1
        return f"L_{p}_{uid[0]}"

    def nop(n):
        while n > 0:
            k = min(n, 16)
            A(f"s_nop {k-1}")
            n -= k

    def srd(r, p, nbytes):
        A(f"s_mov_b32 s{r}, s{p}")
        A(f"s_mov_b32 s{r+1}, s{p+1}")
        A(f"s_mov_b32 s{r+2}, {hex(nbytes)}")
        A(f"s_mov_b32 s{r+3}, 0x20000")

    VST = 200

    def stamp(i):
        if diag is not None and role[0] == "aux" and diag == i:
            A("s_memrealtime s[88:89]")
            A("s_waitcnt lgkmcnt(0)")
        if not stamps:
            return
        A("s_memrealtime s[98:99]")
        A("s_waitcnt lgkmcnt(0)")
        A(f"v_writelane_b32 v{VST}, s98, {i}")

    def stamp_flush():
        if not stamps:
            return
        A("s_mov_b64 exec, -1")
        A(f"s_sub_u32 s97, {hex(SPIN_MAX)}, s15")
        A(f"v_writelane_b32 v{VST}, s97, 16")
        srd(92, P_WS, WS_BYTES)
        A("s_lshl_b32 s97, s2, 3")
        A("s_add_u32 s97, s97, s3")
        A("s_lshl_b32 s97, s97, 8")
        A(f"s_add_u32 s97, s97, {hex(W_STAMP)}")
        A(f"v_lshlrev_b32 v{VST+1}, 2, v0")
        A(f"buffer_store_dword v{VST}, v{VST+1}, s[92:95], s97 offen")
        A("s_waitcnt vmcnt(0)")

    def spin_guard():
        A("s_sub_u32 s15, s15, 1")
        A("s_cbranch_scc1 L_abort")

    def lds_wait(off, thr, vt, st):
        l = lab("w")
        A(f"{l}:")
        A(f"ds_read_b32 v{vt}, v8 offset:{off}")
        spin_guard()
        A("s_waitcnt lgkmcnt(0)")
        A(f"v_readfirstlane_b32 s{st}, v{vt}")
        A(f"s_cmp_ge_i32 s{st}, {thr}")
        A(f"s_cbranch_scc0 {l}")

    def lds_wait4(off, thr, vq, extra=()):
        l = lab("w4")
        A(f"{l}:")
        A(f"ds_read_b128 v[{vq}:{vq+3}], v8 offset:{off}")
        for e in extra:
            A(e)
        spin_guard()
        A(f"s_waitcnt lgkmcnt({len(extra)})")
        A(f"v_min3_i32 v{vq}, v{vq}, v{vq+1}, v{vq+2}")
        A(f"v_min_i32 v{vq}, v{vq}, v{vq+3}")
        A(f"v_cmp_gt_i32 vcc, {thr}, v{vq}")
        if extra:
            A("s_waitcnt lgkmcnt(0)")
        A(f"s_cbranch_vccnz {l}")

    def lds_set(addr_v, off, val_v):
        A("s_mov_b64 exec, 1")
        A(f"ds_write_b32 v{addr_v}, v{val_v} offset:{off}")
        A("s_mov_b64 exec, -1")

    def allreduce(regs, op, tmps, steps=("x1", "x2", "hm", "m", "p16", "p32")):
        dpp = {"x1": "quad_perm:[1,0,3,2]", "x2": "quad_perm:[2,3,0,1]", "hm": "row_half_mirror", "m": "row_mirror",
               "r4": "row_ror:4", "r8": "row_ror:8"}
        for st in steps:
            if st in dpp:
                nop(max(0, 3 - len(regs)))
                for r in regs:
                    A(f"{op}_dpp v{r}, v{r}, v{r} {dpp[st]} row_mask:0xf bank_mask:0xf")
            else:
                ins = "v_permlane16_swap_b32" if st == "p16" else "v_permlane32_swap_b32"
                for r, t in zip(regs, tmps):
                    A(f"v_mov_b32 v{t}, v{r}")
                nop(max(0, 3 - len(regs)))
                for r, t in zip(regs, tmps):
                    A(f"{ins} v{r}, v{t}")
                nop(1)
                for r, t in zip(regs, tmps):
                    A(f"{op} v{r}, v{r}, v{t}")

    def make_tag(s, v):
        A(f"v_readfirstlane_b32 s{s}, v{v}")
        A(f"s_add_u32 s{s}, s{s}, 0x4d2b7f35")

    def local_tag(dst, tag):
        A(f"s_getreg_b32 s{dst}, hwreg(HW_REG_XCC_ID, 0, 4)")
        A(f"s_mul_i32 s{dst}, s{dst}, 0x10001")
        A(f"s_xor_b32 s{dst}, s{dst}, s{tag}")

    def store_by(sloc, ins):
        l1, l2 = lab("far"), lab("st")
        A(f"s_cmp_eq_u32 s{sloc}, 2")
        A(f"s_cbranch_scc0 {l1}")
        for i in ins:
            A(i)
        A(f"s_branch {l2}")
        A(f"{l1}:")
        for i in ins:
            A(i + " sc1")
        A(f"{l2}:")

    def tag_check(base, n, stag, t1, t2):
        for i in range(n):
            A(f"v_xor_b32 v{base+1+2*i}, s{stag}, v{base+1+2*i}")
        r = [base + 1 + 2 * i for i in range(n)]
        if n == 8:
            A(f"v_or3_b32 v{t1}, v{r[0]}, v{r[1]}, v{r[2]}")
            A(f"v_or3_b32 v{t2}, v{r[3]}, v{r[4]}, v{r[5]}")
            A(f"v_or3_b32 v{t1}, v{t1}, v{r[6]}, v{r[7]}")
            A(f"v_or_b32 v{t1}, v{t1}, v{t2}")
        else:
            A(f"v_or3_b32 v{t1}, v{r[0]}, v{r[1]}, v{r[2]}")
            A(f"v_or_b32 v{t1}, v{t1}, v{r[3]}")
        A(f"v_cmp_ne_u32 vcc, 0, v{t1}")

    def vaddr_T0(dst, t1, t2, t3):
        A(f"v_lshrrev_b32 v{t1}, 2, v0")
        A(f"v_and_b32 v{t2}, 7, v{t1}")
        A(f"v_lshlrev_b32 v{t2}, 1, v{t2}")
        A(f"v_lshrrev_b32 v{t3}, 5, v0")
        A(f"v_or_b32 v{t2}, v{t2}, v{t3}")
        A(f"v_bfe_u32 v{t3}, v0, 1, 1")
        A(f"v_xor_b32 v{t2}, v{t2}, v{t3}")
        A(f"v_lshlrev_b32 v{t2}, 4, v{t2}")
        A(f"v_lshl_or_b32 v{dst}, v{t1}, 8, v{t2}")
        A(f"v_and_b32 v{t3}, 1, v0")
        A(f"v_lshl_or_b32 v{dst}, v{t3}, 3, v{dst}")

    def unpack(dst, src):
        A(f"v_lshlrev_b32 v{dst}, 16, v{src}")
        A(f"v_and_b32 v{dst+1}, 0xffff0000, v{src}")

    P_X, P_K, P_V, P_WQ, P_WO, P_BX, P_G, P_U, P_D, P_OUT, P_DBG, P_WS = range(16, 40, 2)
    S_KVH, S_J, S_B, S_S, S_RB, S_CH, S_W = 4, 5, 6, 7, 8, 9, 10

    A(HEADER)
    A(f"; @launch grid=(256,1,1) block=(512,1,1) lds={LDS_BYTES}")
    A('.amdgcn_target "amdgcn-amd-amdhsa--gfx950"')
    A(".text")
    A(f".globl {KNAME}")
    A(".p2align 8")
    A(f".type {KNAME},@function")
    A(f"{KNAME}:")
    A("s_cmp_ge_u32 s2, 256")
    A("s_cbranch_scc1 L_abort")
    A("s_load_dwordx16 s[16:31], s[0:1], 0")
    A("s_load_dwordx8 s[32:39], s[0:1], 64")
    if stamps:
        A("s_memrealtime s[98:99]")
        A(f"v_mov_b32 v{VST}, 0")
    if diag is not None:
        A("s_memrealtime s[90:91]")
    A(f"s_lshr_b32 s{S_J}, s2, 3")
    if codepf:
        A("s_getpc_b64 s[80:81]")
        A(f"s_lshl_b32 s6, s{S_J}, 9")
        A("v_subrev_u32 v2, 448, v0")
        A("v_cmp_gt_u32 vcc, 4, v2")
        A("v_lshl_add_u32 v2, v2, 7, s6")
        A(f"v_min_u32 v2, L_end-{KNAME}-64, v2")
        A("s_and_b64 exec, exec, vcc")
        A("s_cbranch_execz L_nopf")
        A("global_load_dword v165, v2, s[80:81]")
        A("L_nopf:")
        A("s_mov_b64 exec, -1")
    A("v_lshrrev_b32 v1, 6, v0")
    A("v_and_b32 v0, 63, v0")
    A("v_readfirstlane_b32 s3, v1")
    A(f"v_mov_b32 v8, {hex(L_FLAG)}")
    A("v_lshl_add_u32 v9, v0, 2, v8")
    A("v_mov_b32 v11, 0")
    A("ds_write_b32 v9, v11")
    A(f"s_and_b32 s{S_KVH}, s2, 7")
    A(f"s_lshr_b32 s{S_B}, s{S_J}, 4")
    A(f"s_and_b32 s{S_S}, s{S_J}, 15")
    A(f"s_lshr_b32 s{S_RB}, s{S_J}, 1")
    A(f"s_and_b32 s{S_CH}, s{S_J}, 1")
    A(f"s_lshl_b32 s{S_W}, s{S_KVH}, 5")
    A(f"s_add_u32 s{S_W}, s{S_W}, s{S_J}")
    A(f"s_mov_b32 s15, {hex(SPIN_MAX)}")
    A("v_lshrrev_b32 v1, 4, v0")
    A("v_and_b32 v2, 15, v0")
    A("v_lshlrev_b32 v3, 1, v1")
    A("v_xor_b32 v2, v2, v3")
    A("v_lshlrev_b32 v2, 4, v2")
    A("v_lshl_or_b32 v4, v1, 8, v2")
    A("v_xor_b32 v5, 0x80, v4")
    A("v_xor_b32 v6, 16, v4")
    A("v_xor_b32 v7, 0x90, v4")
    A("v_lshlrev_b32 v10, 4, v0")
    sO1, sO2, sN, sL, sBase, sT = 60, 61, 62, 63, 64, 66
    A(f"s_lshl_b32 s{sBase}, s{S_B}, 3")
    A(f"s_add_u32 s{sBase}, s{sBase}, s{S_KVH}")
    A(f"s_lshl_b32 s{sBase}, s{sBase}, 4")
    A(f"s_add_u32 s{sBase}, s{sBase}, s{S_S}")
    A(f"s_lshl_b32 s{sBase}, s{sBase}, 1")
    A(f"s_add_u32 s{sBase}, s{sBase}, s{S_B}")
    A(f"s_lshl_b32 s{sBase}, s{sBase}, 1")
    A(f"s_bfe_u32 s{sT}, s{S_S}, 0x10002")
    A(f"s_add_u32 s{sBase}, s{sBase}, s{sT}")
    A(f"s_lshl_b32 s{sBase}, s{sBase}, 17")
    A(f"s_mov_b32 s{sO1}, s{sBase}")
    A("s_mov_b32 s42, 0x8000000")
    A("s_mov_b32 s43, 0x20000")
    A(f"s_mov_b32 s{sN}, 0")
    A(f"s_mov_b32 s{sL}, 0")
    A("v_mov_b32 v16, 0"); A("v_mov_b32 v17, 0"); A("v_mov_b32 v18, 0"); A("v_mov_b32 v19, 0")
    A("s_waitcnt lgkmcnt(0)")
    if stamps:
        A(f"v_writelane_b32 v{VST}, s98, 0")
    A("s_barrier")
    A("s_cmp_lg_u32 s3, 0")
    A("s_cbranch_scc1 L_roles")

    role[0] = "ld"
    A("s_setprio 3")
    A(f"s_mov_b64 s[40:41], s[{P_K}:{P_K+1}]")
    pub_i = (NL - 1) % 8
    pub_d = (pub_i - NL + 1) // 8
    A("L_slot:")
    A("s_waitcnt lgkmcnt(0)")
    A("v_min3_i32 v20, v16, v17, v18")
    A("v_min_i32 v20, v20, v19")
    A(f"s_mov_b32 m0, s{sL}")
    A(f"v_readfirstlane_b32 s{sT}, v20")
    A(f"ds_read_b128 v[16:19], v8 offset:{F_DONE}")
    A(f"s_add_u32 s{sT}, s{sT}, 16")
    A(f"s_cmp_lt_i32 s{sN}, s{sT}")
    A("s_cbranch_scc0 L_full")
    extra = {
        0: [f"s_add_u32 s{sO2}, s{sO1}, 0x8000", f"s_add_i32 s{sT}, s{sN}, {pub_d}", f"v_mov_b32 v21, s{sT}"],
        3: [f"s_add_u32 m0, s{sL}, 0x1000"],
        4: [f"s_add_u32 s{sN}, s{sN}, 1", f"s_and_b32 s{sO1}, s{sN}, 7", f"s_lshl_b32 s{sO1}, s{sO1}, 12"],
        5: [f"s_and_b32 s{sT}, s{sN}, 0x38", f"s_lshl_b32 s{sT}, s{sT}, 13", f"s_or_b32 s{sO1}, s{sO1}, s{sT}"],
        6: [f"s_xor_b32 s{sO1}, s{sO1}, s{sBase}", f"s_add_u32 s{sL}, s{sL}, 0x2000", f"s_and_b32 s{sL}, s{sL}, 0x1ffff"],
    }
    for i in range(8):
        A(f"s_waitcnt vmcnt({NL-1})")
        A(f"buffer_load_dwordx4 v{4+(i&3)}, s[40:43], s{sO1 if i < 4 else sO2} offen offset:{(i&3)*1024} {pK} lds")
        for e in extra.get(i, []):
            A(e)
        if i == pub_i:
            lds_set(8, F_LANDED, 21)
    if stamps:
        for n, k in ((1, 3), (16, 4), (32, 5), (64, 6), (96, 7)):
            l = lab("st")
            A(f"s_cmp_lg_u32 s{sN}, {n}"); A(f"s_cbranch_scc1 {l}"); stamp(k); A(f"{l}:")
    A(f"s_and_b32 s{sT}, s{sN}, 63")
    A("s_cbranch_scc1 L_slot")
    A(f"s_mov_b64 s[40:41], s[{P_V}:{P_V+1}]")
    A(f"s_cmp_lt_u32 s{sN}, 128")
    A("s_cbranch_scc1 L_slot")
    stamp(1)
    A("s_mov_b64 exec, 1")
    for x in range(127 + pub_d + 1, 129):
        A(f"v_mov_b32 v21, {x}")
        A(f"s_waitcnt vmcnt({(128 - x) * 8})")
        A(f"ds_write_b32 v8, v21 offset:{F_LANDED}")
    stamp(2)
    stamp_flush()
    A("s_endpgm")
    A("L_full:")
    spin_guard()
    A("s_branch L_slot")

    A("L_roles:")
    A("s_cmp_lg_u32 s3, 1")
    A("s_cbranch_scc1 L_other")
    role[0] = "aux"
    SWQ, SX, SWS, SG, SU, SOUT = 40, 44, 48, 52, 56, 60
    sO, sTag, sA, sB2, sThr, sLoc = 64, 65, 66, 67, 75, 84
    XB, TF = 64, 96
    if diag is not None:
        A("s_mov_b32 s88, s90")
    A("s_setprio 2")
    srd(SX, P_X, 2048)
    A(f"buffer_load_dwordx4 v[16:19], v10, s[{SX}:{SX+3}], 0 offen")
    A(f"buffer_load_dwordx4 v[20:23], v10, s[{SX}:{SX+3}], 0 offen offset:1024")
    srd(SWQ, P_WQ, 512 * 4096 * 2)
    A("v_lshrrev_b32 v12, 3, v0")
    A("v_and_b32 v13, 7, v0")
    A("v_xor_b32 v13, v13, v3")
    A("v_lshlrev_b32 v13, 4, v13")
    A("v_lshl_or_b32 v14, v12, 13, v13")
    A(f"s_lshr_b32 s{sB2}, s{S_J}, 3")
    A(f"s_lshl_b32 s{sO}, s{sB2}, 20")
    A(f"s_lshl_b32 s{sA}, s{S_KVH}, 10")
    A(f"s_add_u32 s{sO}, s{sO}, s{sA}")
    A(f"s_and_b32 s{sA}, s{S_J}, 7")
    A(f"s_lshl_b32 s{sA}, s{sA}, 7")
    A(f"s_add_u32 s{sO}, s{sO}, s{sA}")
    A(f"s_mov_b32 s{sA}, {hex(L_TILE)}")
    lw = lab("wq")
    A(f"{lw}:")
    A(f"s_mov_b32 m0, s{sA}")
    A(f"s_add_u32 s{sA}, s{sA}, 0x400")
    A(f"buffer_load_dwordx4 v14, s[{SWQ}:{SWQ+3}], s{sO} offen {pW} lds")
    A(f"s_add_u32 s{sO}, s{sO}, 0x10000")
    A(f"s_cmp_lt_u32 s{sA}, {hex(L_TILE + 0x4000)}")
    A(f"s_cbranch_scc1 {lw}")
    srd(SWS, P_WS, WS_BYTES)
    A(f"buffer_load_dword v24, v11, s[{SWS}:{SWS+3}], 0 offen sc1")
    stamp(1)
    A(f"v_add_u32 v25, {hex(L_XN)}, v10")
    A("v_bfe_u32 v15, v0, 3, 1")
    A("v_lshlrev_b32 v26, 10, v15")
    A("v_lshl_add_u32 v26, v1, 3, v26")
    A(f"v_add_u32 v26, {hex(L_XN)}, v26")
    A(f"s_lshl_b32 s{sA}, s{sB2}, 8")
    A(f"v_add_u32 v28, s{sA}, v26")
    A(f"s_and_b32 s{sA}, s{S_J}, 7")
    A(f"s_lshl_b32 s{sA}, s{sA}, 7")
    A(f"v_add_u32 v26, s{sA}, v26")
    A("v_lshrrev_b32 v29, 2, v0")
    A("v_lshlrev_b32 v29, 7, v29")
    A("v_bfe_u32 v30, v0, 3, 2")
    A("v_lshl_or_b32 v29, v30, 5, v29")
    A("v_and_b32 v30, 3, v0")
    A("v_lshl_or_b32 v29, v30, 3, v29")
    A(f"v_add_u32 v160, {hex(L_TILE)}, v29")
    for T in range(1, 4):
        A(f"v_xor_b32 v{160+T}, {32*T}, v160")
    A("v_bfe_u32 v30, v0, 1, 2")
    A("v_lshlrev_b32 v27, 7, v30")
    A("v_lshl_or_b32 v27, v1, 5, v27")
    A("v_and_b32 v30, 1, v0")
    A("v_lshl_or_b32 v27, v30, 4, v27")
    A("v_lshl_or_b32 v31, v15, 14, v27")
    A(f"s_lshl_b32 s{sO}, s{S_KVH}, 15")
    A(f"s_lshl_b32 s{sA}, s{S_J}, 9")
    A(f"s_add_u32 s{sO}, s{sO}, s{sA}")
    A(f"s_add_u32 s{sO}, s{sO}, {hex(W_Q)}")
    A("s_mov_b32 s68, 0xaaaaaaaa"); A("s_mov_b32 s69, s68")
    A("s_mov_b32 s70, 0xcccccccc"); A("s_mov_b32 s71, s70")
    A("s_mov_b32 s72, 0xf0f0f0f0"); A("s_mov_b32 s73, s72")
    A("s_waitcnt vmcnt(17)")
    stamp(2)
    XF = 32
    for b in range(2):
        for i in range(4):
            unpack(XF + 8 * b + 2 * i, 16 + 4 * b + i)
    for b in range(2):
        A(f"v_add_f32 v{48+b}, v{XF+8*b}, v{XF+8*b+1}")
    for i in range(2, 8):
        for b in range(2):
            A(f"v_add_f32 v{48+b}, v{48+b}, v{XF+8*b+i}")
    allreduce([48, 49], "v_add_f32", [50, 51])
    for b in range(2):
        A(f"v_mul_f32 v{48+b}, 0x3b000000, v{48+b}")
    for i in range(8):
        for b in range(2):
            A(f"v_sub_f32 v{52+b}, v{XF+8*b+i}, v{48+b}")
        for b in range(2):
            A(f"{'v_mul_f32' if i == 0 else 'v_fmac_f32'} v{54+b}, v{52+b}, v{52+b}")
    allreduce([54, 55], "v_add_f32", [50, 51])
    for b in range(2):
        A(f"v_mul_f32 v{54+b}, 0x3b000000, v{54+b}")
    A("v_cvt_pk_bf16_f32 v50, v48, v49")
    A("v_cvt_pk_bf16_f32 v51, v54, v55")
    unpack(48, 50)
    unpack(54, 51)
    A("v_add_f32 v54, 0x3727c5ac, v54"); A("v_add_f32 v55, 0x3727c5ac, v55")
    A("v_cvt_pk_bf16_f32 v51, v54, v55")
    unpack(54, 51)
    A("v_sqrt_f32 v54, v54"); A("v_sqrt_f32 v55, v55")
    nop(1)
    A("v_cvt_pk_bf16_f32 v51, v54, v55")
    unpack(54, 51)
    A("v_rcp_f32 v54, v54"); A("v_rcp_f32 v55, v55")
    for b in range(2):
        for i in range(8):
            A(f"v_sub_f32 v{XF+8*b+i}, v{XF+8*b+i}, v{48+b}")
        for i in range(4):
            A(f"v_cvt_pk_bf16_f32 v{56+4*b+i}, v{XF+8*b+2*i}, v{XF+8*b+2*i+1}")
        for i in range(4):
            unpack(XF + 8 * b + 2 * i, 56 + 4 * b + i)
        for i in range(8):
            A(f"v_mul_f32 v{XF+8*b+i}, v{XF+8*b+i}, v{54+b}")
        for i in range(4):
            A(f"v_cvt_pk_bf16_f32 v{56+4*b+i}, v{XF+8*b+2*i}, v{XF+8*b+2*i+1}")
        A(f"ds_write_b128 v25, v[{56+4*b}:{59+4*b}] offset:{1024*b}")
    A("s_waitcnt lgkmcnt(0)")
    for s in range(4):
        A(f"ds_read2_b64 v[{XB+4*s}:{XB+4*s+3}], v28 offset0:{8*s} offset1:{8*s+4}")
    stamp(3)
    A("s_waitcnt vmcnt(0)")
    stamp(4)

    def tile_mfma(acc_of, b_of, first):
        for hf in range(2):
            for s in range(2 * hf, 2 * hf + 2):
                for T in range(4):
                    r = TF + 16 * s + 4 * T
                    A(f"ds_read_b64_tr_b16 v[{r}:{r+1}], v{160+T} offset:{s*4096}")
                    A(f"ds_read_b64_tr_b16 v[{r+2}:{r+3}], v{160+T} offset:{s*4096+2048}")
                if s == 2 * hf:
                    A("s_waitcnt lgkmcnt(4)")
            A("s_waitcnt lgkmcnt(0)")
            for s in range(2 * hf, 2 * hf + 2):
                for T in range(4):
                    r = TF + 16 * s + 4 * T
                    d = acc_of(s, T)
                    c = "0" if first(s) else f"v[{d}:{d+3}]"
                    A(f"v_mfma_f32_16x16x32_bf16 v[{d}:{d+3}], v[{r}:{r+3}], v[{b_of(s)}:{b_of(s)+3}], {c}")

    def select_granule(D, out):
        for T in range(4):
            A(f"v_cndmask_b32 v{D+4*T}, v{D+4*T}, v{D+2+4*T}, s[68:69]")
            A(f"v_cndmask_b32 v{D+1+4*T}, v{D+1+4*T}, v{D+3+4*T}, s[68:69]")
        for T in (0, 2):
            A(f"v_cndmask_b32 v{D+4*T}, v{D+4*T}, v{D+4+4*T}, s[70:71]")
            A(f"v_cndmask_b32 v{D+1+4*T}, v{D+1+4*T}, v{D+5+4*T}, s[70:71]")
        A(f"v_cndmask_b32 v{out}, v{D}, v{D+8}, s[72:73]")
        A(f"v_cndmask_b32 v{out+2}, v{D+1}, v{D+9}, s[72:73]")

    tile_mfma(lambda s, T: 32 + 4 * T, lambda s: XB + 4 * s, lambda s: s == 0)
    make_tag(sTag, 24)
    local_tag(sA, sTag)
    A(f"v_mov_b32 v17, s{sA}")
    A(f"v_mov_b32 v19, s{sA}")
    select_granule(32, 16)
    A(f"buffer_store_dwordx4 v[16:19], v31, s[{SWS}:{SWS+3}], s{sO} offen")
    A("v_mov_b32 v80, 1")
    lds_set(8, F_QPUB, 80)
    A("s_setprio 0")
    A(f"s_add_u32 s{sO}, s{sO}, {hex(W_QB - W_Q)}")
    A(f"v_mov_b32 v17, s{sTag}")
    A(f"v_mov_b32 v19, s{sTag}")
    A(f"s_mov_b32 s{sB2}, 1")
    stamp(5)
    A("L_qserve:")
    A(f"ds_read_b128 v[44:47], v8 offset:{F_QRDY}")
    A(f"ds_read_b32 v48, v8 offset:{F_BREQ}")
    spin_guard()
    A("s_waitcnt lgkmcnt(0)")
    A("v_min3_i32 v44, v44, v45, v46")
    A("v_min_i32 v44, v44, v47")
    A(f"v_readfirstlane_b32 s{sA}, v48")
    A(f"v_readfirstlane_b32 s{sLoc}, v44")
    A(f"s_and_b32 s{sA}, s{sA}, s{sB2}")
    A("s_cbranch_scc0 L_qnob")
    A(f"buffer_store_dwordx4 v[16:19], v31, s[{SWS}:{SWS+3}], s{sO} offen sc1")
    A(f"s_mov_b32 s{sB2}, 0")
    A("L_qnob:")
    A(f"s_cmp_eq_u32 s{sLoc}, 0")
    A("s_cbranch_scc1 L_qserve")
    A(f"s_cmp_ge_u32 s{S_KVH}, {0 if noffn else 7}")
    A("s_cbranch_scc1 L_noffn1")
    for s in range(2):
        A(f"ds_read2_b64 v[{XB+4*s}:{XB+4*s+3}], v26 offset0:{8*s} offset1:{8*s+4}")
    srd(SG, P_G, 0 if nogu else 512 * 1792 * 2)
    A("v_mul_u32_u24 v14, 3584, v12")
    A("v_add_u32 v14, v14, v13")
    A(f"v_mov_b32 v21, s{sTag}")
    A(f"v_mov_b32 v23, s{sTag}")
    A(f"s_and_b32 s{sB2}, s{S_J}, 7")
    A(f"s_mul_i32 s{sB2}, s{sB2}, {64*3584}")
    A(f"s_lshr_b32 s{sA}, s{S_W}, 3")
    A(f"s_lshl_b32 s{sA}, s{sA}, 7")
    A(f"s_add_u32 s{sB2}, s{sB2}, s{sA}")
    A(f"s_mov_b32 s{sO}, s{sB2}")
    lds_wait(F_DONE, FFN_AT, 44, sA)
    stamp(6)
    A(f"s_mov_b32 s{sA}, {hex(L_TILE)}")
    lw = lab("ft")
    A(f"{lw}:")
    A(f"s_mov_b32 m0, s{sA}")
    A(f"s_waitcnt vmcnt({AUXNL-1})")
    A(f"buffer_load_dwordx4 v14, s[{SG}:{SG+3}], s{sO} offen {pW if pF is None else pF} lds")
    A(f"s_add_u32 s{sA}, s{sA}, 0x400")
    A(f"s_add_u32 s{sO}, s{sO}, {8*3584}")
    A(f"s_and_b32 s74, s{sA}, 0x1fff")
    A(f"s_cbranch_scc1 {lw}")
    A(f"s_mov_b64 s[{SG}:{SG+1}], s[{P_U}:{P_U+1}]")
    A(f"s_mov_b32 s{sO}, s{sB2}")
    A(f"s_cmp_lt_u32 s{sA}, {hex(L_TILE + 0x4000)}")
    A(f"s_cbranch_scc1 {lw}")
    A("v_lshl_or_b32 v30, v15, 9, v27")
    A(f"s_lshl_b32 s{sO}, s{S_W}, 11")
    A(f"s_add_u32 s{sO}, s{sO}, {hex(W_F)}")
    A("s_waitcnt vmcnt(0)")
    tile_mfma(lambda s, T: 32 + 16 * (s >> 1) + 4 * T, lambda s: XB + 4 * (s & 1), lambda s: s in (0, 2))
    select_granule(32, 16)
    select_granule(48, 20)
    store_by(sLoc, [f"buffer_store_dwordx4 v[16:19], v30, s[{SWS}:{SWS+3}], s{sO} offen",
                    f"buffer_store_dwordx4 v[20:23], v30, s[{SWS}:{SWS+3}], s{sO} offen offset:1024"])
    A("L_noffn1:")
    lds_set(8, F_TILE, 80)
    stamp(7)
    lds_wait(F_DONE, GATH_AT, 44, sA)
    A("v_mov_b32 v40, 0")
    A("v_mov_b32 v41, 0")
    A(f"s_cmp_ge_u32 s{S_KVH}, {0 if noffn else 7}")
    A("s_cbranch_scc1 L_noffn2")
    A("v_and_b32 v30, 7, v0")
    A("v_lshlrev_b32 v30, 11, v30")
    A("v_lshl_or_b32 v30, v15, 9, v30")
    A("v_lshl_or_b32 v30, v1, 5, v30")
    A(f"s_lshr_b32 s{sO}, s{S_W}, 3")
    A(f"s_lshl_b32 s{sO}, s{sO}, 14")
    A(f"s_and_b32 s{sA}, s{S_RB}, 3")
    A(f"s_lshl_b32 s{sA}, s{sA}, 7")
    A(f"s_add_u32 s{sO}, s{sO}, s{sA}")
    A(f"s_add_u32 s{sO}, s{sO}, {hex(W_F)}")
    lq = lab("fpoll")
    A(f"{lq}:")
    for i, off in enumerate((0, 16, 1024, 1040)):
        A(f"buffer_load_dwordx4 v[{44+4*i}:{47+4*i}], v30, s[{SWS}:{SWS+3}], s{sO} offen offset:{off} sc1")
    spin_guard()
    A("s_waitcnt vmcnt(0)")
    tag_check(44, 8, sTag, 60, 61)
    A(f"s_cbranch_vccnz {lq}")
    allreduce([44 + 2 * i for i in range(8)], "v_add_f32", [], steps=("x1", "x2", "hm"))
    for i in range(4):
        A(f"v_cvt_pk_bf16_f32 v40, v{44+4*i}, v{46+4*i}")
        unpack(32 + 2 * i, 40)
    A("s_mov_b32 s68, 0x3d372713")
    A("s_mov_b32 s69, 0xc0135761")
    for i in range(4):
        A(f"v_mul_f32 v{44+i}, v{32+i}, v{32+i}")
        A(f"v_fma_f32 v{44+i}, v{44+i}, s68, 1.0")
        A(f"v_mul_f32 v{44+i}, v{44+i}, v{32+i}")
        A(f"v_mul_f32 v{44+i}, s69, v{44+i}")
        A(f"v_exp_f32 v{44+i}, v{44+i}")
    nop(1)
    for i in range(4):
        A(f"v_add_f32 v{44+i}, 1.0, v{44+i}")
    for i in range(4):
        A(f"v_rcp_f32 v{44+i}, v{44+i}")
    nop(1)
    for i in range(4):
        A(f"v_mul_f32 v{32+i}, v{32+i}, v{44+i}")
    for r in (32, 34):
        A(f"v_cvt_pk_bf16_f32 v40, v{r}, v{r+1}")
        unpack(r, 40)
    for i in range(4):
        A(f"v_mul_f32 v{32+i}, v{32+i}, v{36+i}")
    A("v_cvt_pk_bf16_f32 v40, v32, v33")
    A("v_cvt_pk_bf16_f32 v41, v34, v35")
    A("L_noffn2:")
    A("v_lshlrev_b32 v42, 3, v0")
    A(f"v_add_u32 v43, {hex(L_H)}, v42")
    A("ds_write_b64 v43, v[40:41]")
    lds_set(8, F_HRDY, 80)
    srd(SOUT, P_OUT, 2048)
    A(f"s_lshl_b32 s{sO}, s{S_W}, 3")
    A(f"buffer_load_dwordx2 v[52:53], v11, s[{SX}:{SX+3}], s{sO} offen")
    for i in range(4):
        A(f"s_bfe_u32 s{70+i}, s{sTag}, {hex(0x80000 + 8*i)}")
    A(f"s_lshr_b32 s{sA}, s{S_KVH}, 2")
    A(f"s_lshl_b32 s{sA}, s{sA}, 18")
    A(f"s_and_b32 s{sB2}, s{S_W}, 127")
    A(f"s_lshl_b32 s{sB2}, s{sB2}, 4")
    A(f"s_add_u32 s{sA}, s{sA}, s{sB2}")
    A(f"s_add_u32 s{sA}, s{sA}, {hex(W_Y)}")
    A(f"s_add_u32 s{sB2}, s{sA}, 0x20000")
    A("v_lshlrev_b32 v41, 11, v0")
    A("s_waitcnt vmcnt(0)")
    unpack(56, 52)
    unpack(58, 53)
    A(f"v_mov_b32 v60, s{sTag}")
    stamp(8)
    A(f"s_mov_b32 s{sThr}, -1")
    A("s_cmp_eq_u32 s2, 0")
    A("s_cselect_b32 s78, 1, 0")
    A("s_mov_b32 s79, 0")
    if findry:
        A("s_branch L_ysum")
    A("L_fin_real:")
    A(f"s_mov_b32 s{sThr}, -2")
    A("s_waitcnt vmcnt(0)")
    A("s_mov_b64 exec, -1")
    lds_wait(F_LANDED, 128, 44, 68) if yearly else lds_wait(F_YDONE, 1, 44, 68)
    A("s_setprio 3")
    A("s_mov_b64 vcc, -1")
    stamp(9)
    A("L_ypoll:")
    A("s_mov_b64 exec, vcc")
    A(f"buffer_load_dwordx4 v[44:47], v41, s[{SWS}:{SWS+3}], s{sA} offen sc1")
    A(f"buffer_load_dwordx4 v[48:51], v41, s[{SWS}:{SWS+3}], s{sB2} offen sc1")
    spin_guard()
    A("s_waitcnt vmcnt(0)")
    for i in range(8):
        A(f"v_xor_b32 v{44+i}, s{70+(i&3)}, v{44+i}")
    A("v_or3_b32 v52, v44, v45, v46")
    A("v_or3_b32 v53, v47, v48, v49")
    A("v_or3_b32 v52, v52, v50, v51")
    A("v_or_b32 v52, v52, v53")
    A("v_and_b32 v52, 0xff, v52")
    A("v_cmp_ne_u32 vcc, 0, v52")
    A("s_cbranch_vccnz L_ypoll")
    A("s_mov_b64 exec, -1")
    stamp(10)
    A("L_ysum:")
    for i in range(4):
        A(f"v_add_f32 v{44+i}, v{44+i}, v{48+i}")
    allreduce([44, 45, 46, 47], "v_add_f32", [48, 49, 50, 51])
    for i in range(4):
        A(f"v_add_f32 v{44+i}, v{44+i}, v{56+i}")
    A("v_cvt_pk_bf16_f32 v48, v44, v45")
    A("v_cvt_pk_bf16_f32 v49, v46, v47")
    A("s_mov_b64 exec, 1")
    A(f"buffer_store_dwordx2 v[48:49], v11, s[{SOUT}:{SOUT+3}], s{sO} offen")
    A(f"s_cmp_eq_u32 s{sThr}, -1")
    A("s_cbranch_scc1 L_fin_real")
    le = lab("noep")
    A("s_mov_b64 exec, s[78:79]")
    A(f"s_cbranch_execz {le}")
    A(f"buffer_store_dword v60, v11, s[{SWS}:{SWS+3}], 0 offen sc1")
    A(f"{le}:")
    stamp(11)
    stamp_flush()
    if diag is not None:
        A("s_sub_u32 s88, s88, s90")
        A("s_add_u32 s88, s88, 10000")
        A("L_diag:")
        A("s_memrealtime s[86:87]")
        A("s_waitcnt lgkmcnt(0)")
        A("s_sub_u32 s86, s86, s90")
        A("s_cmp_lt_u32 s86, s88")
        A("s_cbranch_scc1 L_diag")
    A("s_endpgm")

    role[0] = "cons"
    SWS = 48
    sC, sLd, sTg, sL2E, sSc, sA, sB2, sTag, sLoc = 60, 61, 62, 63, 64, 65, 66, 67, 84
    AV, VDN, AK = 6, 9, 144
    S, O, KF, Q, SV = 16, 24, 32, 64, 128
    VF, PF = 32, 40
    vM, vNM, vL, vT, vT2, vPW, vPR = 152, 153, 154, 155, 156, 157, 158
    A("L_other:")
    srd(SWS, P_WS, WS_BYTES)
    A(f"buffer_load_dword v164, v11, s[{SWS}:{SWS+3}], 0 offen sc1")
    A("s_cmp_ge_u32 s3, 6")
    A("s_cbranch_scc1 L_tail")
    A("s_setprio 1")
    A(f"s_sub_u32 s{sC}, s3, 2")
    A(f"s_lshr_b32 s69, s{S_W}, 4")
    A("s_lshl_b32 s69, s69, 14")
    A(f"s_lshl_b32 s{sA}, s{sC}, 10")
    A(f"s_add_u32 s69, s69, s{sA}")
    A(f"s_add_u32 s69, s69, {hex(W_Q)}")
    if True:
        A("v_lshrrev_b32 v12, 3, v0")
        A("v_and_b32 v13, 7, v0")
        A("v_lshlrev_b32 v13, 7, v13")
        A("v_lshl_or_b32 v12, v12, 12, v13")
        A("s_mov_b32 exec_hi, 0")
        A(f"buffer_load_dword v166, v12, s[{SWS}:{SWS+3}], s69 offen sc1")
        A("s_mov_b32 exec_hi, -1")
    A("s_add_u32 s70, s69, 0x1000")
    A("s_add_u32 s71, s69, 0x2000")
    A("s_add_u32 s72, s69, 0x3000")
    A(f"s_mov_b32 s{sL2E}, {hex(LOG2E)}")
    A(f"s_mov_b32 s{sSc}, {hex(SCALE)}")
    A("v_and_b32 v15, 3, v0")
    A("v_lshlrev_b32 v160, 9, v15")
    A(f"v_bfe_u32 v{vT2}, v0, 2, 1")
    A(f"v_lshl_or_b32 v160, v{vT2}, 6, v160")
    A("v_lshl_or_b32 v160, v1, 4, v160")
    A(f"s_lshl_b32 s68, s{S_W}, 11")
    A(f"s_lshl_b32 s{sA}, s{sC}, 7")
    A(f"s_add_u32 s68, s68, s{sA}")
    A(f"s_add_u32 s68, s68, {hex(W_O)}")
    A(f"s_lshl_b32 s73, s{S_KVH}, 2")
    A(f"s_add_u32 s73, s73, s{sC}")
    A("s_lshl_b32 s73, s73, 1")
    A(f"s_add_u32 s73, s73, s{S_B}")
    A("s_lshl_b32 s73, s73, 3")
    A(f"s_and_b32 s{sA}, s{S_S}, 7")
    A(f"s_add_u32 s73, s73, s{sA}")
    A("s_lshl_b32 s73, s73, 1")
    A(f"s_lshr_b32 s{sA}, s{S_S}, 3")
    A(f"s_add_u32 s73, s73, s{sA}")
    A("s_lshl_b32 s73, s73, 4")
    A(f"s_add_u32 s73, s73, {hex(W_ML)}")
    A(f"v_lshlrev_b32 v{vPR}, 4, v15")
    A(f"v_lshl_or_b32 v{vPR}, v1, 6, v{vPR}")
    A(f"v_add_u32 v{vPR}, {hex(L_TILE)}, v{vPR}")
    A(f"v_bfe_u32 v{vT}, v0, 2, 2")
    A(f"v_lshl_add_u32 v{vPW}, v{vT}, 10, v{vPR}")
    A(f"s_lshl_b32 s{sA}, s{sC}, 8")
    A(f"v_add_u32 v{vPW}, s{sA}, v{vPW}")
    A(f"s_add_u32 s{sA}, s{sA}, {hex(L_Q)}")
    A(f"v_lshl_add_u32 v2, v0, 2, s{sA}")
    A("v_lshlrev_b32 v3, 8, v15")
    A("v_lshl_add_u32 v3, v1, 6, v3")
    A(f"v_add_u32 v3, {hex(L_Q)}, v3")
    A("v_lshl_add_u32 v4, v15, 4, v8")
    A(f"s_lshl_b32 s{sA}, s{sC}, 2")
    A(f"v_add_u32 v5, s{sA}, v4")
    A(f"v_add_u32 v{VDN}, s{sA}, v8")
    A("v_and_b32 v14, 15, v0")
    A("v_and_b32 v12, 7, v0")
    A("v_lshlrev_b32 v12, 1, v12")
    A("v_bfe_u32 v13, v0, 3, 1")
    A("v_or_b32 v12, v12, v13")
    A("v_lshlrev_b32 v13, 2, v1")
    A("v_xor_b32 v12, v12, v13")
    A("v_lshlrev_b32 v12, 4, v12")
    A("v_lshl_or_b32 v12, v14, 8, v12")
    A(f"s_lshl_b32 s{sA}, s{sC}, 13")
    A(f"v_or_b32 v{AK}, s{sA}, v12")
    for s in range(1, 8):
        A(f"v_xor_b32 v{AK+s}, {hex(16*(s&3) + 0x10000*(s>>2))}, v{AK}")
    vaddr_T0(13, 12, 14, 15)
    A(f"s_lshl_b32 s{sA}, s{sC}, 6")
    A(f"v_xor_b32 v{AV}, s{sA}, v13")
    A(f"v_xor_b32 v{AV+1}, 32, v{AV}")
    A(f"s_mov_b32 s{sLd}, 0")
    A(f"s_sub_u32 s{sTg}, s{sC}, 3")
    A(f"v_mov_b32 v{vM}, 0xff800000")
    A(f"v_mov_b32 v{vL}, 0")
    for i in range(8):
        A(f"v_mov_b32 v{O+i}, 0")
    A("s_mov_b32 s76, 0x000f000f"); A("s_mov_b32 s77, s76")
    for g in range(1, 4):
        A(f"s_lshl_b64 s[{76+2*g}:{77+2*g}], s[76:77], {4*g}")
    A("v_mov_b32 v159, 1")
    A("s_waitcnt vmcnt(0)")
    make_tag(sTag, 164)
    local_tag(74, sTag)
    stamp(1)
    lds_wait(F_QPUB, 1, vT, sA)
    stamp(5)
    A("s_mov_b64 vcc, -1")
    A(f"s_mov_b32 s{sB2}, 0")
    A("L_qpoll:")
    A(f"s_add_u32 s{sB2}, s{sB2}, 1")
    A(f"s_and_b32 s{sA}, s{sB2}, {(QB_EVERY - 1) if fast else 0}")
    A(f"s_cselect_b32 s{sA}, 0, {hex(W_QB - W_Q)}")
    A(f"s_cselect_b32 s75, s74, s{sTag}")
    A("s_cselect_b64 exec, 0, 1")
    A(f"ds_write_b32 v8, v159 offset:{F_BREQ}")
    A("s_mov_b64 exec, vcc")
    A(f"v_add_u32 v15, s{sA}, v10")
    for kb in range(4):
        A(f"buffer_load_dwordx4 v[{KF+4*kb}:{KF+4*kb+3}], v15, s[{SWS}:{SWS+3}], s{69+kb} offen sc1")
    spin_guard()
    A("s_waitcnt vmcnt(0)")
    tag_check(KF, 8, 75, vT, vT2)
    A("s_cbranch_vccnz L_qpoll")
    A("s_mov_b64 exec, -1")
    stamp(6)
    for kb in range(1, 4):
        A(f"v_add_f32 v{KF}, v{KF}, v{KF+4*kb}")
        A(f"v_add_f32 v{KF+2}, v{KF+2}, v{KF+4*kb+2}")
    A(f"v_cvt_pk_bf16_f32 v{vT}, v{KF}, v{KF+2}")
    A(f"ds_write_b32 v2, v{vT}")
    A(f"s_cmp_lt_u32 s{sB2}, {QB_EVERY if fast else 0}")
    A(f"s_cselect_b32 s{sA}, 2, 1")
    A(f"v_mov_b32 v{vT2}, s{sA}")
    lds_set(VDN, F_QRDY, vT2)
    lds_wait4(F_QRDY, 1, S, [f"ds_read_b128 v[{KF+4*s}:{KF+4*s+3}], v3 offset:{16*s}" for s in range(4)])
    A(f"v_readfirstlane_b32 s{sLoc}, v{S}")
    for g in range(4):
        for i in range(16):
            A(f"v_cndmask_b32 v{Q+16*g+i}, 0, v{KF+i}, s[{76+2*g}:{77+2*g}]")
    stamp(2)

    def wait_landed(tgt):
        lo, ls = lab("lo"), lab("ls")
        A(f"s_cmp_ge_i32 s{sLd}, {tgt}")
        A(f"s_cbranch_scc1 {lo}")
        A(f"{ls}:")
        A(f"ds_read_b32 v{vT}, v8 offset:{F_LANDED}")
        spin_guard()
        A("s_waitcnt lgkmcnt(0)")
        A(f"v_readfirstlane_b32 s{sLd}, v{vT}")
        A(f"s_cmp_ge_i32 s{sLd}, {tgt}")
        A(f"s_cbranch_scc0 {ls}")
        A(f"{lo}:")

    A("L_kwin:")
    for g in range(4):
        A(f"s_add_u32 s{sTg}, s{sTg}, 4")
        wait_landed(f"s{sTg}")
        for t in range(2):
            for s in range(4):
                r = KF + 16 * t + 4 * s
                A(f"ds_read_b128 v[{r}:{r+3}], v{AK + 4*(g>>1) + s} offset:{(g&1)*32768 + t*4096}")
        A(f"s_add_u32 s{sA}, s{sTg}, 3")
        A(f"s_min_u32 s{sA}, s{sA}, 64")
        A(f"v_mov_b32 v{vT2}, s{sA}")
        for t in range(2):
            A(f"s_waitcnt lgkmcnt({4 if t == 0 else 0})")
            if t == 1:
                lds_set(VDN, F_DONE, vT2)
            for s in range(4):
                r = KF + 16 * t + 4 * s
                c = "0" if (g == 0 and s == 0) else f"v[{S+4*t}:{S+4*t+3}]"
                q = Q + 16 * g + 4 * s
                A(f"v_mfma_f32_16x16x32_bf16 v[{S+4*t}:{S+4*t+3}], v[{r}:{r+3}], v[{q}:{q+3}], {c}")
    for i in range(12):
        A(f"v_mov_b32 v{SV+i}, v{SV+4+i}")
    for i in range(4):
        A(f"v_cvt_pk_bf16_f32 v{SV+12+i}, v{S+2*i}, v{S+2*i+1}")
    for i in range(4):
        unpack(S + 2 * i, SV + 12 + i)
    for i in range(8):
        A(f"v_mul_f32 v{S+i}, s{sSc}, v{S+i}")
    for i in range(4):
        A(f"v_cvt_pk_bf16_f32 v{SV+12+i}, v{S+2*i}, v{S+2*i+1}")
    A(f"v_max3_f32 v{vM}, v{vM}, v{S}, v{S+1}")
    A(f"v_max3_f32 v{vT}, v{S+2}, v{S+3}, v{S+4}")
    A(f"v_max3_f32 v{vM}, v{vM}, v{S+5}, v{S+6}")
    A(f"v_max3_f32 v{vM}, v{vM}, v{vT}, v{S+7}")
    A(f"s_cmp_lt_u32 s{sTg}, 60")
    A("s_cbranch_scc1 L_kwin")
    stamp(3)
    for i in range(4):
        A(f"v_mov_b32 v{KF+8+i}, -1")
    A("s_mov_b32 exec_lo, 0x00ff00ff"); A("s_mov_b32 exec_hi, 0x00ff00ff")
    store_by(sLoc, [f"buffer_store_dwordx4 v[{KF+8}:{KF+11}], v160, s[{SWS}:{SWS+3}], s68 offen"])
    A("s_mov_b64 exec, -1")
    allreduce([vM], "v_max_f32", [vT], steps=("r4", "r8", "p16", "p32"))
    A("s_mov_b64 exec, 15")
    A(f"ds_write_b32 v5, v{vM} offset:{L_M - L_FLAG}")
    lds_set(VDN, F_MRDY, 159)
    lds_wait(F_TILE, 1, vT, sA)
    lds_wait4(F_MRDY, 1, S, [f"ds_read_b128 v[{S+4}:{S+7}], v4 offset:{L_M - L_FLAG}"])
    A(f"v_max3_f32 v{vM}, v{S+4}, v{S+5}, v{S+6}")
    A(f"v_max_f32 v{vM}, v{vM}, v{S+7}")
    A(f"v_cvt_pk_bf16_f32 v{vM}, v{vM}, v{vM}")
    A(f"v_and_b32 v{vM}, 0xffff0000, v{vM}")
    A(f"v_mul_f32 v{vM}, s{sL2E}, v{vM}")
    A(f"s_mov_b32 s{sA}, 4")
    A("L_pwin:")
    for i in range(4):
        unpack(S + 2 * i, SV + i)
    for i in range(8):
        A(f"v_fma_f32 v{S+i}, v{S+i}, s{sL2E}, -v{vM}")
    for i in range(8):
        A(f"v_exp_f32 v{S+i}, v{S+i}")
    for i in range(12):
        A(f"v_mov_b32 v{SV+i}, v{SV+4+i}")
    A("s_waitcnt lgkmcnt(0)")
    for i in range(4):
        A(f"v_cvt_pk_bf16_f32 v{KF+i}, v{S+2*i}, v{S+2*i+1}")
    A(f"ds_write_b128 v{vPW}, v[{KF}:{KF+3}]")
    for i in range(8):
        A(f"v_add_f32 v{vL}, v{vL}, v{S+i}")
    A(f"v_add_u32 v{vPW}, 0x1000, v{vPW}")
    A(f"s_sub_u32 s{sA}, s{sA}, 1")
    A(f"s_cmp_lg_u32 s{sA}, 0")
    A("s_cbranch_scc1 L_pwin")
    allreduce([vL], "v_add_f32", [vT], steps=("r4", "r8", "p16", "p32"))
    A("s_mov_b64 exec, 15")
    A(f"ds_write_b32 v5, v{vL} offset:{L_L - L_FLAG}")
    A("s_waitcnt vmcnt(0)")
    lds_set(VDN, F_PRDY, 159)
    lds_wait4(F_PRDY, 1, S, [f"ds_read_b128 v[{S+4}:{S+7}], v4 offset:{L_L - L_FLAG}"])
    A(f"v_add_f32 v{S+4}, v{S+4}, v{S+5}")
    A(f"v_add_f32 v{S+6}, v{S+6}, v{S+7}")
    A(f"v_mov_b32 v{S}, v{vM}")
    A(f"v_mov_b32 v{S+1}, s{sTag}")
    A(f"v_add_f32 v{S+2}, v{S+4}, v{S+6}")
    A(f"v_mov_b32 v{S+3}, s{sTag}")
    A(f"s_lshl_b64 exec, 1, s{sC}")
    store_by(sLoc, [f"buffer_store_dwordx4 v[{S}:{S+3}], v11, s[{SWS}:{SWS+3}], s73 offen"])
    A("s_mov_b64 exec, -1")
    A(f"s_mov_b32 s{sTg}, 64")
    stamp(7)
    A("L_vwin:")
    for g in range(4):
        A(f"ds_read_b128 v[{PF}:{PF+3}], v{vPR} offset:{g*256}")
        A(f"s_add_u32 s{sTg}, s{sTg}, 1")
        wait_landed(f"s{sTg}")
        for tt in range(2):
            for h in range(2):
                r = VF + 4 * tt + 2 * h
                A(f"ds_read_b64_tr_b16 v[{r}:{r+1}], v{AV+tt} offset:{g*8192 + h*4096}")
        A(f"v_mov_b32 v{vT2}, s{sTg}")
        for tt in range(2):
            A(f"s_waitcnt lgkmcnt({2 if tt == 0 else 0})")
            A(f"v_mfma_f32_16x16x32_bf16 v[{O+4*tt}:{O+4*tt+3}], v[{VF+4*tt}:{VF+4*tt+3}], v[{PF}:{PF+3}], v[{O+4*tt}:{O+4*tt+3}]")
        lds_set(VDN, F_DONE, vT2)
    A(f"s_cmp_eq_u32 s{sTg}, 128")
    A("s_cbranch_scc1 L_vend")
    for tt in range(2):
        A(f"v_add_u32 v{AV+tt}, 0x8000, v{AV+tt}")
        A(f"v_and_b32 v{AV+tt}, 0x1ffff, v{AV+tt}")
    A(f"v_add_u32 v{vPR}, 0x400, v{vPR}")
    A("s_branch L_vwin")
    A("L_vend:")
    A(f"s_cmp_eq_u32 s{sLoc}, 2")
    nop(2)
    for i in range(4):
        A(f"v_mov_b32_dpp v{O+i}, v{O+4+i} row_shr:4 row_mask:0xf bank_mask:0x2")
    A("s_mov_b32 exec_lo, 0x00ff00ff"); A("s_mov_b32 exec_hi, 0x00ff00ff")
    A("s_cbranch_scc0 L_o_far")
    A(f"buffer_store_dwordx4 v[{O}:{O+3}], v160, s[{SWS}:{SWS+3}], s68 offen")
    A("L_o_end:")
    stamp(4)
    stamp_flush()
    A("s_endpgm")
    A("L_o_far:")
    A(f"buffer_store_dwordx4 v[{O}:{O+3}], v160, s[{SWS}:{SWS+3}], s68 offen sc1")
    A("s_branch L_o_end")

    role[0] = "tail"
    SWO, SD = 40, 44
    sTw, sThr, sDry, sA, sB2, sTag, sWo, sDo = 60, 61, 62, 65, 66, 67, 63, 64
    GO, WF, DF, Y = 32, 64, 96, 112
    A("L_tail:")
    A(f"s_sub_u32 s{sTw}, s3, 6")
    srd(SWO, P_WO, 0 if nowt else 4096 * 512 * 2)
    srd(SD, P_D, 0 if nowt else 1792 * 512 * 2)
    A("v_lshl_or_b32 v4, v1, 10, v2")
    A("v_xor_b32 v5, 0x80, v4"); A("v_add_u32 v5, 3072, v5")
    A("v_xor_b32 v6, 16, v4"); A("v_add_u32 v6, 6144, v6")
    A("v_xor_b32 v7, 0x90, v4"); A("v_add_u32 v7, 9216, v7")
    A(f"s_lshl_b32 s{sB2}, s{S_CH}, 1")
    A(f"s_add_u32 s{sB2}, s{sB2}, s{sTw}")
    A(f"s_lshl_b32 s{sB2}, s{sB2}, 8")
    A(f"s_lshr_b32 s{sWo}, s{S_W}, 1")
    A(f"s_lshl_b32 s{sWo}, s{sWo}, 15")
    A(f"s_add_u32 s{sWo}, s{sWo}, s{sB2}")
    A(f"s_add_u32 s82, s{sWo}, 0x4000")
    A(f"s_lshr_b32 s{sDo}, s{S_W}, 1")
    A(f"s_lshl_b32 s{sDo}, s{sDo}, 14")
    A(f"s_add_u32 s{sDo}, s{sDo}, s{sB2}")
    A(f"s_cmp_lt_u32 s{S_KVH}, 7")
    A(f"s_cselect_b32 s{sDo}, s{sDo}, 0")
    A(f"s_cselect_b32 s{SD+2}, s{SD+2}, 0")
    A(f"s_lshl_b32 s83, s{sTw}, 13")
    A(f"s_lshl_b32 s84, s{sTw}, 12")
    A("s_add_u32 s84, s84, 0x4000")
    vaddr_T0(13, 12, 14, 15)
    for T in range(8):
        A(f"v_xor_b32 v12, {32*T}, v13")
        A(f"v_add_u32 v{144+T}, s83, v12")
        A(f"v_add_u32 v{152+T}, s84, v12")
    A("v_lshlrev_b32 v14, 3, v0")
    A(f"v_add_u32 v14, {hex(L_H)}, v14")
    A("v_and_b32 v161, 15, v0")
    A("v_lshlrev_b32 v161, 5, v161")
    A(f"s_lshr_b32 s69, s{S_W}, 3")
    A("s_lshl_b32 s69, s69, 9")
    A(f"s_add_u32 s69, s69, {hex(W_ML)}")
    A("v_and_b32 v162, 7, v0")
    A("v_lshlrev_b32 v162, 11, v162")
    A("v_bfe_u32 v12, v0, 3, 1")
    A("v_lshl_or_b32 v162, v12, 15, v162")
    A("v_lshl_or_b32 v162, v1, 4, v162")
    A(f"s_lshl_b32 s70, s{S_KVH}, 16")
    A(f"s_lshl_b32 s{sA}, s{S_RB}, 7")
    A(f"s_add_u32 s70, s70, s{sA}")
    A(f"s_add_u32 s70, s70, {hex(W_O)}")
    A("s_add_u32 s71, s70, 0x4000")
    A("v_lshlrev_b32 v163, 18, v12")
    A("v_bfe_u32 v12, v0, 2, 1")
    A("v_lshl_or_b32 v163, v12, 6, v163")
    A("v_lshl_or_b32 v163, v1, 4, v163")
    A(f"s_lshl_b32 s72, s{S_W}, 10")
    A(f"s_lshl_b32 s{sA}, s{sTw}, 9")
    A(f"s_add_u32 s72, s72, s{sA}")
    A(f"s_add_u32 s72, s72, {hex(W_Y)}")
    A("s_mov_b64 exec, 1")
    A(f"buffer_load_dword v18, v11, s[{SWO}:{SWO+3}], s{sWo} offen {pW}")
    A(f"buffer_load_dword v19, v11, s[{SD}:{SD+3}], s{sDo} offen {pW}")
    A("s_mov_b64 exec, -1")
    A("s_waitcnt vmcnt(0)")
    make_tag(sTag, 164)
    A("s_mov_b32 s85, 0xffffff00")
    for i in range(4):
        A(f"v_bfe_u32 v{52+i}, s{sTag}, {8*i}, 8")
    stamp(1)
    lds_wait(F_DONE, ML_AT, 20, sA)
    lds_wait(F_HRDY, 1, 20, sA)
    A("ds_read_b64 v[24:25], v14")
    lq = lab("mlpoll")
    A(f"{lq}:")
    A("s_waitcnt vmcnt(0)")
    A(f"buffer_load_dwordx4 v[16:19], v161, s[{SWS}:{SWS+3}], s69 offen sc1")
    A(f"buffer_load_dwordx4 v[20:23], v161, s[{SWS}:{SWS+3}], s69 offen offset:16 sc1")
    spin_guard()
    A("s_waitcnt vmcnt(0)")
    tag_check(16, 4, sTag, 26, 27)
    A(f"s_cbranch_vccnz {lq}")
    A("v_max_f32 v26, v16, v20")
    allreduce([26], "v_max_f32", [27], steps=("x1", "x2", "hm"))
    A("v_sub_f32 v16, v16, v26")
    A("v_sub_f32 v20, v20, v26")
    A("v_exp_f32 v16, v16")
    A("v_exp_f32 v20, v20")
    nop(1)
    A("v_mul_f32 v27, v16, v18")
    A("v_fmac_f32 v27, v20, v22")
    allreduce([27], "v_add_f32", [26], steps=("x1", "x2", "hm"))
    A("v_rcp_f32 v27, v27")
    A("v_mov_b32 v23, 1")
    A("v_mul_f32 v16, v16, v27")
    A("v_mul_f32 v18, v20, v27")
    stamp(5)
    A(f"s_mov_b32 s{sDry}, 1")
    A(f"s_mov_b32 s{sThr}, -1")
    if taildry:
        A("s_branch L_t_frag")
    A("L_tail_real:")
    A(f"s_mov_b32 s{sDry}, 0")
    A(f"s_mov_b32 s{sThr}, -2")
    stamp(9)
    lds_wait4(F_DONE, TRIG, 28)
    A("s_setprio 2")
    stamp(3)
    A("s_mov_b32 m0, s83")
    nop(1)
    for i in range(4):
        A(f"buffer_load_dwordx4 v{4+i}, s[{SWO}:{SWO+3}], s{sWo} offen offset:{i*1024} {pW} lds")
    A("s_add_u32 m0, s83, 0x1000")
    nop(1)
    for i in range(4):
        A(f"buffer_load_dwordx4 v{4+i}, s[{SWO}:{SWO+3}], s82 offen offset:{i*1024} {pW} lds")
    A("s_mov_b32 m0, s84")
    nop(1)
    for i in range(4):
        A(f"buffer_load_dwordx4 v{4+i}, s[{SD}:{SD+3}], s{sDo} offen offset:{i*1024} {pW} lds")
    A("s_waitcnt vmcnt(0)")
    stamp(4)
    A("L_t_frag:")

    def o_loads():
        A(f"buffer_load_dwordx4 v[{GO}:{GO+3}], v162, s[{SWS}:{SWS+3}], s70 offen sc1")
        A(f"buffer_load_dwordx4 v[{GO+4}:{GO+7}], v162, s[{SWS}:{SWS+3}], s70 offen offset:64 sc1")
        A(f"buffer_load_dwordx4 v[{GO+8}:{GO+11}], v162, s[{SWS}:{SWS+3}], s71 offen sc1")
        A(f"buffer_load_dwordx4 v[{GO+12}:{GO+15}], v162, s[{SWS}:{SWS+3}], s71 offen offset:64 sc1")
    o_loads()
    for T in range(8):
        A(f"ds_read_b64_tr_b16 v[{DF+2*T}:{DF+2*T+1}], v{152+T}")
    for T in range(3):
        A(f"ds_read_b64_tr_b16 v[{WF+4*T}:{WF+4*T+1}], v{144+T}")
        A(f"ds_read_b64_tr_b16 v[{WF+4*T+2}:{WF+4*T+3}], v{144+T} offset:4096")
    A("s_waitcnt lgkmcnt(5)")
    for T in range(3, 8):
        A(f"ds_read_b64_tr_b16 v[{WF+4*T}:{WF+4*T+1}], v{144+T}")
        A(f"ds_read_b64_tr_b16 v[{WF+4*T+2}:{WF+4*T+3}], v{144+T} offset:4096")
    for T in range(8):
        A(f"v_mfma_f32_16x16x16_bf16 v[{Y+4*T}:{Y+4*T+3}], v[{DF+2*T}:{DF+2*T+1}], v[24:25], 0")
    stamp(6)
    lq, lq2 = lab("opoll"), lab("ochk")
    A(f"s_branch {lq2}")
    A(f"{lq}:")
    A("s_mov_b64 exec, vcc")
    o_loads()
    spin_guard()
    A(f"{lq2}:")
    A("s_waitcnt vmcnt(0) lgkmcnt(0)")
    A(f"v_max3_u32 v20, v{GO}, v{GO+1}, v{GO+2}")
    A(f"v_max3_u32 v21, v{GO+3}, v{GO+4}, v{GO+5}")
    A(f"v_max3_u32 v22, v{GO+6}, v{GO+7}, v{GO+8}")
    A(f"v_max3_u32 v20, v20, v{GO+9}, v{GO+10}")
    A(f"v_max3_u32 v21, v21, v{GO+11}, v{GO+12}")
    A(f"v_max3_u32 v22, v22, v{GO+13}, v{GO+14}")
    A(f"v_max3_u32 v20, v20, v21, v{GO+15}")
    A("v_max_u32 v20, v20, v22")
    A(f"v_cmp_lt_u32 vcc, s{sThr}, v20")
    A(f"s_cbranch_vccnz {lq}")
    A("s_mov_b64 exec, -1")
    stamp(7)
    for i in range(8):
        A(f"v_mul_f32 v{GO+i}, v{GO+i}, v16")
    for i in range(8):
        A(f"v_fmac_f32 v{GO+i}, v{GO+8+i}, v18")
    allreduce([GO + i for i in range(8)], "v_add_f32", [], steps=("x1", "x2", "hm"))
    for i in range(4):
        A(f"v_cvt_pk_bf16_f32 v{48+i}, v{GO+2*i}, v{GO+2*i+1}")
    A(f"s_cmp_lg_u32 s{sDry}, 0")
    nop(1)
    for T in range(8):
        A(f"v_mfma_f32_16x16x32_bf16 v[{Y+4*T}:{Y+4*T+3}], v[{WF+4*T}:{WF+4*T+3}], v[48:51], v[{Y+4*T}:{Y+4*T+3}]")
    A("s_cbranch_scc1 L_tail_real")
    A("s_mov_b32 exec_lo, 0x11111111"); A("s_mov_b32 exec_hi, 0x11111111")
    for u in range(4):
        for i in range(4):
            A(f"v_mov_b32_dpp v{Y+8*u+i}, v{Y+8*u+4+i} quad_perm:[0,1,2,3] row_mask:0xf bank_mask:0xa")
        for i in range(4):
            A(f"v_and_or_b32 v{Y+8*u+i}, v{Y+8*u+i}, s85, v{52+i}")
        A(f"buffer_store_dwordx4 v[{Y+8*u}:{Y+8*u+3}], v163, s[{SWS}:{SWS+3}], s72 offen offset:{128*u} sc1")
    A("s_mov_b64 exec, 1")
    A(f"ds_write_b32 v8, v23 offset:{F_YDONE}")
    stamp(8)
    stamp_flush()
    A("L_abort:")
    A("s_endpgm")
    A("L_end:")
    nv = 208 if stamps else 168
    A('.section .rodata,"a"')
    A(".p2align 6")
    A(f".amdhsa_kernel {KNAME}")
    A(f"  .amdhsa_next_free_vgpr {nv}")
    A("  .amdhsa_next_free_sgpr 102")
    A(f"  .amdhsa_accum_offset {nv}")
    A("  .amdhsa_group_segment_fixed_size 0")
    A("  .amdhsa_kernarg_size 96")
    A("  .amdhsa_user_sgpr_count 2")
    A("  .amdhsa_user_sgpr_kernarg_segment_ptr 1")
    A("  .amdhsa_system_sgpr_workgroup_id_x 1")
    A(".end_amdhsa_kernel")
    out = []
    for ln in L:
        if ln.startswith((";", ".", " ")) or ln.endswith(":") or "\n" in ln:
            out.append(ln)
        else:
            out.append("    " + ln)
    return "\n".join(out) + "\n"


if __name__ == "__main__":
    kw = eval("dict(" + (sys.argv[2] if len(sys.argv) > 2 else "") + ")")
    open(sys.argv[1], "w").write(gen(**kw))
```

```python
import sys
from gen_kernel import HEADER, KNAME

L_TILE = 0x20000
L_XN = 0x24000
L_Q = 0x24800
L_H = 0x24C00
L_FLAG = 0x24E00
F_LANDED, F_QPUB, F_HRDY, F_YDONE, F_DONE, F_QRDY, F_MRDY, F_PRDY, F_TILE = 0, 4, 8, 12, 16, 32, 48, 64, 80
F_BREQ = 84
L_M = L_FLAG + 128
L_L = L_FLAG + 192
LDS_BYTES = 0x24F00
W_EPOCH = 0x0
W_ML = 0x4000
W_O = 0x10000
W_Y = 0x90000
W_Q = 0x110000
W_QB = 0x150000
W_F = 0x190000
W_STAMP = 0x200000
WS_BYTES = 0x300000

LOG2E = 0x3FB8AA3B
SCALE = 0x3DB504F3
SPIN_MAX = 1 << 22


def gen(NL=20, stamps=False, AUXNL=2, pK="nt", pW="nt", diag=None, TRIG=124, codepf=True, findry=True,
        fast=True, QB_EVERY=8, FFN_AT=20, GATH_AT=52, ML_AT=88, noffn=False, taildry=True, nowt=False, yearly=False, skew=None, nogu=False, pF=None):
    L = []
    A = L.append
    uid = [0]
    role = ["pro"]

    def lab(p):
        uid[0] += 1
        return f"L_{p}_{uid[0]}"

    def nop(n):
        while n > 0:
            k = min(n, 16)
            A(f"s_nop {k-1}")
            n -= k

    def srd(r, p, nbytes):
        A(f"s_mov_b32 s{r}, s{p}")
        A(f"s_mov_b32 s{r+1}, s{p+1}")
        A(f"s_mov_b32 s{r+2}, {hex(nbytes)}")
        A(f"s_mov_b32 s{r+3}, 0x20000")

    VST = 200

    def stamp(i):
        if diag is not None and role[0] == "aux" and diag == i:
            A("s_memrealtime s[88:89]")
            A("s_waitcnt lgkmcnt(0)")
        if not stamps:
            return
        A("s_memrealtime s[98:99]")
        A("s_waitcnt lgkmcnt(0)")
        A(f"v_writelane_b32 v{VST}, s98, {i}")

    def stamp_flush():
        if not stamps:
            return
        A("s_mov_b64 exec, -1")
        A(f"s_sub_u32 s97, {hex(SPIN_MAX)}, s15")
        A(f"v_writelane_b32 v{VST}, s97, 16")
        srd(92, P_WS, WS_BYTES)
        A("s_lshl_b32 s97, s2, 3")
        A("s_add_u32 s97, s97, s3")
        A("s_lshl_b32 s97, s97, 8")
        A(f"s_add_u32 s97, s97, {hex(W_STAMP)}")
        A(f"v_lshlrev_b32 v{VST+1}, 2, v0")
        A(f"buffer_store_dword v{VST}, v{VST+1}, s[92:95], s97 offen")
        A("s_waitcnt vmcnt(0)")

    def spin_guard():
        A("s_sub_u32 s15, s15, 1")
        A("s_cbranch_scc1 L_abort")

    def lds_wait(off, thr, vt, st):
        l = lab("w")
        A(f"{l}:")
        A(f"ds_read_b32 v{vt}, v8 offset:{off}")
        spin_guard()
        A("s_waitcnt lgkmcnt(0)")
        A(f"v_readfirstlane_b32 s{st}, v{vt}")
        A(f"s_cmp_ge_i32 s{st}, {thr}")
        A(f"s_cbranch_scc0 {l}")

    def lds_wait4(off, thr, vq, extra=()):
        l = lab("w4")
        A(f"{l}:")
        A(f"ds_read_b128 v[{vq}:{vq+3}], v8 offset:{off}")
        for e in extra:
            A(e)
        spin_guard()
        A(f"s_waitcnt lgkmcnt({len(extra)})")
        A(f"v_min3_i32 v{vq}, v{vq}, v{vq+1}, v{vq+2}")
        A(f"v_min_i32 v{vq}, v{vq}, v{vq+3}")
        A(f"v_cmp_gt_i32 vcc, {thr}, v{vq}")
        if extra:
            A("s_waitcnt lgkmcnt(0)")
        A(f"s_cbranch_vccnz {l}")

    def lds_set(addr_v, off, val_v):
        A("s_mov_b64 exec, 1")
        A(f"ds_write_b32 v{addr_v}, v{val_v} offset:{off}")
        A("s_mov_b64 exec, -1")

    def allreduce(regs, op, tmps, steps=("x1", "x2", "hm", "m", "p16", "p32")):
        dpp = {"x1": "quad_perm:[1,0,3,2]", "x2": "quad_perm:[2,3,0,1]", "hm": "row_half_mirror", "m": "row_mirror",
               "r4": "row_ror:4", "r8": "row_ror:8"}
        for st in steps:
            if st in dpp:
                nop(max(0, 3 - len(regs)))
                for r in regs:
                    A(f"{op}_dpp v{r}, v{r}, v{r} {dpp[st]} row_mask:0xf bank_mask:0xf")
            else:
                ins = "v_permlane16_swap_b32" if st == "p16" else "v_permlane32_swap_b32"
                for r, t in zip(regs, tmps):
                    A(f"v_mov_b32 v{t}, v{r}")
                nop(max(0, 3 - len(regs)))
                for r, t in zip(regs, tmps):
                    A(f"{ins} v{r}, v{t}")
                nop(1)
                for r, t in zip(regs, tmps):
                    A(f"{op} v{r}, v{r}, v{t}")

    def make_tag(s, v):
        A(f"v_readfirstlane_b32 s{s}, v{v}")
        A(f"s_add_u32 s{s}, s{s}, 0x4d2b7f35")

    def local_tag(dst, tag):
        A(f"s_getreg_b32 s{dst}, hwreg(HW_REG_XCC_ID, 0, 4)")
        A(f"s_mul_i32 s{dst}, s{dst}, 0x10001")
        A(f"s_xor_b32 s{dst}, s{dst}, s{tag}")

    def store_by(sloc, ins):
        l1, l2 = lab("far"), lab("st")
        A(f"s_cmp_eq_u32 s{sloc}, 2")
        A(f"s_cbranch_scc0 {l1}")
        for i in ins:
            A(i)
        A(f"s_branch {l2}")
        A(f"{l1}:")
        for i in ins:
            A(i + " sc1")
        A(f"{l2}:")

    def tag_check(base, n, stag, t1, t2):
        for i in range(n):
            A(f"v_xor_b32 v{base+1+2*i}, s{stag}, v{base+1+2*i}")
        r = [base + 1 + 2 * i for i in range(n)]
        if n == 8:
            A(f"v_or3_b32 v{t1}, v{r[0]}, v{r[1]}, v{r[2]}")
            A(f"v_or3_b32 v{t2}, v{r[3]}, v{r[4]}, v{r[5]}")
            A(f"v_or3_b32 v{t1}, v{t1}, v{r[6]}, v{r[7]}")
            A(f"v_or_b32 v{t1}, v{t1}, v{t2}")
        else:
            A(f"v_or3_b32 v{t1}, v{r[0]}, v{r[1]}, v{r[2]}")
            A(f"v_or_b32 v{t1}, v{t1}, v{r[3]}")
        A(f"v_cmp_ne_u32 vcc, 0, v{t1}")

    def vaddr_T0(dst, t1, t2, t3):
        A(f"v_lshrrev_b32 v{t1}, 2, v0")
        A(f"v_and_b32 v{t2}, 7, v{t1}")
        A(f"v_lshlrev_b32 v{t2}, 1, v{t2}")
        A(f"v_lshrrev_b32 v{t3}, 5, v0")
        A(f"v_or_b32 v{t2}, v{t2}, v{t3}")
        A(f"v_bfe_u32 v{t3}, v0, 1, 1")
        A(f"v_xor_b32 v{t2}, v{t2}, v{t3}")
        A(f"v_lshlrev_b32 v{t2}, 4, v{t2}")
        A(f"v_lshl_or_b32 v{dst}, v{t1}, 8, v{t2}")
        A(f"v_and_b32 v{t3}, 1, v0")
        A(f"v_lshl_or_b32 v{dst}, v{t3}, 3, v{dst}")

    def unpack(dst, src):
        A(f"v_lshlrev_b32 v{dst}, 16, v{src}")
        A(f"v_and_b32 v{dst+1}, 0xffff0000, v{src}")

    P_X, P_K, P_V, P_WQ, P_WO, P_BX, P_G, P_U, P_D, P_OUT, P_DBG, P_WS = range(16, 40, 2)
    S_KVH, S_J, S_B, S_S, S_RB, S_CH, S_W = 4, 5, 6, 7, 8, 9, 10

    A(HEADER)
    A(f"; @launch grid=(256,1,1) block=(512,1,1) lds={LDS_BYTES}")
    A('.amdgcn_target "amdgcn-amd-amdhsa--gfx950"')
    A(".text")
    A(f".globl {KNAME}")
    A(".p2align 8")
    A(f".type {KNAME},@function")
    A(f"{KNAME}:")
    A("s_cmp_ge_u32 s2, 256")
    A("s_cbranch_scc1 L_abort")
    A("s_load_dwordx16 s[16:31], s[0:1], 0")
    A("s_load_dwordx8 s[32:39], s[0:1], 64")
    if stamps:
        A("s_memrealtime s[98:99]")
        A(f"v_mov_b32 v{VST}, 0")
    if diag is not None:
        A("s_memrealtime s[90:91]")
    A(f"s_lshr_b32 s{S_J}, s2, 3")
    if codepf:
        A("s_getpc_b64 s[80:81]")
        A(f"s_lshl_b32 s6, s{S_J}, 9")
        A("v_subrev_u32 v2, 448, v0")
        A("v_cmp_gt_u32 vcc, 4, v2")
        A("v_lshl_add_u32 v2, v2, 7, s6")
        A(f"v_min_u32 v2, L_end-{KNAME}-64, v2")
        A("s_and_b64 exec, exec, vcc")
        A("s_cbranch_execz L_nopf")
        A("global_load_dword v165, v2, s[80:81]")
        A("L_nopf:")
        A("s_mov_b64 exec, -1")
    A("v_lshrrev_b32 v1, 6, v0")
    A("v_and_b32 v0, 63, v0")
    A("v_readfirstlane_b32 s3, v1")
    A(f"v_mov_b32 v8, {hex(L_FLAG)}")
    A("v_lshl_add_u32 v9, v0, 2, v8")
    A("v_mov_b32 v11, 0")
    A("ds_write_b32 v9, v11")
    A(f"s_and_b32 s{S_KVH}, s2, 7")
    A(f"s_lshr_b32 s{S_B}, s{S_J}, 4")
    A(f"s_and_b32 s{S_S}, s{S_J}, 15")
    A(f"s_lshr_b32 s{S_RB}, s{S_J}, 1")
    A(f"s_and_b32 s{S_CH}, s{S_J}, 1")
    A(f"s_lshl_b32 s{S_W}, s{S_KVH}, 5")
    A(f"s_add_u32 s{S_W}, s{S_W}, s{S_J}")
    A(f"s_mov_b32 s15, {hex(SPIN_MAX)}")
    A("v_lshrrev_b32 v1, 4, v0")
    A("v_and_b32 v2, 15, v0")
    A("v_lshlrev_b32 v3, 1, v1")
    A("v_xor_b32 v2, v2, v3")
    A("v_lshlrev_b32 v2, 4, v2")
    A("v_lshl_or_b32 v4, v1, 8, v2")
    A("v_xor_b32 v5, 0x80, v4")
    A("v_xor_b32 v6, 16, v4")
    A("v_xor_b32 v7, 0x90, v4")
    A("v_lshlrev_b32 v10, 4, v0")
    sO1, sO2, sN, sL, sBase, sT = 60, 61, 62, 63, 64, 66
    A(f"s_lshl_b32 s{sBase}, s{S_B}, 3")
    A(f"s_add_u32 s{sBase}, s{sBase}, s{S_KVH}")
    A(f"s_lshl_b32 s{sBase}, s{sBase}, 4")
    A(f"s_add_u32 s{sBase}, s{sBase}, s{S_S}")
    A(f"s_lshl_b32 s{sBase}, s{sBase}, 1")
    A(f"s_add_u32 s{sBase}, s{sBase}, s{S_B}")
    A(f"s_lshl_b32 s{sBase}, s{sBase}, 1")
    A(f"s_bfe_u32 s{sT}, s{S_S}, 0x10002")
    A(f"s_add_u32 s{sBase}, s{sBase}, s{sT}")
    A(f"s_lshl_b32 s{sBase}, s{sBase}, 17")
    A(f"s_mov_b32 s{sO1}, s{sBase}")
    A("s_mov_b32 s42, 0x8000000")
    A("s_mov_b32 s43, 0x20000")
    A(f"s_mov_b32 s{sN}, 0")
    A(f"s_mov_b32 s{sL}, 0")
    A("v_mov_b32 v16, 0"); A("v_mov_b32 v17, 0"); A("v_mov_b32 v18, 0"); A("v_mov_b32 v19, 0")
    A("s_waitcnt lgkmcnt(0)")
    if stamps:
        A(f"v_writelane_b32 v{VST}, s98, 0")
    A("s_barrier")
    A("s_cmp_lg_u32 s3, 0")
    A("s_cbranch_scc1 L_roles")

    role[0] = "ld"
    A("s_setprio 3")
    A(f"s_mov_b64 s[40:41], s[{P_K}:{P_K+1}]")
    pub_i = (NL - 1) % 8
    pub_d = (pub_i - NL + 1) // 8
    A("L_slot:")
    A("s_waitcnt lgkmcnt(0)")
    A("v_min3_i32 v20, v16, v17, v18")
    A("v_min_i32 v20, v20, v19")
    A(f"s_mov_b32 m0, s{sL}")
    A(f"v_readfirstlane_b32 s{sT}, v20")
    A(f"ds_read_b128 v[16:19], v8 offset:{F_DONE}")
    A(f"s_add_u32 s{sT}, s{sT}, 16")
    A(f"s_cmp_lt_i32 s{sN}, s{sT}")
    A("s_cbranch_scc0 L_full")
    extra = {
        0: [f"s_add_u32 s{sO2}, s{sO1}, 0x8000", f"s_add_i32 s{sT}, s{sN}, {pub_d}", f"v_mov_b32 v21, s{sT}"],
        3: [f"s_add_u32 m0, s{sL}, 0x1000"],
        4: [f"s_add_u32 s{sN}, s{sN}, 1", f"s_and_b32 s{sO1}, s{sN}, 7", f"s_lshl_b32 s{sO1}, s{sO1}, 12"],
        5: [f"s_and_b32 s{sT}, s{sN}, 0x38", f"s_lshl_b32 s{sT}, s{sT}, 13", f"s_or_b32 s{sO1}, s{sO1}, s{sT}"],
        6: [f"s_xor_b32 s{sO1}, s{sO1}, s{sBase}", f"s_add_u32 s{sL}, s{sL}, 0x2000", f"s_and_b32 s{sL}, s{sL}, 0x1ffff"],
    }
    for i in range(8):
        A(f"s_waitcnt vmcnt({NL-1})")
        A(f"buffer_load_dwordx4 v{4+(i&3)}, s[40:43], s{sO1 if i < 4 else sO2} offen offset:{(i&3)*1024} {pK} lds")
        for e in extra.get(i, []):
            A(e)
        if i == pub_i:
            lds_set(8, F_LANDED, 21)
    if stamps:
        for n, k in ((1, 3), (16, 4), (32, 5), (64, 6), (96, 7)):
            l = lab("st")
            A(f"s_cmp_lg_u32 s{sN}, {n}"); A(f"s_cbranch_scc1 {l}"); stamp(k); A(f"{l}:")
    A(f"s_and_b32 s{sT}, s{sN}, 63")
    A("s_cbranch_scc1 L_slot")
    A(f"s_mov_b64 s[40:41], s[{P_V}:{P_V+1}]")
    A(f"s_cmp_lt_u32 s{sN}, 128")
    A("s_cbranch_scc1 L_slot")
    stamp(1)
    A("s_mov_b64 exec, 1")
    for x in range(127 + pub_d + 1, 129):
        A(f"v_mov_b32 v21, {x}")
        A(f"s_waitcnt vmcnt({(128 - x) * 8})")
        A(f"ds_write_b32 v8, v21 offset:{F_LANDED}")
    stamp(2)
    stamp_flush()
    A("s_endpgm")
    A("L_full:")
    spin_guard()
    A("s_branch L_slot")

    A("L_roles:")
    A("s_cmp_lg_u32 s3, 1")
    A("s_cbranch_scc1 L_other")
    role[0] = "aux"
    SWQ, SX, SWS, SG, SU, SOUT = 40, 44, 48, 52, 56, 60
    sO, sTag, sA, sB2, sThr, sLoc = 64, 65, 66, 67, 75, 84
    XB, TF = 64, 96
    if diag is not None:
        A("s_mov_b32 s88, s90")
    A("s_setprio 2")
    srd(SX, P_X, 2048)
    A(f"buffer_load_dwordx4 v[16:19], v10, s[{SX}:{SX+3}], 0 offen")
    A(f"buffer_load_dwordx4 v[20:23], v10, s[{SX}:{SX+3}], 0 offen offset:1024")
    srd(SWQ, P_WQ, 512 * 4096 * 2)
    A("v_lshrrev_b32 v12, 3, v0")
    A("v_and_b32 v13, 7, v0")
    A("v_xor_b32 v13, v13, v3")
    A("v_lshlrev_b32 v13, 4, v13")
    A("v_lshl_or_b32 v14, v12, 13, v13")
    A(f"s_lshr_b32 s{sB2}, s{S_J}, 3")
    A(f"s_lshl_b32 s{sO}, s{sB2}, 20")
    A(f"s_lshl_b32 s{sA}, s{S_KVH}, 10")
    A(f"s_add_u32 s{sO}, s{sO}, s{sA}")
    A(f"s_and_b32 s{sA}, s{S_J}, 7")
    A(f"s_lshl_b32 s{sA}, s{sA}, 7")
    A(f"s_add_u32 s{sO}, s{sO}, s{sA}")
    A(f"s_mov_b32 s{sA}, {hex(L_TILE)}")
    lw = lab("wq")
    A(f"{lw}:")
    A(f"s_mov_b32 m0, s{sA}")
    A(f"s_add_u32 s{sA}, s{sA}, 0x400")
    A(f"buffer_load_dwordx4 v14, s[{SWQ}:{SWQ+3}], s{sO} offen {pW} lds")
    A(f"s_add_u32 s{sO}, s{sO}, 0x10000")
    A(f"s_cmp_lt_u32 s{sA}, {hex(L_TILE + 0x4000)}")
    A(f"s_cbranch_scc1 {lw}")
    srd(SWS, P_WS, WS_BYTES)
    A(f"buffer_load_dword v24, v11, s[{SWS}:{SWS+3}], 0 offen sc1")
    stamp(1)
    A(f"v_add_u32 v25, {hex(L_XN)}, v10")
    A("v_bfe_u32 v15, v0, 3, 1")
    A("v_lshlrev_b32 v26, 10, v15")
    A("v_lshl_add_u32 v26, v1, 3, v26")
    A(f"v_add_u32 v26, {hex(L_XN)}, v26")
    A(f"s_lshl_b32 s{sA}, s{sB2}, 8")
    A(f"v_add_u32 v28, s{sA}, v26")
    A(f"s_and_b32 s{sA}, s{S_J}, 7")
    A(f"s_lshl_b32 s{sA}, s{sA}, 7")
    A(f"v_add_u32 v26, s{sA}, v26")
    A("v_lshrrev_b32 v29, 2, v0")
    A("v_lshlrev_b32 v29, 7, v29")
    A("v_bfe_u32 v30, v0, 3, 2")
    A("v_lshl_or_b32 v29, v30, 5, v29")
    A("v_and_b32 v30, 3, v0")
    A("v_lshl_or_b32 v29, v30, 3, v29")
    A(f"v_add_u32 v160, {hex(L_TILE)}, v29")
    for T in range(1, 4):
        A(f"v_xor_b32 v{160+T}, {32*T}, v160")
    A("v_bfe_u32 v30, v0, 1, 2")
    A("v_lshlrev_b32 v27, 7, v30")
    A("v_lshl_or_b32 v27, v1, 5, v27")
    A("v_and_b32 v30, 1, v0")
    A("v_lshl_or_b32 v27, v30, 4, v27")
    A("v_lshl_or_b32 v31, v15, 14, v27")
    A(f"s_lshl_b32 s{sO}, s{S_KVH}, 15")
    A(f"s_lshl_b32 s{sA}, s{S_J}, 9")
    A(f"s_add_u32 s{sO}, s{sO}, s{sA}")
    A(f"s_add_u32 s{sO}, s{sO}, {hex(W_Q)}")
    A("s_mov_b32 s68, 0xaaaaaaaa"); A("s_mov_b32 s69, s68")
    A("s_mov_b32 s70, 0xcccccccc"); A("s_mov_b32 s71, s70")
    A("s_mov_b32 s72, 0xf0f0f0f0"); A("s_mov_b32 s73, s72")
    A("s_waitcnt vmcnt(17)")
    stamp(2)
    XF = 32
    for b in range(2):
        for i in range(4):
            unpack(XF + 8 * b + 2 * i, 16 + 4 * b + i)
    for b in range(2):
        A(f"v_add_f32 v{48+b}, v{XF+8*b}, v{XF+8*b+1}")
    for i in range(2, 8):
        for b in range(2):
            A(f"v_add_f32 v{48+b}, v{48+b}, v{XF+8*b+i}")
    allreduce([48, 49], "v_add_f32", [50, 51])
    for b in range(2):
        A(f"v_mul_f32 v{48+b}, 0x3b000000, v{48+b}")
    for i in range(8):
        for b in range(2):
            A(f"v_sub_f32 v{52+b}, v{XF+8*b+i}, v{48+b}")
        for b in range(2):
            A(f"{'v_mul_f32' if i == 0 else 'v_fmac_f32'} v{54+b}, v{52+b}, v{52+b}")
    allreduce([54, 55], "v_add_f32", [50, 51])
    for b in range(2):
        A(f"v_mul_f32 v{54+b}, 0x3b000000, v{54+b}")
    A("v_cvt_pk_bf16_f32 v50, v48, v49")
    A("v_cvt_pk_bf16_f32 v51, v54, v55")
    unpack(48, 50)
    unpack(54, 51)
    A("v_add_f32 v54, 0x3727c5ac, v54"); A("v_add_f32 v55, 0x3727c5ac, v55")
    A("v_cvt_pk_bf16_f32 v51, v54, v55")
    unpack(54, 51)
    A("v_sqrt_f32 v54, v54"); A("v_sqrt_f32 v55, v55")
    nop(1)
    A("v_cvt_pk_bf16_f32 v51, v54, v55")
    unpack(54, 51)
    A("v_rcp_f32 v54, v54"); A("v_rcp_f32 v55, v55")
    for b in range(2):
        for i in range(8):
            A(f"v_sub_f32 v{XF+8*b+i}, v{XF+8*b+i}, v{48+b}")
        for i in range(4):
            A(f"v_cvt_pk_bf16_f32 v{56+4*b+i}, v{XF+8*b+2*i}, v{XF+8*b+2*i+1}")
        for i in range(4):
            unpack(XF + 8 * b + 2 * i, 56 + 4 * b + i)
        for i in range(8):
            A(f"v_mul_f32 v{XF+8*b+i}, v{XF+8*b+i}, v{54+b}")
        for i in range(4):
            A(f"v_cvt_pk_bf16_f32 v{56+4*b+i}, v{XF+8*b+2*i}, v{XF+8*b+2*i+1}")
        A(f"ds_write_b128 v25, v[{56+4*b}:{59+4*b}] offset:{1024*b}")
    A("s_waitcnt lgkmcnt(0)")
    for s in range(4):
        A(f"ds_read2_b64 v[{XB+4*s}:{XB+4*s+3}], v28 offset0:{8*s} offset1:{8*s+4}")
    stamp(3)
    A("s_waitcnt vmcnt(0)")
    stamp(4)

    def tile_mfma(acc_of, b_of, first):
        for hf in range(2):
            for s in range(2 * hf, 2 * hf + 2):
                for T in range(4):
                    r = TF + 16 * s + 4 * T
                    A(f"ds_read_b64_tr_b16 v[{r}:{r+1}], v{160+T} offset:{s*4096}")
                    A(f"ds_read_b64_tr_b16 v[{r+2}:{r+3}], v{160+T} offset:{s*4096+2048}")
                if s == 2 * hf:
                    A("s_waitcnt lgkmcnt(4)")
            A("s_waitcnt lgkmcnt(0)")
            for s in range(2 * hf, 2 * hf + 2):
                for T in range(4):
                    r = TF + 16 * s + 4 * T
                    d = acc_of(s, T)
                    c = "0" if first(s) else f"v[{d}:{d+3}]"
                    A(f"v_mfma_f32_16x16x32_bf16 v[{d}:{d+3}], v[{r}:{r+3}], v[{b_of(s)}:{b_of(s)+3}], {c}")

    def select_granule(D, out):
        for T in range(4):
            A(f"v_cndmask_b32 v{D+4*T}, v{D+4*T}, v{D+2+4*T}, s[68:69]")
            A(f"v_cndmask_b32 v{D+1+4*T}, v{D+1+4*T}, v{D+3+4*T}, s[68:69]")
        for T in (0, 2):
            A(f"v_cndmask_b32 v{D+4*T}, v{D+4*T}, v{D+4+4*T}, s[70:71]")
            A(f"v_cndmask_b32 v{D+1+4*T}, v{D+1+4*T}, v{D+5+4*T}, s[70:71]")
        A(f"v_cndmask_b32 v{out}, v{D}, v{D+8}, s[72:73]")
        A(f"v_cndmask_b32 v{out+2}, v{D+1}, v{D+9}, s[72:73]")

    tile_mfma(lambda s, T: 32 + 4 * T, lambda s: XB + 4 * s, lambda s: s == 0)
    make_tag(sTag, 24)
    local_tag(sA, sTag)
    A(f"v_mov_b32 v17, s{sA}")
    A(f"v_mov_b32 v19, s{sA}")
    select_granule(32, 16)
    A(f"buffer_store_dwordx4 v[16:19], v31, s[{SWS}:{SWS+3}], s{sO} offen")
    A("v_mov_b32 v80, 1")
    lds_set(8, F_QPUB, 80)
    A("s_setprio 0")
    A(f"s_add_u32 s{sO}, s{sO}, {hex(W_QB - W_Q)}")
    A(f"v_mov_b32 v17, s{sTag}")
    A(f"v_mov_b32 v19, s{sTag}")
    A(f"s_mov_b32 s{sB2}, 1")
    stamp(5)
    A("L_qserve:")
    A(f"ds_read_b128 v[44:47], v8 offset:{F_QRDY}")
    A(f"ds_read_b32 v48, v8 offset:{F_BREQ}")
    spin_guard()
    A("s_waitcnt lgkmcnt(0)")
    A("v_min3_i32 v44, v44, v45, v46")
    A("v_min_i32 v44, v44, v47")
    A(f"v_readfirstlane_b32 s{sA}, v48")
    A(f"v_readfirstlane_b32 s{sLoc}, v44")
    A(f"s_and_b32 s{sA}, s{sA}, s{sB2}")
    A("s_cbranch_scc0 L_qnob")
    A(f"buffer_store_dwordx4 v[16:19], v31, s[{SWS}:{SWS+3}], s{sO} offen sc1")
    A(f"s_mov_b32 s{sB2}, 0")
    A("L_qnob:")
    A(f"s_cmp_eq_u32 s{sLoc}, 0")
    A("s_cbranch_scc1 L_qserve")
    if skew is not None:
        A("v_mov_b32 v44, s90"); A("s_lshl_b32 s87, s2, 2"); A(f"s_add_u32 s87, s87, {hex(W_STAMP)}")
        A("s_mov_b64 exec, 1"); A(f"buffer_store_dword v44, v11, s[{SWS}:{SWS+3}], s87 offen sc1"); A("s_mov_b64 exec, -1")
    A(f"s_cmp_ge_u32 s{S_KVH}, {0 if noffn else 7}")
    A("s_cbranch_scc1 L_noffn1")
    for s in range(2):
        A(f"ds_read2_b64 v[{XB+4*s}:{XB+4*s+3}], v26 offset0:{8*s} offset1:{8*s+4}")
    srd(SG, P_G, 0 if nogu else 512 * 1792 * 2)
    A("v_mul_u32_u24 v14, 3584, v12")
    A("v_add_u32 v14, v14, v13")
    A(f"v_mov_b32 v21, s{sTag}")
    A(f"v_mov_b32 v23, s{sTag}")
    A(f"s_and_b32 s{sB2}, s{S_J}, 7")
    A(f"s_mul_i32 s{sB2}, s{sB2}, {64*3584}")
    A(f"s_lshr_b32 s{sA}, s{S_W}, 3")
    A(f"s_lshl_b32 s{sA}, s{sA}, 7")
    A(f"s_add_u32 s{sB2}, s{sB2}, s{sA}")
    A(f"s_mov_b32 s{sO}, s{sB2}")
    lds_wait(F_DONE, FFN_AT, 44, sA)
    stamp(6)
    A(f"s_mov_b32 s{sA}, {hex(L_TILE)}")
    lw = lab("ft")
    A(f"{lw}:")
    A(f"s_mov_b32 m0, s{sA}")
    A(f"s_waitcnt vmcnt({AUXNL-1})")
    A(f"buffer_load_dwordx4 v14, s[{SG}:{SG+3}], s{sO} offen {pW if pF is None else pF} lds")
    A(f"s_add_u32 s{sA}, s{sA}, 0x400")
    A(f"s_add_u32 s{sO}, s{sO}, {8*3584}")
    A(f"s_and_b32 s74, s{sA}, 0x1fff")
    A(f"s_cbranch_scc1 {lw}")
    A(f"s_mov_b64 s[{SG}:{SG+1}], s[{P_U}:{P_U+1}]")
    A(f"s_mov_b32 s{sO}, s{sB2}")
    A(f"s_cmp_lt_u32 s{sA}, {hex(L_TILE + 0x4000)}")
    A(f"s_cbranch_scc1 {lw}")
    A("v_lshl_or_b32 v30, v15, 9, v27")
    A(f"s_lshl_b32 s{sO}, s{S_W}, 11")
    A(f"s_add_u32 s{sO}, s{sO}, {hex(W_F)}")
    A("s_waitcnt vmcnt(0)")
    tile_mfma(lambda s, T: 32 + 16 * (s >> 1) + 4 * T, lambda s: XB + 4 * (s & 1), lambda s: s in (0, 2))
    select_granule(32, 16)
    select_granule(48, 20)
    store_by(sLoc, [f"buffer_store_dwordx4 v[16:19], v30, s[{SWS}:{SWS+3}], s{sO} offen",
                    f"buffer_store_dwordx4 v[20:23], v30, s[{SWS}:{SWS+3}], s{sO} offen offset:1024"])
    A("L_noffn1:")
    lds_set(8, F_TILE, 80)
    stamp(7)
    lds_wait(F_DONE, GATH_AT, 44, sA)
    A("v_mov_b32 v40, 0")
    A("v_mov_b32 v41, 0")
    A(f"s_cmp_ge_u32 s{S_KVH}, {0 if noffn else 7}")
    A("s_cbranch_scc1 L_noffn2")
    A("v_and_b32 v30, 7, v0")
    A("v_lshlrev_b32 v30, 11, v30")
    A("v_lshl_or_b32 v30, v15, 9, v30")
    A("v_lshl_or_b32 v30, v1, 5, v30")
    A(f"s_lshr_b32 s{sO}, s{S_W}, 3")
    A(f"s_lshl_b32 s{sO}, s{sO}, 14")
    A(f"s_and_b32 s{sA}, s{S_RB}, 3")
    A(f"s_lshl_b32 s{sA}, s{sA}, 7")
    A(f"s_add_u32 s{sO}, s{sO}, s{sA}")
    A(f"s_add_u32 s{sO}, s{sO}, {hex(W_F)}")
    lq = lab("fpoll")
    A(f"{lq}:")
    for i, off in enumerate((0, 16, 1024, 1040)):
        A(f"buffer_load_dwordx4 v[{44+4*i}:{47+4*i}], v30, s[{SWS}:{SWS+3}], s{sO} offen offset:{off} sc1")
    spin_guard()
    A("s_waitcnt vmcnt(0)")
    tag_check(44, 8, sTag, 60, 61)
    A(f"s_cbranch_vccnz {lq}")
    allreduce([44 + 2 * i for i in range(8)], "v_add_f32", [], steps=("x1", "x2", "hm"))
    for i in range(4):
        A(f"v_cvt_pk_bf16_f32 v40, v{44+4*i}, v{46+4*i}")
        unpack(32 + 2 * i, 40)
    A("s_mov_b32 s68, 0x3d372713")
    A("s_mov_b32 s69, 0xc0135761")
    for i in range(4):
        A(f"v_mul_f32 v{44+i}, v{32+i}, v{32+i}")
        A(f"v_fma_f32 v{44+i}, v{44+i}, s68, 1.0")
        A(f"v_mul_f32 v{44+i}, v{44+i}, v{32+i}")
        A(f"v_mul_f32 v{44+i}, s69, v{44+i}")
        A(f"v_exp_f32 v{44+i}, v{44+i}")
    nop(1)
    for i in range(4):
        A(f"v_add_f32 v{44+i}, 1.0, v{44+i}")
    for i in range(4):
        A(f"v_rcp_f32 v{44+i}, v{44+i}")
    nop(1)
    for i in range(4):
        A(f"v_mul_f32 v{32+i}, v{32+i}, v{44+i}")
    for r in (32, 34):
        A(f"v_cvt_pk_bf16_f32 v40, v{r}, v{r+1}")
        unpack(r, 40)
    for i in range(4):
        A(f"v_mul_f32 v{32+i}, v{32+i}, v{36+i}")
    A("v_cvt_pk_bf16_f32 v40, v32, v33")
    A("v_cvt_pk_bf16_f32 v41, v34, v35")
    A("L_noffn2:")
    A("v_lshlrev_b32 v42, 3, v0")
    A(f"v_add_u32 v43, {hex(L_H)}, v42")
    A("ds_write_b64 v43, v[40:41]")
    lds_set(8, F_HRDY, 80)
    srd(SOUT, P_OUT, 2048)
    A(f"s_lshl_b32 s{sO}, s{S_W}, 3")
    A(f"buffer_load_dwordx2 v[52:53], v11, s[{SX}:{SX+3}], s{sO} offen")
    for i in range(4):
        A(f"s_bfe_u32 s{70+i}, s{sTag}, {hex(0x80000 + 8*i)}")
    A(f"s_lshr_b32 s{sA}, s{S_KVH}, 2")
    A(f"s_lshl_b32 s{sA}, s{sA}, 18")
    A(f"s_and_b32 s{sB2}, s{S_W}, 127")
    A(f"s_lshl_b32 s{sB2}, s{sB2}, 4")
    A(f"s_add_u32 s{sA}, s{sA}, s{sB2}")
    A(f"s_add_u32 s{sA}, s{sA}, {hex(W_Y)}")
    A(f"s_add_u32 s{sB2}, s{sA}, 0x20000")
    A("v_lshlrev_b32 v41, 11, v0")
    A("s_waitcnt vmcnt(0)")
    unpack(56, 52)
    unpack(58, 53)
    A(f"v_mov_b32 v60, s{sTag}")
    stamp(8)
    A(f"s_mov_b32 s{sThr}, -1")
    A("s_cmp_eq_u32 s2, 0")
    A("s_cselect_b32 s78, 1, 0")
    A("s_mov_b32 s79, 0")
    if findry:
        A("s_branch L_ysum")
    A("L_fin_real:")
    A(f"s_mov_b32 s{sThr}, -2")
    A("s_waitcnt vmcnt(0)")
    A("s_mov_b64 exec, -1")
    lds_wait(F_LANDED, 128, 44, 68) if yearly else lds_wait(F_YDONE, 1, 44, 68)
    A("s_setprio 3")
    A("s_mov_b64 vcc, -1")
    stamp(9)
    A("L_ypoll:")
    A("s_mov_b64 exec, vcc")
    A(f"buffer_load_dwordx4 v[44:47], v41, s[{SWS}:{SWS+3}], s{sA} offen sc1")
    A(f"buffer_load_dwordx4 v[48:51], v41, s[{SWS}:{SWS+3}], s{sB2} offen sc1")
    spin_guard()
    A("s_waitcnt vmcnt(0)")
    for i in range(8):
        A(f"v_xor_b32 v{44+i}, s{70+(i&3)}, v{44+i}")
    A("v_or3_b32 v52, v44, v45, v46")
    A("v_or3_b32 v53, v47, v48, v49")
    A("v_or3_b32 v52, v52, v50, v51")
    A("v_or_b32 v52, v52, v53")
    A("v_and_b32 v52, 0xff, v52")
    A("v_cmp_ne_u32 vcc, 0, v52")
    A("s_cbranch_vccnz L_ypoll")
    A("s_mov_b64 exec, -1")
    stamp(10)
    A("L_ysum:")
    for i in range(4):
        A(f"v_add_f32 v{44+i}, v{44+i}, v{48+i}")
    allreduce([44, 45, 46, 47], "v_add_f32", [48, 49, 50, 51])
    for i in range(4):
        A(f"v_add_f32 v{44+i}, v{44+i}, v{56+i}")
    A("v_cvt_pk_bf16_f32 v48, v44, v45")
    A("v_cvt_pk_bf16_f32 v49, v46, v47")
    A("s_mov_b64 exec, 1")
    A(f"buffer_store_dwordx2 v[48:49], v11, s[{SOUT}:{SOUT+3}], s{sO} offen")
    A(f"s_cmp_eq_u32 s{sThr}, -1")
    A("s_cbranch_scc1 L_fin_real")
    le = lab("noep")
    A("s_mov_b64 exec, s[78:79]")
    A(f"s_cbranch_execz {le}")
    A(f"buffer_store_dword v60, v11, s[{SWS}:{SWS+3}], 0 offen sc1")
    A(f"{le}:")
    stamp(11)
    stamp_flush()
    if diag is not None:
        A("s_sub_u32 s88, s88, s90")
        if skew is not None:
            A("s_mov_b64 exec, -1"); A(f"s_mov_b32 s87, {hex(W_STAMP)}"); A("v_lshlrev_b32 v44, 2, v0")
            A(f"buffer_load_dword v45, v44, s[{SWS}:{SWS+3}], s87 offen sc1"); A("s_waitcnt vmcnt(0)")
            A("v_subrev_u32 v45, s90, v45"); A("v_mov_b32 v46, v45")
            allreduce([45], "v_min_i32", [47]); allreduce([46], "v_max_i32", [47])
            nop(1)
            A("v_readfirstlane_b32 s86, v45"); A("v_readfirstlane_b32 s87, v46")
            A("s_sub_u32 s87, s87, s86"); A(f"s_mul_i32 s87, s87, {skew}"); A("s_add_u32 s88, s88, s87"); A("s_add_u32 s88, s88, s86")
        A("s_add_u32 s88, s88, 10000")
        A("L_diag:")
        A("s_memrealtime s[86:87]")
        A("s_waitcnt lgkmcnt(0)")
        A("s_sub_u32 s86, s86, s90")
        A("s_cmp_lt_u32 s86, s88")
        A("s_cbranch_scc1 L_diag")
    A("s_endpgm")

    role[0] = "cons"
    SWS = 48
    sC, sLd, sTg, sL2E, sSc, sA, sB2, sTag, sLoc = 60, 61, 62, 63, 64, 65, 66, 67, 84
    AV, VDN, AK = 6, 9, 144
    S, O, KF, Q, SV = 16, 24, 32, 64, 128
    VF, PF = 32, 40
    vM, vNM, vL, vT, vT2, vPW, vPR = 152, 153, 154, 155, 156, 157, 158
    A("L_other:")
    srd(SWS, P_WS, WS_BYTES)
    A(f"buffer_load_dword v164, v11, s[{SWS}:{SWS+3}], 0 offen sc1")
    A("s_cmp_ge_u32 s3, 6")
    A("s_cbranch_scc1 L_tail")
    A("s_setprio 1")
    A(f"s_sub_u32 s{sC}, s3, 2")
    A(f"s_lshr_b32 s69, s{S_W}, 4")
    A("s_lshl_b32 s69, s69, 14")
    A(f"s_lshl_b32 s{sA}, s{sC}, 10")
    A(f"s_add_u32 s69, s69, s{sA}")
    A(f"s_add_u32 s69, s69, {hex(W_Q)}")
    if True:
        A("v_lshrrev_b32 v12, 3, v0")
        A("v_and_b32 v13, 7, v0")
        A("v_lshlrev_b32 v13, 7, v13")
        A("v_lshl_or_b32 v12, v12, 12, v13")
        A("s_mov_b32 exec_hi, 0")
        A(f"buffer_load_dword v166, v12, s[{SWS}:{SWS+3}], s69 offen sc1")
        A("s_mov_b32 exec_hi, -1")
    A("s_add_u32 s70, s69, 0x1000")
    A("s_add_u32 s71, s69, 0x2000")
    A("s_add_u32 s72, s69, 0x3000")
    A(f"s_mov_b32 s{sL2E}, {hex(LOG2E)}")
    A(f"s_mov_b32 s{sSc}, {hex(SCALE)}")
    A("v_and_b32 v15, 3, v0")
    A("v_lshlrev_b32 v160, 9, v15")
    A(f"v_bfe_u32 v{vT2}, v0, 2, 1")
    A(f"v_lshl_or_b32 v160, v{vT2}, 6, v160")
    A("v_lshl_or_b32 v160, v1, 4, v160")
    A(f"s_lshl_b32 s68, s{S_W}, 11")
    A(f"s_lshl_b32 s{sA}, s{sC}, 7")
    A(f"s_add_u32 s68, s68, s{sA}")
    A(f"s_add_u32 s68, s68, {hex(W_O)}")
    A(f"s_lshl_b32 s73, s{S_KVH}, 2")
    A(f"s_add_u32 s73, s73, s{sC}")
    A("s_lshl_b32 s73, s73, 1")
    A(f"s_add_u32 s73, s73, s{S_B}")
    A("s_lshl_b32 s73, s73, 3")
    A(f"s_and_b32 s{sA}, s{S_S}, 7")
    A(f"s_add_u32 s73, s73, s{sA}")
    A("s_lshl_b32 s73, s73, 1")
    A(f"s_lshr_b32 s{sA}, s{S_S}, 3")
    A(f"s_add_u32 s73, s73, s{sA}")
    A("s_lshl_b32 s73, s73, 4")
    A(f"s_add_u32 s73, s73, {hex(W_ML)}")
    A(f"v_lshlrev_b32 v{vPR}, 4, v15")
    A(f"v_lshl_or_b32 v{vPR}, v1, 6, v{vPR}")
    A(f"v_add_u32 v{vPR}, {hex(L_TILE)}, v{vPR}")
    A(f"v_bfe_u32 v{vT}, v0, 2, 2")
    A(f"v_lshl_add_u32 v{vPW}, v{vT}, 10, v{vPR}")
    A(f"s_lshl_b32 s{sA}, s{sC}, 8")
    A(f"v_add_u32 v{vPW}, s{sA}, v{vPW}")
    A(f"s_add_u32 s{sA}, s{sA}, {hex(L_Q)}")
    A(f"v_lshl_add_u32 v2, v0, 2, s{sA}")
    A("v_lshlrev_b32 v3, 8, v15")
    A("v_lshl_add_u32 v3, v1, 6, v3")
    A(f"v_add_u32 v3, {hex(L_Q)}, v3")
    A("v_lshl_add_u32 v4, v15, 4, v8")
    A(f"s_lshl_b32 s{sA}, s{sC}, 2")
    A(f"v_add_u32 v5, s{sA}, v4")
    A(f"v_add_u32 v{VDN}, s{sA}, v8")
    A("v_and_b32 v14, 15, v0")
    A("v_and_b32 v12, 7, v0")
    A("v_lshlrev_b32 v12, 1, v12")
    A("v_bfe_u32 v13, v0, 3, 1")
    A("v_or_b32 v12, v12, v13")
    A("v_lshlrev_b32 v13, 2, v1")
    A("v_xor_b32 v12, v12, v13")
    A("v_lshlrev_b32 v12, 4, v12")
    A("v_lshl_or_b32 v12, v14, 8, v12")
    A(f"s_lshl_b32 s{sA}, s{sC}, 13")
    A(f"v_or_b32 v{AK}, s{sA}, v12")
    for s in range(1, 8):
        A(f"v_xor_b32 v{AK+s}, {hex(16*(s&3) + 0x10000*(s>>2))}, v{AK}")
    vaddr_T0(13, 12, 14, 15)
    A(f"s_lshl_b32 s{sA}, s{sC}, 6")
    A(f"v_xor_b32 v{AV}, s{sA}, v13")
    A(f"v_xor_b32 v{AV+1}, 32, v{AV}")
    A(f"s_mov_b32 s{sLd}, 0")
    A(f"s_sub_u32 s{sTg}, s{sC}, 3")
    A(f"v_mov_b32 v{vM}, 0xff800000")
    A(f"v_mov_b32 v{vL}, 0")
    for i in range(8):
        A(f"v_mov_b32 v{O+i}, 0")
    A("s_mov_b32 s76, 0x000f000f"); A("s_mov_b32 s77, s76")
    for g in range(1, 4):
        A(f"s_lshl_b64 s[{76+2*g}:{77+2*g}], s[76:77], {4*g}")
    A("v_mov_b32 v159, 1")
    A("s_waitcnt vmcnt(0)")
    make_tag(sTag, 164)
    local_tag(74, sTag)
    stamp(1)
    lds_wait(F_QPUB, 1, vT, sA)
    stamp(5)
    A("s_mov_b64 vcc, -1")
    A(f"s_mov_b32 s{sB2}, 0")
    A("L_qpoll:")
    A(f"s_add_u32 s{sB2}, s{sB2}, 1")
    A(f"s_and_b32 s{sA}, s{sB2}, {(QB_EVERY - 1) if fast else 0}")
    A(f"s_cselect_b32 s{sA}, 0, {hex(W_QB - W_Q)}")
    A(f"s_cselect_b32 s75, s74, s{sTag}")
    A("s_cselect_b64 exec, 0, 1")
    A(f"ds_write_b32 v8, v159 offset:{F_BREQ}")
    A("s_mov_b64 exec, vcc")
    A(f"v_add_u32 v15, s{sA}, v10")
    for kb in range(4):
        A(f"buffer_load_dwordx4 v[{KF+4*kb}:{KF+4*kb+3}], v15, s[{SWS}:{SWS+3}], s{69+kb} offen sc1")
    spin_guard()
    A("s_waitcnt vmcnt(0)")
    tag_check(KF, 8, 75, vT, vT2)
    A("s_cbranch_vccnz L_qpoll")
    A("s_mov_b64 exec, -1")
    stamp(6)
    for kb in range(1, 4):
        A(f"v_add_f32 v{KF}, v{KF}, v{KF+4*kb}")
        A(f"v_add_f32 v{KF+2}, v{KF+2}, v{KF+4*kb+2}")
    A(f"v_cvt_pk_bf16_f32 v{vT}, v{KF}, v{KF+2}")
    A(f"ds_write_b32 v2, v{vT}")
    A(f"s_cmp_lt_u32 s{sB2}, {QB_EVERY if fast else 0}")
    A(f"s_cselect_b32 s{sA}, 2, 1")
    A(f"v_mov_b32 v{vT2}, s{sA}")
    lds_set(VDN, F_QRDY, vT2)
    lds_wait4(F_QRDY, 1, S, [f"ds_read_b128 v[{KF+4*s}:{KF+4*s+3}], v3 offset:{16*s}" for s in range(4)])
    A(f"v_readfirstlane_b32 s{sLoc}, v{S}")
    for g in range(4):
        for i in range(16):
            A(f"v_cndmask_b32 v{Q+16*g+i}, 0, v{KF+i}, s[{76+2*g}:{77+2*g}]")
    stamp(2)

    def wait_landed(tgt):
        lo, ls = lab("lo"), lab("ls")
        A(f"s_cmp_ge_i32 s{sLd}, {tgt}")
        A(f"s_cbranch_scc1 {lo}")
        A(f"{ls}:")
        A(f"ds_read_b32 v{vT}, v8 offset:{F_LANDED}")
        spin_guard()
        A("s_waitcnt lgkmcnt(0)")
        A(f"v_readfirstlane_b32 s{sLd}, v{vT}")
        A(f"s_cmp_ge_i32 s{sLd}, {tgt}")
        A(f"s_cbranch_scc0 {ls}")
        A(f"{lo}:")

    A("L_kwin:")
    for g in range(4):
        A(f"s_add_u32 s{sTg}, s{sTg}, 4")
        wait_landed(f"s{sTg}")
        for t in range(2):
            for s in range(4):
                r = KF + 16 * t + 4 * s
                A(f"ds_read_b128 v[{r}:{r+3}], v{AK + 4*(g>>1) + s} offset:{(g&1)*32768 + t*4096}")
        A(f"s_add_u32 s{sA}, s{sTg}, 3")
        A(f"s_min_u32 s{sA}, s{sA}, 64")
        A(f"v_mov_b32 v{vT2}, s{sA}")
        for t in range(2):
            A(f"s_waitcnt lgkmcnt({4 if t == 0 else 0})")
            if t == 1:
                lds_set(VDN, F_DONE, vT2)
            for s in range(4):
                r = KF + 16 * t + 4 * s
                c = "0" if (g == 0 and s == 0) else f"v[{S+4*t}:{S+4*t+3}]"
                q = Q + 16 * g + 4 * s
                A(f"v_mfma_f32_16x16x32_bf16 v[{S+4*t}:{S+4*t+3}], v[{r}:{r+3}], v[{q}:{q+3}], {c}")
    for i in range(12):
        A(f"v_mov_b32 v{SV+i}, v{SV+4+i}")
    for i in range(4):
        A(f"v_cvt_pk_bf16_f32 v{SV+12+i}, v{S+2*i}, v{S+2*i+1}")
    for i in range(4):
        unpack(S + 2 * i, SV + 12 + i)
    for i in range(8):
        A(f"v_mul_f32 v{S+i}, s{sSc}, v{S+i}")
    for i in range(4):
        A(f"v_cvt_pk_bf16_f32 v{SV+12+i}, v{S+2*i}, v{S+2*i+1}")
    A(f"v_max3_f32 v{vM}, v{vM}, v{S}, v{S+1}")
    A(f"v_max3_f32 v{vT}, v{S+2}, v{S+3}, v{S+4}")
    A(f"v_max3_f32 v{vM}, v{vM}, v{S+5}, v{S+6}")
    A(f"v_max3_f32 v{vM}, v{vM}, v{vT}, v{S+7}")
    A(f"s_cmp_lt_u32 s{sTg}, 60")
    A("s_cbranch_scc1 L_kwin")
    stamp(3)
    for i in range(4):
        A(f"v_mov_b32 v{KF+8+i}, -1")
    A("s_mov_b32 exec_lo, 0x00ff00ff"); A("s_mov_b32 exec_hi, 0x00ff00ff")
    store_by(sLoc, [f"buffer_store_dwordx4 v[{KF+8}:{KF+11}], v160, s[{SWS}:{SWS+3}], s68 offen"])
    A("s_mov_b64 exec, -1")
    allreduce([vM], "v_max_f32", [vT], steps=("r4", "r8", "p16", "p32"))
    A("s_mov_b64 exec, 15")
    A(f"ds_write_b32 v5, v{vM} offset:{L_M - L_FLAG}")
    lds_set(VDN, F_MRDY, 159)
    lds_wait(F_TILE, 1, vT, sA)
    lds_wait4(F_MRDY, 1, S, [f"ds_read_b128 v[{S+4}:{S+7}], v4 offset:{L_M - L_FLAG}"])
    A(f"v_max3_f32 v{vM}, v{S+4}, v{S+5}, v{S+6}")
    A(f"v_max_f32 v{vM}, v{vM}, v{S+7}")
    A(f"v_cvt_pk_bf16_f32 v{vM}, v{vM}, v{vM}")
    A(f"v_and_b32 v{vM}, 0xffff0000, v{vM}")
    A(f"v_mul_f32 v{vM}, s{sL2E}, v{vM}")
    A(f"s_mov_b32 s{sA}, 4")
    A("L_pwin:")
    for i in range(4):
        unpack(S + 2 * i, SV + i)
    for i in range(8):
        A(f"v_fma_f32 v{S+i}, v{S+i}, s{sL2E}, -v{vM}")
    for i in range(8):
        A(f"v_exp_f32 v{S+i}, v{S+i}")
    for i in range(12):
        A(f"v_mov_b32 v{SV+i}, v{SV+4+i}")
    A("s_waitcnt lgkmcnt(0)")
    for i in range(4):
        A(f"v_cvt_pk_bf16_f32 v{KF+i}, v{S+2*i}, v{S+2*i+1}")
    A(f"ds_write_b128 v{vPW}, v[{KF}:{KF+3}]")
    for i in range(8):
        A(f"v_add_f32 v{vL}, v{vL}, v{S+i}")
    A(f"v_add_u32 v{vPW}, 0x1000, v{vPW}")
    A(f"s_sub_u32 s{sA}, s{sA}, 1")
    A(f"s_cmp_lg_u32 s{sA}, 0")
    A("s_cbranch_scc1 L_pwin")
    allreduce([vL], "v_add_f32", [vT], steps=("r4", "r8", "p16", "p32"))
    A("s_mov_b64 exec, 15")
    A(f"ds_write_b32 v5, v{vL} offset:{L_L - L_FLAG}")
    A("s_waitcnt vmcnt(0)")
    lds_set(VDN, F_PRDY, 159)
    lds_wait4(F_PRDY, 1, S, [f"ds_read_b128 v[{S+4}:{S+7}], v4 offset:{L_L - L_FLAG}"])
    A(f"v_add_f32 v{S+4}, v{S+4}, v{S+5}")
    A(f"v_add_f32 v{S+6}, v{S+6}, v{S+7}")
    A(f"v_mov_b32 v{S}, v{vM}")
    A(f"v_mov_b32 v{S+1}, s{sTag}")
    A(f"v_add_f32 v{S+2}, v{S+4}, v{S+6}")
    A(f"v_mov_b32 v{S+3}, s{sTag}")
    A(f"s_lshl_b64 exec, 1, s{sC}")
    store_by(sLoc, [f"buffer_store_dwordx4 v[{S}:{S+3}], v11, s[{SWS}:{SWS+3}], s73 offen"])
    A("s_mov_b64 exec, -1")
    A(f"s_mov_b32 s{sTg}, 64")
    stamp(7)
    A("L_vwin:")
    for g in range(4):
        A(f"ds_read_b128 v[{PF}:{PF+3}], v{vPR} offset:{g*256}")
        A(f"s_add_u32 s{sTg}, s{sTg}, 1")
        wait_landed(f"s{sTg}")
        for tt in range(2):
            for h in range(2):
                r = VF + 4 * tt + 2 * h
                A(f"ds_read_b64_tr_b16 v[{r}:{r+1}], v{AV+tt} offset:{g*8192 + h*4096}")
        A(f"v_mov_b32 v{vT2}, s{sTg}")
        for tt in range(2):
            A(f"s_waitcnt lgkmcnt({2 if tt == 0 else 0})")
            A(f"v_mfma_f32_16x16x32_bf16 v[{O+4*tt}:{O+4*tt+3}], v[{VF+4*tt}:{VF+4*tt+3}], v[{PF}:{PF+3}], v[{O+4*tt}:{O+4*tt+3}]")
        lds_set(VDN, F_DONE, vT2)
    A(f"s_cmp_eq_u32 s{sTg}, 128")
    A("s_cbranch_scc1 L_vend")
    for tt in range(2):
        A(f"v_add_u32 v{AV+tt}, 0x8000, v{AV+tt}")
        A(f"v_and_b32 v{AV+tt}, 0x1ffff, v{AV+tt}")
    A(f"v_add_u32 v{vPR}, 0x400, v{vPR}")
    A("s_branch L_vwin")
    A("L_vend:")
    A(f"s_cmp_eq_u32 s{sLoc}, 2")
    nop(2)
    for i in range(4):
        A(f"v_mov_b32_dpp v{O+i}, v{O+4+i} row_shr:4 row_mask:0xf bank_mask:0x2")
    A("s_mov_b32 exec_lo, 0x00ff00ff"); A("s_mov_b32 exec_hi, 0x00ff00ff")
    A("s_cbranch_scc0 L_o_far")
    A(f"buffer_store_dwordx4 v[{O}:{O+3}], v160, s[{SWS}:{SWS+3}], s68 offen")
    A("L_o_end:")
    stamp(4)
    stamp_flush()
    A("s_endpgm")
    A("L_o_far:")
    A(f"buffer_store_dwordx4 v[{O}:{O+3}], v160, s[{SWS}:{SWS+3}], s68 offen sc1")
    A("s_branch L_o_end")

    role[0] = "tail"
    SWO, SD = 40, 44
    sTw, sThr, sDry, sA, sB2, sTag, sWo, sDo = 60, 61, 62, 65, 66, 67, 63, 64
    GO, WF, DF, Y = 32, 64, 96, 112
    A("L_tail:")
    A(f"s_sub_u32 s{sTw}, s3, 6")
    srd(SWO, P_WO, 0 if nowt else 4096 * 512 * 2)
    srd(SD, P_D, 0 if nowt else 1792 * 512 * 2)
    A("v_lshl_or_b32 v4, v1, 10, v2")
    A("v_xor_b32 v5, 0x80, v4"); A("v_add_u32 v5, 3072, v5")
    A("v_xor_b32 v6, 16, v4"); A("v_add_u32 v6, 6144, v6")
    A("v_xor_b32 v7, 0x90, v4"); A("v_add_u32 v7, 9216, v7")
    A(f"s_lshl_b32 s{sB2}, s{S_CH}, 1")
    A(f"s_add_u32 s{sB2}, s{sB2}, s{sTw}")
    A(f"s_lshl_b32 s{sB2}, s{sB2}, 8")
    A(f"s_lshr_b32 s{sWo}, s{S_W}, 1")
    A(f"s_lshl_b32 s{sWo}, s{sWo}, 15")
    A(f"s_add_u32 s{sWo}, s{sWo}, s{sB2}")
    A(f"s_add_u32 s82, s{sWo}, 0x4000")
    A(f"s_lshr_b32 s{sDo}, s{S_W}, 1")
    A(f"s_lshl_b32 s{sDo}, s{sDo}, 14")
    A(f"s_add_u32 s{sDo}, s{sDo}, s{sB2}")
    A(f"s_cmp_lt_u32 s{S_KVH}, 7")
    A(f"s_cselect_b32 s{sDo}, s{sDo}, 0")
    A(f"s_cselect_b32 s{SD+2}, s{SD+2}, 0")
    A(f"s_lshl_b32 s83, s{sTw}, 13")
    A(f"s_lshl_b32 s84, s{sTw}, 12")
    A("s_add_u32 s84, s84, 0x4000")
    vaddr_T0(13, 12, 14, 15)
    for T in range(8):
        A(f"v_xor_b32 v12, {32*T}, v13")
        A(f"v_add_u32 v{144+T}, s83, v12")
        A(f"v_add_u32 v{152+T}, s84, v12")
    A("v_lshlrev_b32 v14, 3, v0")
    A(f"v_add_u32 v14, {hex(L_H)}, v14")
    A("v_and_b32 v161, 15, v0")
    A("v_lshlrev_b32 v161, 5, v161")
    A(f"s_lshr_b32 s69, s{S_W}, 3")
    A("s_lshl_b32 s69, s69, 9")
    A(f"s_add_u32 s69, s69, {hex(W_ML)}")
    A("v_and_b32 v162, 7, v0")
    A("v_lshlrev_b32 v162, 11, v162")
    A("v_bfe_u32 v12, v0, 3, 1")
    A("v_lshl_or_b32 v162, v12, 15, v162")
    A("v_lshl_or_b32 v162, v1, 4, v162")
    A(f"s_lshl_b32 s70, s{S_KVH}, 16")
    A(f"s_lshl_b32 s{sA}, s{S_RB}, 7")
    A(f"s_add_u32 s70, s70, s{sA}")
    A(f"s_add_u32 s70, s70, {hex(W_O)}")
    A("s_add_u32 s71, s70, 0x4000")
    A("v_lshlrev_b32 v163, 18, v12")
    A("v_bfe_u32 v12, v0, 2, 1")
    A("v_lshl_or_b32 v163, v12, 6, v163")
    A("v_lshl_or_b32 v163, v1, 4, v163")
    A(f"s_lshl_b32 s72, s{S_W}, 10")
    A(f"s_lshl_b32 s{sA}, s{sTw}, 9")
    A(f"s_add_u32 s72, s72, s{sA}")
    A(f"s_add_u32 s72, s72, {hex(W_Y)}")
    A("s_mov_b64 exec, 1")
    A(f"buffer_load_dword v18, v11, s[{SWO}:{SWO+3}], s{sWo} offen {pW}")
    A(f"buffer_load_dword v19, v11, s[{SD}:{SD+3}], s{sDo} offen {pW}")
    A("s_mov_b64 exec, -1")
    A("s_waitcnt vmcnt(0)")
    make_tag(sTag, 164)
    A("s_mov_b32 s85, 0xffffff00")
    for i in range(4):
        A(f"v_bfe_u32 v{52+i}, s{sTag}, {8*i}, 8")
    stamp(1)
    lds_wait(F_DONE, ML_AT, 20, sA)
    lds_wait(F_HRDY, 1, 20, sA)
    A("ds_read_b64 v[24:25], v14")
    lq = lab("mlpoll")
    A(f"{lq}:")
    A("s_waitcnt vmcnt(0)")
    A(f"buffer_load_dwordx4 v[16:19], v161, s[{SWS}:{SWS+3}], s69 offen sc1")
    A(f"buffer_load_dwordx4 v[20:23], v161, s[{SWS}:{SWS+3}], s69 offen offset:16 sc1")
    spin_guard()
    A("s_waitcnt vmcnt(0)")
    tag_check(16, 4, sTag, 26, 27)
    A(f"s_cbranch_vccnz {lq}")
    A("v_max_f32 v26, v16, v20")
    allreduce([26], "v_max_f32", [27], steps=("x1", "x2", "hm"))
    A("v_sub_f32 v16, v16, v26")
    A("v_sub_f32 v20, v20, v26")
    A("v_exp_f32 v16, v16")
    A("v_exp_f32 v20, v20")
    nop(1)
    A("v_mul_f32 v27, v16, v18")
    A("v_fmac_f32 v27, v20, v22")
    allreduce([27], "v_add_f32", [26], steps=("x1", "x2", "hm"))
    A("v_rcp_f32 v27, v27")
    A("v_mov_b32 v23, 1")
    A("v_mul_f32 v16, v16, v27")
    A("v_mul_f32 v18, v20, v27")
    stamp(5)
    A(f"s_mov_b32 s{sDry}, 1")
    A(f"s_mov_b32 s{sThr}, -1")
    if taildry:
        A("s_branch L_t_frag")
    A("L_tail_real:")
    A(f"s_mov_b32 s{sDry}, 0")
    A(f"s_mov_b32 s{sThr}, -2")
    stamp(9)
    lds_wait4(F_DONE, TRIG, 28)
    A("s_setprio 2")
    stamp(3)
    A("s_mov_b32 m0, s83")
    nop(1)
    for i in range(4):
        A(f"buffer_load_dwordx4 v{4+i}, s[{SWO}:{SWO+3}], s{sWo} offen offset:{i*1024} {pW} lds")
    A("s_add_u32 m0, s83, 0x1000")
    nop(1)
    for i in range(4):
        A(f"buffer_load_dwordx4 v{4+i}, s[{SWO}:{SWO+3}], s82 offen offset:{i*1024} {pW} lds")
    A("s_mov_b32 m0, s84")
    nop(1)
    for i in range(4):
        A(f"buffer_load_dwordx4 v{4+i}, s[{SD}:{SD+3}], s{sDo} offen offset:{i*1024} {pW} lds")
    A("s_waitcnt vmcnt(0)")
    stamp(4)
    A("L_t_frag:")

    def o_loads():
        A(f"buffer_load_dwordx4 v[{GO}:{GO+3}], v162, s[{SWS}:{SWS+3}], s70 offen sc1")
        A(f"buffer_load_dwordx4 v[{GO+4}:{GO+7}], v162, s[{SWS}:{SWS+3}], s70 offen offset:64 sc1")
        A(f"buffer_load_dwordx4 v[{GO+8}:{GO+11}], v162, s[{SWS}:{SWS+3}], s71 offen sc1")
        A(f"buffer_load_dwordx4 v[{GO+12}:{GO+15}], v162, s[{SWS}:{SWS+3}], s71 offen offset:64 sc1")
    o_loads()
    for T in range(8):
        A(f"ds_read_b64_tr_b16 v[{DF+2*T}:{DF+2*T+1}], v{152+T}")
    for T in range(3):
        A(f"ds_read_b64_tr_b16 v[{WF+4*T}:{WF+4*T+1}], v{144+T}")
        A(f"ds_read_b64_tr_b16 v[{WF+4*T+2}:{WF+4*T+3}], v{144+T} offset:4096")
    A("s_waitcnt lgkmcnt(5)")
    for T in range(3, 8):
        A(f"ds_read_b64_tr_b16 v[{WF+4*T}:{WF+4*T+1}], v{144+T}")
        A(f"ds_read_b64_tr_b16 v[{WF+4*T+2}:{WF+4*T+3}], v{144+T} offset:4096")
    for T in range(8):
        A(f"v_mfma_f32_16x16x16_bf16 v[{Y+4*T}:{Y+4*T+3}], v[{DF+2*T}:{DF+2*T+1}], v[24:25], 0")
    stamp(6)
    lq, lq2 = lab("opoll"), lab("ochk")
    A(f"s_branch {lq2}")
    A(f"{lq}:")
    A("s_mov_b64 exec, vcc")
    o_loads()
    spin_guard()
    A(f"{lq2}:")
    A("s_waitcnt vmcnt(0) lgkmcnt(0)")
    A(f"v_max3_u32 v20, v{GO}, v{GO+1}, v{GO+2}")
    A(f"v_max3_u32 v21, v{GO+3}, v{GO+4}, v{GO+5}")
    A(f"v_max3_u32 v22, v{GO+6}, v{GO+7}, v{GO+8}")
    A(f"v_max3_u32 v20, v20, v{GO+9}, v{GO+10}")
    A(f"v_max3_u32 v21, v21, v{GO+11}, v{GO+12}")
    A(f"v_max3_u32 v22, v22, v{GO+13}, v{GO+14}")
    A(f"v_max3_u32 v20, v20, v21, v{GO+15}")
    A("v_max_u32 v20, v20, v22")
    A(f"v_cmp_lt_u32 vcc, s{sThr}, v20")
    A(f"s_cbranch_vccnz {lq}")
    A("s_mov_b64 exec, -1")
    stamp(7)
    for i in range(8):
        A(f"v_mul_f32 v{GO+i}, v{GO+i}, v16")
    for i in range(8):
        A(f"v_fmac_f32 v{GO+i}, v{GO+8+i}, v18")
    allreduce([GO + i for i in range(8)], "v_add_f32", [], steps=("x1", "x2", "hm"))
    for i in range(4):
        A(f"v_cvt_pk_bf16_f32 v{48+i}, v{GO+2*i}, v{GO+2*i+1}")
    A(f"s_cmp_lg_u32 s{sDry}, 0")
    nop(1)
    for T in range(8):
        A(f"v_mfma_f32_16x16x32_bf16 v[{Y+4*T}:{Y+4*T+3}], v[{WF+4*T}:{WF+4*T+3}], v[48:51], v[{Y+4*T}:{Y+4*T+3}]")
    A("s_cbranch_scc1 L_tail_real")
    A("s_mov_b32 exec_lo, 0x11111111"); A("s_mov_b32 exec_hi, 0x11111111")
    for u in range(4):
        for i in range(4):
            A(f"v_mov_b32_dpp v{Y+8*u+i}, v{Y+8*u+4+i} quad_perm:[0,1,2,3] row_mask:0xf bank_mask:0xa")
        for i in range(4):
            A(f"v_and_or_b32 v{Y+8*u+i}, v{Y+8*u+i}, s85, v{52+i}")
        A(f"buffer_store_dwordx4 v[{Y+8*u}:{Y+8*u+3}], v163, s[{SWS}:{SWS+3}], s72 offen offset:{128*u} sc1")
    A("s_mov_b64 exec, 1")
    A(f"ds_write_b32 v8, v23 offset:{F_YDONE}")
    stamp(8)
    stamp_flush()
    A("L_abort:")
    A("s_endpgm")
    A("L_end:")
    nv = 208 if stamps else 168
    A('.section .rodata,"a"')
    A(".p2align 6")
    A(f".amdhsa_kernel {KNAME}")
    A(f"  .amdhsa_next_free_vgpr {nv}")
    A("  .amdhsa_next_free_sgpr 102")
    A(f"  .amdhsa_accum_offset {nv}")
    A("  .amdhsa_group_segment_fixed_size 0")
    A("  .amdhsa_kernarg_size 96")
    A("  .amdhsa_user_sgpr_count 2")
    A("  .amdhsa_user_sgpr_kernarg_segment_ptr 1")
    A("  .amdhsa_system_sgpr_workgroup_id_x 1")
    A(".end_amdhsa_kernel")
    out = []
    for ln in L:
        if ln.startswith((";", ".", " ")) or ln.endswith(":") or "\n" in ln:
            out.append(ln)
        else:
            out.append("    " + ln)
    return "\n".join(out) + "\n"


if __name__ == "__main__":
    kw = eval("dict(" + (sys.argv[2] if len(sys.argv) > 2 else "") + ")")
    open(sys.argv[1], "w").write(gen(**kw))
```

```python
import sys
from gen_kernel import HEADER, KNAME

L_TILE = 0x20000
L_T2 = 0x1C000
L_DN = 0x24000
L_XN = 0x26000
L_Q = 0x26800
L_H = 0x26C00
L_FLAG = 0x26E00
F_QPUB, F_HRDY, F_YDONE, F_DONE, F_QRDY, F_MRDY, F_PRDY, F_TILE, F_BREQ, F_CTL = 4, 8, 12, 16, 32, 48, 64, 80, 84, 88
L_M = L_FLAG + 128
L_L = L_FLAG + 192
F_LANDED = 256
LB = 4
LDS_BYTES = 0x27000
W_EPOCH = 0x0
W_PROG = 0x1000
W_IND = 0x2000
W_ML = 0x4000
W_O = 0x10000
W_Y = 0x90000
W_Q = 0x110000
W_QB = 0x150000
W_F = 0x190000
W_STAMP = 0x200000
WS_BYTES = 0x300000

LOG2E = 0x3FB8AA3B
SCALE = 0x3DB504F3
SPIN_MAX = 1 << 22


def gen(NLS=(16, 18, 20, 22, 24, 26), idx0=2, gain=1.0, bias=2.3, ctl=True, NL0=24, stamps=False, pK="nt", pW="nt", diag=None, TRIG=125,
        codepf=True, findry=True, fast=True, QB_EVERY=8, GATH_AT=32, ML_AT=88, noffn=False, taildry=True, nowt=False,
        FX=7, boost7=0, touch=True, qtrig=True, ptouch=True, ind=True):
    L = []
    A = L.append
    uid = [0]
    role = ["pro"]

    def lab(p):
        uid[0] += 1
        return f"L_{p}_{uid[0]}"

    def nop(n):
        while n > 0:
            k = min(n, 16)
            A(f"s_nop {k-1}")
            n -= k

    def srd(r, p, nbytes):
        A(f"s_mov_b32 s{r}, s{p}")
        A(f"s_mov_b32 s{r+1}, s{p+1}")
        A(f"s_mov_b32 s{r+2}, {hex(nbytes)}")
        A(f"s_mov_b32 s{r+3}, 0x20000")

    VST = 200

    def stamp(i):
        if diag is not None and role[0] == "cons" and diag == i:
            A("s_memrealtime s[88:89]")
            A("s_waitcnt lgkmcnt(0)")
        if not stamps:
            return
        A("s_memrealtime s[98:99]")
        A("s_waitcnt lgkmcnt(0)")
        A(f"v_writelane_b32 v{VST}, s98, {i}")

    def stamp_flush():
        if not stamps:
            return
        A("s_mov_b64 exec, -1")
        A(f"s_sub_u32 s97, {hex(SPIN_MAX)}, s15")
        A(f"v_writelane_b32 v{VST}, s97, 16")
        srd(92, P_WS, WS_BYTES)
        A("s_lshl_b32 s97, s2, 3")
        A("s_add_u32 s97, s97, s3")
        A("s_lshl_b32 s97, s97, 8")
        A(f"s_add_u32 s97, s97, {hex(W_STAMP)}")
        A(f"v_lshlrev_b32 v{VST+1}, 2, v0")
        A(f"buffer_store_dword v{VST}, v{VST+1}, s[92:95], s97 offen")
        A("s_waitcnt vmcnt(0)")

    def spin_guard():
        A("s_sub_u32 s15, s15, 1")
        A("s_cbranch_scc1 L_abort")

    def lds_wait(off, thr, vt, st):
        l = lab("w")
        A(f"{l}:")
        A(f"ds_read_b32 v{vt}, v8 offset:{off}")
        spin_guard()
        A("s_waitcnt lgkmcnt(0)")
        A(f"v_readfirstlane_b32 s{st}, v{vt}")
        A(f"s_cmp_ge_i32 s{st}, {thr}")
        A(f"s_cbranch_scc0 {l}")

    def lds_wait4(off, thr, vq, extra=()):
        l = lab("w4")
        A(f"{l}:")
        A(f"ds_read_b128 v[{vq}:{vq+3}], v8 offset:{off}")
        for e in extra:
            A(e)
        spin_guard()
        A(f"s_waitcnt lgkmcnt({len(extra)})")
        A(f"v_min3_i32 v{vq}, v{vq}, v{vq+1}, v{vq+2}")
        A(f"v_min_i32 v{vq}, v{vq}, v{vq+3}")
        A(f"v_cmp_gt_i32 vcc, {thr}, v{vq}")
        if extra:
            A("s_waitcnt lgkmcnt(0)")
        A(f"s_cbranch_vccnz {l}")

    def lds_set(addr_v, off, val_v):
        A("s_mov_b64 exec, 1")
        A(f"ds_write_b32 v{addr_v}, v{val_v} offset:{off}")
        A("s_mov_b64 exec, -1")

    def allreduce(regs, op, tmps, steps=("x1", "x2", "hm", "m", "p16", "p32")):
        dpp = {"x1": "quad_perm:[1,0,3,2]", "x2": "quad_perm:[2,3,0,1]", "hm": "row_half_mirror", "m": "row_mirror",
               "r4": "row_ror:4", "r8": "row_ror:8"}
        for st in steps:
            if st in dpp:
                nop(max(0, 3 - len(regs)))
                for r in regs:
                    A(f"{op}_dpp v{r}, v{r}, v{r} {dpp[st]} row_mask:0xf bank_mask:0xf")
            else:
                ins = "v_permlane16_swap_b32" if st == "p16" else "v_permlane32_swap_b32"
                for r, t in zip(regs, tmps):
                    A(f"v_mov_b32 v{t}, v{r}")
                nop(max(0, 3 - len(regs)))
                for r, t in zip(regs, tmps):
                    A(f"{ins} v{r}, v{t}")
                nop(1)
                for r, t in zip(regs, tmps):
                    A(f"{op} v{r}, v{r}, v{t}")

    def make_tag(s, v):
        A(f"v_readfirstlane_b32 s{s}, v{v}")
        A(f"s_add_u32 s{s}, s{s}, 0x4d2b7f35")

    def local_tag(dst, tag):
        A(f"s_getreg_b32 s{dst}, hwreg(HW_REG_XCC_ID, 0, 4)")
        A(f"s_mul_i32 s{dst}, s{dst}, 0x10001")
        A(f"s_xor_b32 s{dst}, s{dst}, s{tag}")

    def store_by(sloc, ins):
        l1, l2 = lab("far"), lab("st")
        A(f"s_cmp_eq_u32 s{sloc}, 2")
        A(f"s_cbranch_scc0 {l1}")
        for i in ins:
            A(i)
        A(f"s_branch {l2}")
        A(f"{l1}:")
        for i in ins:
            A(i + " sc1")
        A(f"{l2}:")

    def tag_check(base, n, stag, t1, t2):
        for i in range(n):
            A(f"v_xor_b32 v{base+1+2*i}, s{stag}, v{base+1+2*i}")
        r = [base + 1 + 2 * i for i in range(n)]
        if n == 8:
            A(f"v_or3_b32 v{t1}, v{r[0]}, v{r[1]}, v{r[2]}")
            A(f"v_or3_b32 v{t2}, v{r[3]}, v{r[4]}, v{r[5]}")
            A(f"v_or3_b32 v{t1}, v{t1}, v{r[6]}, v{r[7]}")
            A(f"v_or_b32 v{t1}, v{t1}, v{t2}")
        else:
            A(f"v_or3_b32 v{t1}, v{r[0]}, v{r[1]}, v{r[2]}")
            A(f"v_or_b32 v{t1}, v{t1}, v{r[3]}")
        A(f"v_cmp_ne_u32 vcc, 0, v{t1}")

    def vaddr_T0(dst, t1, t2, t3):
        A(f"v_lshrrev_b32 v{t1}, 2, v0")
        A(f"v_and_b32 v{t2}, 7, v{t1}")
        A(f"v_lshlrev_b32 v{t2}, 1, v{t2}")
        A(f"v_lshrrev_b32 v{t3}, 5, v0")
        A(f"v_or_b32 v{t2}, v{t2}, v{t3}")
        A(f"v_bfe_u32 v{t3}, v0, 1, 1")
        A(f"v_xor_b32 v{t2}, v{t2}, v{t3}")
        A(f"v_lshlrev_b32 v{t2}, 4, v{t2}")
        A(f"v_lshl_or_b32 v{dst}, v{t1}, 8, v{t2}")
        A(f"v_and_b32 v{t3}, 1, v0")
        A(f"v_lshl_or_b32 v{dst}, v{t3}, 3, v{dst}")

    def unpack(dst, src):
        A(f"v_lshlrev_b32 v{dst}, 16, v{src}")
        A(f"v_and_b32 v{dst+1}, 0xffff0000, v{src}")

    P_X, P_K, P_V, P_WQ, P_WO, P_BX, P_G, P_U, P_D, P_OUT, P_DBG, P_WS = range(16, 40, 2)
    S_KVH, S_J, S_B, S_S, S_RB, S_CH, S_W = 4, 5, 6, 7, 8, 9, 10

    A(HEADER)
    A(f"; @launch grid=(256,1,1) block=(512,1,1) lds={LDS_BYTES}")
    A('.amdgcn_target "amdgcn-amd-amdhsa--gfx950"')
    A(".text")
    A(f".globl {KNAME}")
    A(".p2align 8")
    A(f".type {KNAME},@function")
    A(f"{KNAME}:")
    A("s_cmp_ge_u32 s2, 256")
    A("s_cbranch_scc1 L_abort")
    A("s_load_dwordx16 s[16:31], s[0:1], 0")
    A("s_load_dwordx8 s[32:39], s[0:1], 64")
    if stamps:
        A("s_memrealtime s[98:99]")
        A(f"v_mov_b32 v{VST}, 0")
    if diag is not None:
        A("s_memrealtime s[90:91]")
    A(f"s_lshr_b32 s{S_J}, s2, 3")
    if codepf:
        A("s_getpc_b64 s[80:81]")
        A(f"s_lshl_b32 s6, s{S_J}, 9")
        A("v_subrev_u32 v2, 448, v0")
        A("v_cmp_gt_u32 vcc, 4, v2")
        A("v_lshl_add_u32 v2, v2, 7, s6")
        A(f"v_min_u32 v2, L_end-{KNAME}-64, v2")
        A("s_and_b64 exec, exec, vcc")
        A("s_cbranch_execz L_nopf")
        A("global_load_dword v165, v2, s[80:81]")
        A("L_nopf:")
        A("s_mov_b64 exec, -1")
    A("v_lshrrev_b32 v1, 6, v0")
    A("v_and_b32 v0, 63, v0")
    A("v_readfirstlane_b32 s3, v1")
    A(f"v_mov_b32 v8, {hex(L_FLAG)}")
    A("v_lshl_add_u32 v9, v0, 2, v8")
    A("v_mov_b32 v11, 0")
    A("ds_write_b32 v9, v11")
    A(f"ds_write_b32 v9, v11 offset:{F_LANDED}")
    A(f"s_and_b32 s{S_KVH}, s2, 7")
    A(f"s_lshr_b32 s{S_B}, s{S_J}, 4")
    A(f"s_and_b32 s{S_S}, s{S_J}, 15")
    A(f"s_lshr_b32 s{S_RB}, s{S_J}, 1")
    A(f"s_and_b32 s{S_CH}, s{S_J}, 1")
    A(f"s_lshl_b32 s{S_W}, s{S_KVH}, 5")
    A(f"s_add_u32 s{S_W}, s{S_W}, s{S_J}")
    A(f"s_mov_b32 s15, {hex(SPIN_MAX)}")
    A("v_lshrrev_b32 v1, 4, v0")
    A("v_lshlrev_b32 v3, 1, v1")
    A("v_lshlrev_b32 v10, 4, v0")
    sO1, sO2, sN, sNc, sBase, sTt, sT, sIdx, sEv = 60, 61, 62, 63, 64, 65, 66, 68, 69
    sSmp, sPrevF, sPs, sPl, sCen = 70, 71, 72, 73, 74
    A("v_lshrrev_b32 v12, 3, v0")
    A("v_and_b32 v13, 7, v0")
    A("v_xor_b32 v13, v13, v3")
    A("v_lshlrev_b32 v13, 4, v13")
    A("v_lshl_or_b32 v4, v12, 13, v13")
    for i in range(1, 4):
        A(f"v_add_u32 v{4+i}, {i*(0x10000-1024)}, v4")
    A(f"s_lshr_b32 s{sT}, s{S_J}, 3")
    A(f"s_lshl_b32 s{sO1}, s{sT}, 10")
    A(f"s_add_u32 s{sO1}, s{sO1}, s{S_KVH}")
    A(f"s_lshl_b32 s{sO1}, s{sO1}, 3")
    A(f"s_and_b32 s{sT}, s{S_J}, 7")
    A(f"s_add_u32 s{sO1}, s{sO1}, s{sT}")
    A(f"s_lshl_b32 s{sO1}, s{sO1}, 7")
    A(f"s_mov_b32 s42, {hex(512*4096*2)}")
    A("s_mov_b32 s43, 0x20000")
    A("s_mov_b32 s46, 2048")
    A("s_mov_b32 s47, 0x20000")
    A(f"s_mov_b32 m0, {hex(L_TILE)}")
    A("s_cmp_lg_u32 s3, 0")
    A("s_waitcnt lgkmcnt(0)")
    if stamps:
        A(f"v_writelane_b32 v{VST}, s98, 0")
    A("s_cbranch_scc1 L_roles")

    role[0] = "ld"
    A(f"s_mov_b64 s[40:41], s[{P_WQ}:{P_WQ+1}]")
    A("s_setprio 3")
    A("L_ldq:")
    for i in range(4):
        A(f"buffer_load_dwordx4 v{4+i}, s[40:43], s{sO1} offen offset:{i*1024} {pW} lds")
    A("s_add_u32 m0, m0, 0x1000")
    A(f"s_add_u32 s{sO1}, s{sO1}, 0x40000")
    A(f"s_cmp_lt_u32 m0, {hex(L_TILE + 0x4000)}")
    A("s_cbranch_scc1 L_ldq")
    A("s_barrier")
    A("v_mul_u32_u24 v4, 3584, v12")
    A("v_add_u32 v4, v4, v13")
    for i in range(1, 4):
        A(f"v_add_u32 v{4+i}, {i*(8*3584-1024)}, v4")
    A(f"s_mul_i32 s{sO2}, s{sT}, {64*3584}")
    A(f"s_lshr_b32 s{sT}, s{S_W}, 3")
    A(f"s_lshl_b32 s{sT}, s{sT}, 7")
    A(f"s_add_u32 s{sO2}, s{sO2}, s{sT}")
    A(f"s_cmp_lt_u32 s{S_KVH}, {0 if noffn else 7}")
    A(f"s_cselect_b32 s42, {hex(512*1792*2)}, 0")
    A(f"s_mov_b64 s[40:41], s[{P_G}:{P_G+1}]")
    A(f"s_mov_b32 m0, {hex(L_T2)}")
    A("L_ldf2:")
    A(f"s_mov_b32 s{sO1}, s{sO2}")
    A("L_ldf:")
    for i in range(4):
        A(f"s_waitcnt vmcnt({NL0-1})")
        A(f"buffer_load_dwordx4 v{4+i}, s[40:43], s{sO1} offen offset:{i*1024} {pW} lds")
    A("s_add_u32 m0, m0, 0x1000")
    A(f"s_add_u32 s{sO1}, s{sO1}, {32*3584}")
    A("s_bitcmp1_b32 m0, 12")
    A("s_cbranch_scc1 L_ldf")
    A(f"s_mov_b64 s[40:41], s[{P_U}:{P_U+1}]")
    A("s_bitcmp1_b32 m0, 13")
    A("s_cbranch_scc1 L_ldf2")
    A("v_and_b32 v2, 15, v0")
    A("v_xor_b32 v2, v2, v3")
    A("v_lshlrev_b32 v2, 4, v2")
    A("v_lshl_or_b32 v4, v1, 8, v2")
    A("v_xor_b32 v5, 0x80, v4")
    A("v_xor_b32 v6, 16, v4")
    A("v_xor_b32 v7, 0x90, v4")
    A(f"s_lshl_b32 s{sBase}, s{S_B}, 3")
    A(f"s_add_u32 s{sBase}, s{sBase}, s{S_KVH}")
    A(f"s_lshl_b32 s{sBase}, s{sBase}, 4")
    A(f"s_add_u32 s{sBase}, s{sBase}, s{S_S}")
    A(f"s_lshl_b32 s{sBase}, s{sBase}, 1")
    A(f"s_add_u32 s{sBase}, s{sBase}, s{S_B}")
    A(f"s_lshl_b32 s{sBase}, s{sBase}, 1")
    A(f"s_bfe_u32 s{sT}, s{S_S}, 0x10002")
    A(f"s_add_u32 s{sBase}, s{sBase}, s{sT}")
    A(f"s_lshl_b32 s{sBase}, s{sBase}, 17")
    A(f"s_mov_b32 s{sO1}, s{sBase}")
    A("s_mov_b32 s42, 0x8000000")
    A(f"s_mov_b64 s[40:41], s[{P_K}:{P_K+1}]")
    A(f"s_mov_b32 s{sN}, 0")
    A(f"s_mov_b32 s{sTt}, 0")
    A("s_mov_b32 m0, 0")
    A(f"s_mov_b32 s{sEv}, 2")
    A(f"s_mov_b32 s{sNc}, 2")
    A(f"s_mov_b32 s{sIdx}, 0")
    A("v_mov_b32 v22, 0")
    A(f"ds_read_b128 v[16:19], v8 offset:{F_DONE}")
    NV = len(NLS)
    extra = {
        0: [f"s_add_u32 s{sO2}, s{sO1}, 0x8000"],
        1: [f"s_or_b32 s{sTt}, s{sTt}, 0x8000", f"s_add_u32 s{sTt}, s{sTt}, 0x1000"],
        2: [f"s_and_b32 s{sTt}, s{sTt}, 0x77000"],
        3: ["s_add_u32 m0, m0, 0x1000"],
        4: [f"s_xor_b32 s{sO1}, s{sTt}, s{sBase}"],
        5: [f"s_add_u32 s{sN}, s{sN}, 1"],
        6: [f"s_add_u32 s{sT}, m0, 0x1000"],
        7: [f"s_and_b32 m0, s{sT}, 0x1ffff"],
    }

    def body(k):
        NL = NLS[k]
        pub_i = (NL - 1) % 8
        pub_d = (pub_i - NL + 1) // 8
        A(f"v_add_u32 v21, {pub_d + LB - 1}, v22")
        A(f"L_body{k}:")
        for i in range(8):
            A(f"s_waitcnt vmcnt({NL-1})")
            A(f"buffer_load_dwordx4 v{4+(i&3)}, s[40:43], s{sO1 if i < 4 else sO2} offen offset:{(i&3)*1024} {pK} lds")
            if i == 0:
                A("v_add_u32 v21, 1, v21")
            if i == pub_i:
                A(f"ds_max_i32 v9, v21 offset:{F_LANDED}")
            for e in extra.get(i, []):
                A(e)
        A(f"s_cmp_lg_u32 s{sN}, s{sEv}")
        A(f"s_cbranch_scc1 L_body{k}")

    A("L_def:")
    body(idx0)
    A("L_event:")
    if stamps:
        A(f"s_and_b32 s{sT}, s{sN}, 15"); A("s_cbranch_scc0 L_ldst")
        A("L_ldst_back:")
    A(f"s_bitcmp1_b32 s{sN}, 7")
    A("s_cbranch_scc1 L_drain")
    A(f"s_cmp_eq_u32 s{sN}, s{sNc}")
    A("s_cbranch_scc1 L_ctl")
    A("L_event2:")
    A("s_waitcnt lgkmcnt(0)")
    A("v_min3_i32 v20, v16, v17, v18")
    A("v_min_i32 v20, v20, v19")
    A(f"s_bitcmp1_b32 s{sN}, 6")
    A(f"v_readfirstlane_b32 s{sT}, v20")
    A("L_event3:")
    A(f"ds_read_b128 v[16:19], v8 offset:{F_DONE}")
    A(f"s_cselect_b64 s[40:41], s[{P_V}:{P_V+1}], s[40:41]")
    A(f"s_cmp_eq_u32 s{sT}, 0")
    A(f"s_cselect_b32 s{sEv}, 14, 16")
    A(f"s_add_u32 s{sT}, s{sT}, s{sEv}")
    A(f"s_or_b32 s{sEv}, s{sN}, {15 if stamps else 63}")
    A(f"s_add_u32 s{sEv}, s{sEv}, 1")
    A(f"s_min_u32 s{sEv}, s{sEv}, s{sT}")
    A(f"s_min_u32 s{sEv}, s{sEv}, s{sNc}")
    A(f"v_mov_b32 v22, s{sN}")
    A(f"s_cmp_le_u32 s{sEv}, s{sN}")
    A("s_cbranch_scc1 L_full")
    A(f"s_cmp_eq_u32 s{sIdx}, 0")
    A("s_cbranch_scc1 L_def")
    A("s_branch L_var")
    A("L_full:")
    spin_guard()
    A("s_branch L_event2")
    A("L_roles:")
    A("s_cmp_lg_u32 s3, 1")
    A("s_cbranch_scc1 L_roles2")
    A(f"s_mov_b64 s[44:45], s[{P_X}:{P_X+1}]")
    A("s_setprio 2")
    A("buffer_load_dwordx4 v[16:19], v10, s[44:47], 0 offen")
    A("buffer_load_dwordx4 v[20:23], v10, s[44:47], 0 offen offset:1024")
    A("L_roles2:")
    A("s_barrier")
    A("s_cbranch_scc1 L_other")
    A("s_branch L_aux")
    A("L_drain:")
    stamp(1)
    for x in range(125, 129):
        A(f"v_mov_b32 v21, {x + LB}")
        A(f"s_waitcnt vmcnt({(128 - x) * 8})")
        A(f"ds_max_i32 v9, v21 offset:{F_LANDED}")
    stamp(2)
    stamp_flush()
    A("s_endpgm")

    if stamps:
        A("L_ldst:")
        for n, k in ((16, 4), (32, 5), (64, 6), (96, 7)):
            l = lab("st")
            A(f"s_cmp_lg_u32 s{sN}, {n}"); A(f"s_cbranch_scc1 {l}"); stamp(k); A(f"{l}:")
        A("s_branch L_ldst_back")

    def loader_rest():
        A("L_ctl:")
        A(f"s_cmp_eq_u32 s{sN}, 2")
        A("s_cbranch_scc1 L_ctl_init")
        A("s_waitcnt lgkmcnt(0)")
        A("v_add_u32 v15, v12, v13")
        A(f"v_mov_b32 v24, s{sN}")
        A("v_readfirstlane_b32 s78, v23")
        A("s_mov_b64 exec, 1")
        A(f"buffer_store_dword v24, v11, s[44:47], s{sPs} offen")
        A("s_mov_b64 exec, 0xffff")
        A("v_add_u32_dpp v15, v15, v15 quad_perm:[1,0,3,2] row_mask:0xf bank_mask:0xf")
        A(f"buffer_load_dwordx2 v[12:13], v14, s[44:47], s{sPl} offen sc1")
        A(f"ds_read_b32 v23, v8 offset:{F_CTL}")
        A("v_add_u32_dpp v15, v15, v15 quad_perm:[2,3,0,1] row_mask:0xf bank_mask:0xf")
        A("v_min3_i32 v20, v16, v17, v18")
        A(f"s_add_u32 s{sNc}, s{sNc}, 4")
        A("v_add_u32_dpp v15, v15, v15 row_half_mirror row_mask:0xf bank_mask:0xf")
        A("v_min_i32 v20, v20, v19")
        A(f"s_add_u32 s{sSmp}, s{sSmp}, {4*32*int(gain*256)}")
        A("v_add_u32_dpp v15, v15, v15 row_mirror row_mask:0xf bank_mask:0xf")
        A(f"v_readfirstlane_b32 s{sT}, v20")
        A("v_readfirstlane_b32 s76, v15")
        A("s_mov_b64 exec, -1")
        A(f"s_mul_i32 s76, s76, {int(gain*256)}")
        A(f"s_sub_i32 s76, s76, s{sSmp}")
        A("s_ashr_i32 s76, s76, 13")
        A(f"s_max_i32 s76, s76, {-idx0}")
        A(f"s_min_i32 s76, s76, {NV-1-idx0}")
        A(f"s_cmp_eq_u32 s{sPrevF}, {2 if ctl else 3}")
        A(f"s_cselect_b32 s{sIdx}, s76, s{sIdx}")
        A(f"s_mov_b32 s{sPrevF}, s78")
        A(f"s_bitcmp1_b32 s{sN}, 6")
        A("s_branch L_event3")
        A("L_ctl_init:")
        srd(44, P_WS, WS_BYTES)
        A(f"s_lshl_b32 s{sPs}, s{S_W}, 2")
        A(f"s_add_u32 s{sPs}, s{sPs}, {hex(W_PROG)}")
        A(f"s_and_b32 s{sPl}, s{sPs}, 0xffffff80")
        A(f"s_lshr_b32 s{sNc}, s{S_J}, 2")
        A(f"s_add_u32 s{sNc}, s{sNc}, s{S_J}")
        A(f"s_and_b32 s{sNc}, s{sNc}, 3")
        A(f"s_add_u32 s{sNc}, s{sNc}, 3")
        A(f"s_mov_b32 s{sPrevF}, 0")
        A(f"s_sub_u32 s{sSmp}, s{sNc}, 8")
        A(f"s_mul_i32 s{sSmp}, s{sSmp}, {32*int(gain*256)}")
        A(f"s_cmp_eq_u32 s{S_KVH}, {FX}")
        A(f"s_cselect_b32 s{sCen}, {int(boost7 * 256 * 32)}, 0")
        A(f"s_add_u32 s{sCen}, s{sCen}, {int((0.5 + bias * gain) * 256 * 32)}")
        A(f"s_sub_u32 s{sSmp}, s{sSmp}, s{sCen}")
        A("v_lshlrev_b32 v14, 3, v0")
        A("v_mov_b32 v12, 0"); A("v_mov_b32 v13, 0"); A("v_mov_b32 v23, 0")
        A("s_branch L_event2")
        A("L_var:")
        others = [i for i in range(NV) if i != idx0]

        def tree(lst):
            if len(lst) == 1:
                body(lst[0])
                A("s_branch L_event")
                return
            mid = len(lst) // 2
            l = lab("tr")
            A(f"s_cmp_ge_i32 s{sIdx}, {lst[mid] - idx0}")
            A(f"s_cbranch_scc1 {l}")
            tree(lst[:mid])
            A(f"{l}:")
            tree(lst[mid:])
        tree(others)

    role[0] = "aux"
    SWQ, SX, SWS, SG, SU, SOUT = 40, 44, 48, 52, 56, 60
    sO, sTag, sA, sB2, sThr, sLoc = 64, 65, 66, 67, 75, 84
    XB, TF = 64, 96
    A("L_aux:")
    A(f"s_lshr_b32 s{sB2}, s{S_J}, 3")
    srd(SWS, P_WS, WS_BYTES)
    A(f"buffer_load_dword v24, v11, s[{SWS}:{SWS+3}], 0 offen sc1")
    A(f"s_lshl_b32 s76, s{S_W}, 2")
    A(f"s_add_u32 s76, s76, {hex(W_PROG)}")
    A("s_mov_b64 exec, 1")
    A(f"buffer_store_dword v11, v11, s[{SWS}:{SWS+3}], s76 offen")
    A("s_mov_b64 exec, -1")
    stamp(1)
    A(f"v_add_u32 v25, {hex(L_XN)}, v10")
    A("v_bfe_u32 v15, v0, 3, 1")
    A("v_lshlrev_b32 v26, 10, v15")
    A("v_lshl_add_u32 v26, v1, 3, v26")
    A(f"v_add_u32 v26, {hex(L_XN)}, v26")
    A(f"s_lshl_b32 s{sA}, s{sB2}, 8")
    A(f"v_add_u32 v28, s{sA}, v26")
    A(f"s_and_b32 s{sA}, s{S_J}, 7")
    A(f"s_lshl_b32 s{sA}, s{sA}, 7")
    A(f"v_add_u32 v26, s{sA}, v26")
    A("v_lshrrev_b32 v29, 2, v0")
    A("v_lshlrev_b32 v29, 7, v29")
    A("v_bfe_u32 v30, v0, 3, 2")
    A("v_lshl_or_b32 v29, v30, 5, v29")
    A("v_and_b32 v30, 3, v0")
    A("v_lshl_or_b32 v29, v30, 3, v29")
    A(f"v_add_u32 v160, {hex(L_TILE)}, v29")
    for T in range(1, 4):
        A(f"v_xor_b32 v{160+T}, {32*T}, v160")
    A("v_bfe_u32 v30, v0, 1, 2")
    A("v_lshlrev_b32 v27, 7, v30")
    A("v_lshl_or_b32 v27, v1, 5, v27")
    A("v_and_b32 v30, 1, v0")
    A("v_lshl_or_b32 v27, v30, 4, v27")
    A("v_lshl_or_b32 v31, v15, 14, v27")
    A(f"s_lshl_b32 s{sO}, s{S_KVH}, 15")
    A(f"s_lshl_b32 s{sA}, s{S_J}, 9")
    A(f"s_add_u32 s{sO}, s{sO}, s{sA}")
    A(f"s_add_u32 s{sO}, s{sO}, {hex(W_Q)}")
    if ptouch:
        A(f"buffer_load_dword v89, v31, s[{SWS}:{SWS+3}], s{sO} offen sc1")
    A("s_mov_b32 s68, 0xaaaaaaaa"); A("s_mov_b32 s69, s68")
    A("s_mov_b32 s70, 0xcccccccc"); A("s_mov_b32 s71, s70")
    A("s_mov_b32 s72, 0xf0f0f0f0"); A("s_mov_b32 s73, s72")
    A(f"s_waitcnt vmcnt({3 if ptouch else 2})")
    stamp(2)
    XF = 32
    for b in range(2):
        for i in range(4):
            unpack(XF + 8 * b + 2 * i, 16 + 4 * b + i)
    for b in range(2):
        A(f"v_add_f32 v{48+b}, v{XF+8*b}, v{XF+8*b+1}")
    for i in range(2, 8):
        for b in range(2):
            A(f"v_add_f32 v{48+b}, v{48+b}, v{XF+8*b+i}")
    allreduce([48, 49], "v_add_f32", [50, 51])
    for b in range(2):
        A(f"v_mul_f32 v{48+b}, 0x3b000000, v{48+b}")
    for i in range(8):
        for b in range(2):
            A(f"v_sub_f32 v{52+b}, v{XF+8*b+i}, v{48+b}")
        for b in range(2):
            A(f"{'v_mul_f32' if i == 0 else 'v_fmac_f32'} v{54+b}, v{52+b}, v{52+b}")
    allreduce([54, 55], "v_add_f32", [50, 51])
    for b in range(2):
        A(f"v_mul_f32 v{54+b}, 0x3b000000, v{54+b}")
    A("v_cvt_pk_bf16_f32 v50, v48, v49")
    A("v_cvt_pk_bf16_f32 v51, v54, v55")
    unpack(48, 50)
    unpack(54, 51)
    A("v_add_f32 v54, 0x3727c5ac, v54"); A("v_add_f32 v55, 0x3727c5ac, v55")
    A("v_cvt_pk_bf16_f32 v51, v54, v55")
    unpack(54, 51)
    A("v_sqrt_f32 v54, v54"); A("v_sqrt_f32 v55, v55")
    nop(1)
    A("v_cvt_pk_bf16_f32 v51, v54, v55")
    unpack(54, 51)
    A("v_rcp_f32 v54, v54"); A("v_rcp_f32 v55, v55")
    for b in range(2):
        for i in range(8):
            A(f"v_sub_f32 v{XF+8*b+i}, v{XF+8*b+i}, v{48+b}")
        for i in range(4):
            A(f"v_cvt_pk_bf16_f32 v{56+4*b+i}, v{XF+8*b+2*i}, v{XF+8*b+2*i+1}")
        for i in range(4):
            unpack(XF + 8 * b + 2 * i, 56 + 4 * b + i)
        for i in range(8):
            A(f"v_mul_f32 v{XF+8*b+i}, v{XF+8*b+i}, v{54+b}")
        for i in range(4):
            A(f"v_cvt_pk_bf16_f32 v{56+4*b+i}, v{XF+8*b+2*i}, v{XF+8*b+2*i+1}")
        A(f"ds_write_b128 v25, v[{56+4*b}:{59+4*b}] offset:{1024*b}")
    A("s_waitcnt lgkmcnt(0)")
    for s in range(4):
        A(f"ds_read2_b64 v[{XB+4*s}:{XB+4*s+3}], v28 offset0:{8*s} offset1:{8*s+4}")
    for s in range(2):
        A(f"ds_read2_b64 v[{XB+16+4*s}:{XB+16+4*s+3}], v26 offset0:{8*s} offset1:{8*s+4}")
    stamp(3)
    lds_wait(F_LANDED, 2, 44, sA)
    A("s_waitcnt vmcnt(0)")
    stamp(4)

    def tile_mfma(acc_of, b_of, first):
        for hf in range(2):
            for s in range(2 * hf, 2 * hf + 2):
                for T in range(4):
                    r = TF + 16 * s + 4 * T
                    A(f"ds_read_b64_tr_b16 v[{r}:{r+1}], v{160+T} offset:{s*4096}")
                    A(f"ds_read_b64_tr_b16 v[{r+2}:{r+3}], v{160+T} offset:{s*4096+2048}")
                if s == 2 * hf:
                    A("s_waitcnt lgkmcnt(4)")
            A("s_waitcnt lgkmcnt(0)")
            for s in range(2 * hf, 2 * hf + 2):
                for T in range(4):
                    r = TF + 16 * s + 4 * T
                    d = acc_of(s, T)
                    c = "0" if first(s) else f"v[{d}:{d+3}]"
                    A(f"v_mfma_f32_16x16x32_bf16 v[{d}:{d+3}], v[{r}:{r+3}], v[{b_of(s)}:{b_of(s)+3}], {c}")

    def select_granule(D, out):
        for T in range(4):
            A(f"v_cndmask_b32 v{D+4*T}, v{D+4*T}, v{D+2+4*T}, s[68:69]")
            A(f"v_cndmask_b32 v{D+1+4*T}, v{D+1+4*T}, v{D+3+4*T}, s[68:69]")
        for T in (0, 2):
            A(f"v_cndmask_b32 v{D+4*T}, v{D+4*T}, v{D+4+4*T}, s[70:71]")
            A(f"v_cndmask_b32 v{D+1+4*T}, v{D+1+4*T}, v{D+5+4*T}, s[70:71]")
        A(f"v_cndmask_b32 v{out}, v{D}, v{D+8}, s[72:73]")
        A(f"v_cndmask_b32 v{out+2}, v{D+1}, v{D+9}, s[72:73]")

    tile_mfma(lambda s, T: 32 + 4 * T, lambda s: XB + 4 * s, lambda s: s == 0)
    make_tag(sTag, 24)
    local_tag(sA, sTag)
    A(f"v_mov_b32 v17, s{sA}")
    A(f"v_mov_b32 v19, s{sA}")
    select_granule(32, 16)
    A(f"buffer_store_dwordx4 v[16:19], v31, s[{SWS}:{SWS+3}], s{sO} offen")
    A("v_mov_b32 v88, 1")
    lds_set(8, F_QPUB, 88)
    A("s_setprio 0")
    A(f"s_add_u32 s{sO}, s{sO}, {hex(W_QB - W_Q)}")
    A(f"v_mov_b32 v17, s{sTag}")
    A(f"v_mov_b32 v19, s{sTag}")
    A(f"s_mov_b32 s{sB2}, 1")
    stamp(5)
    for T in range(4):
        A(f"v_add_u32 v{160+T}, {L_T2 - L_TILE}, v{160+T}")
    for r in (21, 23, 93, 95):
        A(f"v_mov_b32 v{r}, s{sTag}")
    lds_wait(F_LANDED, 4, 44, sA)
    tile_mfma(lambda s, T: 32 + 16 * (s >> 1) + 4 * T, lambda s: XB + 16 + 4 * (s & 1), lambda s: s in (0, 2))
    lds_set(8, F_TILE, 88)
    select_granule(32, 92)
    select_granule(48, 20)
    stamp(6)
    A("L_qserve:")
    A(f"ds_read_b128 v[44:47], v8 offset:{F_QRDY}")
    A(f"ds_read_b32 v48, v8 offset:{F_BREQ}")
    spin_guard()
    A("s_waitcnt lgkmcnt(0)")
    A("v_min3_i32 v44, v44, v45, v46")
    A("v_min_i32 v44, v44, v47")
    A(f"v_readfirstlane_b32 s{sA}, v48")
    A(f"v_readfirstlane_b32 s{sLoc}, v44")
    A(f"s_and_b32 s{sA}, s{sA}, s{sB2}")
    A("s_cbranch_scc0 L_qnob")
    A(f"buffer_store_dwordx4 v[16:19], v31, s[{SWS}:{SWS+3}], s{sO} offen sc1")
    A(f"s_mov_b32 s{sB2}, 0")
    A("L_qnob:")
    A(f"s_cmp_eq_u32 s{sLoc}, 0")
    A("s_cbranch_scc1 L_qserve")
    A(f"s_cmp_ge_u32 s{S_KVH}, {0 if noffn else 7}")
    A("s_cbranch_scc1 L_noffn1")
    A("v_lshl_or_b32 v30, v15, 9, v27")
    A(f"s_lshl_b32 s{sO}, s{S_W}, 11")
    A(f"s_add_u32 s{sO}, s{sO}, {hex(W_F)}")
    store_by(sLoc, [f"buffer_store_dwordx4 v[92:95], v30, s[{SWS}:{SWS+3}], s{sO} offen",
                    f"buffer_store_dwordx4 v[20:23], v30, s[{SWS}:{SWS+3}], s{sO} offen offset:1024"])
    A("L_noffn1:")
    stamp(7)
    A("v_lshlrev_b32 v42, 3, v0")
    lds_wait(F_DONE, GATH_AT, 44, sA)
    A("v_mov_b32 v40, 0")
    A("v_mov_b32 v41, 0")
    A(f"s_cmp_ge_u32 s{S_KVH}, {0 if noffn else 7}")
    A("s_cbranch_scc1 L_noffn2")
    A("v_and_b32 v30, 7, v0")
    A("v_lshlrev_b32 v30, 11, v30")
    A("v_lshl_or_b32 v30, v15, 9, v30")
    A("v_lshl_or_b32 v30, v1, 5, v30")
    A(f"s_lshr_b32 s{sO}, s{S_W}, 3")
    A(f"s_lshl_b32 s{sO}, s{sO}, 14")
    A(f"s_and_b32 s{sA}, s{S_RB}, 3")
    A(f"s_lshl_b32 s{sA}, s{sA}, 7")
    A(f"s_add_u32 s{sO}, s{sO}, s{sA}")
    A(f"s_add_u32 s{sO}, s{sO}, {hex(W_F)}")
    lq = lab("fpoll")
    A(f"{lq}:")
    for i, off in enumerate((0, 16, 1024, 1040)):
        A(f"buffer_load_dwordx4 v[{44+4*i}:{47+4*i}], v30, s[{SWS}:{SWS+3}], s{sO} offen offset:{off} sc1")
    spin_guard()
    A("s_waitcnt vmcnt(0)")
    tag_check(44, 8, sTag, 60, 61)
    A(f"s_cbranch_vccnz {lq}")
    allreduce([44 + 2 * i for i in range(8)], "v_add_f32", [], steps=("x1", "x2", "hm"))
    for i in range(4):
        A(f"v_cvt_pk_bf16_f32 v40, v{44+4*i}, v{46+4*i}")
        unpack(32 + 2 * i, 40)
    A("s_mov_b32 s68, 0x3d372713")
    A("s_mov_b32 s69, 0xc0135761")
    for i in range(4):
        A(f"v_mul_f32 v{44+i}, v{32+i}, v{32+i}")
        A(f"v_fma_f32 v{44+i}, v{44+i}, s68, 1.0")
        A(f"v_mul_f32 v{44+i}, v{44+i}, v{32+i}")
        A(f"v_mul_f32 v{44+i}, s69, v{44+i}")
        A(f"v_exp_f32 v{44+i}, v{44+i}")
    nop(1)
    for i in range(4):
        A(f"v_add_f32 v{44+i}, 1.0, v{44+i}")
    for i in range(4):
        A(f"v_rcp_f32 v{44+i}, v{44+i}")
    nop(1)
    for i in range(4):
        A(f"v_mul_f32 v{32+i}, v{32+i}, v{44+i}")
    for r in (32, 34):
        A(f"v_cvt_pk_bf16_f32 v40, v{r}, v{r+1}")
        unpack(r, 40)
    for i in range(4):
        A(f"v_mul_f32 v{32+i}, v{32+i}, v{36+i}")
    A("v_cvt_pk_bf16_f32 v40, v32, v33")
    A("v_cvt_pk_bf16_f32 v41, v34, v35")
    A("L_noffn2:")
    A(f"v_add_u32 v43, {hex(L_H)}, v42")
    A("ds_write_b64 v43, v[40:41]")
    lds_set(8, F_HRDY, 88)
    stamp(8)
    stamp_flush()
    A("s_endpgm")

    role[0] = "cons"
    SWS = 48
    sC, sLd, sTg, sL2E, sSc, sA, sB2, sTag, sLoc = 60, 61, 62, 63, 64, 65, 66, 67, 84
    AV, VDN, AK = 6, 9, 144
    S, O, KF, Q, SV = 16, 24, 32, 64, 128
    VF, PF = 32, 40
    vM, vNM, vL, vT, vT2, vPW, vPR = 152, 153, 154, 155, 156, 157, 158
    A("L_other:")
    srd(SWS, P_WS, WS_BYTES)
    A(f"buffer_load_dword v164, v11, s[{SWS}:{SWS+3}], 0 offen sc1")
    A("s_cmp_ge_u32 s3, 6")
    A("s_cbranch_scc1 L_tail")
    A("s_setprio 1")
    A(f"s_sub_u32 s{sC}, s3, 2")
    A(f"s_lshr_b32 s69, s{S_W}, 4")
    A("s_lshl_b32 s69, s69, 14")
    A(f"s_lshl_b32 s{sA}, s{sC}, 10")
    A(f"s_add_u32 s69, s69, s{sA}")
    A(f"s_add_u32 s69, s69, {hex(W_Q)}")
    if not ptouch:
        A("v_lshrrev_b32 v12, 3, v0")
        A("v_and_b32 v13, 7, v0")
        A("v_lshlrev_b32 v13, 7, v13")
        A("v_lshl_or_b32 v12, v12, 12, v13")
        A("s_mov_b32 exec_hi, 0")
        A(f"buffer_load_dword v166, v12, s[{SWS}:{SWS+3}], s69 offen sc1")
        A("s_mov_b32 exec_hi, -1")
    A("s_add_u32 s70, s69, 0x1000")
    A("s_add_u32 s71, s69, 0x2000")
    A("s_add_u32 s72, s69, 0x3000")
    A(f"s_mov_b32 s{sL2E}, {hex(LOG2E)}")
    A(f"s_mov_b32 s{sSc}, {hex(SCALE)}")
    A("v_and_b32 v15, 3, v0")
    A("v_lshlrev_b32 v160, 9, v15")
    A(f"v_bfe_u32 v{vT2}, v0, 2, 1")
    A(f"v_lshl_or_b32 v160, v{vT2}, 6, v160")
    A("v_lshl_or_b32 v160, v1, 4, v160")
    A(f"s_lshl_b32 s68, s{S_W}, 11")
    A(f"s_lshl_b32 s{sA}, s{sC}, 7")
    A(f"s_add_u32 s68, s68, s{sA}")
    A(f"s_add_u32 s68, s68, {hex(W_O)}")
    A(f"s_lshl_b32 s73, s{S_KVH}, 2")
    A(f"s_add_u32 s73, s73, s{sC}")
    A("s_lshl_b32 s73, s73, 1")
    A(f"s_add_u32 s73, s73, s{S_B}")
    A("s_lshl_b32 s73, s73, 3")
    A(f"s_and_b32 s{sA}, s{S_S}, 7")
    A(f"s_add_u32 s73, s73, s{sA}")
    A("s_lshl_b32 s73, s73, 1")
    A(f"s_lshr_b32 s{sA}, s{S_S}, 3")
    A(f"s_add_u32 s73, s73, s{sA}")
    A("s_lshl_b32 s73, s73, 4")
    A(f"s_add_u32 s73, s73, {hex(W_ML)}")
    A(f"v_lshlrev_b32 v{vPR}, 4, v15")
    A(f"v_lshl_or_b32 v{vPR}, v1, 6, v{vPR}")
    A(f"v_add_u32 v{vPR}, {hex(L_TILE)}, v{vPR}")
    A(f"v_bfe_u32 v{vT}, v0, 2, 2")
    A(f"v_lshl_add_u32 v{vPW}, v{vT}, 10, v{vPR}")
    A(f"s_lshl_b32 s{sA}, s{sC}, 8")
    A(f"v_add_u32 v{vPW}, s{sA}, v{vPW}")
    A(f"s_add_u32 s{sA}, s{sA}, {hex(L_Q)}")
    A(f"v_lshl_add_u32 v2, v0, 2, s{sA}")
    A("v_lshlrev_b32 v3, 8, v15")
    A("v_lshl_add_u32 v3, v1, 6, v3")
    A(f"v_add_u32 v3, {hex(L_Q)}, v3")
    A("v_lshl_add_u32 v4, v15, 4, v8")
    A(f"s_lshl_b32 s{sA}, s{sC}, 2")
    A(f"v_add_u32 v5, s{sA}, v4")
    A(f"v_add_u32 v{VDN}, s{sA}, v8")
    A("v_and_b32 v14, 15, v0")
    A("v_and_b32 v12, 7, v0")
    A("v_lshlrev_b32 v12, 1, v12")
    A("v_bfe_u32 v13, v0, 3, 1")
    A("v_or_b32 v12, v12, v13")
    A("v_lshlrev_b32 v13, 2, v1")
    A("v_xor_b32 v12, v12, v13")
    A("v_lshlrev_b32 v12, 4, v12")
    A("v_lshl_or_b32 v12, v14, 8, v12")
    A(f"s_lshl_b32 s{sA}, s{sC}, 13")
    A(f"v_or_b32 v{AK}, s{sA}, v12")
    for s in range(1, 8):
        A(f"v_xor_b32 v{AK+s}, {hex(16*(s&3) + 0x10000*(s>>2))}, v{AK}")
    vaddr_T0(13, 12, 14, 15)
    A(f"s_lshl_b32 s{sA}, s{sC}, 6")
    A(f"v_xor_b32 v{AV}, s{sA}, v13")
    A(f"v_xor_b32 v{AV+1}, 32, v{AV}")
    A(f"s_mov_b32 s{sLd}, 0")
    A(f"s_sub_u32 s{sTg}, s{sC}, 3")
    A(f"v_mov_b32 v{vM}, 0xff800000")
    A(f"v_mov_b32 v{vL}, 0")
    for i in range(8):
        A(f"v_mov_b32 v{O+i}, 0")
    A("s_mov_b32 s76, 0x000f000f"); A("s_mov_b32 s77, s76")
    for g in range(1, 4):
        A(f"s_lshl_b64 s[{76+2*g}:{77+2*g}], s[76:77], {4*g}")
    A("v_mov_b32 v159, 1")
    if diag is not None:
        A("s_mov_b32 s88, s90")
    SX, SOUT = 40, 44
    srd(SX, P_X, 2048)
    srd(SOUT, P_OUT, 2048)
    A(f"s_lshl_b32 s85, s{S_J}, 2")
    A(f"s_add_u32 s85, s85, s{sC}")
    A("s_lshl_b32 s85, s85, 4")
    A("v_and_b32 v12, 1, v0")
    A("v_lshlrev_b32 v161, 3, v12")
    A(f"buffer_load_dwordx2 v[162:163], v161, s[{SX}:{SX+3}], s85 offen")
    A("v_lshrrev_b32 v13, 1, v0")
    A("v_lshlrev_b32 v13, 13, v13")
    A("v_lshl_or_b32 v167, v12, 4, v13")
    A(f"s_lshl_b32 s52, s{S_B}, 18")
    A("s_and_b32 s53, s85, 0x3ff")
    A("s_lshl_b32 s53, s53, 1")
    A("s_add_u32 s52, s52, s53")
    A(f"s_add_u32 s52, s52, {hex(W_Y)}")
    A("s_add_u32 s53, s52, 0x1000")
    A("s_waitcnt vmcnt(0)")
    make_tag(sTag, 164)
    local_tag(74, sTag)
    for i in range(4):
        A(f"s_bfe_u32 s{54+i}, s{sTag}, {hex(0x80000 + 8*i)}")
    if findry:
        A("s_mov_b32 s58, 1")
        A(f"s_cmp_eq_u32 s{S_KVH}, {FX}")
        A("s_cbranch_scc1 L_ysum")
        A("L_fin_back:")
        A("s_mov_b64 exec, -1")
    A("s_mov_b32 s58, 0")
    stamp(1)
    lds_wait(F_TILE if qtrig else F_QPUB, 1, vT, sA)
    stamp(5)
    A("s_mov_b64 vcc, -1")
    A(f"s_mov_b32 s{sB2}, 0")
    A("L_qpoll:")
    A(f"s_add_u32 s{sB2}, s{sB2}, 1")
    A(f"s_and_b32 s{sA}, s{sB2}, {(QB_EVERY - 1) if fast else 0}")
    A(f"s_cselect_b32 s{sA}, 0, {hex(W_QB - W_Q)}")
    A(f"s_cselect_b32 s75, s74, s{sTag}")
    A("s_cselect_b64 exec, 0, 1")
    A(f"ds_write_b32 v8, v159 offset:{F_BREQ}")
    A("s_mov_b64 exec, vcc")
    A(f"v_add_u32 v15, s{sA}, v10")
    for kb in range(4):
        A(f"buffer_load_dwordx4 v[{KF+4*kb}:{KF+4*kb+3}], v15, s[{SWS}:{SWS+3}], s{69+kb} offen sc1")
    spin_guard()
    A("s_waitcnt vmcnt(0)")
    tag_check(KF, 8, 75, vT, vT2)
    A("s_cbranch_vccnz L_qpoll")
    A("s_mov_b64 exec, -1")
    stamp(6)
    for kb in range(1, 4):
        A(f"v_add_f32 v{KF}, v{KF}, v{KF+4*kb}")
        A(f"v_add_f32 v{KF+2}, v{KF+2}, v{KF+4*kb+2}")
    A(f"v_cvt_pk_bf16_f32 v{vT}, v{KF}, v{KF+2}")
    A(f"ds_write_b32 v2, v{vT}")
    A(f"s_cmp_lt_u32 s{sB2}, {QB_EVERY if fast else 0}")
    A(f"s_cselect_b32 s{sA}, 2, 1")
    A(f"v_mov_b32 v{vT2}, s{sA}")
    lds_set(VDN, F_QRDY, vT2)
    lds_wait4(F_QRDY, 1, S, [f"ds_read_b128 v[{KF+4*s}:{KF+4*s+3}], v3 offset:{16*s}" for s in range(4)])
    A(f"v_readfirstlane_b32 s{sLoc}, v{S}")
    lds_set(8, F_CTL, S)
    if not qtrig:
        lds_wait(F_TILE, 1, vT, sA)
    for g in range(4):
        for i in range(16):
            A(f"v_cndmask_b32 v{Q+16*g+i}, 0, v{KF+i}, s[{76+2*g}:{77+2*g}]")
    stamp(2)

    def wait_landed(tgt):
        lo, ls = lab("lo"), lab("ls")
        A(f"s_cmp_ge_i32 s{sLd}, {tgt}")
        A(f"s_cbranch_scc1 {lo}")
        A(f"{ls}:")
        A(f"ds_read_b32 v{vT}, v8 offset:{F_LANDED}")
        spin_guard()
        A("s_waitcnt lgkmcnt(0)")
        A(f"v_readfirstlane_b32 s{sLd}, v{vT}")
        A(f"s_sub_u32 s{sLd}, s{sLd}, {LB}")
        A(f"s_cmp_ge_i32 s{sLd}, {tgt}")
        A(f"s_cbranch_scc0 {ls}")
        A(f"{lo}:")

    A("L_kwin:")
    for g in range(4):
        A(f"s_add_u32 s{sTg}, s{sTg}, 4")
        wait_landed(f"s{sTg}")
        for t in range(2):
            for s in range(4):
                r = KF + 16 * t + 4 * s
                A(f"ds_read_b128 v[{r}:{r+3}], v{AK + 4*(g>>1) + s} offset:{(g&1)*32768 + t*4096}")
        A(f"s_add_u32 s{sA}, s{sTg}, 3")
        A(f"s_min_u32 s{sA}, s{sA}, 64")
        A(f"v_mov_b32 v{vT2}, s{sA}")
        for t in range(2):
            A(f"s_waitcnt lgkmcnt({4 if t == 0 else 0})")
            if t == 1:
                lds_set(VDN, F_DONE, vT2)
            for s in range(4):
                r = KF + 16 * t + 4 * s
                c = "0" if (g == 0 and s == 0) else f"v[{S+4*t}:{S+4*t+3}]"
                q = Q + 16 * g + 4 * s
                A(f"v_mfma_f32_16x16x32_bf16 v[{S+4*t}:{S+4*t+3}], v[{r}:{r+3}], v[{q}:{q+3}], {c}")
    for i in range(12):
        A(f"v_mov_b32 v{SV+i}, v{SV+4+i}")
    for i in range(4):
        A(f"v_cvt_pk_bf16_f32 v{SV+12+i}, v{S+2*i}, v{S+2*i+1}")
    for i in range(4):
        unpack(S + 2 * i, SV + 12 + i)
    for i in range(8):
        A(f"v_mul_f32 v{S+i}, s{sSc}, v{S+i}")
    for i in range(4):
        A(f"v_cvt_pk_bf16_f32 v{SV+12+i}, v{S+2*i}, v{S+2*i+1}")
    A(f"v_max3_f32 v{vM}, v{vM}, v{S}, v{S+1}")
    A(f"v_max3_f32 v{vT}, v{S+2}, v{S+3}, v{S+4}")
    A(f"v_max3_f32 v{vM}, v{vM}, v{S+5}, v{S+6}")
    A(f"v_max3_f32 v{vM}, v{vM}, v{vT}, v{S+7}")
    A(f"s_cmp_lt_u32 s{sTg}, 60")
    A("s_cbranch_scc1 L_kwin")
    stamp(3)
    for i in range(4):
        A(f"v_mov_b32 v{KF+8+i}, -1")
    A("s_mov_b32 exec_lo, 0x00ff00ff"); A("s_mov_b32 exec_hi, 0x00ff00ff")
    store_by(sLoc, [f"buffer_store_dwordx4 v[{KF+8}:{KF+11}], v160, s[{SWS}:{SWS+3}], s68 offen"])
    A("s_mov_b64 exec, -1")
    allreduce([vM], "v_max_f32", [vT], steps=("r4", "r8", "p16", "p32"))
    A("s_mov_b64 exec, 15")
    A(f"ds_write_b32 v5, v{vM} offset:{L_M - L_FLAG}")
    lds_set(VDN, F_MRDY, 159)
    lds_wait4(F_MRDY, 1, S, [f"ds_read_b128 v[{S+4}:{S+7}], v4 offset:{L_M - L_FLAG}"])
    A(f"v_max3_f32 v{vM}, v{S+4}, v{S+5}, v{S+6}")
    A(f"v_max_f32 v{vM}, v{vM}, v{S+7}")
    A(f"v_cvt_pk_bf16_f32 v{vM}, v{vM}, v{vM}")
    A(f"v_and_b32 v{vM}, 0xffff0000, v{vM}")
    A(f"v_mul_f32 v{vM}, s{sL2E}, v{vM}")
    A(f"s_mov_b32 s{sA}, 4")
    A("L_pwin:")
    for i in range(4):
        unpack(S + 2 * i, SV + i)
    for i in range(8):
        A(f"v_fma_f32 v{S+i}, v{S+i}, s{sL2E}, -v{vM}")
    for i in range(8):
        A(f"v_exp_f32 v{S+i}, v{S+i}")
    for i in range(12):
        A(f"v_mov_b32 v{SV+i}, v{SV+4+i}")
    A("s_waitcnt lgkmcnt(0)")
    for i in range(4):
        A(f"v_cvt_pk_bf16_f32 v{KF+i}, v{S+2*i}, v{S+2*i+1}")
    A(f"ds_write_b128 v{vPW}, v[{KF}:{KF+3}]")
    for i in range(8):
        A(f"v_add_f32 v{vL}, v{vL}, v{S+i}")
    A(f"v_add_u32 v{vPW}, 0x1000, v{vPW}")
    A(f"s_sub_u32 s{sA}, s{sA}, 1")
    A(f"s_cmp_lg_u32 s{sA}, 0")
    A("s_cbranch_scc1 L_pwin")
    allreduce([vL], "v_add_f32", [vT], steps=("r4", "r8", "p16", "p32"))
    A("s_mov_b64 exec, 15")
    A(f"ds_write_b32 v5, v{vL} offset:{L_L - L_FLAG}")
    A("s_waitcnt vmcnt(0)")
    lds_set(VDN, F_PRDY, 159)
    lds_wait4(F_PRDY, 1, S, [f"ds_read_b128 v[{S+4}:{S+7}], v4 offset:{L_L - L_FLAG}"])
    A(f"v_add_f32 v{S+4}, v{S+4}, v{S+5}")
    A(f"v_add_f32 v{S+6}, v{S+6}, v{S+7}")
    A(f"v_mov_b32 v{S}, v{vM}")
    A(f"v_mov_b32 v{S+1}, s{sTag}")
    A(f"v_add_f32 v{S+2}, v{S+4}, v{S+6}")
    A(f"v_mov_b32 v{S+3}, s{sTag}")
    A(f"s_lshl_b64 exec, 1, s{sC}")
    store_by(sLoc, [f"buffer_store_dwordx4 v[{S}:{S+3}], v11, s[{SWS}:{SWS+3}], s73 offen"])
    A("s_mov_b64 exec, -1")
    A(f"s_mov_b32 s{sTg}, 64")
    stamp(7)
    A("L_vwin:")
    for g in range(4):
        A(f"ds_read_b128 v[{PF}:{PF+3}], v{vPR} offset:{g*256}")
        A(f"s_add_u32 s{sTg}, s{sTg}, 1")
        wait_landed(f"s{sTg}")
        for tt in range(2):
            for h in range(2):
                r = VF + 4 * tt + 2 * h
                A(f"ds_read_b64_tr_b16 v[{r}:{r+1}], v{AV+tt} offset:{g*8192 + h*4096}")
        A(f"v_mov_b32 v{vT2}, s{sTg}")
        for tt in range(2):
            A(f"s_waitcnt lgkmcnt({2 if tt == 0 else 0})")
            A(f"v_mfma_f32_16x16x32_bf16 v[{O+4*tt}:{O+4*tt+3}], v[{VF+4*tt}:{VF+4*tt+3}], v[{PF}:{PF+3}], v[{O+4*tt}:{O+4*tt+3}]")
        lds_set(VDN, F_DONE, vT2)
    A(f"s_cmp_eq_u32 s{sTg}, 128")
    A("s_cbranch_scc1 L_vend")
    for tt in range(2):
        A(f"v_add_u32 v{AV+tt}, 0x8000, v{AV+tt}")
        A(f"v_and_b32 v{AV+tt}, 0x1ffff, v{AV+tt}")
    A(f"v_add_u32 v{vPR}, 0x400, v{vPR}")
    A("s_branch L_vwin")
    A("L_vend:")
    A(f"s_cmp_eq_u32 s{sLoc}, 2")
    nop(2)
    for i in range(4):
        A(f"v_mov_b32_dpp v{O+i}, v{O+4+i} row_shr:4 row_mask:0xf bank_mask:0x2")
    A("s_mov_b32 exec_lo, 0x00ff00ff"); A("s_mov_b32 exec_hi, 0x00ff00ff")
    A("s_cbranch_scc0 L_o_far")
    A(f"buffer_store_dwordx4 v[{O}:{O+3}], v160, s[{SWS}:{SWS+3}], s68 offen")
    A("L_o_end:")
    stamp(4)
    A(f"s_cmp_lg_u32 s{S_KVH}, {FX}")
    A("s_cbranch_scc1 L_c_end")
    A("s_mov_b64 exec, -1")
    lds_wait(F_YDONE, 1, vT, sA)
    stamp(9)
    YG = 32
    if ind:
        A("s_mov_b64 s[86:87], -1")
        A("v_lshrrev_b32 v12, 3, v0")
        A("v_lshlrev_b32 v12, 7, v12")
        A(f"s_mov_b32 s59, {hex(W_IND)}")
        A("L_ypoll:")
        A("s_mov_b64 exec, s[86:87]")
        A(f"buffer_load_dword v13, v12, s[{SWS}:{SWS+3}], s59 offen sc1")
        spin_guard()
        A("s_waitcnt vmcnt(0)")
        A(f"v_cmp_eq_u32 vcc, s{sTag}, v13")
        A("s_and_b64 exec, exec, vcc")
        A("s_cbranch_execz L_ypoll")
    else:
        A("s_mov_b64 vcc, -1")
        A("L_ypoll:")
        A("s_mov_b64 exec, vcc")
    for i in range(4):
        A(f"buffer_load_dwordx4 v[{YG+4*i}:{YG+4*i+3}], v167, s[{SWS}:{SWS+3}], s{52+(i>>1)} offen offset:{2048*(i&1)} sc1")
    spin_guard()
    for i in range(4):
        A(f"s_waitcnt vmcnt({3-i})")
        for k in range(4):
            A(f"v_xor_b32 v{YG+4*i+k}, s{54+k}, v{YG+4*i+k}")
        if i == 0:
            A(f"v_or3_b32 v{vT}, v{YG}, v{YG+1}, v{YG+2}")
            A(f"v_or_b32 v{vT}, v{vT}, v{YG+3}")
        else:
            A(f"v_or3_b32 v{vT}, v{vT}, v{YG+4*i}, v{YG+4*i+1}")
            A(f"v_or3_b32 v{vT}, v{vT}, v{YG+4*i+2}, v{YG+4*i+3}")
    A(f"v_and_b32 v{vT}, 0xff, v{vT}")
    if ind:
        A(f"v_cmp_eq_u32 vcc, 0, v{vT}")
        A("s_andn2_b64 s[86:87], s[86:87], vcc")
        A("s_cbranch_scc1 L_ypoll")
    else:
        A(f"v_cmp_ne_u32 vcc, 0, v{vT}")
        A("s_cbranch_vccnz L_ypoll")
    A("s_mov_b64 exec, -1")
    stamp(10)
    A("L_ysum:")
    for k in range(4):
        A(f"v_add_f32 v{YG+k}, v{YG+k}, v{YG+4+k}")
    for k in range(4):
        A(f"v_add_f32 v{YG+8+k}, v{YG+8+k}, v{YG+12+k}")
    for k in range(4):
        A(f"v_add_f32 v{YG+k}, v{YG+k}, v{YG+8+k}")
    allreduce([YG + k for k in range(4)], "v_add_f32", [YG + 4 + k for k in range(4)], steps=("x2", "r4", "r8", "p16", "p32"))
    unpack(YG + 4, 162)
    unpack(YG + 6, 163)
    for k in range(4):
        A(f"v_add_f32 v{YG+k}, v{YG+k}, v{YG+4+k}")
    A(f"v_cvt_pk_bf16_f32 v{YG+8}, v{YG}, v{YG+1}")
    A(f"v_cvt_pk_bf16_f32 v{YG+9}, v{YG+2}, v{YG+3}")
    A("s_mov_b64 exec, 3")
    A(f"buffer_store_dwordx2 v[{YG+8}:{YG+9}], v161, s[{SOUT}:{SOUT+3}], s85 offen")
    if findry:
        A("s_cmp_lg_u32 s58, 0")
        A("s_cbranch_scc1 L_fin_back")
    A("s_cmp_lg_u32 s85, 0")
    A("s_cbranch_scc1 L_c_st")
    A(f"v_mov_b32 v{vT}, s{sTag}")
    A("s_mov_b64 exec, 1")
    A(f"buffer_store_dword v{vT}, v11, s[{SWS}:{SWS+3}], 0 offen")
    A("L_c_st:")
    stamp(11)
    A("L_c_end:")
    stamp_flush()
    if diag is not None:
        A("s_sub_u32 s88, s88, s90")
        A("s_add_u32 s88, s88, 10000")
        A("L_diag:")
        A("s_memrealtime s[86:87]")
        A("s_waitcnt lgkmcnt(0)")
        A("s_sub_u32 s86, s86, s90")
        A("s_cmp_lt_u32 s86, s88")
        A("s_cbranch_scc1 L_diag")
    A("s_endpgm")
    A("L_o_far:")
    A(f"buffer_store_dwordx4 v[{O}:{O+3}], v160, s[{SWS}:{SWS+3}], s68 offen sc1")
    A("s_branch L_o_end")

    role[0] = "tail"
    SWO, SD = 40, 44
    sTw, sThr, sDry, sA, sB2, sTag, sWo, sDo = 60, 61, 62, 65, 66, 67, 63, 64
    GO, WF, DF, Y = 32, 64, 96, 112
    A("L_tail:")
    A(f"s_sub_u32 s{sTw}, s3, 6")
    srd(SWO, P_WO, 0 if nowt else 4096 * 512 * 2)
    srd(SD, P_D, 0 if nowt else 1792 * 512 * 2)
    A("v_and_b32 v2, 15, v0")
    A("v_xor_b32 v2, v2, v3")
    A("v_lshlrev_b32 v2, 4, v2")
    A("v_lshl_or_b32 v4, v1, 10, v2")
    A("v_xor_b32 v5, 0x80, v4"); A("v_add_u32 v5, 3072, v5")
    A("v_xor_b32 v6, 16, v4"); A("v_add_u32 v6, 6144, v6")
    A("v_xor_b32 v7, 0x90, v4"); A("v_add_u32 v7, 9216, v7")
    A(f"s_lshl_b32 s{sB2}, s{S_CH}, 1")
    A(f"s_add_u32 s{sB2}, s{sB2}, s{sTw}")
    A(f"s_lshl_b32 s{sB2}, s{sB2}, 8")
    A(f"s_lshr_b32 s{sWo}, s{S_W}, 1")
    A(f"s_lshl_b32 s{sWo}, s{sWo}, 15")
    A(f"s_add_u32 s{sWo}, s{sWo}, s{sB2}")
    A(f"s_add_u32 s82, s{sWo}, 0x4000")
    A(f"s_lshr_b32 s{sDo}, s{S_W}, 1")
    A(f"s_lshl_b32 s{sDo}, s{sDo}, 14")
    A(f"s_add_u32 s{sDo}, s{sDo}, s{sB2}")
    A(f"s_cmp_lt_u32 s{S_KVH}, 7")
    A(f"s_cselect_b32 s{sDo}, s{sDo}, 0")
    A(f"s_cselect_b32 s{SD+2}, s{SD+2}, 0")
    A(f"s_lshl_b32 s83, s{sTw}, 13")
    A(f"s_lshl_b32 s84, s{sTw}, 12")
    A(f"s_add_u32 s84, s84, {hex(L_DN)}")
    A("s_mov_b32 m0, s84")
    nop(1)
    for i in range(4):
        A(f"buffer_load_dwordx4 v{4+i}, s[{SD}:{SD+3}], s{sDo} offen offset:{i*1024} {pW} lds")
    vaddr_T0(13, 12, 14, 15)
    for T in range(8):
        A(f"v_xor_b32 v12, {32*T}, v13")
        A(f"v_add_u32 v{144+T}, s83, v12")
        A(f"v_add_u32 v{152+T}, s84, v12")
    A("v_lshlrev_b32 v14, 3, v0")
    A(f"v_add_u32 v14, {hex(L_H)}, v14")
    A("v_and_b32 v161, 15, v0")
    A("v_lshlrev_b32 v161, 5, v161")
    A(f"s_lshr_b32 s69, s{S_W}, 3")
    A("s_lshl_b32 s69, s69, 9")
    A(f"s_add_u32 s69, s69, {hex(W_ML)}")
    A("v_and_b32 v162, 7, v0")
    A("v_lshlrev_b32 v162, 11, v162")
    A("v_bfe_u32 v12, v0, 3, 1")
    A("v_lshl_or_b32 v162, v12, 15, v162")
    A("v_lshl_or_b32 v162, v1, 4, v162")
    A(f"s_lshl_b32 s70, s{S_KVH}, 16")
    A(f"s_lshl_b32 s{sA}, s{S_RB}, 7")
    A(f"s_add_u32 s70, s70, s{sA}")
    A(f"s_add_u32 s70, s70, {hex(W_O)}")
    A("s_add_u32 s71, s70, 0x4000")
    A("v_lshlrev_b32 v163, 18, v12")
    A("v_bfe_u32 v12, v0, 2, 1")
    A("v_lshl_or_b32 v163, v12, 6, v163")
    A("v_lshl_or_b32 v163, v1, 4, v163")
    A(f"s_lshl_b32 s72, s{S_W}, 10")
    A(f"s_lshl_b32 s{sA}, s{sTw}, 9")
    A(f"s_add_u32 s72, s72, s{sA}")
    A(f"s_add_u32 s72, s72, {hex(W_Y)}")
    if touch:
        A("v_lshlrev_b32 v12, 7, v0")
        A(f"s_lshl_b32 s{sA}, s{S_W}, 11")
        A(f"s_cmp_eq_u32 s{sTw}, 0")
        A(f"s_cselect_b32 s{sB2}, 0, {hex(W_F - W_O)}")
        A(f"s_add_u32 s{sA}, s{sA}, s{sB2}")
        A(f"s_add_u32 s{sA}, s{sA}, {hex(W_O)}")
        A("s_mov_b64 exec, 0xffff")
        A(f"buffer_load_dword v17, v12, s[{SWS}:{SWS+3}], s{sA} offen sc1")
        A("s_mov_b64 exec, 15")
        A(f"buffer_load_dword v19, v12, s[{SWS}:{SWS+3}], s69 offen sc1")
    A("s_mov_b64 exec, 1")
    A(f"buffer_load_dword v18, v11, s[{SWO}:{SWO+3}], s{sWo} offen {pW}")
    A("s_mov_b64 exec, -1")
    A("s_waitcnt vmcnt(0)")
    make_tag(sTag, 164)
    A("s_mov_b32 s85, 0xffffff00")
    A(f"v_mov_b32 v56, s{sTag}")
    A(f"s_lshl_b32 s78, s{S_KVH}, 7")
    A(f"s_add_u32 s78, s78, {hex(W_IND)}")
    for i in range(4):
        A(f"v_bfe_u32 v{52+i}, s{sTag}, {8*i}, 8")
    for T in range(8):
        A(f"ds_read_b64_tr_b16 v[{DF+2*T}:{DF+2*T+1}], v{152+T}")
    stamp(1)
    lds_wait(F_DONE, ML_AT, 20, sA)
    lds_wait(F_HRDY, 1, 20, sA)
    A("ds_read_b64 v[24:25], v14")
    lq = lab("mlpoll")
    A(f"{lq}:")
    A("s_waitcnt vmcnt(0)")
    A(f"buffer_load_dwordx4 v[16:19], v161, s[{SWS}:{SWS+3}], s69 offen sc1")
    A(f"buffer_load_dwordx4 v[20:23], v161, s[{SWS}:{SWS+3}], s69 offen offset:16 sc1")
    spin_guard()
    A("s_waitcnt vmcnt(0)")
    tag_check(16, 4, sTag, 26, 27)
    A(f"s_cbranch_vccnz {lq}")
    A("v_max_f32 v26, v16, v20")
    allreduce([26], "v_max_f32", [27], steps=("x1", "x2", "hm"))
    A("v_sub_f32 v16, v16, v26")
    A("v_sub_f32 v20, v20, v26")
    A("v_exp_f32 v16, v16")
    A("v_exp_f32 v20, v20")
    nop(1)
    A("v_mul_f32 v27, v16, v18")
    A("v_fmac_f32 v27, v20, v22")
    allreduce([27], "v_add_f32", [26], steps=("x1", "x2", "hm"))
    A("v_rcp_f32 v27, v27")
    A("v_mov_b32 v23, 1")
    A("v_mul_f32 v16, v16, v27")
    A("v_mul_f32 v18, v20, v27")
    stamp(5)
    A(f"s_mov_b32 s{sDry}, 1")
    A("s_mov_b64 s[76:77], 0")
    A(f"s_mov_b32 s{sThr}, -1")
    if taildry:
        A("s_branch L_t_frag")
    A("L_tail_real:")
    A(f"s_mov_b32 s{sDry}, 0")
    A(f"s_add_u32 s76, s{S_J}, s{sTw}")
    A("s_cmp_eq_u32 s76, 0")
    A("s_cselect_b64 s[76:77], 1, 0")
    A(f"s_mov_b32 s{sThr}, -2")
    A("s_waitcnt lgkmcnt(0)")
    nop(8)
    for T in range(8):
        A(f"v_mfma_f32_16x16x16_bf16 v[{Y+4*T}:{Y+4*T+3}], v[{DF+2*T}:{DF+2*T+1}], v[24:25], 0")
    stamp(9)
    lds_wait4(F_DONE, TRIG, 28)
    A("s_setprio 2")
    stamp(3)
    A("s_mov_b32 m0, s83")
    nop(1)
    for i in range(4):
        A(f"buffer_load_dwordx4 v{4+i}, s[{SWO}:{SWO+3}], s{sWo} offen offset:{i*1024} {pW} lds")
    A("s_add_u32 m0, s83, 0x1000")
    nop(1)
    for i in range(4):
        A(f"buffer_load_dwordx4 v{4+i}, s[{SWO}:{SWO+3}], s82 offen offset:{i*1024} {pW} lds")
    A("s_waitcnt vmcnt(0)")
    stamp(4)
    A("L_t_frag:")

    def o_loads():
        A(f"buffer_load_dwordx4 v[{GO}:{GO+3}], v162, s[{SWS}:{SWS+3}], s70 offen sc1")
        A(f"buffer_load_dwordx4 v[{GO+4}:{GO+7}], v162, s[{SWS}:{SWS+3}], s70 offen offset:64 sc1")
        A(f"buffer_load_dwordx4 v[{GO+8}:{GO+11}], v162, s[{SWS}:{SWS+3}], s71 offen sc1")
        A(f"buffer_load_dwordx4 v[{GO+12}:{GO+15}], v162, s[{SWS}:{SWS+3}], s71 offen offset:64 sc1")
    o_loads()
    for T in range(8):
        if T == 7:
            A("s_waitcnt lgkmcnt(8)")
        A(f"ds_read_b64_tr_b16 v[{WF+4*T}:{WF+4*T+1}], v{144+T}")
        A(f"ds_read_b64_tr_b16 v[{WF+4*T+2}:{WF+4*T+3}], v{144+T} offset:4096")
    stamp(6)
    lq, lq2 = lab("opoll"), lab("ochk")
    A(f"s_branch {lq2}")
    A(f"{lq}:")
    A("s_mov_b64 exec, vcc")
    o_loads()
    spin_guard()
    A(f"{lq2}:")
    A("s_waitcnt vmcnt(0) lgkmcnt(0)")
    A(f"v_max3_u32 v20, v{GO}, v{GO+1}, v{GO+2}")
    A(f"v_max3_u32 v21, v{GO+3}, v{GO+4}, v{GO+5}")
    A(f"v_max3_u32 v22, v{GO+6}, v{GO+7}, v{GO+8}")
    A(f"v_max3_u32 v20, v20, v{GO+9}, v{GO+10}")
    A(f"v_max3_u32 v21, v21, v{GO+11}, v{GO+12}")
    A(f"v_max3_u32 v22, v22, v{GO+13}, v{GO+14}")
    A(f"v_max3_u32 v20, v20, v21, v{GO+15}")
    A("v_max_u32 v20, v20, v22")
    A(f"v_cmp_lt_u32 vcc, s{sThr}, v20")
    A(f"s_cbranch_vccnz {lq}")
    if ind:
        A("s_mov_b64 exec, s[76:77]")
        A("s_cbranch_execz L_noind")
        A(f"buffer_store_dword v56, v11, s[{SWS}:{SWS+3}], s78 offen sc1")
        A("L_noind:")
    A("s_mov_b64 exec, -1")
    stamp(7)
    for i in range(8):
        A(f"v_mul_f32 v{GO+i}, v{GO+i}, v16")
    for i in range(8):
        A(f"v_fmac_f32 v{GO+i}, v{GO+8+i}, v18")
    allreduce([GO + i for i in range(8)], "v_add_f32", [], steps=("x1", "x2", "hm"))
    for i in range(4):
        A(f"v_cvt_pk_bf16_f32 v{48+i}, v{GO+2*i}, v{GO+2*i+1}")
    A(f"s_cmp_lg_u32 s{sDry}, 0")
    nop(1)
    for T in range(8):
        A(f"v_mfma_f32_16x16x32_bf16 v[{Y+4*T}:{Y+4*T+3}], v[{WF+4*T}:{WF+4*T+3}], v[48:51], v[{Y+4*T}:{Y+4*T+3}]")
    A("s_cbranch_scc1 L_tail_real")
    A("s_mov_b32 exec_lo, 0x11111111"); A("s_mov_b32 exec_hi, 0x11111111")
    for u in range(4):
        for i in range(4):
            A(f"v_mov_b32_dpp v{Y+8*u+i}, v{Y+8*u+4+i} quad_perm:[0,1,2,3] row_mask:0xf bank_mask:0xa")
        for i in range(4):
            A(f"v_and_or_b32 v{Y+8*u+i}, v{Y+8*u+i}, s85, v{52+i}")
        A(f"buffer_store_dwordx4 v[{Y+8*u}:{Y+8*u+3}], v163, s[{SWS}:{SWS+3}], s72 offen offset:{128*u} sc1")
    A("s_mov_b64 exec, 1")
    A(f"ds_write_b32 v8, v23 offset:{F_YDONE}")
    stamp(8)
    stamp_flush()
    A("L_abort:")
    A("s_endpgm")
    sT = 66
    loader_rest()
    A("L_end:")
    nv = 208 if stamps else 168
    A('.section .rodata,"a"')
    A(".p2align 6")
    A(f".amdhsa_kernel {KNAME}")
    A(f"  .amdhsa_next_free_vgpr {nv}")
    A("  .amdhsa_next_free_sgpr 102")
    A(f"  .amdhsa_accum_offset {nv}")
    A("  .amdhsa_group_segment_fixed_size 0")
    A("  .amdhsa_kernarg_size 96")
    A("  .amdhsa_user_sgpr_count 2")
    A("  .amdhsa_user_sgpr_kernarg_segment_ptr 1")
    A("  .amdhsa_system_sgpr_workgroup_id_x 1")
    A(".end_amdhsa_kernel")
    out = []
    for ln in L:
        if ln.startswith((";", ".", " ")) or ln.endswith(":") or "\n" in ln:
            out.append(ln)
        else:
            out.append("    " + ln)
    return "\n".join(out) + "\n"


if __name__ == "__main__":
    kw = eval("dict(" + (sys.argv[2] if len(sys.argv) > 2 else "") + ")")
    open(sys.argv[1], "w").write(gen(**kw))
FINAL_WAVE = 2
```

```python
import sys
from gen_kernel import HEADER, KNAME

L_TILE = 0x20000
L_T2 = 0x1C000
L_DN = 0x24000
L_XN = 0x26000
L_Q = 0x26800
L_OX = 0x26C00
L_FLAG = 0x26E00
F_ORDY, F_DONE, F_QRDY, F_MRDY, F_PRDY, F_TILE, F_BREQ, F_CTL, F_HRDY, F_WRDY = 0, 16, 32, 48, 64, 80, 84, 88, 96, 112
L_M = L_FLAG + 128
L_L = L_FLAG + 192
F_LANDED = 256
LB = 4
LDS_BYTES = 0x27000
W_EPOCH = 0x0
W_PROG = 0x1000
W_MARK = 0x1400
W_IND = 0x2000
W_ML = 0x4000
W_O = 0x10000
W_Y = 0x90000
W_Q = 0x110000
W_QB = 0x150000
W_F = 0x190000
W_STAMP = 0x200000
WS_BYTES = 0x300000

LOG2E = 0x3FB8AA3B
SCALE = 0x3DB504F3
SPIN_MAX = 1 << 22


def gen(NLS=(16, 18, 20, 22, 24, 26), idx0=2, gain=1.0, bias=2.37, ctl=True, NL0=24, stamps=False, pK="nt", pW="nt", diag=None, TRIG=126,
        codepf=True, fast=True, QB_EVERY=8, GATH_AT=32, ML_AT=88, noffn=False, nowt=False,
        FX=7, boost7=-0.15, touch=True, early=False, indpos=1, ind=True, opre=False, boostE=0.15, retouch=0, gate=False, MARK_AT=0, cw=True, pads=True, spec=True, kvtouch=True, yall=True):
    L = []
    A = L.append
    uid = [0]
    role = ["pro"]

    def lab(p):
        uid[0] += 1
        return f"L_{p}_{uid[0]}"

    def nop(n):
        while n > 0:
            k = min(n, 16)
            A(f"s_nop {k-1}")
            n -= k

    def srd(r, p, nbytes):
        A(f"s_mov_b32 s{r}, s{p}")
        A(f"s_mov_b32 s{r+1}, s{p+1}")
        A(f"s_mov_b32 s{r+2}, {hex(nbytes)}")
        A(f"s_mov_b32 s{r+3}, 0x20000")

    VST = 166

    def stamp(i):
        if diag is not None and role[0] == "cons" and diag == i:
            A("s_memrealtime s[88:89]")
            A("s_waitcnt lgkmcnt(0)")
        if not stamps:
            return
        A("s_memrealtime s[98:99]")
        A("s_waitcnt lgkmcnt(0)")
        A(f"v_writelane_b32 v{VST}, s98, {i}")

    def stamp_flush():
        if not stamps:
            return
        A("s_mov_b64 exec, -1")
        A(f"s_sub_u32 s97, {hex(SPIN_MAX)}, s15")
        A(f"v_writelane_b32 v{VST}, s97, 16")
        srd(92, P_WS, WS_BYTES)
        A("s_lshl_b32 s97, s2, 4")
        A("s_add_u32 s97, s97, s3")
        A("s_lshl_b32 s97, s97, 8")
        A(f"s_add_u32 s97, s97, {hex(W_STAMP)}")
        A(f"v_lshlrev_b32 v{VST+1}, 2, v0")
        A(f"buffer_store_dword v{VST}, v{VST+1}, s[92:95], s97 offen")
        A("s_waitcnt vmcnt(0)")

    def spin_guard():
        A("s_sub_u32 s15, s15, 1")
        A("s_cbranch_scc1 L_abort")

    def lds_wait(off, thr, vt, st):
        l = lab("w")
        A(f"{l}:")
        A(f"ds_read_b32 v{vt}, v8 offset:{off}")
        spin_guard()
        A("s_waitcnt lgkmcnt(0)")
        A(f"v_readfirstlane_b32 s{st}, v{vt}")
        A(f"s_cmp_ge_i32 s{st}, {thr}")
        A(f"s_cbranch_scc0 {l}")

    def lds_wait4(off, thr, vq, extra=()):
        l = lab("w4")
        A(f"{l}:")
        A(f"ds_read_b128 v[{vq}:{vq+3}], v8 offset:{off}")
        for e in extra:
            A(e)
        spin_guard()
        A(f"s_waitcnt lgkmcnt({len(extra)})")
        A(f"v_min3_i32 v{vq}, v{vq}, v{vq+1}, v{vq+2}")
        A(f"v_min_i32 v{vq}, v{vq}, v{vq+3}")
        A(f"v_cmp_gt_i32 vcc, {thr}, v{vq}")
        if extra:
            A("s_waitcnt lgkmcnt(0)")
        A(f"s_cbranch_vccnz {l}")

    def lds_set(addr_v, off, val_v):
        A("s_mov_b64 exec, 1")
        A(f"ds_write_b32 v{addr_v}, v{val_v} offset:{off}")
        A("s_mov_b64 exec, -1")

    def allreduce(regs, op, tmps, steps=("x1", "x2", "hm", "m", "p16", "p32")):
        dpp = {"x1": "quad_perm:[1,0,3,2]", "x2": "quad_perm:[2,3,0,1]", "hm": "row_half_mirror", "m": "row_mirror",
               "r4": "row_ror:4", "r8": "row_ror:8"}
        for st in steps:
            if st in dpp:
                nop(max(0, 3 - len(regs)))
                for r in regs:
                    A(f"{op}_dpp v{r}, v{r}, v{r} {dpp[st]} row_mask:0xf bank_mask:0xf")
            else:
                ins = "v_permlane16_swap_b32" if st == "p16" else "v_permlane32_swap_b32"
                for r, t in zip(regs, tmps):
                    A(f"v_mov_b32 v{t}, v{r}")
                nop(max(0, 3 - len(regs)))
                for r, t in zip(regs, tmps):
                    A(f"{ins} v{r}, v{t}")
                nop(1)
                for r, t in zip(regs, tmps):
                    A(f"{op} v{r}, v{r}, v{t}")

    def make_tag(s, v):
        A(f"v_readfirstlane_b32 s{s}, v{v}")
        A(f"s_add_u32 s{s}, s{s}, 0x4d2b7f35")

    def local_tag(dst, tag):
        A(f"s_getreg_b32 s{dst}, hwreg(HW_REG_XCC_ID, 0, 4)")
        A(f"s_mul_i32 s{dst}, s{dst}, 0x10001")
        A(f"s_xor_b32 s{dst}, s{dst}, s{tag}")

    def store_by(sloc, ins):
        l1, l2 = lab("far"), lab("st")
        A(f"s_cmp_eq_u32 s{sloc}, 2")
        A(f"s_cbranch_scc0 {l1}")
        for i in ins:
            A(i)
        A(f"s_branch {l2}")
        A(f"{l1}:")
        for i in ins:
            A(i + " sc1")
        A(f"{l2}:")

    def tag_check(base, n, stag, t1, t2):
        for i in range(n):
            A(f"v_xor_b32 v{base+1+2*i}, s{stag}, v{base+1+2*i}")
        r = [base + 1 + 2 * i for i in range(n)]
        if n == 8:
            A(f"v_or3_b32 v{t1}, v{r[0]}, v{r[1]}, v{r[2]}")
            A(f"v_or3_b32 v{t2}, v{r[3]}, v{r[4]}, v{r[5]}")
            A(f"v_or3_b32 v{t1}, v{t1}, v{r[6]}, v{r[7]}")
            A(f"v_or_b32 v{t1}, v{t1}, v{t2}")
        else:
            A(f"v_or3_b32 v{t1}, v{r[0]}, v{r[1]}, v{r[2]}")
            A(f"v_or_b32 v{t1}, v{t1}, v{r[3]}")
        A(f"v_cmp_ne_u32 vcc, 0, v{t1}")

    def vaddr_T0(dst, t1, t2, t3):
        A(f"v_lshrrev_b32 v{t1}, 2, v0")
        A(f"v_and_b32 v{t2}, 7, v{t1}")
        A(f"v_lshlrev_b32 v{t2}, 1, v{t2}")
        A(f"v_lshrrev_b32 v{t3}, 5, v0")
        A(f"v_or_b32 v{t2}, v{t2}, v{t3}")
        A(f"v_bfe_u32 v{t3}, v0, 1, 1")
        A(f"v_xor_b32 v{t2}, v{t2}, v{t3}")
        A(f"v_lshlrev_b32 v{t2}, 4, v{t2}")
        A(f"v_lshl_or_b32 v{dst}, v{t1}, 8, v{t2}")
        A(f"v_and_b32 v{t3}, 1, v0")
        A(f"v_lshl_or_b32 v{dst}, v{t3}, 3, v{dst}")

    def prog_addr(d, t):
        A(f"s_lshr_b32 s{d}, s{S_W}, 4")
        A(f"s_lshl_b32 s{d}, s{d}, 2")
        A(f"s_and_b32 s{t}, s{S_S}, 3")
        A(f"s_add_u32 s{d}, s{d}, s{t}")
        A(f"s_lshl_b32 s{d}, s{d}, 4")
        A(f"s_and_b32 s{t}, s{S_S}, 12")
        A(f"s_add_u32 s{d}, s{d}, s{t}")
        A(f"s_add_u32 s{d}, s{d}, {hex(W_PROG)}")

    def unpack(dst, src):
        A(f"v_lshlrev_b32 v{dst}, 16, v{src}")
        A(f"v_and_b32 v{dst+1}, 0xffff0000, v{src}")

    P_X, P_K, P_V, P_WQ, P_WO, P_BX, P_G, P_U, P_D, P_OUT, P_DBG, P_WS = range(16, 40, 2)
    S_KVH, S_J, S_B, S_S, S_RB, S_CH, S_W = 4, 5, 6, 7, 8, 9, 10

    A(HEADER)
    A(f"; @launch grid=(256,1,1) block=(640,1,1) lds={LDS_BYTES}")
    A('.amdgcn_target "amdgcn-amd-amdhsa--gfx950"')
    A(".text")
    A(f".globl {KNAME}")
    A(".p2align 8")
    A(f".type {KNAME},@function")
    A(f"{KNAME}:")
    A("s_cmp_ge_u32 s2, 256")
    A("s_cbranch_scc1 L_abort")
    A("s_load_dwordx16 s[16:31], s[0:1], 0")
    A("s_load_dwordx8 s[32:39], s[0:1], 64")
    if stamps:
        A("s_memrealtime s[98:99]")
        A(f"v_mov_b32 v{VST}, 0")
    if diag is not None:
        A("s_memrealtime s[90:91]")
    A(f"s_lshr_b32 s{S_J}, s2, 3")
    if codepf:
        A("s_getpc_b64 s[80:81]")
        A(f"s_lshl_b32 s6, s{S_J}, 9")
        A("v_subrev_u32 v2, 448, v0")
        A("v_cmp_gt_u32 vcc, 4, v2")
        A("v_lshl_add_u32 v2, v2, 7, s6")
        A(f"v_min_u32 v2, L_end-{KNAME}-64, v2")
        A("s_and_b64 exec, exec, vcc")
        A("s_cbranch_execz L_nopf")
        A("global_load_dword v165, v2, s[80:81]")
        A("L_nopf:")
        A("s_mov_b64 exec, -1")
    A("v_lshrrev_b32 v1, 6, v0")
    A("v_and_b32 v0, 63, v0")
    A("v_readfirstlane_b32 s3, v1")
    A(f"v_mov_b32 v8, {hex(L_FLAG)}")
    A("v_lshl_add_u32 v9, v0, 2, v8")
    A("v_mov_b32 v11, 0")
    A("ds_write_b32 v9, v11")
    A(f"ds_write_b32 v9, v11 offset:{F_LANDED}")
    A(f"s_and_b32 s{S_KVH}, s2, 7")
    A(f"s_lshr_b32 s{S_B}, s{S_J}, 4")
    A(f"s_and_b32 s{S_S}, s{S_J}, 15")
    A(f"s_lshl_b32 s{S_W}, s{S_KVH}, 5")
    A(f"s_add_u32 s{S_W}, s{S_W}, s{S_J}")
    A(f"s_mov_b32 s15, {hex(SPIN_MAX)}")
    A("v_lshrrev_b32 v1, 4, v0")
    A("v_lshlrev_b32 v3, 1, v1")
    A("v_lshlrev_b32 v10, 4, v0")
    sO1, sO2, sN, sNc, sBase, sTt, sT, sIdx, sEv = 60, 61, 62, 63, 64, 65, 66, 68, 69
    sSmp, sPrevF, sPs, sPl, sCen = 70, 71, 72, 73, 74
    A("v_lshrrev_b32 v12, 3, v0")
    A("v_and_b32 v13, 7, v0")
    A("v_xor_b32 v13, v13, v3")
    A("v_lshlrev_b32 v13, 4, v13")
    A("v_lshl_or_b32 v4, v12, 13, v13")
    for i in range(1, 4):
        A(f"v_add_u32 v{4+i}, {i*(0x10000-1024)}, v4")
    A(f"s_lshr_b32 s{sT}, s{S_J}, 3")
    A(f"s_lshl_b32 s{sO1}, s{sT}, 10")
    A(f"s_add_u32 s{sO1}, s{sO1}, s{S_KVH}")
    A(f"s_lshl_b32 s{sO1}, s{sO1}, 3")
    A(f"s_and_b32 s{sT}, s{S_J}, 7")
    A(f"s_add_u32 s{sO1}, s{sO1}, s{sT}")
    A(f"s_lshl_b32 s{sO1}, s{sO1}, 7")
    A(f"s_mov_b32 s42, {hex(512*4096*2)}")
    A("s_mov_b32 s43, 0x20000")
    A("s_mov_b32 s46, 2048")
    A("s_mov_b32 s47, 0x20000")
    A(f"s_mov_b32 m0, {hex(L_TILE)}")
    A("s_cmp_lg_u32 s3, 0")
    A("s_waitcnt lgkmcnt(0)")
    if stamps:
        A(f"v_writelane_b32 v{VST}, s98, 0")
    A("s_cbranch_scc1 L_roles")

    role[0] = "ld"
    A(f"s_mov_b64 s[40:41], s[{P_WQ}:{P_WQ+1}]")
    A("s_setprio 3")
    A("L_ldq:")
    for i in range(4):
        A(f"buffer_load_dwordx4 v{4+i}, s[40:43], s{sO1} offen offset:{i*1024} {pW} lds")
    A("s_add_u32 m0, m0, 0x1000")
    A(f"s_add_u32 s{sO1}, s{sO1}, 0x40000")
    A(f"s_cmp_lt_u32 m0, {hex(L_TILE + 0x4000)}")
    A("s_cbranch_scc1 L_ldq")
    A("s_barrier")
    A("v_mul_u32_u24 v4, 3584, v12")
    A("v_add_u32 v4, v4, v13")
    for i in range(1, 4):
        A(f"v_add_u32 v{4+i}, {i*(8*3584-1024)}, v4")
    A(f"s_mul_i32 s{sO2}, s{sT}, {64*3584}")
    A(f"s_lshr_b32 s{sT}, s{S_W}, 3")
    A(f"s_lshl_b32 s{sT}, s{sT}, 7")
    A(f"s_add_u32 s{sO2}, s{sO2}, s{sT}")
    A(f"s_cmp_lt_u32 s{S_KVH}, {0 if noffn else 7}")
    A(f"s_cselect_b32 s42, {hex(512*1792*2)}, 0")
    A(f"s_mov_b64 s[40:41], s[{P_G}:{P_G+1}]")
    A(f"s_mov_b32 m0, {hex(L_T2)}")
    A("L_ldf2:")
    A(f"s_mov_b32 s{sO1}, s{sO2}")
    A("L_ldf:")
    for i in range(4):
        A(f"s_waitcnt vmcnt({NL0-1})")
        A(f"buffer_load_dwordx4 v{4+i}, s[40:43], s{sO1} offen offset:{i*1024} {pW} lds")
    A("s_add_u32 m0, m0, 0x1000")
    A(f"s_add_u32 s{sO1}, s{sO1}, {32*3584}")
    A("s_bitcmp1_b32 m0, 12")
    A("s_cbranch_scc1 L_ldf")
    A(f"s_mov_b64 s[40:41], s[{P_U}:{P_U+1}]")
    A("s_bitcmp1_b32 m0, 13")
    A("s_cbranch_scc1 L_ldf2")
    A("v_and_b32 v2, 15, v0")
    A("v_xor_b32 v2, v2, v3")
    A("v_lshlrev_b32 v2, 4, v2")
    A("v_lshl_or_b32 v4, v1, 8, v2")
    A("v_xor_b32 v5, 0x80, v4")
    A("v_xor_b32 v6, 16, v4")
    A("v_xor_b32 v7, 0x90, v4")
    A(f"s_lshl_b32 s{sBase}, s{S_B}, 3")
    A(f"s_add_u32 s{sBase}, s{sBase}, s{S_KVH}")
    A(f"s_lshl_b32 s{sBase}, s{sBase}, 4")
    A(f"s_add_u32 s{sBase}, s{sBase}, s{S_S}")
    A(f"s_lshl_b32 s{sBase}, s{sBase}, 1")
    A(f"s_add_u32 s{sBase}, s{sBase}, s{S_B}")
    A(f"s_lshl_b32 s{sBase}, s{sBase}, 1")
    A(f"s_bfe_u32 s{sT}, s{S_S}, 0x10002")
    A(f"s_add_u32 s{sBase}, s{sBase}, s{sT}")
    A(f"s_lshl_b32 s{sBase}, s{sBase}, 17")
    A(f"s_mov_b32 s{sO1}, s{sBase}")
    A("s_mov_b32 s42, 0x8000000")
    A(f"s_mov_b64 s[40:41], s[{P_K}:{P_K+1}]")
    A(f"s_mov_b32 s{sN}, 0")
    A(f"s_mov_b32 s{sTt}, 0")
    A("s_mov_b32 m0, 0")
    A(f"s_mov_b32 s{sEv}, 2")
    A(f"s_mov_b32 s{sNc}, 2")
    A(f"s_mov_b32 s{sIdx}, 0")
    A(f"s_mov_b64 s[44:45], s[{P_WS}:{P_WS+1}]")
    A(f"s_mov_b32 s46, {hex(WS_BYTES)}")
    A("v_lshlrev_b32 v14, 3, v0")
    A("v_mov_b32 v22, 0")
    A(f"ds_read_b128 v[16:19], v8 offset:{F_DONE}")
    NV = len(NLS)
    extra = {
        0: [f"s_add_u32 s{sO2}, s{sO1}, 0x8000"],
        1: [f"s_or_b32 s{sTt}, s{sTt}, 0x8000", f"s_add_u32 s{sTt}, s{sTt}, 0x1000"],
        2: [f"s_and_b32 s{sTt}, s{sTt}, 0x77000"],
        3: ["s_add_u32 m0, m0, 0x1000"],
        4: [f"s_xor_b32 s{sO1}, s{sTt}, s{sBase}"],
        5: [f"s_add_u32 s{sN}, s{sN}, 1"],
        6: [f"s_add_u32 s{sT}, m0, 0x1000"],
        7: [f"s_and_b32 m0, s{sT}, 0x1ffff"],
    }

    def body(k):
        NL = NLS[k]
        pub_i = (NL - 1) % 8
        pub_d = (pub_i - NL + 1) // 8
        A(f"v_add_u32 v21, {pub_d + LB - 1}, v22")
        A(f"L_body{k}:")
        for i in range(8):
            A(f"s_waitcnt vmcnt({NL-1})")
            A(f"buffer_load_dwordx4 v{4+(i&3)}, s[40:43], s{sO1 if i < 4 else sO2} offen offset:{(i&3)*1024} {pK} lds")
            if i == 0:
                A("v_add_u32 v21, 1, v21")
            if i == pub_i:
                A(f"ds_max_i32 v9, v21 offset:{F_LANDED}")
            for e in extra.get(i, []):
                A(e)
        A(f"s_cmp_lg_u32 s{sN}, s{sEv}")
        A(f"s_cbranch_scc1 L_body{k}")

    A("L_def:")
    body(idx0)
    A("L_event:")
    if stamps:
        A(f"s_and_b32 s{sT}, s{sN}, 15"); A("s_cbranch_scc0 L_ldst")
        A("L_ldst_back:")
    A(f"s_bitcmp1_b32 s{sN}, 7")
    A("s_cbranch_scc1 L_drain")
    A(f"s_cmp_eq_u32 s{sN}, s{sNc}")
    A("s_cbranch_scc1 L_ctl")
    A("L_event2:")
    A("s_waitcnt lgkmcnt(0)")
    A("v_min3_i32 v20, v16, v17, v18")
    A("v_min_i32 v20, v20, v19")
    A(f"s_bitcmp1_b32 s{sN}, 6")
    A(f"v_readfirstlane_b32 s{sT}, v20")
    A("L_event3:")
    A(f"ds_read_b128 v[16:19], v8 offset:{F_DONE}")
    A(f"s_cselect_b64 s[40:41], s[{P_V}:{P_V+1}], s[40:41]")
    A(f"s_cmp_eq_u32 s{sT}, 0")
    A(f"s_cselect_b32 s{sEv}, 14, 16")
    A(f"s_add_u32 s{sT}, s{sT}, s{sEv}")
    A(f"s_or_b32 s{sEv}, s{sN}, {15 if stamps else 63}")
    A(f"s_add_u32 s{sEv}, s{sEv}, 1")
    A(f"s_min_u32 s{sEv}, s{sEv}, s{sT}")
    A(f"s_min_u32 s{sEv}, s{sEv}, s{sNc}")
    A(f"v_mov_b32 v22, s{sN}")
    A(f"s_cmp_le_u32 s{sEv}, s{sN}")
    A("s_cbranch_scc1 L_full")
    A(f"s_cmp_eq_u32 s{sIdx}, 0")
    A("s_cbranch_scc1 L_def")
    A("s_branch L_var")
    A("L_full:")
    spin_guard()
    A("s_branch L_event2")
    A("L_roles:")
    A("s_cmp_lg_u32 s3, 1")
    A("s_cbranch_scc1 L_roles2")
    A(f"s_mov_b64 s[44:45], s[{P_X}:{P_X+1}]")
    A("s_setprio 2")
    A("buffer_load_dwordx4 v[16:19], v10, s[44:47], 0 offen")
    A("buffer_load_dwordx4 v[20:23], v10, s[44:47], 0 offen offset:1024")
    A("L_roles2:")
    A("s_barrier")
    A("s_cbranch_scc1 L_other")
    A("s_branch L_aux")
    A("L_drain:")
    stamp(1)
    for x in range(125, 129):
        A(f"v_mov_b32 v21, {x + LB}")
        if gate and x == 128 and MARK_AT:
            A("v_mov_b32 v24, 200")
            A("s_mov_b64 exec, 1")
            A(f"s_waitcnt vmcnt({MARK_AT})")
            A(f"buffer_store_dword v24, v11, s[44:47], s{sPs} offen")
            A("s_waitcnt vmcnt(1)")
        else:
            A(f"s_waitcnt vmcnt({(128 - x) * 8})")
        A(f"ds_max_i32 v9, v21 offset:{F_LANDED}")
    if gate and not MARK_AT:
        A("v_mov_b32 v24, 200")
        A("s_mov_b64 exec, 1")
        A(f"buffer_store_dword v24, v11, s[44:47], s{sPs} offen")
    stamp(2)
    stamp_flush()
    A("s_endpgm")

    if stamps:
        A("L_ldst:")
        for n, k in ((16, 4), (32, 5), (64, 6), (96, 7)):
            l = lab("st")
            A(f"s_cmp_lg_u32 s{sN}, {n}"); A(f"s_cbranch_scc1 {l}"); stamp(k); A(f"{l}:")
        A("s_branch L_ldst_back")

    def loader_rest():
        A("L_ctl:")
        A(f"s_cmp_eq_u32 s{sN}, 2")
        A("s_cbranch_scc1 L_ctl_init")
        A("s_waitcnt lgkmcnt(0)")
        A("v_add_u32 v15, v12, v13")
        A(f"v_mov_b32 v24, s{sN}")
        A("v_readfirstlane_b32 s78, v23")
        A("s_mov_b64 exec, 1")
        A(f"buffer_store_dword v24, v11, s[44:47], s{sPs} offen")
        A("s_mov_b64 exec, 0xffff")
        A("v_add_u32_dpp v15, v15, v15 quad_perm:[1,0,3,2] row_mask:0xf bank_mask:0xf")
        A(f"buffer_load_dwordx2 v[12:13], v14, s[44:47], s{sPl} offen sc1")
        A(f"ds_read_b32 v23, v8 offset:{F_CTL}")
        A("v_add_u32_dpp v15, v15, v15 quad_perm:[2,3,0,1] row_mask:0xf bank_mask:0xf")
        A("v_min3_i32 v20, v16, v17, v18")
        A(f"s_add_u32 s{sNc}, s{sNc}, 4")
        A("v_add_u32_dpp v15, v15, v15 row_half_mirror row_mask:0xf bank_mask:0xf")
        A("v_min_i32 v20, v20, v19")
        A(f"s_add_u32 s{sSmp}, s{sSmp}, {4*32*int(gain*256)}")
        A("v_add_u32_dpp v15, v15, v15 row_mirror row_mask:0xf bank_mask:0xf")
        A(f"v_readfirstlane_b32 s{sT}, v20")
        A("v_readfirstlane_b32 s76, v15")
        A("s_mov_b64 exec, -1")
        A(f"s_mul_i32 s76, s76, {int(gain*256)}")
        A(f"s_sub_i32 s76, s76, s{sSmp}")
        A("s_ashr_i32 s76, s76, 13")
        A(f"s_max_i32 s76, s76, {-idx0}")
        A(f"s_min_i32 s76, s76, {NV-1-idx0}")
        A(f"s_cmp_eq_u32 s{sPrevF}, {2 if ctl else 3}")
        A(f"s_cselect_b32 s{sIdx}, s76, s{sIdx}")
        A(f"s_mov_b32 s{sPrevF}, s78")
        A(f"s_bitcmp1_b32 s{sN}, 6")
        A("s_branch L_event3")
        A("L_ctl_init:")
        prog_addr(sPs, sPl)
        A(f"s_and_b32 s{sPl}, s{sPs}, 0xffffff80")
        A(f"s_lshr_b32 s{sNc}, s{S_J}, 2")
        A(f"s_add_u32 s{sNc}, s{sNc}, s{S_J}")
        A(f"s_and_b32 s{sNc}, s{sNc}, 3")
        A(f"s_add_u32 s{sNc}, s{sNc}, 3")
        A(f"s_mov_b32 s{sPrevF}, 0")
        A(f"s_sub_u32 s{sSmp}, s{sNc}, 8")
        A(f"s_mul_i32 s{sSmp}, s{sSmp}, {32*int(gain*256)}")
        A(f"s_cmp_eq_u32 s{S_KVH}, {FX}")
        A(f"s_cselect_b32 s{sCen}, {int(boost7 * 256 * 32)}, 0")
        A(f"s_add_u32 s{sCen}, s{sCen}, {int((0.5 + bias * gain) * 256 * 32)}")
        A(f"s_sub_u32 s{sSmp}, s{sSmp}, s{sCen}")
        if boostE:
            A(f"s_getreg_b32 s{sCen}, hwreg(HW_REG_XCC_ID, 0, 1)")
            A(f"s_mul_i32 s{sCen}, s{sCen}, {int(boostE * 256 * 32)}")
            A(f"s_add_u32 s{sSmp}, s{sSmp}, s{sCen}")
        A("v_mov_b32 v12, 0"); A("v_mov_b32 v13, 0"); A("v_mov_b32 v23, 0")
        A("s_branch L_event2")
        A("L_var:")
        others = [i for i in range(NV) if i != idx0]

        def tree(lst):
            if len(lst) == 1:
                body(lst[0])
                A("s_branch L_event")
                return
            mid = len(lst) // 2
            l = lab("tr")
            A(f"s_cmp_ge_i32 s{sIdx}, {lst[mid] - idx0}")
            A(f"s_cbranch_scc1 {l}")
            tree(lst[:mid])
            A(f"{l}:")
            tree(lst[mid:])
        tree(others)

    role[0] = "aux"
    SWQ, SX, SWS, SG, SU, SOUT = 40, 44, 48, 52, 56, 60
    sO, sTag, sA, sB2, sThr, sLoc = 64, 65, 66, 67, 75, 84
    XB, TF = 64, 96
    A("L_aux:")
    A(f"s_lshr_b32 s{sB2}, s{S_J}, 3")
    srd(SWS, P_WS, WS_BYTES)
    A(f"buffer_load_dword v24, v11, s[{SWS}:{SWS+3}], 0 offen sc1")
    prog_addr(76, 77)
    A("s_mov_b64 exec, 1")
    A(f"buffer_store_dword v11, v11, s[{SWS}:{SWS+3}], s76 offen")
    A("s_mov_b64 exec, -1")
    stamp(1)
    A(f"v_add_u32 v25, {hex(L_XN)}, v10")
    A("v_bfe_u32 v15, v0, 3, 1")
    A("v_lshlrev_b32 v26, 10, v15")
    A("v_lshl_add_u32 v26, v1, 3, v26")
    A(f"v_add_u32 v26, {hex(L_XN)}, v26")
    A(f"s_lshl_b32 s{sA}, s{sB2}, 8")
    A(f"v_add_u32 v28, s{sA}, v26")
    A(f"s_and_b32 s{sA}, s{S_J}, 7")
    A(f"s_lshl_b32 s{sA}, s{sA}, 7")
    A(f"v_add_u32 v26, s{sA}, v26")
    A("v_lshrrev_b32 v29, 2, v0")
    A("v_lshlrev_b32 v29, 7, v29")
    A("v_bfe_u32 v30, v0, 3, 2")
    A("v_lshl_or_b32 v29, v30, 5, v29")
    A("v_and_b32 v30, 3, v0")
    A("v_lshl_or_b32 v29, v30, 3, v29")
    A(f"v_add_u32 v160, {hex(L_TILE)}, v29")
    for T in range(1, 4):
        A(f"v_xor_b32 v{160+T}, {32*T}, v160")
    A("v_bfe_u32 v30, v0, 1, 2")
    A("v_lshlrev_b32 v27, 7, v30")
    A("v_lshl_or_b32 v27, v1, 5, v27")
    A("v_and_b32 v30, 1, v0")
    A("v_lshl_or_b32 v27, v30, 4, v27")
    A("v_lshl_or_b32 v31, v15, 14, v27")
    A(f"s_lshl_b32 s{sO}, s{S_KVH}, 15")
    A(f"s_lshl_b32 s{sA}, s{S_J}, 9")
    A(f"s_add_u32 s{sO}, s{sO}, s{sA}")
    A(f"s_add_u32 s{sO}, s{sO}, {hex(W_Q)}")
    if True:
        A(f"buffer_load_dword v89, v31, s[{SWS}:{SWS+3}], s{sO} offen sc1")
    A("s_mov_b32 s68, 0xaaaaaaaa"); A("s_mov_b32 s69, s68")
    A("s_mov_b32 s70, 0xcccccccc"); A("s_mov_b32 s71, s70")
    A("s_mov_b32 s72, 0xf0f0f0f0"); A("s_mov_b32 s73, s72")
    A(f"s_waitcnt vmcnt(3)")
    stamp(2)
    XF = 32
    for b in range(2):
        for i in range(4):
            unpack(XF + 8 * b + 2 * i, 16 + 4 * b + i)
    for b in range(2):
        A(f"v_add_f32 v{48+b}, v{XF+8*b}, v{XF+8*b+1}")
    for i in range(2, 8):
        for b in range(2):
            A(f"v_add_f32 v{48+b}, v{48+b}, v{XF+8*b+i}")
    allreduce([48, 49], "v_add_f32", [50, 51])
    for b in range(2):
        A(f"v_mul_f32 v{48+b}, 0x3b000000, v{48+b}")
    for i in range(8):
        for b in range(2):
            A(f"v_sub_f32 v{52+b}, v{XF+8*b+i}, v{48+b}")
        for b in range(2):
            A(f"{'v_mul_f32' if i == 0 else 'v_fmac_f32'} v{54+b}, v{52+b}, v{52+b}")
    allreduce([54, 55], "v_add_f32", [50, 51])
    for b in range(2):
        A(f"v_mul_f32 v{54+b}, 0x3b000000, v{54+b}")
    A("v_cvt_pk_bf16_f32 v50, v48, v49")
    A("v_cvt_pk_bf16_f32 v51, v54, v55")
    unpack(48, 50)
    unpack(54, 51)
    A("v_add_f32 v54, 0x3727c5ac, v54"); A("v_add_f32 v55, 0x3727c5ac, v55")
    A("v_cvt_pk_bf16_f32 v51, v54, v55")
    unpack(54, 51)
    A("v_sqrt_f32 v54, v54"); A("v_sqrt_f32 v55, v55")
    nop(1)
    A("v_cvt_pk_bf16_f32 v51, v54, v55")
    unpack(54, 51)
    A("v_rcp_f32 v54, v54"); A("v_rcp_f32 v55, v55")
    for b in range(2):
        for i in range(8):
            A(f"v_sub_f32 v{XF+8*b+i}, v{XF+8*b+i}, v{48+b}")
        for i in range(4):
            A(f"v_cvt_pk_bf16_f32 v{56+4*b+i}, v{XF+8*b+2*i}, v{XF+8*b+2*i+1}")
        for i in range(4):
            unpack(XF + 8 * b + 2 * i, 56 + 4 * b + i)
        for i in range(8):
            A(f"v_mul_f32 v{XF+8*b+i}, v{XF+8*b+i}, v{54+b}")
        for i in range(4):
            A(f"v_cvt_pk_bf16_f32 v{56+4*b+i}, v{XF+8*b+2*i}, v{XF+8*b+2*i+1}")
        A(f"ds_write_b128 v25, v[{56+4*b}:{59+4*b}] offset:{1024*b}")
    A("s_waitcnt lgkmcnt(0)")
    for s in range(4):
        A(f"ds_read2_b64 v[{XB+4*s}:{XB+4*s+3}], v28 offset0:{8*s} offset1:{8*s+4}")
    for s in range(2):
        A(f"ds_read2_b64 v[{XB+16+4*s}:{XB+16+4*s+3}], v26 offset0:{8*s} offset1:{8*s+4}")
    stamp(3)
    lds_wait(F_LANDED, 2, 44, sA)
    A("s_waitcnt vmcnt(0)")
    stamp(4)

    def tile_mfma(acc_of, b_of, first):
        for hf in range(2):
            for s in range(2 * hf, 2 * hf + 2):
                for T in range(4):
                    r = TF + 16 * s + 4 * T
                    A(f"ds_read_b64_tr_b16 v[{r}:{r+1}], v{160+T} offset:{s*4096}")
                    A(f"ds_read_b64_tr_b16 v[{r+2}:{r+3}], v{160+T} offset:{s*4096+2048}")
                if s == 2 * hf:
                    A("s_waitcnt lgkmcnt(4)")
            A("s_waitcnt lgkmcnt(0)")
            for s in range(2 * hf, 2 * hf + 2):
                for T in range(4):
                    r = TF + 16 * s + 4 * T
                    d = acc_of(s, T)
                    c = "0" if first(s) else f"v[{d}:{d+3}]"
                    A(f"v_mfma_f32_16x16x32_bf16 v[{d}:{d+3}], v[{r}:{r+3}], v[{b_of(s)}:{b_of(s)+3}], {c}")

    def select_granule(D, out):
        for T in range(4):
            A(f"v_cndmask_b32 v{D+4*T}, v{D+4*T}, v{D+2+4*T}, s[68:69]")
            A(f"v_cndmask_b32 v{D+1+4*T}, v{D+1+4*T}, v{D+3+4*T}, s[68:69]")
        for T in (0, 2):
            A(f"v_cndmask_b32 v{D+4*T}, v{D+4*T}, v{D+4+4*T}, s[70:71]")
            A(f"v_cndmask_b32 v{D+1+4*T}, v{D+1+4*T}, v{D+5+4*T}, s[70:71]")
        A(f"v_cndmask_b32 v{out}, v{D}, v{D+8}, s[72:73]")
        A(f"v_cndmask_b32 v{out+2}, v{D+1}, v{D+9}, s[72:73]")

    tile_mfma(lambda s, T: 32 + 4 * T, lambda s: XB + 4 * s, lambda s: s == 0)
    make_tag(sTag, 24)
    local_tag(sA, sTag)
    A(f"v_mov_b32 v17, s{sA}")
    A(f"v_mov_b32 v19, s{sA}")
    select_granule(32, 16)
    A(f"buffer_store_dwordx4 v[16:19], v31, s[{SWS}:{SWS+3}], s{sO} offen")
    A("v_mov_b32 v88, 1")
    A("s_setprio 0")
    A(f"s_add_u32 s{sO}, s{sO}, {hex(W_QB - W_Q)}")
    A(f"v_mov_b32 v17, s{sTag}")
    A(f"v_mov_b32 v19, s{sTag}")
    A(f"s_mov_b32 s{sB2}, 1")
    stamp(5)
    for T in range(4):
        A(f"v_add_u32 v{160+T}, {L_T2 - L_TILE}, v{160+T}")
    for r in (21, 23, 93, 95):
        A(f"v_mov_b32 v{r}, s{sTag}")
    lds_wait(F_LANDED, 4, 44, sA)
    tile_mfma(lambda s, T: 32 + 16 * (s >> 1) + 4 * T, lambda s: XB + 16 + 4 * (s & 1), lambda s: s in (0, 2))
    lds_set(8, F_TILE, 88)
    select_granule(32, 92)
    select_granule(48, 20)
    stamp(6)
    A("L_qserve:")
    A(f"ds_read_b128 v[44:47], v8 offset:{F_QRDY}")
    A(f"ds_read_b32 v48, v8 offset:{F_BREQ}")
    spin_guard()
    A("s_waitcnt lgkmcnt(0)")
    A("v_min3_i32 v44, v44, v45, v46")
    A("v_min_i32 v44, v44, v47")
    A(f"v_readfirstlane_b32 s{sA}, v48")
    A(f"v_readfirstlane_b32 s{sLoc}, v44")
    A(f"s_and_b32 s{sA}, s{sA}, s{sB2}")
    A("s_cbranch_scc0 L_qnob")
    A(f"buffer_store_dwordx4 v[16:19], v31, s[{SWS}:{SWS+3}], s{sO} offen sc1")
    A(f"s_mov_b32 s{sB2}, 0")
    A("L_qnob:")
    A(f"s_cmp_eq_u32 s{sLoc}, 0")
    A("s_cbranch_scc1 L_qserve")
    A(f"s_cmp_ge_u32 s{S_KVH}, {0 if noffn else 7}")
    A("s_cbranch_scc1 L_noffn1")
    A("v_lshl_or_b32 v30, v15, 9, v27")
    A(f"s_lshl_b32 s{sO}, s{S_W}, 11")
    A(f"s_add_u32 s{sO}, s{sO}, {hex(W_F)}")
    store_by(sLoc, [f"buffer_store_dwordx4 v[92:95], v30, s[{SWS}:{SWS+3}], s{sO} offen",
                    f"buffer_store_dwordx4 v[20:23], v30, s[{SWS}:{SWS+3}], s{sO} offen offset:1024"])
    A("L_noffn1:")
    stamp(7)
    stamp_flush()
    A("s_endpgm")

    role[0] = "cons"
    SWS = 48
    sC, sLd, sTg, sL2E, sSc, sA, sB2, sTag, sLoc = 60, 61, 62, 63, 64, 65, 66, 67, 84
    AV, VDN, AK = 6, 9, 144
    S, O, KF, Q, SV = 16, 24, 32, 64, 128
    VF, PF = 32, 40
    vM, vNM, vL, vT, vT2, vPW, vPR = 152, 153, 154, 155, 156, 157, 158
    A("L_other:")
    srd(SWS, P_WS, WS_BYTES)
    A(f"buffer_load_dword v164, v11, s[{SWS}:{SWS+3}], 0 offen sc1")
    A("s_cmp_ge_u32 s3, 6")
    A("s_cbranch_scc1 L_tail")
    if pads:
        A("s_mov_b64 exec, 0")
        A("s_branch L_vlast")
        A("L_cpad:")
        A("s_mov_b64 exec, -1")
    A("s_setprio 1")
    A(f"s_sub_u32 s{sC}, s3, 2")
    A(f"s_lshr_b32 s69, s{S_W}, 4")
    A("s_lshl_b32 s69, s69, 14")
    A(f"s_lshl_b32 s{sA}, s{sC}, 10")
    A(f"s_add_u32 s69, s69, s{sA}")
    A(f"s_add_u32 s69, s69, {hex(W_Q)}")
    A("s_add_u32 s70, s69, 0x1000")
    A("s_add_u32 s71, s69, 0x2000")
    A("s_add_u32 s72, s69, 0x3000")
    A(f"s_mov_b32 s{sL2E}, {hex(LOG2E)}")
    A(f"s_mov_b32 s{sSc}, {hex(SCALE)}")
    A("v_and_b32 v15, 3, v0")
    A("v_lshlrev_b32 v160, 9, v15")
    A(f"v_bfe_u32 v{vT2}, v0, 2, 1")
    A(f"v_lshl_or_b32 v160, v{vT2}, 6, v160")
    A("v_lshl_or_b32 v160, v1, 4, v160")
    A(f"s_lshl_b32 s68, s{S_W}, 11")
    A(f"s_lshl_b32 s{sA}, s{sC}, 7")
    A(f"s_add_u32 s68, s68, s{sA}")
    A(f"s_add_u32 s68, s68, {hex(W_O)}")
    A(f"s_lshl_b32 s73, s{S_KVH}, 2")
    A(f"s_add_u32 s73, s73, s{sC}")
    A("s_lshl_b32 s73, s73, 1")
    A(f"s_add_u32 s73, s73, s{S_B}")
    A("s_lshl_b32 s73, s73, 2")
    A(f"s_and_b32 s{sA}, s{S_S}, 3")
    A(f"s_add_u32 s73, s73, s{sA}")
    A("s_lshl_b32 s73, s73, 2")
    A(f"s_lshr_b32 s{sA}, s{S_S}, 2")
    A(f"s_add_u32 s73, s73, s{sA}")
    A("s_lshl_b32 s73, s73, 4")
    A(f"s_add_u32 s73, s73, {hex(W_ML)}")
    A(f"v_lshlrev_b32 v{vPR}, 4, v15")
    A(f"v_lshl_or_b32 v{vPR}, v1, 6, v{vPR}")
    A(f"v_add_u32 v{vPR}, {hex(L_TILE)}, v{vPR}")
    A(f"v_bfe_u32 v{vT}, v0, 2, 2")
    A(f"v_lshl_add_u32 v{vPW}, v{vT}, 10, v{vPR}")
    A(f"s_lshl_b32 s{sA}, s{sC}, 8")
    A(f"v_add_u32 v{vPW}, s{sA}, v{vPW}")
    A(f"s_add_u32 s{sA}, s{sA}, {hex(L_Q)}")
    A(f"v_lshl_add_u32 v2, v0, 2, s{sA}")
    A("v_lshlrev_b32 v3, 8, v15")
    A("v_lshl_add_u32 v3, v1, 6, v3")
    A(f"v_add_u32 v3, {hex(L_Q)}, v3")
    A("v_lshl_add_u32 v4, v15, 4, v8")
    A(f"s_lshl_b32 s{sA}, s{sC}, 2")
    A(f"v_add_u32 v5, s{sA}, v4")
    A(f"v_add_u32 v{VDN}, s{sA}, v8")
    A("v_and_b32 v14, 15, v0")
    A("v_and_b32 v12, 7, v0")
    A("v_lshlrev_b32 v12, 1, v12")
    A("v_bfe_u32 v13, v0, 3, 1")
    A("v_or_b32 v12, v12, v13")
    A("v_lshlrev_b32 v13, 2, v1")
    A("v_xor_b32 v12, v12, v13")
    A("v_lshlrev_b32 v12, 4, v12")
    A("v_lshl_or_b32 v12, v14, 8, v12")
    A(f"s_lshl_b32 s{sA}, s{sC}, 13")
    A(f"v_or_b32 v{AK}, s{sA}, v12")
    for s in range(1, 8):
        A(f"v_xor_b32 v{AK+s}, {hex(16*(s&3) + 0x10000*(s>>2))}, v{AK}")
    vaddr_T0(13, 12, 14, 15)
    A(f"s_lshl_b32 s{sA}, s{sC}, 6")
    A(f"v_xor_b32 v{AV}, s{sA}, v13")
    A(f"v_xor_b32 v{AV+1}, 32, v{AV}")
    A(f"s_mov_b32 s{sLd}, 0")
    A(f"s_sub_u32 s{sTg}, s{sC}, 3")
    A(f"v_mov_b32 v{vM}, 0xff800000")
    A(f"v_mov_b32 v{vL}, 0")
    for i in range(8):
        A(f"v_mov_b32 v{O+i}, 0")
    A("s_mov_b32 s76, 0x000f000f"); A("s_mov_b32 s77, s76")
    for g in range(1, 4):
        A(f"s_lshl_b64 s[{76+2*g}:{77+2*g}], s[76:77], {4*g}")
    A("v_mov_b32 v159, 1")
    if diag is not None:
        A("s_mov_b32 s88, s90")
    SX, SOUT = 40, 44
    vYA = 153
    srd(SX, P_X, 2048)
    srd(SOUT, P_OUT, 2048)
    A(f"s_lshl_b32 s85, s{S_J}, 2")
    A(f"s_add_u32 s85, s85, s{sC}")
    A("s_lshl_b32 s85, s85, 4")
    A("v_and_b32 v12, 1, v0")
    A("v_bfe_u32 v13, v0, 2, 2")
    A("v_lshlrev_b32 v13, 1, v13")
    A("v_lshl_or_b32 v161, v12, 3, v13")
    A("v_lshrrev_b32 v13, 1, v0")
    A("v_lshlrev_b32 v13, 11, v13")
    A(f"v_lshl_or_b32 v{vYA}, v12, 4, v13")
    A("v_lshrrev_b32 v163, 3, v0")
    A("v_lshlrev_b32 v163, 7, v163")
    A(f"s_lshl_b32 s52, s{S_B}, 16")
    A("s_and_b32 s53, s85, 0x3ff")
    A("s_lshl_b32 s53, s53, 1")
    A("s_add_u32 s52, s52, s53")
    A(f"s_add_u32 s52, s52, {hex(W_Y)}")
    A(f"s_mov_b32 s59, {hex(W_IND)}")
    A(f"s_lshl_b32 s58, s{S_W}, 2")
    A(f"s_add_u32 s58, s58, {hex(W_MARK)}")
    A("s_and_b32 s53, s58, 0xffffff80")
    A(f"s_cmp_lg_u32 s{S_KVH}, {FX}")
    A("s_cbranch_scc1 L_nofin")
    A(f"buffer_load_ushort v162, v161, s[{SX}:{SX+3}], s85 offen")
    A("s_mov_b64 exec, 1")
    A(f"buffer_store_short v11, v161, s[{SOUT}:{SOUT+3}], s85 offen")
    A("s_mov_b64 exec, -1")
    A("L_nofin:")
    A("s_waitcnt vmcnt(0)")
    make_tag(sTag, 164)
    local_tag(74, sTag)
    for i in range(4):
        A(f"s_bfe_u32 s{54+i}, s{sTag}, {hex(0x80000 + 8*i)}")
    A("v_lshlrev_b32 v162, 16, v162")
    A(f"v_mov_b32 v164, s{sTag}")
    stamp(1)
    lds_wait(F_TILE, 1, vT, sA)
    stamp(5)
    A("s_mov_b64 vcc, -1")
    A(f"s_mov_b32 s{sB2}, 0")
    A("L_qpoll:")
    A(f"s_add_u32 s{sB2}, s{sB2}, 1")
    A(f"s_and_b32 s{sA}, s{sB2}, {(QB_EVERY - 1) if fast else 0}")
    A(f"s_cselect_b32 s{sA}, 0, {hex(W_QB - W_Q)}")
    A(f"s_cselect_b32 s75, s74, s{sTag}")
    A("s_cselect_b64 exec, 0, 1")
    A(f"ds_write_b32 v8, v159 offset:{F_BREQ}")
    A("s_mov_b64 exec, vcc")
    A(f"v_add_u32 v15, s{sA}, v10")
    for kb in range(4):
        A(f"buffer_load_dwordx4 v[{KF+4*kb}:{KF+4*kb+3}], v15, s[{SWS}:{SWS+3}], s{69+kb} offen sc1")
    spin_guard()
    A("s_waitcnt vmcnt(0)")
    tag_check(KF, 8, 75, vT, vT2)
    A("s_cbranch_vccnz L_qpoll")
    A("s_mov_b64 exec, -1")
    stamp(6)
    for kb in range(1, 4):
        A(f"v_add_f32 v{KF}, v{KF}, v{KF+4*kb}")
        A(f"v_add_f32 v{KF+2}, v{KF+2}, v{KF+4*kb+2}")
    A(f"v_cvt_pk_bf16_f32 v{vT}, v{KF}, v{KF+2}")
    A(f"ds_write_b32 v2, v{vT}")
    A(f"s_cmp_lt_u32 s{sB2}, {QB_EVERY if fast else 0}")
    A(f"s_cselect_b32 s{sA}, 2, 1")
    A(f"v_mov_b32 v{vT2}, s{sA}")
    lds_set(VDN, F_QRDY, vT2)
    lds_wait4(F_QRDY, 1, S, [f"ds_read_b128 v[{KF+4*s}:{KF+4*s+3}], v3 offset:{16*s}" for s in range(4)])
    A(f"v_readfirstlane_b32 s{sLoc}, v{S}")
    lds_set(8, F_CTL, S)
    for g in range(4):
        for i in range(16):
            A(f"v_cndmask_b32 v{Q+16*g+i}, 0, v{KF+i}, s[{76+2*g}:{77+2*g}]")
    stamp(2)

    def wait_landed(tgt):
        lo, ls = lab("lo"), lab("ls")
        A(f"s_cmp_ge_i32 s{sLd}, {tgt}")
        A(f"s_cbranch_scc1 {lo}")
        A(f"{ls}:")
        A(f"ds_read_b32 v{vT}, v8 offset:{F_LANDED}")
        spin_guard()
        A("s_waitcnt lgkmcnt(0)")
        A(f"v_readfirstlane_b32 s{sLd}, v{vT}")
        A(f"s_sub_u32 s{sLd}, s{sLd}, {LB}")
        A(f"s_cmp_ge_i32 s{sLd}, {tgt}")
        A(f"s_cbranch_scc0 {ls}")
        A(f"{lo}:")

    A("L_kwin:")
    for g in range(4):
        A(f"s_add_u32 s{sTg}, s{sTg}, 4")
        wait_landed(f"s{sTg}")
        for t in range(2):
            for s in range(4):
                r = KF + 16 * t + 4 * s
                A(f"ds_read_b128 v[{r}:{r+3}], v{AK + 4*(g>>1) + s} offset:{(g&1)*32768 + t*4096}")
        A(f"s_add_u32 s{sA}, s{sTg}, 3")
        A(f"s_min_u32 s{sA}, s{sA}, 64")
        A(f"v_mov_b32 v{vT2}, s{sA}")
        for t in range(2):
            A(f"s_waitcnt lgkmcnt({4 if t == 0 else 0})")
            if t == 1:
                lds_set(VDN, F_DONE, vT2)
            for s in range(4):
                r = KF + 16 * t + 4 * s
                c = "0" if (g == 0 and s == 0) else f"v[{S+4*t}:{S+4*t+3}]"
                q = Q + 16 * g + 4 * s
                A(f"v_mfma_f32_16x16x32_bf16 v[{S+4*t}:{S+4*t+3}], v[{r}:{r+3}], v[{q}:{q+3}], {c}")
    for i in range(12):
        A(f"v_mov_b32 v{SV+i}, v{SV+4+i}")
    for i in range(4):
        A(f"v_cvt_pk_bf16_f32 v{SV+12+i}, v{S+2*i}, v{S+2*i+1}")
    for i in range(4):
        unpack(S + 2 * i, SV + 12 + i)
    for i in range(8):
        A(f"v_mul_f32 v{S+i}, s{sSc}, v{S+i}")
    for i in range(4):
        A(f"v_cvt_pk_bf16_f32 v{SV+12+i}, v{S+2*i}, v{S+2*i+1}")
    A(f"v_max3_f32 v{vM}, v{vM}, v{S}, v{S+1}")
    A(f"v_max3_f32 v{vT}, v{S+2}, v{S+3}, v{S+4}")
    A(f"v_max3_f32 v{vM}, v{vM}, v{S+5}, v{S+6}")
    A(f"v_max3_f32 v{vM}, v{vM}, v{vT}, v{S+7}")
    A(f"s_cmp_lt_u32 s{sTg}, 60")
    A("s_cbranch_scc1 L_kwin")
    stamp(3)
    for i in range(4):
        A(f"v_mov_b32 v{KF+8+i}, -1")
    A("s_mov_b32 exec_lo, 0x00ff00ff"); A("s_mov_b32 exec_hi, 0x00ff00ff")
    store_by(sLoc, [f"buffer_store_dwordx4 v[{KF+8}:{KF+11}], v160, s[{SWS}:{SWS+3}], s68 offen"])
    A("s_mov_b64 exec, -1")
    allreduce([vM], "v_max_f32", [vT], steps=("r4", "r8", "p16", "p32"))
    A("s_mov_b64 exec, 15")
    A(f"ds_write_b32 v5, v{vM} offset:{L_M - L_FLAG}")
    lds_set(VDN, F_MRDY, 159)
    lds_wait4(F_MRDY, 1, S, [f"ds_read_b128 v[{S+4}:{S+7}], v4 offset:{L_M - L_FLAG}"])
    A(f"v_max3_f32 v{vM}, v{S+4}, v{S+5}, v{S+6}")
    A(f"v_max_f32 v{vM}, v{vM}, v{S+7}")
    A(f"v_cvt_pk_bf16_f32 v{vM}, v{vM}, v{vM}")
    A(f"v_and_b32 v{vM}, 0xffff0000, v{vM}")
    A(f"v_mul_f32 v{vM}, s{sL2E}, v{vM}")
    A(f"s_mov_b32 s{sA}, 4")
    A("L_pwin:")
    for i in range(4):
        unpack(S + 2 * i, SV + i)
    for i in range(8):
        A(f"v_fma_f32 v{S+i}, v{S+i}, s{sL2E}, -v{vM}")
    for i in range(8):
        A(f"v_exp_f32 v{S+i}, v{S+i}")
    for i in range(12):
        A(f"v_mov_b32 v{SV+i}, v{SV+4+i}")
    A("s_waitcnt lgkmcnt(0)")
    for i in range(4):
        A(f"v_cvt_pk_bf16_f32 v{KF+i}, v{S+2*i}, v{S+2*i+1}")
    A(f"ds_write_b128 v{vPW}, v[{KF}:{KF+3}]")
    for i in range(8):
        A(f"v_add_f32 v{vL}, v{vL}, v{S+i}")
    A(f"v_add_u32 v{vPW}, 0x1000, v{vPW}")
    A(f"s_sub_u32 s{sA}, s{sA}, 1")
    A(f"s_cmp_lg_u32 s{sA}, 0")
    A("s_cbranch_scc1 L_pwin")
    allreduce([vL], "v_add_f32", [vT], steps=("r4", "r8", "p16", "p32"))
    A("s_mov_b64 exec, 15")
    A(f"ds_write_b32 v5, v{vL} offset:{L_L - L_FLAG}")
    A("s_waitcnt vmcnt(0)")
    lds_set(VDN, F_PRDY, 159)
    lds_wait4(F_PRDY, 1, S, [f"ds_read_b128 v[{S+4}:{S+7}], v4 offset:{L_L - L_FLAG}"])
    A(f"v_add_f32 v{S+4}, v{S+4}, v{S+5}")
    A(f"v_add_f32 v{S+6}, v{S+6}, v{S+7}")
    A(f"v_mov_b32 v{S}, v{vM}")
    A(f"v_mov_b32 v{S+1}, s{sTag}")
    A(f"v_add_f32 v{S+2}, v{S+4}, v{S+6}")
    A(f"v_mov_b32 v{S+3}, s{sTag}")
    A(f"s_lshl_b64 exec, 1, s{sC}")
    store_by(sLoc, [f"buffer_store_dwordx4 v[{S}:{S+3}], v11, s[{SWS}:{SWS+3}], s73 offen"])
    A("s_mov_b64 exec, -1")
    A(f"s_mov_b32 s{sTg}, 64")
    stamp(7)
    def v_reads(g):
        return [f"ds_read_b64_tr_b16 v[{VF+4*tt+2*h}:{VF+4*tt+2*h+1}], v{AV+tt} offset:{g*8192 + h*4096}" for tt in range(2) for h in range(2)]

    def v_mfma(tt):
        A(f"v_mfma_f32_16x16x32_bf16 v[{O+4*tt}:{O+4*tt+3}], v[{VF+4*tt}:{VF+4*tt+3}], v[{PF}:{PF+3}], v[{O+4*tt}:{O+4*tt+3}]")

    A("L_vwin:")
    for g in range(4):
        A(f"ds_read_b128 v[{PF}:{PF+3}], v{vPR} offset:{g*256}")
        A(f"s_add_u32 s{sTg}, s{sTg}, 1")
        if g == 3:
            A(f"s_cmp_eq_u32 s{sTg}, 128")
            A("s_cbranch_scc1 L_vlast")
        wait_landed(f"s{sTg}")
        for r in v_reads(g):
            A(r)
        A(f"v_mov_b32 v{vT2}, s{sTg}")
        for tt in range(2):
            A(f"s_waitcnt lgkmcnt({2 if tt == 0 else 0})")
            v_mfma(tt)
        lds_set(VDN, F_DONE, vT2)
    for tt in range(2):
        A(f"v_add_u32 v{AV+tt}, 0x8000, v{AV+tt}")
        A(f"v_and_b32 v{AV+tt}, 0x1ffff, v{AV+tt}")
    A(f"v_add_u32 v{vPR}, 0x400, v{vPR}")
    A("s_branch L_vwin")
    A(".p2align 6")
    A("L_vlast:")
    if pads:
        A("s_cbranch_execz L_cpad")
    if spec:
        A("L_vl2:")
        A(f"ds_read_b32 v{vT}, v8 offset:{F_LANDED}")
        for r in v_reads(3):
            A(r)
        spin_guard()
        A("s_waitcnt lgkmcnt(4)")
        A(f"v_cmp_gt_i32 vcc, {128 + LB}, v{vT}")
        A("s_cbranch_vccnz L_vl2")
    else:
        wait_landed(128)
        for r in v_reads(3):
            A(r)
    for tt in range(2):
        A(f"s_waitcnt lgkmcnt({2 if tt == 0 else 0})")
        v_mfma(tt)
    A(f"s_cmp_eq_u32 s{sLoc}, 2")
    A("s_mov_b32 s86, 0x00ff00ff")
    A("s_mov_b32 s87, s86")
    nop(5)
    for i in range(4):
        A(f"v_mov_b32_dpp v{O+i}, v{O+4+i} row_shr:4 row_mask:0xf bank_mask:0x2")
    A("s_mov_b64 exec, s[86:87]")
    A("s_cbranch_scc0 L_o_far")
    A(f"buffer_store_dwordx4 v[{O}:{O+3}], v160, s[{SWS}:{SWS+3}], s68 offen")
    A("L_o_pub:")
    stamp(4)
    if early:
        A(f"s_cmp_lg_u32 s{sC}, 0")
        A("s_cbranch_scc1 L_o_end")
        A("s_mov_b64 exec, 1")
        A(f"buffer_store_dword v164, v11, s[{SWS}:{SWS+3}], s58 offen")
        A("s_mov_b64 exec, 0xff")
        A(f"buffer_load_dwordx4 v[{S}:{S+3}], v10, s[{SWS}:{SWS+3}], s53 offen sc1")
        A(f"s_lshl_b32 s{sA}, s{S_KVH}, 7")
        A(f"s_add_u32 s{sA}, s{sA}, s59")
        A("s_waitcnt vmcnt(0)")
        A(f"v_min3_u32 v{vT}, v{S}, v{S+1}, v{S+2}")
        A(f"v_max3_u32 v{vT2}, v{S}, v{S+1}, v{S+2}")
        A(f"v_min_u32 v{vT}, v{vT}, v{S+3}")
        A(f"v_max_u32 v{vT2}, v{vT2}, v{S+3}")
        A(f"v_cmp_ne_u32 vcc, v164, v{vT}")
        A(f"v_cmp_ne_u32 s[86:87], v164, v{vT2}")
        A("s_or_b64 vcc, vcc, s[86:87]")
        A("s_cbranch_scc1 L_o_end")
        A("s_mov_b64 exec, 1")
        A(f"buffer_store_dword v164, v11, s[{SWS}:{SWS+3}], s{sA} offen sc1")
        stamp(12)
    A("L_o_end:")
    A(f"s_cmp_lg_u32 s{S_KVH}, {FX}")
    A("s_cbranch_scc1 L_c_end")
    A("s_mov_b64 exec, -1")
    lds_wait4(F_ORDY, 1, S)
    stamp(9)
    YG = 32
    A("s_mov_b64 s[86:87], -1")
    if not ind:
        A("s_branch L_ypoll")
    A("L_ipoll:")
    A("s_mov_b64 exec, s[86:87]")
    A(f"buffer_load_dword v13, v163, s[{SWS}:{SWS+3}], s59 offen sc1")
    spin_guard()
    A("s_waitcnt vmcnt(0)")
    if yall:
        A("v_cmp_ne_u32 vcc, v164, v13")
        A("s_cbranch_vccnz L_ipoll")
        stamp(13)
        A("L_ypoll:")
    else:
        A("v_cmp_eq_u32 vcc, v164, v13")
        A("s_and_b64 exec, exec, vcc")
        A("s_cbranch_execz L_ipoll")
    A(f"buffer_load_dwordx4 v[{YG}:{YG+3}], v{vYA}, s[{SWS}:{SWS+3}], s52 offen sc1")
    spin_guard()
    A("s_waitcnt vmcnt(0)")
    for k in range(4):
        A(f"v_xor_b32 v{YG+k}, s{54+k}, v{YG+k}")
    A(f"v_or3_b32 v{vT}, v{YG}, v{YG+1}, v{YG+2}")
    A(f"v_or_b32 v{vT}, v{vT}, v{YG+3}")
    A(f"v_and_b32 v{vT}, 0xff, v{vT}")
    if yall:
        A(f"v_cmp_ne_u32 vcc, 0, v{vT}")
        A("s_and_b64 exec, exec, vcc")
        A("s_cbranch_scc1 L_ypoll")
    else:
        A(f"v_cmp_eq_u32 vcc, 0, v{vT}")
        A("s_andn2_b64 s[86:87], s[86:87], vcc")
        A("s_cbranch_scc1 L_ipoll")
    A("s_mov_b64 exec, -1")
    stamp(10)
    A(f"v_add_f32_dpp v{YG+4}, v{YG}, v{YG} row_ror:12 row_mask:0xf bank_mask:0x5")
    A(f"v_add_f32_dpp v{YG+5}, v{YG+2}, v{YG+2} row_ror:12 row_mask:0xf bank_mask:0x5")
    nop(1)
    A(f"v_add_f32_dpp v{YG+4}, v{YG+1}, v{YG+1} row_ror:4 row_mask:0xf bank_mask:0xa")
    A(f"v_add_f32_dpp v{YG+5}, v{YG+3}, v{YG+3} row_ror:4 row_mask:0xf bank_mask:0xa")
    nop(1)
    A(f"v_add_f32_dpp v{YG+6}, v{YG+4}, v{YG+4} row_ror:8 row_mask:0xf bank_mask:0x3")
    nop(2)
    A(f"v_add_f32_dpp v{YG+6}, v{YG+5}, v{YG+5} row_ror:8 row_mask:0xf bank_mask:0xc")
    allreduce([YG + 6], "v_add_f32", [YG + 7], steps=("x2", "p16", "p32"))
    A(f"v_add_f32 v{YG+6}, v{YG+6}, v162")
    A("s_mov_b64 exec, 0x3333")
    A(f"v_cvt_pk_bf16_f32 v{YG+6}, v{YG+6}, v{YG+6}")
    A(f"buffer_store_short v{YG+6}, v161, s[{SOUT}:{SOUT+3}], s85 offen")
    A("s_cmp_lg_u32 s85, 0")
    A("s_cbranch_scc1 L_c_st")
    A("s_mov_b64 exec, 1")
    A(f"buffer_store_dword v164, v11, s[{SWS}:{SWS+3}], 0 offen")
    A("L_c_st:")
    stamp(11)
    A("L_c_end:")
    stamp_flush()
    if diag is not None:
        A("s_sub_u32 s88, s88, s90")
        A("s_add_u32 s88, s88, 10000")
        A("L_diag:")
        A("s_memrealtime s[86:87]")
        A("s_waitcnt lgkmcnt(0)")
        A("s_sub_u32 s86, s86, s90")
        A("s_cmp_lt_u32 s86, s88")
        A("s_cbranch_scc1 L_diag")
    A("s_endpgm")
    A("L_o_far:")
    A(f"buffer_store_dwordx4 v[{O}:{O+3}], v160, s[{SWS}:{SWS+3}], s68 offen sc1")
    A("s_branch L_o_pub")

    role[0] = "tail"
    SWO, SD = 40, 44
    sTw, sA, sB2, sTag, sWo, sDo, sO = 60, 65, 66, 67, 63, 64, 61
    GA, GB, WF, DF, HB, Y, R, W = 64, 80, 96, 112, 120, 128, 132, 136
    A("L_tail:")
    if pads:
        A("s_mov_b64 exec, 0")
        A("s_branch L_tend")
        A("L_tpad:")
        A("s_mov_b64 exec, -1")
    A(f"s_sub_u32 s{sTw}, s3, 6")
    srd(SWO, P_WO, 0 if nowt else 4096 * 512 * 2)
    srd(SD, P_D, 0 if nowt else 1792 * 512 * 2)
    A("v_lshl_or_b32 v4, v12, 10, v13")
    for i in range(1, 4):
        A(f"v_add_u32 v{4+i}, {i*(8192-1024)}, v4")
    A(f"s_lshr_b32 s{sO}, s{S_W}, 3")
    A(f"s_lshl_b32 s{sDo}, s{sO}, 2")
    A(f"s_add_u32 s{sDo}, s{sDo}, s{sTw}")
    A(f"s_lshl_b32 s{sWo}, s{sDo}, 15")
    A(f"s_lshl_b32 s{sDo}, s{sDo}, 14")
    A(f"s_and_b32 s{sB2}, s{S_J}, 7")
    A(f"s_lshl_b32 s{sA}, s{sB2}, 7")
    A(f"s_add_u32 s{sWo}, s{sWo}, s{sA}")
    A(f"s_add_u32 s{sDo}, s{sDo}, s{sA}")
    A(f"s_cmp_lt_u32 s{S_KVH}, 7")
    A(f"s_cselect_b32 s{sDo}, s{sDo}, 0")
    A(f"s_cselect_b32 s{SD+2}, s{SD+2}, 0")
    A(f"s_lshl_b32 s83, s{sTw}, 12")
    A(f"s_lshl_b32 s84, s{sTw}, 11")
    A(f"s_add_u32 m0, s84, {hex(L_DN)}")
    A(f"s_lshl_b32 s69, s{sO}, 9")
    for i in range(2):
        A(f"buffer_load_dwordx4 v{4+i}, s[{SD}:{SD+3}], s{sDo} offen offset:{i*1024} {pW} lds")
    A(f"s_add_u32 s69, s69, {hex(W_ML)}")
    A("v_lshlrev_b32 v14, 7, v0")
    l1, l2, l3 = lab("tt"), lab("tt"), lab("tt")
    A(f"s_cmp_ge_u32 s{sTw}, 2")
    A(f"s_cbranch_scc1 {l1}")
    if touch:
        A(f"s_lshl_b32 s{sA}, s{S_W}, 11")
        A(f"s_mul_i32 s70, s{sTw}, {hex(W_F - W_O)}")
        A(f"s_add_u32 s{sA}, s{sA}, s70")
        A(f"s_add_u32 s{sA}, s{sA}, {hex(W_O)}")
        A("s_mov_b64 exec, 0xffff")
        A(f"buffer_load_dword v17, v14, s[{SWS}:{SWS+3}], s{sA} offen sc1")
    A(f"s_branch {l3}")
    A(f"{l1}:")
    A(f"s_cmp_eq_u32 s{sTw}, 2")
    A(f"s_cbranch_scc0 {l2}")
    A("s_mov_b64 exec, 15")
    A(f"buffer_load_dword v17, v14, s[{SWS}:{SWS+3}], s69 offen sc1")
    A(f"s_lshl_b32 s{sA}, s{S_KVH}, 7")
    A(f"s_add_u32 s{sA}, s{sA}, {hex(W_MARK)}")
    A("s_mov_b64 exec, 1")
    A(f"buffer_load_dword v18, v11, s[{SWS}:{SWS+3}], s{sA} offen sc1")
    A(f"s_branch {l3}")
    A(f"{l2}:")
    A("s_mov_b64 exec, 1")
    A(f"buffer_load_dword v17, v11, s[{SWO}:{SWO+3}], s{sWo} offen {pW}")
    if kvtouch:
        srd(52, P_K, 0x8000000)
        srd(56, P_V, 0x8000000)
        A(f"s_lshl_b32 s{sA}, s{S_B}, 3")
        A(f"s_add_u32 s{sA}, s{sA}, s{S_KVH}")
        A(f"s_lshl_b32 s{sA}, s{sA}, 4")
        A(f"s_add_u32 s{sA}, s{sA}, s{S_S}")
        A(f"s_lshl_b32 s{sA}, s{sA}, 19")
        A(f"buffer_load_dword v18, v11, s[52:55], s{sA} offen nt")
        A(f"buffer_load_dword v19, v11, s[56:59], s{sA} offen nt")
    A(f"{l3}:")
    A("s_mov_b64 exec, -1")
    A("v_lshrrev_b32 v144, 2, v0")
    A("v_lshlrev_b32 v144, 7, v144")
    A("v_bfe_u32 v14, v0, 3, 2")
    A(f"v_xor_b32 v14, s{sTw}, v14")
    A("v_lshl_or_b32 v144, v14, 5, v144")
    A("v_and_b32 v2, 3, v0")
    A("v_lshl_or_b32 v144, v2, 3, v144")
    A(f"v_add_u32 v145, {hex(L_DN)}, v144")
    A("v_bfe_u32 v15, v0, 3, 1")
    A("v_lshlrev_b32 v161, 6, v12")
    A("v_lshrrev_b32 v14, 5, v0")
    A("v_bfe_u32 v3, v0, 3, 2")
    A("v_and_b32 v162, 7, v0")
    A("v_lshlrev_b32 v162, 4, v162")
    A("v_lshl_or_b32 v162, v3, 11, v162")
    A("v_lshl_or_b32 v162, v14, 15, v162")
    A(f"s_lshl_b32 s70, s{S_KVH}, 7")
    A(f"s_lshr_b32 s{sA}, s{S_J}, 3")
    A(f"s_add_u32 s70, s70, s{sA}")
    A("s_lshl_b32 s70, s70, 2")
    A(f"s_add_u32 s70, s70, s{sTw}")
    A("s_lshl_b32 s70, s70, 7")
    A(f"s_add_u32 s70, s70, {hex(W_O)}")
    for i in range(1, 4):
        A(f"s_add_u32 s{70+i}, s70, {i*8192}")
    A("v_lshlrev_b32 v146, 6, v15")
    A("v_lshl_or_b32 v146, v1, 4, v146")
    A(f"v_add_u32 v146, {hex(L_OX)}, v146")
    A("v_lshlrev_b32 v147, 6, v14")
    A("v_lshl_or_b32 v147, v2, 4, v147")
    A("v_bfe_u32 v14, v0, 2, 1")
    A("v_lshl_or_b32 v147, v14, 3, v147")
    A("v_bfe_u32 v14, v0, 4, 1")
    A("v_lshl_or_b32 v147, v14, 2, v147")
    A(f"s_lshl_b32 s{sA}, s{sTw}, 7")
    A(f"v_add_u32 v147, s{sA}, v147")
    A(f"v_add_u32 v147, {hex(L_OX)}, v147")
    A("v_and_b32 v30, 7, v0")
    A("v_lshlrev_b32 v30, 11, v30")
    A("v_lshl_or_b32 v30, v15, 9, v30")
    A("v_lshl_or_b32 v30, v1, 5, v30")
    A(f"s_lshl_b32 s75, s{sO}, 14")
    A(f"s_add_u32 s75, s75, s{sA}")
    A(f"s_add_u32 s75, s75, {hex(W_F)}")
    A("v_lshlrev_b32 v163, 16, v15")
    A("v_lshl_or_b32 v163, v1, 4, v163")
    A(f"s_lshl_b32 s74, s{S_W}, 2")
    A(f"s_add_u32 s74, s74, s{sTw}")
    A("s_lshl_b32 s74, s74, 6")
    A(f"s_add_u32 s74, s74, {hex(W_Y)}")
    A("v_lshlrev_b32 v148, 3, v0")
    A(f"v_add_u32 v148, {hex(L_XN)}, v148")
    A(f"s_lshl_b32 s{sA}, s{sTw}, 9")
    A(f"v_add_u32 v149, s{sA}, v148")
    A(f"s_lshl_b32 s{sA}, s{sTw}, 2")
    A(f"v_add_u32 v9, s{sA}, v8")
    A("v_mov_b32 v23, 1")
    A("s_waitcnt vmcnt(0)")
    make_tag(sTag, 164)
    A("s_mov_b32 s85, 0xffffff00")
    A(f"v_mov_b32 v164, s{sTag}")
    A(f"s_lshl_b32 s78, s{S_KVH}, 7")
    A(f"s_add_u32 s78, s78, {hex(W_IND)}")
    for i in range(4):
        A(f"v_bfe_u32 v{150+i}, s{sTag}, {8*i}, 8")
    stamp(1)
    A(f"s_lshl_b32 s{sB2}, s{sTw}, 2")
    A(f"s_add_u32 s{sB2}, s{sB2}, {GATH_AT}")
    lds_wait(F_DONE, f"s{sB2}", 20, sA)
    A("v_mov_b32 v40, 0")
    A("v_mov_b32 v41, 0")
    A(f"s_cmp_ge_u32 s{S_KVH}, {0 if noffn else 7}")
    A("s_cbranch_scc1 L_noffn2")
    lq = lab("fpoll")
    A(f"{lq}:")
    for i, off in enumerate((0, 16, 1024, 1040)):
        A(f"buffer_load_dwordx4 v[{44+4*i}:{47+4*i}], v30, s[{SWS}:{SWS+3}], s75 offen offset:{off} sc1")
    spin_guard()
    A("s_waitcnt vmcnt(0)")
    tag_check(44, 8, sTag, 60, 61)
    A(f"s_cbranch_vccnz {lq}")
    allreduce([44 + 2 * i for i in range(8)], "v_add_f32", [], steps=("x1", "x2", "hm"))
    for i in range(4):
        A(f"v_cvt_pk_bf16_f32 v40, v{44+4*i}, v{46+4*i}")
        unpack(32 + 2 * i, 40)
    A("s_mov_b32 s80, 0x3d372713")
    A("s_mov_b32 s81, 0xc0135761")
    for i in range(4):
        A(f"v_mul_f32 v{44+i}, v{32+i}, v{32+i}")
        A(f"v_fma_f32 v{44+i}, v{44+i}, s80, 1.0")
        A(f"v_mul_f32 v{44+i}, v{44+i}, v{32+i}")
        A(f"v_mul_f32 v{44+i}, s81, v{44+i}")
        A(f"v_exp_f32 v{44+i}, v{44+i}")
    nop(1)
    for i in range(4):
        A(f"v_add_f32 v{44+i}, 1.0, v{44+i}")
    for i in range(4):
        A(f"v_rcp_f32 v{44+i}, v{44+i}")
    nop(1)
    for i in range(4):
        A(f"v_mul_f32 v{32+i}, v{32+i}, v{44+i}")
    for r in (32, 34):
        A(f"v_cvt_pk_bf16_f32 v40, v{r}, v{r+1}")
        unpack(r, 40)
    for i in range(4):
        A(f"v_mul_f32 v{32+i}, v{32+i}, v{36+i}")
    A("v_cvt_pk_bf16_f32 v40, v32, v33")
    A("v_cvt_pk_bf16_f32 v41, v34, v35")
    A("L_noffn2:")
    A("ds_write_b64 v149, v[40:41]")
    lds_set(9, F_HRDY, 23)
    lds_wait4(F_HRDY, 1, 28, [f"ds_read_b64 v[{HB+2*i}:{HB+2*i+1}], v148 offset:{512*i}" for i in range(4)] +
              [f"ds_read_b64_tr_b16 v[{DF+2*i}:{DF+2*i+1}], v145 offset:{2048*i}" for i in range(4)])
    A(f"v_mfma_f32_16x16x32_bf16 v[{Y}:{Y+3}], v[{DF}:{DF+3}], v[{HB}:{HB+3}], 0")
    A(f"v_mfma_f32_16x16x32_bf16 v[{Y}:{Y+3}], v[{DF+4}:{DF+7}], v[{HB+4}:{HB+7}], v[{Y}:{Y+3}]")
    stamp(2)
    lds_wait(F_DONE, ML_AT, 20, sA)
    lds_wait(F_CTL, 1, 20, 79)
    A("s_mov_b32 s62, s79")
    lq = lab("mlpoll")
    A(f"{lq}:")
    for i in range(4):
        A(f"buffer_load_dwordx4 v[{44+4*i}:{47+4*i}], v161, s[{SWS}:{SWS+3}], s69 offen offset:{16*i} sc1")
    spin_guard()
    A("s_waitcnt vmcnt(0)")
    tag_check(44, 8, sTag, 60, 61)
    A(f"s_cbranch_vccnz {lq}")
    A("v_max3_f32 v26, v44, v48, v52")
    A("v_max_f32 v26, v26, v56")
    allreduce([26], "v_max_f32", [27], steps=("r8", "p16"))
    for i in range(4):
        A(f"v_sub_f32 v{W+i}, v{44+4*i}, v26")
    for i in range(4):
        A(f"v_exp_f32 v{W+i}, v{W+i}")
    A(f"v_mul_f32 v27, v{W}, v46")
    for i in range(1, 4):
        A(f"v_fmac_f32 v27, v{W+i}, v{46+4*i}")
    allreduce([27], "v_add_f32", [26], steps=("r8", "p16"))
    A("v_rcp_f32 v27, v27")
    A(f"s_add_u32 s76, s{S_J}, s{sTw}")
    if early:
        A("s_lshr_b32 s79, s79, 1")
        A("s_add_u32 s76, s76, s79")
    A("s_cmp_eq_u32 s76, 0")
    A("s_cselect_b64 s[76:77], 1, 0")
    for i in range(4):
        A(f"v_mul_f32 v{W+i}, v{W+i}, v27")
    A("s_mov_b32 m0, s83")
    A("s_mov_b32 s80, 0x00ff00ff"); A("s_mov_b32 s81, s80")
    A("s_mov_b32 s82, 0x01010101"); A("s_mov_b32 s83, s82")
    if retouch:
        lds_wait(F_DONE, retouch, 20, sA)
        A(f"s_lshl_b32 s{sA}, s{S_W}, 2")
        A(f"s_add_u32 s{sA}, s{sA}, s{sTw}")
        A(f"s_lshl_b32 s{sA}, s{sA}, 9")
        A(f"s_add_u32 s{sA}, s{sA}, {hex(W_O)}")
        A("v_lshlrev_b32 v14, 7, v0")
        A("s_mov_b64 exec, 15")
        A(f"buffer_load_dword v17, v14, s[{SWS}:{SWS+3}], s{sA} offen sc1")
        A("s_mov_b64 exec, -1")
    if gate:
        A("v_lshlrev_b32 v155, 4, v12")
        A(f"s_lshl_b32 s68, s{S_KVH}, 7")
        A(f"s_add_u32 s68, s68, {hex(W_PROG)}")
        A("s_cmp_eq_u32 s62, 2")
        A("s_cselect_b32 s62, 200, 0")
    stamp(5)
    A("s_branch L_tend")
    A(".p2align 6")
    A("L_tend:")
    if pads:
        A("s_cbranch_execz L_tpad")
    lds_wait4(F_DONE, TRIG, 28)
    A("s_setprio 2")
    stamp(3)
    for i in range(4):
        A(f"buffer_load_dwordx4 v{4+i}, s[{SWO}:{SWO+3}], s{sWo} offen offset:{i*1024} {pW} lds")

    def o_load(i):
        A(f"buffer_load_dwordx4 v[{GA+4*i}:{GA+4*i+3}], v162, s[{SWS}:{SWS+3}], s{70+i} offen sc1")

    def m_load():
        A(f"buffer_load_dwordx4 v[156:159], v155, s[{SWS}:{SWS+3}], s68 offen sc1")

    if gate:
        m_load()
        for i in range(16):
            A(f"v_mov_b32 v{GA+i}, -1")
        A("s_waitcnt vmcnt(1)")
    else:
        if not opre:
            A("s_waitcnt vmcnt(0)")
        for i in range(4):
            o_load(i)
        if opre:
            A("s_waitcnt vmcnt(4)")
    lds_set(9, F_WRDY, 23)
    stamp(4)
    wfrag = [f"ds_read_b64_tr_b16 v[{WF+2*i}:{WF+2*i+1}], v144 offset:{2048*i}" for i in range(8)]
    if gate:
        A("s_waitcnt vmcnt(0)")
        for i in range(4):
            A(f"v_cmp_le_u32 vcc, s62, v{156+i}")
            A("s_mov_b64 exec, vcc")
            o_load(i)
            A("s_mov_b64 exec, -1")
        m_load()
    lds_wait4(F_WRDY, 1, 28, wfrag)
    stamp(6)
    A("s_branch L_ob")
    A("L_oa:")
    if gate:
        A("s_waitcnt vmcnt(0)")
        for i in range(4):
            A(f"v_cmp_le_u32 s[{52+2*i}:{53+2*i}], s62, v{156+i}")
    for i in range(4):
        if gate:
            A(f"s_and_b64 exec, s[{86+2*i}:{87+2*i}], s[{52+2*i}:{53+2*i}]")
        else:
            A(f"s_mov_b64 exec, s[{86+2*i}:{87+2*i}]")
        o_load(i)
    A("s_mov_b64 exec, -1")
    if gate:
        m_load()
    spin_guard()
    A("L_ob:")
    for i in range(4):
        if cw:
            A(f"s_waitcnt vmcnt({3-i+(1 if gate else 0)})")
        elif i == 0:
            A(f"s_waitcnt vmcnt({1 if gate else 0})")
        A(f"v_max3_u32 v20, v{GA+4*i}, v{GA+4*i+1}, v{GA+4*i+2}")
        A(f"v_max_u32 v20, v20, v{GA+4*i+3}")
        A(f"v_cmp_eq_u32 s[{86+2*i}:{87+2*i}], -1, v20")
    A("s_or_b64 s[94:95], s[86:87], s[88:89]")
    A("s_or_b64 s[94:95], s[94:95], s[90:91]")
    A("s_or_b64 s[94:95], s[94:95], s[92:93]")
    A("s_cbranch_scc1 L_oa")

    def send_ind():
        A("s_mov_b64 exec, s[76:77]")
        A("s_cbranch_execnz L_ind")
        A("L_noind:")
    if indpos == 0:
        send_ind()
        A("s_mov_b64 exec, -1")
    stamp(7)
    for k in range(4):
        A(f"v_mul_f32 v{R+k}, v{GA+k}, v{W}")
    for i in range(1, 4):
        for k in (0, 2, 1, 3):
            A(f"v_fmac_f32 v{R+k}, v{GA+4*i+k}, v{W+i}")
    A(f"v_permlane16_swap_b32 v{R}, v{R+2}")
    nop(1)
    A(f"v_permlane16_swap_b32 v{R+1}, v{R+3}")
    A(f"v_add_f32 v{R}, v{R}, v{R+2}")
    A(f"v_add_f32 v{R+1}, v{R+1}, v{R+3}")
    allreduce([R, R + 1], "v_add_f32", [], steps=("r8",))
    A("s_mov_b64 exec, s[80:81]")
    A(f"v_cvt_pk_bf16_f32 v24, v{R}, v{R+1}")
    A("ds_write_b32 v147, v24")
    lds_set(9, F_ORDY, 23)
    if indpos == 1:
        send_ind()
        A("s_mov_b64 exec, -1")
    lds_wait4(F_ORDY, 1, 28, [f"ds_read_b128 v[{32+4*i}:{35+4*i}], v146 offset:{128*i}" for i in range(4)])
    for i in range(4):
        A(f"v_mfma_f32_16x16x32_bf16 v[{Y}:{Y+3}], v[{WF+4*i}:{WF+4*i+3}], v[{32+4*i}:{35+4*i}], v[{Y}:{Y+3}]")
    if indpos == 2:
        nop(5)
        send_ind()
    else:
        nop(7)
    A("s_mov_b64 exec, s[82:83]")
    for i in range(4):
        A(f"v_and_or_b32 v{Y+i}, v{Y+i}, s85, v{150+i}")
    A(f"buffer_store_dwordx4 v[{Y}:{Y+3}], v163, s[{SWS}:{SWS+3}], s74 offen sc1")
    if indpos == 3:
        send_ind()
    stamp(8)
    stamp_flush()
    A("s_endpgm")
    A("L_ind:")
    A(f"buffer_store_dword v164, v11, s[{SWS}:{SWS+3}], s78 offen sc1")
    A("s_branch L_noind")
    A("L_abort:")
    A("s_endpgm")
    sT = 66
    loader_rest()
    A("L_end:")
    nv = 168
    A('.section .rodata,"a"')
    A(".p2align 6")
    A(f".amdhsa_kernel {KNAME}")
    A(f"  .amdhsa_next_free_vgpr {nv}")
    A("  .amdhsa_next_free_sgpr 102")
    A(f"  .amdhsa_accum_offset {nv}")
    A("  .amdhsa_group_segment_fixed_size 0")
    A("  .amdhsa_kernarg_size 96")
    A("  .amdhsa_user_sgpr_count 2")
    A("  .amdhsa_user_sgpr_kernarg_segment_ptr 1")
    A("  .amdhsa_system_sgpr_workgroup_id_x 1")
    A(".end_amdhsa_kernel")
    out = []
    for ln in L:
        if ln.startswith((";", ".", " ")) or ln.endswith(":") or "\n" in ln:
            out.append(ln)
        else:
            out.append("    " + ln)
    return "\n".join(out) + "\n"


if __name__ == "__main__":
    kw = eval("dict(" + (sys.argv[2] if len(sys.argv) > 2 else "") + ")")
    open(sys.argv[1], "w").write(gen(**kw))
FINAL_WAVE = 2
```

```python
import sys
from gen_kernel import HEADER, KNAME

L_TILE = 0x20000
L_T2 = 0x1C000
L_DN = 0x24000
L_XN = 0x26000
L_Q = 0x26800
L_OX = 0x26C00
L_FLAG = 0x26E00
F_ORDY, F_DONE, F_QRDY, F_MRDY, F_PRDY, F_TILE, F_BREQ, F_CTL, F_HRDY, F_WRDY = 0, 16, 32, 48, 64, 80, 84, 88, 96, 112
L_M = L_FLAG + 128
L_L = L_FLAG + 192
F_LANDED = 256
F_ISS = 92
LB = 4
LDS_BYTES = 0x27000
W_EPOCH = 0x0
W_PROG = 0x1000
W_MARK = 0x1400
W_IND = 0x2000
W_ML = 0x4000
W_O = 0x10000
W_Y = 0x90000
W_Q = 0x110000
W_QB = 0x150000
W_F = 0x190000
W_STAMP = 0x200000
WS_BYTES = 0x300000

LOG2E = 0x3FB8AA3B
SCALE = 0x3DB504F3
SPIN_MAX = 1 << 20


def gen(NLS=(16, 18, 20, 22, 24, 26), idx0=2, gain=1.0, bias=2.37, ctl=True, NL0=24, stamps=False, pK="nt", pW="nt", diag=None, TRIG=126,
        codepf=True, fast=True, QB_EVERY=8, GATH_AT=24, ML_AT=88, noffn=False, nowt=False,
        FX=7, boost7=-0.15, touch=True, early=False, indpos=1, ind=True, opre=False, boostE=0.15, thr=(-9, -9, -9), slp=0, slpc=0, endn=0, endadd=0, wb=0, wearly=False, ocap=0, icap=0, curve=False, idxS=0, tdelay=0, fine=False, retouch=0, gate=False, MARK_AT=0, cw=True, pads=True, spec=True, kvtouch=True, yall=True):
    L = []
    A = L.append
    uid = [0]
    role = ["pro"]

    def lab(p):
        uid[0] += 1
        return f"L_{p}_{uid[0]}"

    def nop(n):
        while n > 0:
            k = min(n, 16)
            A(f"s_nop {k-1}")
            n -= k

    def srd(r, p, nbytes):
        A(f"s_mov_b32 s{r}, s{p}")
        A(f"s_mov_b32 s{r+1}, s{p+1}")
        A(f"s_mov_b32 s{r+2}, {hex(nbytes)}")
        A(f"s_mov_b32 s{r+3}, 0x20000")

    VST = 166

    def stamp(i):
        if diag is not None and role[0] == "cons" and diag == i:
            A("s_memrealtime s[88:89]")
            A("s_waitcnt lgkmcnt(0)")
        if not stamps:
            return
        A("s_memrealtime s[98:99]")
        A("s_waitcnt lgkmcnt(0)")
        A(f"v_writelane_b32 v{VST}, s98, {i}")

    def stamp_flush():
        if not stamps:
            return
        A("s_mov_b64 exec, -1")
        A(f"s_sub_u32 s97, {hex(SPIN_MAX)}, s15")
        A(f"v_writelane_b32 v{VST}, s97, 16")
        srd(92, P_WS, WS_BYTES)
        A("s_lshl_b32 s97, s2, 4")
        A("s_add_u32 s97, s97, s3")
        A("s_lshl_b32 s97, s97, 8")
        A(f"s_add_u32 s97, s97, {hex(W_STAMP)}")
        A(f"v_lshlrev_b32 v{VST+1}, 2, v0")
        A(f"buffer_store_dword v{VST}, v{VST+1}, s[92:95], s97 offen")
        A("s_waitcnt vmcnt(0)")

    def spin_guard():
        A("s_sub_u32 s15, s15, 1")
        A("s_cbranch_scc1 L_abort")

    def lds_wait(off, thr, vt, st):
        l = lab("w")
        A(f"{l}:")
        if slp and role[0] == "tail":
            A(f"s_sleep {slp}")
        A(f"ds_read_b32 v{vt}, v8 offset:{off}")
        spin_guard()
        A("s_waitcnt lgkmcnt(0)")
        A(f"v_readfirstlane_b32 s{st}, v{vt}")
        A(f"s_cmp_ge_i32 s{st}, {thr}")
        A(f"s_cbranch_scc0 {l}")

    def lds_wait4(off, thr, vq, extra=()):
        l = lab("w4")
        A(f"{l}:")
        A(f"ds_read_b128 v[{vq}:{vq+3}], v8 offset:{off}")
        for e in extra:
            A(e)
        spin_guard()
        A(f"s_waitcnt lgkmcnt({len(extra)})")
        A(f"v_min3_i32 v{vq}, v{vq}, v{vq+1}, v{vq+2}")
        A(f"v_min_i32 v{vq}, v{vq}, v{vq+3}")
        A(f"v_cmp_gt_i32 vcc, {thr}, v{vq}")
        if extra:
            A("s_waitcnt lgkmcnt(0)")
        A(f"s_cbranch_vccnz {l}")

    def lds_set(addr_v, off, val_v):
        A("s_mov_b64 exec, 1")
        A(f"ds_write_b32 v{addr_v}, v{val_v} offset:{off}")
        A("s_mov_b64 exec, -1")

    def allreduce(regs, op, tmps, steps=("x1", "x2", "hm", "m", "p16", "p32")):
        dpp = {"x1": "quad_perm:[1,0,3,2]", "x2": "quad_perm:[2,3,0,1]", "hm": "row_half_mirror", "m": "row_mirror",
               "r4": "row_ror:4", "r8": "row_ror:8"}
        for st in steps:
            if st in dpp:
                nop(max(0, 3 - len(regs)))
                for r in regs:
                    A(f"{op}_dpp v{r}, v{r}, v{r} {dpp[st]} row_mask:0xf bank_mask:0xf")
            else:
                ins = "v_permlane16_swap_b32" if st == "p16" else "v_permlane32_swap_b32"
                for r, t in zip(regs, tmps):
                    A(f"v_mov_b32 v{t}, v{r}")
                nop(max(0, 3 - len(regs)))
                for r, t in zip(regs, tmps):
                    A(f"{ins} v{r}, v{t}")
                nop(1)
                for r, t in zip(regs, tmps):
                    A(f"{op} v{r}, v{r}, v{t}")

    def make_tag(s, v):
        A(f"v_readfirstlane_b32 s{s}, v{v}")
        A(f"s_add_u32 s{s}, s{s}, 0x4d2b7f35")

    def local_tag(dst, tag):
        A(f"s_getreg_b32 s{dst}, hwreg(HW_REG_XCC_ID, 0, 4)")
        A(f"s_mul_i32 s{dst}, s{dst}, 0x10001")
        A(f"s_xor_b32 s{dst}, s{dst}, s{tag}")

    def store_by(sloc, ins):
        l1, l2 = lab("far"), lab("st")
        A(f"s_cmp_eq_u32 s{sloc}, 2")
        A(f"s_cbranch_scc0 {l1}")
        for i in ins:
            A(i)
        A(f"s_branch {l2}")
        A(f"{l1}:")
        for i in ins:
            A(i + " sc1")
        A(f"{l2}:")

    def tag_check(base, n, stag, t1, t2):
        for i in range(n):
            A(f"v_xor_b32 v{base+1+2*i}, s{stag}, v{base+1+2*i}")
        r = [base + 1 + 2 * i for i in range(n)]
        if n == 8:
            A(f"v_or3_b32 v{t1}, v{r[0]}, v{r[1]}, v{r[2]}")
            A(f"v_or3_b32 v{t2}, v{r[3]}, v{r[4]}, v{r[5]}")
            A(f"v_or3_b32 v{t1}, v{t1}, v{r[6]}, v{r[7]}")
            A(f"v_or_b32 v{t1}, v{t1}, v{t2}")
        else:
            A(f"v_or3_b32 v{t1}, v{r[0]}, v{r[1]}, v{r[2]}")
            A(f"v_or_b32 v{t1}, v{t1}, v{r[3]}")
        A(f"v_cmp_ne_u32 vcc, 0, v{t1}")

    def byte_check(base, n, sb, t):
        for i in range(n):
            A(f"v_xor_b32 v{base+i}, s{sb+(i&3)}, v{base+i}")
        A(f"v_or3_b32 v{t}, v{base}, v{base+1}, v{base+2}")
        for i in range(3, n - 1, 2):
            A(f"v_or3_b32 v{t}, v{t}, v{base+i}, v{base+i+1}")
        A(f"v_or_b32 v{t}, v{t}, v{base+n-1}")
        A(f"v_and_b32 v{t}, 0xff, v{t}")
        A(f"v_cmp_ne_u32 vcc, 0, v{t}")

    def vaddr_T0(dst, t1, t2, t3):
        A(f"v_lshrrev_b32 v{t1}, 2, v0")
        A(f"v_and_b32 v{t2}, 7, v{t1}")
        A(f"v_lshlrev_b32 v{t2}, 1, v{t2}")
        A(f"v_lshrrev_b32 v{t3}, 5, v0")
        A(f"v_or_b32 v{t2}, v{t2}, v{t3}")
        A(f"v_bfe_u32 v{t3}, v0, 1, 1")
        A(f"v_xor_b32 v{t2}, v{t2}, v{t3}")
        A(f"v_lshlrev_b32 v{t2}, 4, v{t2}")
        A(f"v_lshl_or_b32 v{dst}, v{t1}, 8, v{t2}")
        A(f"v_and_b32 v{t3}, 1, v0")
        A(f"v_lshl_or_b32 v{dst}, v{t3}, 3, v{dst}")

    def prog_addr(d, t):
        A(f"s_lshr_b32 s{d}, s{S_W}, 4")
        A(f"s_lshl_b32 s{d}, s{d}, 2")
        A(f"s_and_b32 s{t}, s{S_S}, 3")
        A(f"s_add_u32 s{d}, s{d}, s{t}")
        A(f"s_lshl_b32 s{d}, s{d}, 4")
        A(f"s_and_b32 s{t}, s{S_S}, 12")
        A(f"s_add_u32 s{d}, s{d}, s{t}")
        A(f"s_add_u32 s{d}, s{d}, {hex(W_PROG)}")

    def unpack(dst, src):
        A(f"v_lshlrev_b32 v{dst}, 16, v{src}")
        A(f"v_and_b32 v{dst+1}, 0xffff0000, v{src}")

    P_X, P_K, P_V, P_WQ, P_WO, P_BX, P_G, P_U, P_D, P_OUT, P_DBG, P_WS = range(16, 40, 2)
    S_KVH, S_J, S_B, S_S, S_RB, S_CH, S_W = 4, 5, 6, 7, 8, 9, 10

    A(HEADER)
    A(f"; @launch grid=(256,1,1) block=(640,1,1) lds={LDS_BYTES}")
    A('.amdgcn_target "amdgcn-amd-amdhsa--gfx950"')
    A(".text")
    A(f".globl {KNAME}")
    A(".p2align 8")
    A(f".type {KNAME},@function")
    A(f"{KNAME}:")
    A("s_cmp_ge_u32 s2, 256")
    A("s_cbranch_scc1 L_abort")
    A("s_load_dwordx16 s[16:31], s[0:1], 0")
    A("s_load_dwordx8 s[32:39], s[0:1], 64")
    if stamps:
        A("s_memrealtime s[98:99]")
        A(f"v_mov_b32 v{VST}, 0")
    if diag is not None:
        A("s_memrealtime s[90:91]")
    A(f"s_lshr_b32 s{S_J}, s2, 3")
    if codepf:
        A("s_getpc_b64 s[80:81]")
        A(f"s_lshl_b32 s6, s{S_J}, 9")
        A("v_subrev_u32 v2, 448, v0")
        A("v_cmp_gt_u32 vcc, 4, v2")
        A("v_lshl_add_u32 v2, v2, 7, s6")
        A(f"v_min_u32 v2, L_end-{KNAME}-64, v2")
        A("s_and_b64 exec, exec, vcc")
        A("s_cbranch_execz L_nopf")
        A("global_load_dword v165, v2, s[80:81]")
        A("L_nopf:")
        A("s_mov_b64 exec, -1")
    A("v_lshrrev_b32 v1, 6, v0")
    A("v_and_b32 v0, 63, v0")
    A("v_readfirstlane_b32 s3, v1")
    A(f"v_mov_b32 v8, {hex(L_FLAG)}")
    A("v_lshl_add_u32 v9, v0, 2, v8")
    A("v_mov_b32 v11, 0")
    A("ds_write_b32 v9, v11")
    A(f"ds_write_b32 v9, v11 offset:{F_LANDED}")
    A(f"s_and_b32 s{S_KVH}, s2, 7")
    A(f"s_lshr_b32 s{S_B}, s{S_J}, 4")
    A(f"s_and_b32 s{S_S}, s{S_J}, 15")
    A(f"s_lshl_b32 s{S_W}, s{S_KVH}, 5")
    A(f"s_add_u32 s{S_W}, s{S_W}, s{S_J}")
    A(f"s_mov_b32 s15, {hex(SPIN_MAX)}")
    A("v_lshrrev_b32 v1, 4, v0")
    A("v_lshlrev_b32 v3, 1, v1")
    A("v_lshlrev_b32 v10, 4, v0")
    sO1, sO2, sN, sNc, sBase, sTt, sT, sIdx, sEv = 60, 61, 62, 63, 64, 65, 66, 68, 69
    sSmp, sPrevF, sPs, sPl, sCen = 70, 71, 72, 73, 74
    A("v_lshrrev_b32 v12, 3, v0")
    A("v_and_b32 v13, 7, v0")
    A("v_xor_b32 v13, v13, v3")
    A("v_lshlrev_b32 v13, 4, v13")
    A("v_lshl_or_b32 v4, v12, 13, v13")
    for i in range(1, 4):
        A(f"v_add_u32 v{4+i}, {i*(0x10000-1024)}, v4")
    A(f"s_lshr_b32 s{sT}, s{S_J}, 3")
    A(f"s_lshl_b32 s{sO1}, s{sT}, 10")
    A(f"s_add_u32 s{sO1}, s{sO1}, s{S_KVH}")
    A(f"s_lshl_b32 s{sO1}, s{sO1}, 3")
    A(f"s_and_b32 s{sT}, s{S_J}, 7")
    A(f"s_add_u32 s{sO1}, s{sO1}, s{sT}")
    A(f"s_lshl_b32 s{sO1}, s{sO1}, 7")
    A(f"s_mov_b32 s42, {hex(512*4096*2)}")
    A("s_mov_b32 s43, 0x20000")
    A("s_mov_b32 s46, 2048")
    A("s_mov_b32 s47, 0x20000")
    A(f"s_mov_b32 m0, {hex(L_TILE)}")
    A("s_cmp_lg_u32 s3, 0")
    A("s_waitcnt lgkmcnt(0)")
    if stamps:
        A(f"v_writelane_b32 v{VST}, s98, 0")
    A("s_cbranch_scc1 L_roles")

    role[0] = "ld"
    A(f"s_mov_b64 s[40:41], s[{P_WQ}:{P_WQ+1}]")
    A("s_setprio 3")
    A("L_ldq:")
    for i in range(4):
        A(f"buffer_load_dwordx4 v{4+i}, s[40:43], s{sO1} offen offset:{i*1024} {pW} lds")
    A("s_add_u32 m0, m0, 0x1000")
    A(f"s_add_u32 s{sO1}, s{sO1}, 0x40000")
    A(f"s_cmp_lt_u32 m0, {hex(L_TILE + 0x4000)}")
    A("s_cbranch_scc1 L_ldq")
    A("s_barrier")
    if fine:
        stamp(3)
    A("v_mul_u32_u24 v4, 3584, v12")
    A("v_add_u32 v4, v4, v13")
    for i in range(1, 4):
        A(f"v_add_u32 v{4+i}, {i*(8*3584-1024)}, v4")
    A(f"s_mul_i32 s{sO2}, s{sT}, {64*3584}")
    A(f"s_lshr_b32 s{sT}, s{S_W}, 3")
    A(f"s_lshl_b32 s{sT}, s{sT}, 7")
    A(f"s_add_u32 s{sO2}, s{sO2}, s{sT}")
    A(f"s_cmp_lt_u32 s{S_KVH}, {0 if noffn else 7}")
    A(f"s_cselect_b32 s42, {hex(512*1792*2)}, 0")
    A(f"s_mov_b64 s[40:41], s[{P_G}:{P_G+1}]")
    A(f"s_mov_b32 m0, {hex(L_T2)}")
    A("L_ldf2:")
    A(f"s_mov_b32 s{sO1}, s{sO2}")
    A("L_ldf:")
    for i in range(4):
        A(f"s_waitcnt vmcnt({NL0-1})")
        A(f"buffer_load_dwordx4 v{4+i}, s[40:43], s{sO1} offen offset:{i*1024} {pW} lds")
    A("s_add_u32 m0, m0, 0x1000")
    A(f"s_add_u32 s{sO1}, s{sO1}, {32*3584}")
    A("s_bitcmp1_b32 m0, 12")
    A("s_cbranch_scc1 L_ldf")
    A(f"s_mov_b64 s[40:41], s[{P_U}:{P_U+1}]")
    A("s_bitcmp1_b32 m0, 13")
    A("s_cbranch_scc1 L_ldf2")
    if fine:
        stamp(8)
    A("v_and_b32 v2, 15, v0")
    A("v_xor_b32 v2, v2, v3")
    A("v_lshlrev_b32 v2, 4, v2")
    A("v_lshl_or_b32 v4, v1, 8, v2")
    A("v_xor_b32 v5, 0x80, v4")
    A("v_xor_b32 v6, 16, v4")
    A("v_xor_b32 v7, 0x90, v4")
    A(f"s_lshl_b32 s{sBase}, s{S_B}, 3")
    A(f"s_add_u32 s{sBase}, s{sBase}, s{S_KVH}")
    A(f"s_lshl_b32 s{sBase}, s{sBase}, 4")
    A(f"s_add_u32 s{sBase}, s{sBase}, s{S_S}")
    A(f"s_lshl_b32 s{sBase}, s{sBase}, 1")
    A(f"s_add_u32 s{sBase}, s{sBase}, s{S_B}")
    A(f"s_lshl_b32 s{sBase}, s{sBase}, 1")
    A(f"s_bfe_u32 s{sT}, s{S_S}, 0x10002")
    A(f"s_add_u32 s{sBase}, s{sBase}, s{sT}")
    A(f"s_lshl_b32 s{sBase}, s{sBase}, 17")
    A(f"s_mov_b32 s{sO1}, s{sBase}")
    A("s_mov_b32 s42, 0x8000000")
    A(f"s_mov_b64 s[40:41], s[{P_K}:{P_K+1}]")
    A(f"s_mov_b32 s{sN}, 0")
    A(f"s_mov_b32 s{sTt}, 0")
    A("s_mov_b32 m0, 0")
    A(f"s_mov_b32 s{sEv}, 2")
    A(f"s_mov_b32 s{sNc}, 2")
    A(f"s_mov_b32 s{sIdx}, {idxS}")
    A(f"s_mov_b64 s[44:45], s[{P_WS}:{P_WS+1}]")
    A(f"s_mov_b32 s46, {hex(WS_BYTES)}")
    A("v_lshlrev_b32 v14, 3, v0")
    A("v_mov_b32 v22, 0")
    A(f"ds_read_b128 v[16:19], v8 offset:{F_DONE}")
    NV = len(NLS)
    extra = {
        0: [f"s_add_u32 s{sO2}, s{sO1}, 0x8000"],
        1: [f"s_or_b32 s{sTt}, s{sTt}, 0x8000", f"s_add_u32 s{sTt}, s{sTt}, 0x1000"],
        2: [f"s_and_b32 s{sTt}, s{sTt}, 0x77000"],
        3: ["s_add_u32 m0, m0, 0x1000"],
        4: [f"s_xor_b32 s{sO1}, s{sTt}, s{sBase}"],
        5: [f"s_add_u32 s{sN}, s{sN}, 1"],
        6: [f"s_add_u32 s{sT}, m0, 0x1000"],
        7: [f"s_and_b32 m0, s{sT}, 0x1ffff"],
    }

    def body(k):
        NL = NLS[k]
        pub_i = (NL - 1) % 8
        pub_d = (pub_i - NL + 1) // 8
        A(f"v_add_u32 v21, {pub_d + LB - 1}, v22")
        A(f"L_body{k}:")
        for i in range(8):
            A(f"s_waitcnt vmcnt({NL-1})")
            A(f"buffer_load_dwordx4 v{4+(i&3)}, s[40:43], s{sO1 if i < 4 else sO2} offen offset:{(i&3)*1024} {pK} lds")
            if i == 0:
                A("v_add_u32 v21, 1, v21")
            if i == pub_i:
                A(f"ds_max_i32 v9, v21 offset:{F_LANDED}")
            for e in extra.get(i, []):
                A(e)
        A(f"s_cmp_lg_u32 s{sN}, s{sEv}")
        A(f"s_cbranch_scc1 L_body{k}")

    A("L_def:")
    body(idx0)
    A("L_event:")
    if stamps:
        A(f"s_and_b32 s{sT}, s{sN}, 15"); A("s_cbranch_scc0 L_ldst")
        A("L_ldst_back:")
    A(f"s_bitcmp1_b32 s{sN}, 7")
    A("s_cbranch_scc1 L_drain")
    A(f"s_cmp_eq_u32 s{sN}, s{sNc}")
    A("s_cbranch_scc1 L_ctl")
    A("L_event2:")
    A("s_waitcnt lgkmcnt(0)")
    A("v_min3_i32 v20, v16, v17, v18")
    A("v_min_i32 v20, v20, v19")
    A(f"s_bitcmp1_b32 s{sN}, 6")
    A(f"v_readfirstlane_b32 s{sT}, v20")
    A("L_event3:")
    A(f"ds_read_b128 v[16:19], v8 offset:{F_DONE}")
    A(f"s_cselect_b64 s[40:41], s[{P_V}:{P_V+1}], s[40:41]")
    A(f"s_cmp_eq_u32 s{sT}, 0")
    A(f"s_cselect_b32 s{sEv}, {12 if wearly else 14}, 16")
    A(f"s_add_u32 s{sT}, s{sT}, s{sEv}")
    A(f"s_or_b32 s{sEv}, s{sN}, {15 if stamps else 63}")
    A(f"s_add_u32 s{sEv}, s{sEv}, 1")
    A(f"s_min_u32 s{sEv}, s{sEv}, s{sT}")
    A(f"s_min_u32 s{sEv}, s{sEv}, s{sNc}")
    A(f"v_mov_b32 v22, s{sN}")
    A(f"s_cmp_le_u32 s{sEv}, s{sN}")
    A("s_cbranch_scc1 L_full")
    A(f"s_cmp_eq_u32 s{sIdx}, 0")
    A("s_cbranch_scc1 L_def")
    A("s_branch L_var")
    A("L_full:")
    spin_guard()
    A("s_branch L_event2")
    A("L_roles:")
    A("s_cmp_lg_u32 s3, 1")
    A("s_cbranch_scc1 L_roles2")
    A(f"s_mov_b64 s[44:45], s[{P_X}:{P_X+1}]")
    A("s_setprio 2")
    A("buffer_load_dwordx4 v[16:19], v10, s[44:47], 0 offen")
    A("buffer_load_dwordx4 v[20:23], v10, s[44:47], 0 offen offset:1024")
    A("L_roles2:")
    A("s_barrier")
    A("s_cbranch_scc1 L_other")
    A("s_branch L_aux")
    A("L_drain:")

    def iss(k):
        if TRIG == 0:
            A(f"s_cmp_ge_i32 s{sIdx}, {k}")
            A("s_cselect_b64 exec, 1, 0")
            A(f"ds_write_b32 v8, v21 offset:{F_ISS}")
            A("s_mov_b64 exec, -1")
    iss(thr[0])
    stamp(1)
    for x in range(125, 129):
        A(f"v_mov_b32 v21, {x + LB}")
        if gate and x == 128 and MARK_AT:
            A("v_mov_b32 v24, 200")
            A("s_mov_b64 exec, 1")
            A(f"s_waitcnt vmcnt({MARK_AT})")
            A(f"buffer_store_dword v24, v11, s[44:47], s{sPs} offen")
            A("s_waitcnt vmcnt(1)")
        else:
            A(f"s_waitcnt vmcnt({(128 - x) * 8})")
        A(f"ds_max_i32 v9, v21 offset:{F_LANDED}")
        if x >= 126:
            iss((thr[1], thr[2], -9)[x - 126])
    if gate and not MARK_AT:
        A("v_mov_b32 v24, 200")
        A("s_mov_b64 exec, 1")
        A(f"buffer_store_dword v24, v11, s[44:47], s{sPs} offen")
    stamp(2)
    stamp_flush()
    A("s_endpgm")

    if stamps:
        A("L_ldst:")
        for n, k in ((16, 4), (32, 5), (64, 6), (96, 7)):
            l = lab("st")
            A(f"s_cmp_lg_u32 s{sN}, {n}"); A(f"s_cbranch_scc1 {l}"); stamp(k); A(f"{l}:")
        A("s_branch L_ldst_back")

    def loader_rest():
        A("L_ctl:")
        A(f"s_cmp_eq_u32 s{sN}, 2")
        A("s_cbranch_scc1 L_ctl_init")
        if curve:
            A("s_memrealtime s[98:99]")
            A(f"s_lshr_b32 s97, s{sN}, 2")
            A("s_add_u32 s97, s97, 20")
            A("s_mov_b32 s96, m0")
            A("s_mov_b32 m0, s97")
        A("s_waitcnt lgkmcnt(0)")
        if curve:
            A(f"v_writelane_b32 v{VST}, s98, m0")
            A("s_mov_b32 m0, s96")
        A("v_add_u32 v15, v12, v13")
        A(f"v_mov_b32 v24, s{sN}")
        A("v_readfirstlane_b32 s78, v23")
        A("s_mov_b64 exec, 1")
        A(f"buffer_store_dword v24, v11, s[44:47], s{sPs} offen")
        A("s_mov_b64 exec, 0xffff")
        A("v_add_u32_dpp v15, v15, v15 quad_perm:[1,0,3,2] row_mask:0xf bank_mask:0xf")
        A(f"buffer_load_dwordx2 v[12:13], v14, s[44:47], s{sPl} offen sc1")
        A(f"ds_read_b32 v23, v8 offset:{F_CTL}")
        A("v_add_u32_dpp v15, v15, v15 quad_perm:[2,3,0,1] row_mask:0xf bank_mask:0xf")
        A("v_min3_i32 v20, v16, v17, v18")
        A(f"s_add_u32 s{sNc}, s{sNc}, 4")
        A("v_add_u32_dpp v15, v15, v15 row_half_mirror row_mask:0xf bank_mask:0xf")
        A("v_min_i32 v20, v20, v19")
        A(f"s_add_u32 s{sSmp}, s{sSmp}, {4*32*int(gain*256)}")
        A("v_add_u32_dpp v15, v15, v15 row_mirror row_mask:0xf bank_mask:0xf")
        A(f"v_readfirstlane_b32 s{sT}, v20")
        A("v_readfirstlane_b32 s76, v15")
        A("s_mov_b64 exec, -1")
        A(f"s_mul_i32 s76, s76, {int(gain*256)}")
        A(f"s_sub_i32 s76, s76, s{sSmp}")
        A("s_ashr_i32 s76, s76, 13")
        if endn:
            A(f"s_cmp_ge_u32 s{sN}, {endn}")
            A(f"s_cselect_b32 s77, {endadd}, 0")
            A("s_add_i32 s76, s76, s77")
        A(f"s_max_i32 s76, s76, {-idx0}")
        A(f"s_min_i32 s76, s76, {NV-1-idx0}")
        A(f"s_cmp_eq_u32 s{sPrevF}, {2 if ctl else 3}")
        A(f"s_cselect_b32 s{sIdx}, s76, s{sIdx}")
        A(f"s_mov_b32 s{sPrevF}, s78")
        A(f"s_bitcmp1_b32 s{sN}, 6")
        A("s_branch L_event3")
        A("L_ctl_init:")
        if fine:
            stamp(9)
        prog_addr(sPs, sPl)
        A(f"s_and_b32 s{sPl}, s{sPs}, 0xffffff80")
        A(f"s_lshr_b32 s{sNc}, s{S_J}, 2")
        A(f"s_add_u32 s{sNc}, s{sNc}, s{S_J}")
        A(f"s_and_b32 s{sNc}, s{sNc}, 3")
        A(f"s_add_u32 s{sNc}, s{sNc}, 3")
        A(f"s_mov_b32 s{sPrevF}, 0")
        A(f"s_sub_u32 s{sSmp}, s{sNc}, 8")
        A(f"s_mul_i32 s{sSmp}, s{sSmp}, {32*int(gain*256)}")
        A(f"s_cmp_eq_u32 s{S_KVH}, {FX}")
        A(f"s_cselect_b32 s{sCen}, {int(boost7 * 256 * 32)}, 0")
        A(f"s_add_u32 s{sCen}, s{sCen}, {int((0.5 + bias * gain) * 256 * 32)}")
        A(f"s_sub_u32 s{sSmp}, s{sSmp}, s{sCen}")
        if boostE:
            A(f"s_getreg_b32 s{sCen}, hwreg(HW_REG_XCC_ID, 0, 1)")
            A(f"s_mul_i32 s{sCen}, s{sCen}, {int(boostE * 256 * 32)}")
            A(f"s_add_u32 s{sSmp}, s{sSmp}, s{sCen}")
        A("v_mov_b32 v12, 0"); A("v_mov_b32 v13, 0"); A("v_mov_b32 v23, 0")
        A("s_branch L_event2")
        A("L_var:")
        others = [i for i in range(NV) if i != idx0]

        def tree(lst):
            if len(lst) == 1:
                body(lst[0])
                A("s_branch L_event")
                return
            mid = len(lst) // 2
            l = lab("tr")
            A(f"s_cmp_ge_i32 s{sIdx}, {lst[mid] - idx0}")
            A(f"s_cbranch_scc1 {l}")
            tree(lst[:mid])
            A(f"{l}:")
            tree(lst[mid:])
        tree(others)

    role[0] = "aux"
    SWQ, SX, SWS, SG, SU, SOUT = 40, 44, 48, 52, 56, 60
    sO, sTag, sA, sB2, sThr, sLoc = 64, 65, 66, 67, 75, 84
    XB, TF = 64, 96
    A("L_aux:")
    A(f"s_lshr_b32 s{sB2}, s{S_J}, 3")
    srd(SWS, P_WS, WS_BYTES)
    A(f"buffer_load_dword v24, v11, s[{SWS}:{SWS+3}], 0 offen sc1")
    prog_addr(76, 77)
    A("s_mov_b64 exec, 1")
    A(f"buffer_store_dword v11, v11, s[{SWS}:{SWS+3}], s76 offen")
    A("s_mov_b64 exec, -1")
    stamp(1)
    A(f"v_add_u32 v25, {hex(L_XN)}, v10")
    A("v_bfe_u32 v15, v0, 3, 1")
    A("v_lshlrev_b32 v26, 10, v15")
    A("v_lshl_add_u32 v26, v1, 3, v26")
    A(f"v_add_u32 v26, {hex(L_XN)}, v26")
    A(f"s_lshl_b32 s{sA}, s{sB2}, 8")
    A(f"v_add_u32 v28, s{sA}, v26")
    A(f"s_and_b32 s{sA}, s{S_J}, 7")
    A(f"s_lshl_b32 s{sA}, s{sA}, 7")
    A(f"v_add_u32 v26, s{sA}, v26")
    A("v_lshrrev_b32 v29, 2, v0")
    A("v_lshlrev_b32 v29, 7, v29")
    A("v_bfe_u32 v30, v0, 3, 2")
    A("v_lshl_or_b32 v29, v30, 5, v29")
    A("v_and_b32 v30, 3, v0")
    A("v_lshl_or_b32 v29, v30, 3, v29")
    A(f"v_add_u32 v160, {hex(L_TILE)}, v29")
    for T in range(1, 4):
        A(f"v_xor_b32 v{160+T}, {32*T}, v160")
    A("v_lshlrev_b32 v27, 6, v30")
    A("v_lshl_or_b32 v27, v1, 4, v27")
    A("v_lshl_or_b32 v31, v15, 13, v27")
    A(f"s_lshl_b32 s{sO}, s{S_KVH}, 14")
    A(f"s_lshl_b32 s{sA}, s{S_J}, 8")
    A(f"s_add_u32 s{sO}, s{sO}, s{sA}")
    A(f"s_add_u32 s{sO}, s{sO}, {hex(W_Q)}")
    for i in range(4):
        A(f"s_mov_b32 s{78+i}, {hex(0x07060500 + i)}")
    if True:
        A(f"buffer_load_dword v89, v31, s[{SWS}:{SWS+3}], s{sO} offen sc1")
    A("s_mov_b32 s68, 0xaaaaaaaa"); A("s_mov_b32 s69, s68")
    A("s_mov_b32 s70, 0xcccccccc"); A("s_mov_b32 s71, s70")
    A("s_mov_b32 s72, 0xf0f0f0f0"); A("s_mov_b32 s73, s72")
    A(f"s_waitcnt vmcnt(3)")
    stamp(2)
    XF = 32
    for b in range(2):
        for i in range(4):
            unpack(XF + 8 * b + 2 * i, 16 + 4 * b + i)
    for b in range(2):
        A(f"v_add_f32 v{48+b}, v{XF+8*b}, v{XF+8*b+1}")
    for i in range(2, 8):
        for b in range(2):
            A(f"v_add_f32 v{48+b}, v{48+b}, v{XF+8*b+i}")
    allreduce([48, 49], "v_add_f32", [50, 51])
    for b in range(2):
        A(f"v_mul_f32 v{48+b}, 0x3b000000, v{48+b}")
    for i in range(8):
        for b in range(2):
            A(f"v_sub_f32 v{52+b}, v{XF+8*b+i}, v{48+b}")
        for b in range(2):
            A(f"{'v_mul_f32' if i == 0 else 'v_fmac_f32'} v{54+b}, v{52+b}, v{52+b}")
    allreduce([54, 55], "v_add_f32", [50, 51])
    for b in range(2):
        A(f"v_mul_f32 v{54+b}, 0x3b000000, v{54+b}")
    A("v_cvt_pk_bf16_f32 v50, v48, v49")
    A("v_cvt_pk_bf16_f32 v51, v54, v55")
    unpack(48, 50)
    unpack(54, 51)
    A("v_add_f32 v54, 0x3727c5ac, v54"); A("v_add_f32 v55, 0x3727c5ac, v55")
    A("v_cvt_pk_bf16_f32 v51, v54, v55")
    unpack(54, 51)
    A("v_sqrt_f32 v54, v54"); A("v_sqrt_f32 v55, v55")
    nop(1)
    A("v_cvt_pk_bf16_f32 v51, v54, v55")
    unpack(54, 51)
    A("v_rcp_f32 v54, v54"); A("v_rcp_f32 v55, v55")
    for b in range(2):
        for i in range(8):
            A(f"v_sub_f32 v{XF+8*b+i}, v{XF+8*b+i}, v{48+b}")
        for i in range(4):
            A(f"v_cvt_pk_bf16_f32 v{56+4*b+i}, v{XF+8*b+2*i}, v{XF+8*b+2*i+1}")
        for i in range(4):
            unpack(XF + 8 * b + 2 * i, 56 + 4 * b + i)
        for i in range(8):
            A(f"v_mul_f32 v{XF+8*b+i}, v{XF+8*b+i}, v{54+b}")
        for i in range(4):
            A(f"v_cvt_pk_bf16_f32 v{56+4*b+i}, v{XF+8*b+2*i}, v{XF+8*b+2*i+1}")
        A(f"ds_write_b128 v25, v[{56+4*b}:{59+4*b}] offset:{1024*b}")
    A("s_waitcnt lgkmcnt(0)")
    for s in range(4):
        A(f"ds_read2_b64 v[{XB+4*s}:{XB+4*s+3}], v28 offset0:{8*s} offset1:{8*s+4}")
    for s in range(2):
        A(f"ds_read2_b64 v[{XB+16+4*s}:{XB+16+4*s+3}], v26 offset0:{8*s} offset1:{8*s+4}")
    stamp(3)
    lds_wait(F_LANDED, 2, 44, sA)
    A("s_waitcnt vmcnt(0)")
    stamp(4)

    def tile_mfma(acc_of, b_of, first):
        for hf in range(2):
            for s in range(2 * hf, 2 * hf + 2):
                for T in range(4):
                    r = TF + 16 * s + 4 * T
                    A(f"ds_read_b64_tr_b16 v[{r}:{r+1}], v{160+T} offset:{s*4096}")
                    A(f"ds_read_b64_tr_b16 v[{r+2}:{r+3}], v{160+T} offset:{s*4096+2048}")
                if s == 2 * hf:
                    A("s_waitcnt lgkmcnt(4)")
            A("s_waitcnt lgkmcnt(0)")
            for s in range(2 * hf, 2 * hf + 2):
                for T in range(4):
                    r = TF + 16 * s + 4 * T
                    d = acc_of(s, T)
                    c = "0" if first(s) else f"v[{d}:{d+3}]"
                    A(f"v_mfma_f32_16x16x32_bf16 v[{d}:{d+3}], v[{r}:{r+3}], v[{b_of(s)}:{b_of(s)+3}], {c}")

    def select_quad(D, out):
        for T in (0, 2):
            for r in range(4):
                A(f"v_cndmask_b32 v{D+4*T+r}, v{D+4*T+r}, v{D+4*T+4+r}, s[68:69]")
        for r in range(4):
            A(f"v_cndmask_b32 v{out+r}, v{D+r}, v{D+8+r}, s[70:71]")
        for r in range(4):
            A(f"v_add_u32 v{out+r}, 0x80, v{out+r}")

    def put_tag(dst, src, vtag):
        for r in range(4):
            A(f"v_perm_b32 v{dst+r}, v{src+r}, v{vtag}, s{78+r}")

    tile_mfma(lambda s, T: 32 + 4 * T, lambda s: XB + 4 * s, lambda s: s == 0)
    make_tag(sTag, 24)
    local_tag(sA, sTag)
    A(f"v_mov_b32 v90, s{sA}")
    A(f"v_mov_b32 v91, s{sTag}")
    select_quad(32, 16)
    put_tag(20, 16, 90)
    A("s_not_b64 exec, s[72:73]")
    A(f"buffer_store_dwordx4 v[20:23], v31, s[{SWS}:{SWS+3}], s{sO} offen")
    A("s_mov_b64 exec, -1")
    A("v_mov_b32 v88, 1")
    A("s_setprio 0")
    A(f"s_add_u32 s{sO}, s{sO}, {hex(W_QB - W_Q)}")
    put_tag(16, 16, 91)
    A(f"s_mov_b32 s{sB2}, 1")
    stamp(5)
    for T in range(4):
        A(f"v_add_u32 v{160+T}, {L_T2 - L_TILE}, v{160+T}")
    lds_wait(F_LANDED, 4, 44, sA)
    tile_mfma(lambda s, T: 32 + 16 * (s >> 1) + 4 * T, lambda s: XB + 16 + 4 * (s & 1), lambda s: s in (0, 2))
    lds_set(8, F_TILE, 88)
    nop(2)
    for i in range(16):
        A(f"v_cndmask_b32 v{32+i}, v{32+i}, v{48+i}, s[72:73]")
    select_quad(32, 92)
    put_tag(92, 92, 91)
    stamp(6)
    A("L_qserve:")
    A(f"ds_read_b128 v[44:47], v8 offset:{F_QRDY}")
    A(f"ds_read_b32 v48, v8 offset:{F_BREQ}")
    spin_guard()
    A("s_waitcnt lgkmcnt(0)")
    A("v_min3_i32 v44, v44, v45, v46")
    A("v_min_i32 v44, v44, v47")
    A(f"v_readfirstlane_b32 s{sA}, v48")
    A(f"v_readfirstlane_b32 s{sLoc}, v44")
    A(f"s_and_b32 s{sA}, s{sA}, s{sB2}")
    A("s_cbranch_scc0 L_qnob")
    A("s_not_b64 exec, s[72:73]")
    A(f"buffer_store_dwordx4 v[16:19], v31, s[{SWS}:{SWS+3}], s{sO} offen sc1")
    A("s_mov_b64 exec, -1")
    A(f"s_mov_b32 s{sB2}, 0")
    A("L_qnob:")
    A(f"s_cmp_eq_u32 s{sLoc}, 0")
    A("s_cbranch_scc1 L_qserve")
    A(f"s_cmp_ge_u32 s{S_KVH}, {0 if noffn else 7}")
    A("s_cbranch_scc1 L_noffn1")
    A("v_lshl_or_b32 v30, v15, 8, v27")
    A("v_bfe_u32 v29, v0, 2, 1")
    A("v_lshl_or_b32 v30, v29, 9, v30")
    A(f"s_lshl_b32 s{sO}, s{S_W}, 10")
    A(f"s_add_u32 s{sO}, s{sO}, {hex(W_F)}")
    store_by(sLoc, [f"buffer_store_dwordx4 v[92:95], v30, s[{SWS}:{SWS+3}], s{sO} offen"])
    A("L_noffn1:")
    stamp(7)
    stamp_flush()
    A("s_endpgm")

    role[0] = "cons"
    SWS = 48
    sC, sLd, sTg, sL2E, sSc, sA, sB2, sTag, sLoc = 60, 61, 62, 63, 64, 65, 66, 67, 84
    AV, VDN, AK = 6, 9, 144
    S, O, KF, Q, SV = 16, 24, 32, 64, 128
    VF, PF = 32, 40
    vM, vNM, vL, vT, vT2, vPW, vPR = 152, 153, 154, 155, 156, 157, 158
    A("L_other:")
    srd(SWS, P_WS, WS_BYTES)
    A(f"buffer_load_dword v164, v11, s[{SWS}:{SWS+3}], 0 offen sc1")
    A("s_cmp_ge_u32 s3, 6")
    A("s_cbranch_scc1 L_tail")
    if pads:
        A("s_mov_b64 exec, 0")
        A("s_branch L_vlast")
        A("L_cpad:")
        A("s_mov_b64 exec, -1")
    A("s_setprio 1")
    A(f"s_sub_u32 s{sC}, s3, 2")
    A(f"s_lshr_b32 s69, s{S_W}, 4")
    A("s_lshl_b32 s69, s69, 13")
    A(f"s_lshl_b32 s{sA}, s{sC}, 9")
    A(f"s_add_u32 s69, s69, s{sA}")
    A(f"s_add_u32 s69, s69, {hex(W_Q)}")
    A("s_add_u32 s70, s69, 0x1000")
    A("v_lshrrev_b32 v12, 5, v0")
    A("v_and_b32 v165, 0x1f0, v10")
    A("v_lshl_or_b32 v165, v12, 11, v165")
    A(f"s_mov_b32 s{sL2E}, {hex(LOG2E)}")
    A(f"s_mov_b32 s{sSc}, {hex(SCALE)}")
    A("v_and_b32 v15, 3, v0")
    A("v_lshlrev_b32 v160, 9, v15")
    A(f"v_bfe_u32 v{vT2}, v0, 2, 1")
    A(f"v_lshl_or_b32 v160, v{vT2}, 6, v160")
    A("v_lshl_or_b32 v160, v1, 4, v160")
    A(f"s_lshl_b32 s68, s{S_W}, 11")
    A(f"s_lshl_b32 s{sA}, s{sC}, 7")
    A(f"s_add_u32 s68, s68, s{sA}")
    A(f"s_add_u32 s68, s68, {hex(W_O)}")
    A(f"s_lshl_b32 s73, s{S_KVH}, 2")
    A(f"s_add_u32 s73, s73, s{sC}")
    A("s_lshl_b32 s73, s73, 1")
    A(f"s_add_u32 s73, s73, s{S_B}")
    A("s_lshl_b32 s73, s73, 2")
    A(f"s_and_b32 s{sA}, s{S_S}, 3")
    A(f"s_add_u32 s73, s73, s{sA}")
    A("s_lshl_b32 s73, s73, 2")
    A(f"s_lshr_b32 s{sA}, s{S_S}, 2")
    A(f"s_add_u32 s73, s73, s{sA}")
    A("s_lshl_b32 s73, s73, 4")
    A(f"s_add_u32 s73, s73, {hex(W_ML)}")
    A(f"v_lshlrev_b32 v{vPR}, 4, v15")
    A(f"v_lshl_or_b32 v{vPR}, v1, 6, v{vPR}")
    A(f"v_add_u32 v{vPR}, {hex(L_TILE)}, v{vPR}")
    A(f"v_bfe_u32 v{vT}, v0, 2, 2")
    A(f"v_lshl_add_u32 v{vPW}, v{vT}, 10, v{vPR}")
    A(f"s_lshl_b32 s{sA}, s{sC}, 8")
    A(f"v_add_u32 v{vPW}, s{sA}, v{vPW}")
    A(f"s_add_u32 s{sA}, s{sA}, {hex(L_Q)}")
    A(f"v_lshl_add_u32 v2, v0, 3, s{sA}")
    A("v_lshlrev_b32 v3, 8, v15")
    A("v_lshl_add_u32 v3, v1, 6, v3")
    A(f"v_add_u32 v3, {hex(L_Q)}, v3")
    A("v_lshl_add_u32 v4, v15, 4, v8")
    A(f"s_lshl_b32 s{sA}, s{sC}, 2")
    A(f"v_add_u32 v5, s{sA}, v4")
    A(f"v_add_u32 v{VDN}, s{sA}, v8")
    A("v_and_b32 v14, 15, v0")
    A("v_and_b32 v12, 7, v0")
    A("v_lshlrev_b32 v12, 1, v12")
    A("v_bfe_u32 v13, v0, 3, 1")
    A("v_or_b32 v12, v12, v13")
    A("v_lshlrev_b32 v13, 2, v1")
    A("v_xor_b32 v12, v12, v13")
    A("v_lshlrev_b32 v12, 4, v12")
    A("v_lshl_or_b32 v12, v14, 8, v12")
    A(f"s_lshl_b32 s{sA}, s{sC}, 13")
    A(f"v_or_b32 v{AK}, s{sA}, v12")
    for s in range(1, 8):
        A(f"v_xor_b32 v{AK+s}, {hex(16*(s&3) + 0x10000*(s>>2))}, v{AK}")
    vaddr_T0(13, 12, 14, 15)
    A(f"s_lshl_b32 s{sA}, s{sC}, 6")
    A(f"v_xor_b32 v{AV}, s{sA}, v13")
    A(f"v_xor_b32 v{AV+1}, 32, v{AV}")
    A(f"s_mov_b32 s{sLd}, 0")
    A(f"s_sub_u32 s{sTg}, s{sC}, 3")
    A(f"v_mov_b32 v{vM}, 0xff800000")
    A(f"v_mov_b32 v{vL}, 0")
    for i in range(8):
        A(f"v_mov_b32 v{O+i}, 0")
    A("s_mov_b32 s76, 0x000f000f"); A("s_mov_b32 s77, s76")
    for g in range(1, 4):
        A(f"s_lshl_b64 s[{76+2*g}:{77+2*g}], s[76:77], {4*g}")
    A("v_mov_b32 v159, 1")
    if diag is not None:
        A("s_mov_b32 s88, s90")
    SX, SOUT = 40, 44
    vYA = 153
    srd(SX, P_X, 2048)
    srd(SOUT, P_OUT, 2048)
    A(f"s_lshl_b32 s85, s{S_J}, 2")
    A(f"s_add_u32 s85, s85, s{sC}")
    A("s_lshl_b32 s85, s85, 4")
    A("v_and_b32 v12, 1, v0")
    A("v_bfe_u32 v13, v0, 2, 2")
    A("v_lshlrev_b32 v13, 1, v13")
    A("v_lshl_or_b32 v161, v12, 3, v13")
    A("v_lshrrev_b32 v13, 1, v0")
    A("v_lshlrev_b32 v13, 11, v13")
    A(f"v_lshl_or_b32 v{vYA}, v12, 4, v13")
    A("v_lshrrev_b32 v163, 3, v0")
    A("v_lshlrev_b32 v163, 7, v163")
    A(f"s_lshl_b32 s52, s{S_B}, 16")
    A("s_and_b32 s53, s85, 0x3ff")
    A("s_lshl_b32 s53, s53, 1")
    A("s_add_u32 s52, s52, s53")
    A(f"s_add_u32 s52, s52, {hex(W_Y)}")
    A(f"s_mov_b32 s59, {hex(W_IND)}")
    A(f"s_lshl_b32 s58, s{S_W}, 2")
    A(f"s_add_u32 s58, s58, {hex(W_MARK)}")
    A("s_and_b32 s53, s58, 0xffffff80")
    A(f"s_cmp_lg_u32 s{S_KVH}, {FX}")
    A("s_cbranch_scc1 L_nofin")
    A(f"buffer_load_ushort v162, v161, s[{SX}:{SX+3}], s85 offen")
    A("s_mov_b64 exec, 1")
    A(f"buffer_store_short v11, v161, s[{SOUT}:{SOUT+3}], s85 offen")
    A("s_mov_b64 exec, -1")
    A("L_nofin:")
    A("s_waitcnt vmcnt(0)")
    make_tag(sTag, 164)
    local_tag(74, sTag)
    for i in range(4):
        A(f"s_bfe_u32 s{54+i}, s{sTag}, {hex(0x80000 + 8*i)}")
    A("v_lshlrev_b32 v162, 16, v162")
    A(f"v_mov_b32 v164, s{sTag}")
    stamp(1)
    lds_wait(F_TILE, 1, vT, sA)
    stamp(5)
    A("s_mov_b64 vcc, -1")
    A(f"s_mov_b32 s{sB2}, 0")
    A("L_qpoll:")
    A(f"s_add_u32 s{sB2}, s{sB2}, 1")
    A(f"s_and_b32 s{sA}, s{sB2}, {(QB_EVERY - 1) if fast else 0}")
    A(f"s_cselect_b32 s{sA}, 0, {hex(W_QB - W_Q)}")
    A(f"s_cselect_b32 s75, s74, s{sTag}")
    A("s_cselect_b64 exec, 0, 1")
    A(f"ds_write_b32 v8, v159 offset:{F_BREQ}")
    A("s_mov_b64 exec, vcc")
    A(f"v_add_u32 v15, s{sA}, v165")
    for i in range(2):
        A(f"buffer_load_dwordx4 v[{KF+4*i}:{KF+4*i+3}], v15, s[{SWS}:{SWS+3}], s{69+i} offen sc1")
    for i in range(4):
        A(f"s_bfe_u32 s{92+i}, s75, {hex(0x80000 + 8*i)}")
    spin_guard()
    A("s_waitcnt vmcnt(0)")
    byte_check(KF, 8, 92, vT)
    A("s_cbranch_vccnz L_qpoll")
    A("s_mov_b64 exec, -1")
    stamp(6)
    for k in range(4):
        A(f"v_add_f32 v{KF+k}, v{KF+k}, v{KF+4+k}")
    allreduce([KF + k for k in range(4)], "v_add_f32", [KF + 4 + k for k in range(4)], steps=("p32",))
    A(f"v_cvt_pk_bf16_f32 v{KF+8}, v{KF}, v{KF+1}")
    A(f"v_cvt_pk_bf16_f32 v{KF+9}, v{KF+2}, v{KF+3}")
    A("s_mov_b32 exec_hi, 0")
    A(f"ds_write_b64 v2, v[{KF+8}:{KF+9}]")
    A("s_mov_b32 exec_hi, -1")
    A(f"s_cmp_lt_u32 s{sB2}, {QB_EVERY if fast else 0}")
    A(f"s_cselect_b32 s{sA}, 2, 1")
    A(f"v_mov_b32 v{vT2}, s{sA}")
    lds_set(VDN, F_QRDY, vT2)
    lds_wait4(F_QRDY, 1, S, [f"ds_read_b128 v[{KF+4*s}:{KF+4*s+3}], v3 offset:{16*s}" for s in range(4)])
    A(f"v_readfirstlane_b32 s{sLoc}, v{S}")
    lds_set(8, F_CTL, S)
    if wearly:
        lds_wait4(F_WRDY, 2, S)
    for g in range(4):
        for i in range(16):
            A(f"v_cndmask_b32 v{Q+16*g+i}, 0, v{KF+i}, s[{76+2*g}:{77+2*g}]")
    stamp(2)

    def wait_landed(tgt):
        lo, ls = lab("lo"), lab("ls")
        A(f"s_cmp_ge_i32 s{sLd}, {tgt}")
        A(f"s_cbranch_scc1 {lo}")
        A(f"{ls}:")
        if slpc:
            A(f"s_sleep {slpc}")
        A(f"ds_read_b32 v{vT}, v8 offset:{F_LANDED}")
        spin_guard()
        A("s_waitcnt lgkmcnt(0)")
        A(f"v_readfirstlane_b32 s{sLd}, v{vT}")
        A(f"s_sub_u32 s{sLd}, s{sLd}, {LB}")
        A(f"s_cmp_ge_i32 s{sLd}, {tgt}")
        A(f"s_cbranch_scc0 {ls}")
        A(f"{lo}:")

    A("L_kwin:")
    for g in range(4):
        A(f"s_add_u32 s{sTg}, s{sTg}, 4")
        wait_landed(f"s{sTg}")
        for t in range(2):
            for s in range(4):
                r = KF + 16 * t + 4 * s
                A(f"ds_read_b128 v[{r}:{r+3}], v{AK + 4*(g>>1) + s} offset:{(g&1)*32768 + t*4096}")
        A(f"s_add_u32 s{sA}, s{sTg}, 3")
        A(f"s_min_u32 s{sA}, s{sA}, 64")
        A(f"v_mov_b32 v{vT2}, s{sA}")
        for t in range(2):
            A(f"s_waitcnt lgkmcnt({4 if t == 0 else 0})")
            if t == 1:
                lds_set(VDN, F_DONE, vT2)
            for s in range(4):
                r = KF + 16 * t + 4 * s
                c = "0" if (g == 0 and s == 0) else f"v[{S+4*t}:{S+4*t+3}]"
                q = Q + 16 * g + 4 * s
                A(f"v_mfma_f32_16x16x32_bf16 v[{S+4*t}:{S+4*t+3}], v[{r}:{r+3}], v[{q}:{q+3}], {c}")
    for i in range(12):
        A(f"v_mov_b32 v{SV+i}, v{SV+4+i}")
    for i in range(4):
        A(f"v_cvt_pk_bf16_f32 v{SV+12+i}, v{S+2*i}, v{S+2*i+1}")
    for i in range(4):
        unpack(S + 2 * i, SV + 12 + i)
    for i in range(8):
        A(f"v_mul_f32 v{S+i}, s{sSc}, v{S+i}")
    for i in range(4):
        A(f"v_cvt_pk_bf16_f32 v{SV+12+i}, v{S+2*i}, v{S+2*i+1}")
    A(f"v_max3_f32 v{vM}, v{vM}, v{S}, v{S+1}")
    A(f"v_max3_f32 v{vT}, v{S+2}, v{S+3}, v{S+4}")
    A(f"v_max3_f32 v{vM}, v{vM}, v{S+5}, v{S+6}")
    A(f"v_max3_f32 v{vM}, v{vM}, v{vT}, v{S+7}")
    A(f"s_cmp_lt_u32 s{sTg}, 60")
    A("s_cbranch_scc1 L_kwin")
    stamp(3)
    for i in range(4):
        A(f"v_mov_b32 v{KF+8+i}, -1")
    A("s_mov_b32 exec_lo, 0x00ff00ff"); A("s_mov_b32 exec_hi, 0x00ff00ff")
    store_by(sLoc, [f"buffer_store_dwordx4 v[{KF+8}:{KF+11}], v160, s[{SWS}:{SWS+3}], s68 offen"])
    A("s_mov_b64 exec, -1")
    allreduce([vM], "v_max_f32", [vT], steps=("r4", "r8", "p16", "p32"))
    A("s_mov_b64 exec, 15")
    A(f"ds_write_b32 v5, v{vM} offset:{L_M - L_FLAG}")
    lds_set(VDN, F_MRDY, 159)
    lds_wait4(F_HRDY, 1, S)
    lds_wait4(F_MRDY, 1, S, [f"ds_read_b128 v[{S+4}:{S+7}], v4 offset:{L_M - L_FLAG}"])
    A(f"v_max3_f32 v{vM}, v{S+4}, v{S+5}, v{S+6}")
    A(f"v_max_f32 v{vM}, v{vM}, v{S+7}")
    A(f"v_cvt_pk_bf16_f32 v{vM}, v{vM}, v{vM}")
    A(f"v_and_b32 v{vM}, 0xffff0000, v{vM}")
    A(f"v_mul_f32 v{vM}, s{sL2E}, v{vM}")
    A(f"s_mov_b32 s{sA}, 4")
    A("L_pwin:")
    for i in range(4):
        unpack(S + 2 * i, SV + i)
    for i in range(8):
        A(f"v_fma_f32 v{S+i}, v{S+i}, s{sL2E}, -v{vM}")
    for i in range(8):
        A(f"v_exp_f32 v{S+i}, v{S+i}")
    for i in range(12):
        A(f"v_mov_b32 v{SV+i}, v{SV+4+i}")
    A("s_waitcnt lgkmcnt(0)")
    for i in range(4):
        A(f"v_cvt_pk_bf16_f32 v{KF+i}, v{S+2*i}, v{S+2*i+1}")
    A(f"ds_write_b128 v{vPW}, v[{KF}:{KF+3}]")
    for i in range(8):
        A(f"v_add_f32 v{vL}, v{vL}, v{S+i}")
    A(f"v_add_u32 v{vPW}, 0x1000, v{vPW}")
    A(f"s_sub_u32 s{sA}, s{sA}, 1")
    A(f"s_cmp_lg_u32 s{sA}, 0")
    A("s_cbranch_scc1 L_pwin")
    allreduce([vL], "v_add_f32", [vT], steps=("r4", "r8", "p16", "p32"))
    A("s_mov_b64 exec, 15")
    A(f"ds_write_b32 v5, v{vL} offset:{L_L - L_FLAG}")
    A("s_waitcnt vmcnt(0)")
    lds_set(VDN, F_PRDY, 159)
    lds_wait4(F_PRDY, 1, S, [f"ds_read_b128 v[{S+4}:{S+7}], v4 offset:{L_L - L_FLAG}"])
    A(f"v_add_f32 v{S+4}, v{S+4}, v{S+5}")
    A(f"v_add_f32 v{S+6}, v{S+6}, v{S+7}")
    A(f"v_mov_b32 v{S}, v{vM}")
    A(f"v_mov_b32 v{S+1}, s{sTag}")
    A(f"v_add_f32 v{S+2}, v{S+4}, v{S+6}")
    A(f"v_mov_b32 v{S+3}, s{sTag}")
    A(f"s_lshl_b64 exec, 1, s{sC}")
    store_by(sLoc, [f"buffer_store_dwordx4 v[{S}:{S+3}], v11, s[{SWS}:{SWS+3}], s73 offen"])
    A("s_mov_b64 exec, -1")
    A(f"s_mov_b32 s{sTg}, 64")
    stamp(7)
    def v_reads(g):
        return [f"ds_read_b64_tr_b16 v[{VF+4*tt+2*h}:{VF+4*tt+2*h+1}], v{AV+tt} offset:{g*8192 + h*4096}" for tt in range(2) for h in range(2)]

    def v_mfma(tt):
        A(f"v_mfma_f32_16x16x32_bf16 v[{O+4*tt}:{O+4*tt+3}], v[{VF+4*tt}:{VF+4*tt+3}], v[{PF}:{PF+3}], v[{O+4*tt}:{O+4*tt+3}]")

    A("L_vwin:")
    for g in range(4):
        A(f"ds_read_b128 v[{PF}:{PF+3}], v{vPR} offset:{g*256}")
        A(f"s_add_u32 s{sTg}, s{sTg}, 1")
        if g == 3:
            A(f"s_cmp_eq_u32 s{sTg}, 128")
            A("s_cbranch_scc1 L_vlast")
        wait_landed(f"s{sTg}")
        for r in v_reads(g):
            A(r)
        A(f"v_mov_b32 v{vT2}, s{sTg}")
        for tt in range(2):
            A(f"s_waitcnt lgkmcnt({2 if tt == 0 else 0})")
            v_mfma(tt)
        lds_set(VDN, F_DONE, vT2)
    for tt in range(2):
        A(f"v_add_u32 v{AV+tt}, 0x8000, v{AV+tt}")
        A(f"v_and_b32 v{AV+tt}, 0x1ffff, v{AV+tt}")
    A(f"v_add_u32 v{vPR}, 0x400, v{vPR}")
    A("s_branch L_vwin")
    A(".p2align 6")
    A("L_vlast:")
    if pads:
        A("s_cbranch_execz L_cpad")
    if spec:
        A("L_vl2:")
        A(f"ds_read_b32 v{vT}, v8 offset:{F_LANDED}")
        for r in v_reads(3):
            A(r)
        spin_guard()
        A("s_waitcnt lgkmcnt(4)")
        A(f"v_cmp_gt_i32 vcc, {128 + LB}, v{vT}")
        A("s_cbranch_vccnz L_vl2")
    else:
        wait_landed(128)
        for r in v_reads(3):
            A(r)
    for tt in range(2):
        A(f"s_waitcnt lgkmcnt({2 if tt == 0 else 0})")
        v_mfma(tt)
    A(f"s_cmp_eq_u32 s{sLoc}, 2")
    A("s_mov_b32 s86, 0x00ff00ff")
    A("s_mov_b32 s87, s86")
    nop(5)
    for i in range(4):
        A(f"v_mov_b32_dpp v{O+i}, v{O+4+i} row_shr:4 row_mask:0xf bank_mask:0x2")
    A("s_mov_b64 exec, s[86:87]")
    A("s_cbranch_scc0 L_o_far")
    A(f"buffer_store_dwordx4 v[{O}:{O+3}], v160, s[{SWS}:{SWS+3}], s68 offen")
    A("L_o_pub:")
    if opre == 3:
        A(f"v_mov_b32 v{vT2}, 128")
        lds_set(VDN, F_DONE, vT2)
    stamp(4)
    if early:
        A(f"s_cmp_lg_u32 s{sC}, 0")
        A("s_cbranch_scc1 L_o_end")
        A("s_mov_b64 exec, 1")
        A(f"buffer_store_dword v164, v11, s[{SWS}:{SWS+3}], s58 offen")
        A("s_mov_b64 exec, 0xff")
        A(f"buffer_load_dwordx4 v[{S}:{S+3}], v10, s[{SWS}:{SWS+3}], s53 offen sc1")
        A(f"s_lshl_b32 s{sA}, s{S_KVH}, 7")
        A(f"s_add_u32 s{sA}, s{sA}, s59")
        A("s_waitcnt vmcnt(0)")
        A(f"v_min3_u32 v{vT}, v{S}, v{S+1}, v{S+2}")
        A(f"v_max3_u32 v{vT2}, v{S}, v{S+1}, v{S+2}")
        A(f"v_min_u32 v{vT}, v{vT}, v{S+3}")
        A(f"v_max_u32 v{vT2}, v{vT2}, v{S+3}")
        A(f"v_cmp_ne_u32 vcc, v164, v{vT}")
        A(f"v_cmp_ne_u32 s[86:87], v164, v{vT2}")
        A("s_or_b64 vcc, vcc, s[86:87]")
        A("s_cbranch_scc1 L_o_end")
        A("s_mov_b64 exec, 1")
        A(f"buffer_store_dword v164, v11, s[{SWS}:{SWS+3}], s{sA} offen sc1")
        stamp(12)
    A("L_o_end:")
    A(f"s_cmp_lg_u32 s{S_KVH}, {FX}")
    A("s_cbranch_scc1 L_c_end")
    A("s_mov_b64 exec, -1")
    lds_wait4(F_ORDY, 1, S)
    stamp(9)
    YG = 32
    A("s_mov_b64 s[86:87], -1")
    if not ind:
        A("s_branch L_ypoll")
    A("v_not_b32 v13, v164")
    A("L_ipoll:")
    if not yall:
        A("s_mov_b64 exec, s[86:87]")
    A(f"buffer_load_dword v13, v163, s[{SWS}:{SWS+3}], s59 offen sc1")
    spin_guard()
    A(f"s_waitcnt vmcnt({icap})")
    if yall:
        A("v_cmp_ne_u32 vcc, v164, v13")
        A("s_cbranch_vccnz L_ipoll")
        stamp(13)
        A("L_ypoll:")
    else:
        A("v_cmp_eq_u32 vcc, v164, v13")
        A("s_and_b64 exec, exec, vcc")
        A("s_cbranch_execz L_ipoll")
    A(f"buffer_load_dwordx4 v[{YG}:{YG+3}], v{vYA}, s[{SWS}:{SWS+3}], s52 offen sc1")
    spin_guard()
    A("s_waitcnt vmcnt(0)")
    for k in range(4):
        A(f"v_xor_b32 v{YG+k}, s{54+k}, v{YG+k}")
    A(f"v_or3_b32 v{vT}, v{YG}, v{YG+1}, v{YG+2}")
    A(f"v_or_b32 v{vT}, v{vT}, v{YG+3}")
    A(f"v_and_b32 v{vT}, 0xff, v{vT}")
    if yall:
        A(f"v_cmp_ne_u32 vcc, 0, v{vT}")
        A("s_and_b64 exec, exec, vcc")
        A("s_cbranch_scc1 L_ypoll")
    else:
        A(f"v_cmp_eq_u32 vcc, 0, v{vT}")
        A("s_andn2_b64 s[86:87], s[86:87], vcc")
        A("s_cbranch_scc1 L_ipoll")
    A("s_mov_b64 exec, -1")
    stamp(10)
    A(f"v_add_f32_dpp v{YG+4}, v{YG}, v{YG} row_ror:12 row_mask:0xf bank_mask:0x5")
    A(f"v_add_f32_dpp v{YG+5}, v{YG+2}, v{YG+2} row_ror:12 row_mask:0xf bank_mask:0x5")
    nop(1)
    A(f"v_add_f32_dpp v{YG+4}, v{YG+1}, v{YG+1} row_ror:4 row_mask:0xf bank_mask:0xa")
    A(f"v_add_f32_dpp v{YG+5}, v{YG+3}, v{YG+3} row_ror:4 row_mask:0xf bank_mask:0xa")
    nop(1)
    A(f"v_add_f32_dpp v{YG+6}, v{YG+4}, v{YG+4} row_ror:8 row_mask:0xf bank_mask:0x3")
    nop(2)
    A(f"v_add_f32_dpp v{YG+6}, v{YG+5}, v{YG+5} row_ror:8 row_mask:0xf bank_mask:0xc")
    allreduce([YG + 6], "v_add_f32", [YG + 7], steps=("x2", "p16", "p32"))
    A(f"v_add_f32 v{YG+6}, v{YG+6}, v162")
    A("s_mov_b64 exec, 0x3333")
    A(f"v_cvt_pk_bf16_f32 v{YG+6}, v{YG+6}, v{YG+6}")
    A(f"buffer_store_short v{YG+6}, v161, s[{SOUT}:{SOUT+3}], s85 offen")
    A("s_cmp_lg_u32 s85, 0")
    A("s_cbranch_scc1 L_c_st")
    A("s_mov_b64 exec, 1")
    A(f"buffer_store_dword v164, v11, s[{SWS}:{SWS+3}], 0 offen")
    A("L_c_st:")
    stamp(11)
    A("L_c_end:")
    stamp_flush()
    if diag is not None:
        A("s_sub_u32 s88, s88, s90")
        A("s_add_u32 s88, s88, 10000")
        A("L_diag:")
        A("s_memrealtime s[86:87]")
        A("s_waitcnt lgkmcnt(0)")
        A("s_sub_u32 s86, s86, s90")
        A("s_cmp_lt_u32 s86, s88")
        A("s_cbranch_scc1 L_diag")
    A("s_endpgm")
    A("L_o_far:")
    A(f"buffer_store_dwordx4 v[{O}:{O+3}], v160, s[{SWS}:{SWS+3}], s68 offen sc1")
    A("s_branch L_o_pub")

    role[0] = "tail"
    SWO, SD = 40, 44
    sTw, sA, sB2, sTag, sWo, sDo, sO = 60, 65, 66, 67, 63, 64, 61
    GA, GB, WF, DF, HB, Y, R, W = 64, 80, 96, 112, 120, 128, 132, 136
    A("L_tail:")
    if pads:
        A("s_mov_b64 exec, 0")
        A("s_branch L_tend")
        A("L_tpad:")
        A("s_mov_b64 exec, -1")
    A(f"s_sub_u32 s{sTw}, s3, 6")
    srd(SWO, P_WO, 0 if nowt else 4096 * 512 * 2)
    srd(SD, P_D, 0 if nowt else 1792 * 512 * 2)
    A("v_lshl_or_b32 v4, v12, 10, v13")
    for i in range(1, 4):
        A(f"v_add_u32 v{4+i}, {i*(8192-1024)}, v4")
    A(f"s_lshr_b32 s{sO}, s{S_W}, 3")
    A(f"s_lshl_b32 s{sDo}, s{sO}, 2")
    A(f"s_add_u32 s{sDo}, s{sDo}, s{sTw}")
    A(f"s_lshl_b32 s{sWo}, s{sDo}, 15")
    A(f"s_lshl_b32 s{sDo}, s{sDo}, 14")
    A(f"s_and_b32 s{sB2}, s{S_J}, 7")
    A(f"s_lshl_b32 s{sA}, s{sB2}, 7")
    A(f"s_add_u32 s{sWo}, s{sWo}, s{sA}")
    A(f"s_add_u32 s{sDo}, s{sDo}, s{sA}")
    A(f"s_cmp_lt_u32 s{S_KVH}, 7")
    A(f"s_cselect_b32 s{sDo}, s{sDo}, 0")
    A(f"s_cselect_b32 s{SD+2}, s{SD+2}, 0")
    A(f"s_lshl_b32 s83, s{sTw}, 12")
    A(f"s_lshl_b32 s84, s{sTw}, 11")
    A(f"s_add_u32 m0, s84, {hex(L_DN)}")
    A(f"s_lshl_b32 s69, s{sO}, 9")
    if tdelay:
        lds_wait(F_LANDED, tdelay, 20, sA)
    for i in range(2):
        A(f"buffer_load_dwordx4 v{4+i}, s[{SD}:{SD+3}], s{sDo} offen offset:{i*1024} {pW} lds")
    if wearly:
        A("s_add_u32 m0, s83, 0x18000")
        nop(1)
        for i in range(4):
            A(f"buffer_load_dwordx4 v{4+i}, s[{SWO}:{SWO+3}], s{sWo} offen offset:{i*1024} {pW} lds")
    A(f"s_add_u32 s69, s69, {hex(W_ML)}")
    A("v_lshlrev_b32 v14, 7, v0")
    l1, l2, l3 = lab("tt"), lab("tt"), lab("tt")
    A(f"s_cmp_ge_u32 s{sTw}, 2")
    A(f"s_cbranch_scc1 {l1}")
    if touch:
        A(f"s_lshl_b32 s{sA}, s{S_W}, 11")
        A(f"s_lshr_b32 s{sA}, s{sA}, s{sTw}")
        A(f"s_mul_i32 s70, s{sTw}, {hex(W_F - W_O)}")
        A(f"s_add_u32 s{sA}, s{sA}, s70")
        A(f"s_add_u32 s{sA}, s{sA}, {hex(W_O)}")
        A(f"s_lshl_b32 s70, s{sTw}, 3")
        A("s_lshr_b64 exec, 0xffff, s70")
        A(f"buffer_load_dword v17, v14, s[{SWS}:{SWS+3}], s{sA} offen sc1")
    A(f"s_branch {l3}")
    A(f"{l1}:")
    A(f"s_cmp_eq_u32 s{sTw}, 2")
    A(f"s_cbranch_scc0 {l2}")
    A("s_mov_b64 exec, 15")
    A(f"buffer_load_dword v17, v14, s[{SWS}:{SWS+3}], s69 offen sc1")
    A(f"s_lshl_b32 s{sA}, s{S_KVH}, 7")
    A(f"s_add_u32 s{sA}, s{sA}, {hex(W_MARK)}")
    A("s_mov_b64 exec, 1")
    A(f"buffer_load_dword v18, v11, s[{SWS}:{SWS+3}], s{sA} offen sc1")
    A(f"s_branch {l3}")
    A(f"{l2}:")
    A("s_mov_b64 exec, 1")
    A(f"buffer_load_dword v17, v11, s[{SWO}:{SWO+3}], s{sWo} offen {pW}")
    if kvtouch:
        srd(52, P_K, 0x8000000)
        srd(56, P_V, 0x8000000)
        A(f"s_lshl_b32 s{sA}, s{S_B}, 3")
        A(f"s_add_u32 s{sA}, s{sA}, s{S_KVH}")
        A(f"s_lshl_b32 s{sA}, s{sA}, 4")
        A(f"s_add_u32 s{sA}, s{sA}, s{S_S}")
        A(f"s_lshl_b32 s{sA}, s{sA}, 19")
        A(f"buffer_load_dword v18, v11, s[52:55], s{sA} offen nt")
        A(f"buffer_load_dword v19, v11, s[56:59], s{sA} offen nt")
    A(f"{l3}:")
    A("s_mov_b64 exec, -1")
    A("v_lshrrev_b32 v144, 2, v0")
    A("v_lshlrev_b32 v144, 7, v144")
    A("v_bfe_u32 v14, v0, 3, 2")
    A(f"v_xor_b32 v14, s{sTw}, v14")
    A("v_lshl_or_b32 v144, v14, 5, v144")
    A("v_and_b32 v2, 3, v0")
    A("v_lshl_or_b32 v144, v2, 3, v144")
    A(f"v_add_u32 v145, {hex(L_DN)}, v144")
    A("v_bfe_u32 v15, v0, 3, 1")
    A("v_lshlrev_b32 v161, 6, v12")
    A("v_lshrrev_b32 v14, 5, v0")
    A("v_bfe_u32 v3, v0, 3, 2")
    A("v_and_b32 v162, 7, v0")
    A("v_lshlrev_b32 v162, 4, v162")
    A("v_lshl_or_b32 v162, v3, 11, v162")
    A("v_lshl_or_b32 v162, v14, 15, v162")
    A(f"s_lshl_b32 s70, s{S_KVH}, 7")
    A(f"s_lshr_b32 s{sA}, s{S_J}, 3")
    A(f"s_add_u32 s70, s70, s{sA}")
    A("s_lshl_b32 s70, s70, 2")
    A(f"s_add_u32 s70, s70, s{sTw}")
    A("s_lshl_b32 s70, s70, 7")
    A(f"s_add_u32 s70, s70, {hex(W_O)}")
    for i in range(1, 4):
        A(f"s_add_u32 s{70+i}, s70, {i*8192}")
    A("v_lshlrev_b32 v146, 6, v15")
    A("v_lshl_or_b32 v146, v1, 4, v146")
    A(f"v_add_u32 v146, {hex(L_OX)}, v146")
    A("v_lshlrev_b32 v147, 6, v14")
    A("v_lshl_or_b32 v147, v2, 4, v147")
    A("v_bfe_u32 v14, v0, 2, 1")
    A("v_lshl_or_b32 v147, v14, 3, v147")
    A("v_bfe_u32 v14, v0, 4, 1")
    A("v_lshl_or_b32 v147, v14, 2, v147")
    A(f"s_lshl_b32 s{sA}, s{sTw}, 7")
    A(f"v_add_u32 v147, s{sA}, v147")
    A(f"v_add_u32 v147, {hex(L_OX)}, v147")
    A("v_and_b32 v30, 7, v0")
    A("v_lshlrev_b32 v30, 10, v30")
    A("v_lshl_or_b32 v30, v15, 8, v30")
    A("v_lshl_or_b32 v30, v1, 4, v30")
    A(f"s_lshl_b32 s75, s{sO}, 7")
    A(f"s_add_u32 s75, s75, s{sTw}")
    A("s_lshl_b32 s75, s75, 6")
    A(f"s_add_u32 s75, s75, {hex(W_F)}")
    A("v_lshlrev_b32 v163, 16, v15")
    A("v_lshl_or_b32 v163, v1, 4, v163")
    A(f"s_lshl_b32 s74, s{S_W}, 2")
    A(f"s_add_u32 s74, s74, s{sTw}")
    A("s_lshl_b32 s74, s74, 6")
    A(f"s_add_u32 s74, s74, {hex(W_Y)}")
    A("v_lshlrev_b32 v148, 3, v0")
    A(f"v_add_u32 v148, {hex(L_XN)}, v148")
    A(f"s_lshl_b32 s{sA}, s{sTw}, 9")
    A(f"v_add_u32 v149, s{sA}, v148")
    A(f"s_lshl_b32 s{sA}, s{sTw}, 2")
    A(f"v_add_u32 v9, s{sA}, v8")
    A("v_mov_b32 v23, 1")
    A("s_waitcnt vmcnt(0)")
    make_tag(sTag, 164)
    A("s_mov_b32 s85, 0xffffff00")
    A(f"v_mov_b32 v164, s{sTag}")
    A(f"s_lshl_b32 s78, s{S_KVH}, 7")
    A(f"s_add_u32 s78, s78, {hex(W_IND)}")
    for i in range(4):
        A(f"v_bfe_u32 v{150+i}, s{sTag}, {8*i}, 8")
    if wearly:
        lds_set(9, F_WRDY, 23)
        A("v_add_u32 v144, 0x18000, v144")
        lds_wait4(F_WRDY, 1, 16, [f"ds_read_b64_tr_b16 v[{WF+2*i}:{WF+2*i+1}], v144 offset:{2048*i}" for i in range(8)])
        A("v_mov_b32 v20, 2")
        lds_set(9, F_WRDY, 20)
    stamp(1)
    A(f"s_lshl_b32 s{sB2}, s{sTw}, 2")
    A(f"s_add_u32 s{sB2}, s{sB2}, {GATH_AT}")
    lds_wait(F_DONE, f"s{sB2}", 20, sA)
    A("v_mov_b32 v40, 0")
    A("v_mov_b32 v41, 0")
    A(f"s_cmp_ge_u32 s{S_KVH}, {0 if noffn else 7}")
    A("s_cbranch_scc1 L_noffn2")
    for i in range(4):
        A(f"s_bfe_u32 s{86+i}, s{sTag}, {hex(0x80000 + 8*i)}")
    lq = lab("fpoll")
    A(f"{lq}:")
    for i in range(2):
        A(f"buffer_load_dwordx4 v[{44+4*i}:{47+4*i}], v30, s[{SWS}:{SWS+3}], s75 offen offset:{512*i} sc1")
    spin_guard()
    A("s_waitcnt vmcnt(0)")
    byte_check(44, 8, 86, 60)
    A(f"s_cbranch_vccnz {lq}")
    allreduce([44 + i for i in range(8)], "v_add_f32", [], steps=("x1", "x2", "hm"))
    for i in range(4):
        A(f"v_cvt_pk_bf16_f32 v40, v{44+2*i}, v{45+2*i}")
        unpack(32 + 2 * i, 40)
    A("s_mov_b32 s80, 0x3d372713")
    A("s_mov_b32 s81, 0xc0135761")
    for i in range(4):
        A(f"v_mul_f32 v{44+i}, v{32+i}, v{32+i}")
        A(f"v_fma_f32 v{44+i}, v{44+i}, s80, 1.0")
        A(f"v_mul_f32 v{44+i}, v{44+i}, v{32+i}")
        A(f"v_mul_f32 v{44+i}, s81, v{44+i}")
        A(f"v_exp_f32 v{44+i}, v{44+i}")
    nop(1)
    for i in range(4):
        A(f"v_add_f32 v{44+i}, 1.0, v{44+i}")
    for i in range(4):
        A(f"v_rcp_f32 v{44+i}, v{44+i}")
    nop(1)
    for i in range(4):
        A(f"v_mul_f32 v{32+i}, v{32+i}, v{44+i}")
    for r in (32, 34):
        A(f"v_cvt_pk_bf16_f32 v40, v{r}, v{r+1}")
        unpack(r, 40)
    for i in range(4):
        A(f"v_mul_f32 v{32+i}, v{32+i}, v{36+i}")
    A("v_cvt_pk_bf16_f32 v40, v32, v33")
    A("v_cvt_pk_bf16_f32 v41, v34, v35")
    A("L_noffn2:")
    A("ds_write_b64 v149, v[40:41]")
    lds_set(9, F_HRDY, 23)
    lds_wait4(F_HRDY, 1, 28, [f"ds_read_b64 v[{HB+2*i}:{HB+2*i+1}], v148 offset:{512*i}" for i in range(4)] +
              [f"ds_read_b64_tr_b16 v[{DF+2*i}:{DF+2*i+1}], v145 offset:{2048*i}" for i in range(4)])
    A(f"v_mfma_f32_16x16x32_bf16 v[{Y}:{Y+3}], v[{DF}:{DF+3}], v[{HB}:{HB+3}], 0")
    A(f"v_mfma_f32_16x16x32_bf16 v[{Y}:{Y+3}], v[{DF+4}:{DF+7}], v[{HB+4}:{HB+7}], v[{Y}:{Y+3}]")
    stamp(2)
    lds_wait(F_DONE, ML_AT, 20, sA)
    lds_wait(F_CTL, 1, 20, 79)
    A("s_mov_b32 s62, s79")
    lq = lab("mlpoll")
    A(f"{lq}:")
    for i in range(4):
        A(f"buffer_load_dwordx4 v[{44+4*i}:{47+4*i}], v161, s[{SWS}:{SWS+3}], s69 offen offset:{16*i} sc1")
    spin_guard()
    A("s_waitcnt vmcnt(0)")
    tag_check(44, 8, sTag, 60, 61)
    A(f"s_cbranch_vccnz {lq}")
    A("v_max3_f32 v26, v44, v48, v52")
    A("v_max_f32 v26, v26, v56")
    allreduce([26], "v_max_f32", [27], steps=("r8", "p16"))
    for i in range(4):
        A(f"v_sub_f32 v{W+i}, v{44+4*i}, v26")
    for i in range(4):
        A(f"v_exp_f32 v{W+i}, v{W+i}")
    A(f"v_mul_f32 v27, v{W}, v46")
    for i in range(1, 4):
        A(f"v_fmac_f32 v27, v{W+i}, v{46+4*i}")
    allreduce([27], "v_add_f32", [26], steps=("r8", "p16"))
    A("v_rcp_f32 v27, v27")
    A(f"s_add_u32 s76, s{S_J}, s{sTw}")
    if early:
        A("s_lshr_b32 s79, s79, 1")
        A("s_add_u32 s76, s76, s79")
    A("s_cmp_eq_u32 s76, 0")
    A("s_cselect_b64 s[76:77], 1, 0")
    for i in range(4):
        A(f"v_mul_f32 v{W+i}, v{W+i}, v27")
    A("s_mov_b32 m0, s83")
    A("s_mov_b32 s80, 0x00ff00ff"); A("s_mov_b32 s81, s80")
    A("s_mov_b32 s82, 0x01010101"); A("s_mov_b32 s83, s82")
    if retouch:
        lds_wait(F_DONE, retouch, 20, sA)
        A(f"s_lshl_b32 s{sA}, s{S_W}, 2")
        A(f"s_add_u32 s{sA}, s{sA}, s{sTw}")
        A(f"s_lshl_b32 s{sA}, s{sA}, 9")
        A(f"s_add_u32 s{sA}, s{sA}, {hex(W_O)}")
        A("v_lshlrev_b32 v14, 7, v0")
        A("s_mov_b64 exec, 15")
        A(f"buffer_load_dword v17, v14, s[{SWS}:{SWS+3}], s{sA} offen sc1")
        A("s_mov_b64 exec, -1")
    if gate:
        A("v_lshlrev_b32 v155, 4, v12")
        A(f"s_lshl_b32 s68, s{S_KVH}, 7")
        A(f"s_add_u32 s68, s68, {hex(W_PROG)}")
        A("s_cmp_eq_u32 s62, 2")
        A("s_cselect_b32 s62, 200, 0")
    if slp:
        lds_wait(F_DONE, 120, 20, sA)
    stamp(5)
    A("s_branch L_tend")
    A(".p2align 6")
    A("L_tend:")
    if pads:
        A("s_cbranch_execz L_tpad")
    if TRIG == 0:
        lds_wait4(F_DONE, 114, 28)
        lds_wait(F_ISS, 1, 28, sA)
    elif TRIG < 128:
        lds_wait4(F_DONE, TRIG, 28)
    else:
        lds_wait(F_LANDED, 128 + LB, 28, sA)
    A("s_setprio 2")
    stamp(3)
    for i in range(0 if wearly else 4):
        A(f"buffer_load_dwordx4 v{4+i}, s[{SWO}:{SWO+3}], s{sWo} offen offset:{i*1024} {pW} lds")

    def o_load(i):
        A(f"buffer_load_dwordx4 v[{GA+4*i}:{GA+4*i+3}], v162, s[{SWS}:{SWS+3}], s{70+i} offen sc1")

    def m_load():
        A(f"buffer_load_dwordx4 v[156:159], v155, s[{SWS}:{SWS+3}], s68 offen sc1")

    if gate:
        m_load()
        for i in range(16):
            A(f"v_mov_b32 v{GA+i}, -1")
        A("s_waitcnt vmcnt(1)")
    else:
        if opre == 2:
            lds_wait(F_LANDED, 128 + LB, 28, sA)
        elif opre == 3:
            lds_wait4(F_DONE, 128, 28)
        elif opre in (4, 5, 6):
            A(f"s_waitcnt vmcnt({opre - 3})")
        if not opre:
            A("s_waitcnt vmcnt(0)")
        for i in range(4):
            o_load(i)
        if opre:
            A("s_waitcnt vmcnt(4)")
    if not wearly:
        lds_set(9, F_WRDY, 23)
    stamp(4)
    wfrag = [f"ds_read_b64_tr_b16 v[{WF+2*i}:{WF+2*i+1}], v144 offset:{2048*i}" for i in range(8)]
    if gate:
        A("s_waitcnt vmcnt(0)")
        for i in range(4):
            A(f"v_cmp_le_u32 vcc, s62, v{156+i}")
            A("s_mov_b64 exec, vcc")
            o_load(i)
            A("s_mov_b64 exec, -1")
        m_load()
    if not wearly:
        lds_wait4(F_WRDY, 1, 28, wfrag)
    stamp(6)
    if ocap:
        A("s_waitcnt vmcnt(0)")
    A("s_branch L_ob")
    A("L_oa:")
    if gate:
        A("s_waitcnt vmcnt(0)")
        for i in range(4):
            A(f"v_cmp_le_u32 s[{52+2*i}:{53+2*i}], s62, v{156+i}")
    for i in range(4):
        if gate:
            A(f"s_and_b64 exec, s[{86+2*i}:{87+2*i}], s[{52+2*i}:{53+2*i}]")
        else:
            A(f"s_mov_b64 exec, s[{86+2*i}:{87+2*i}]")
        o_load(i)
    A("s_mov_b64 exec, -1")
    if gate:
        m_load()
    spin_guard()
    A("L_ob:")
    for i in range(4):
        if ocap:
            if i == 0:
                A(f"s_waitcnt vmcnt({ocap})")
        elif cw:
            A(f"s_waitcnt vmcnt({3-i+(1 if gate else 0)})")
        elif i == 0:
            A(f"s_waitcnt vmcnt({1 if gate else 0})")
        A(f"v_max3_u32 v20, v{GA+4*i}, v{GA+4*i+1}, v{GA+4*i+2}")
        A(f"v_max_u32 v20, v20, v{GA+4*i+3}")
        A(f"v_cmp_eq_u32 s[{86+2*i}:{87+2*i}], -1, v20")
    A("s_or_b64 s[94:95], s[86:87], s[88:89]")
    A("s_or_b64 s[94:95], s[94:95], s[90:91]")
    A("s_or_b64 s[94:95], s[94:95], s[92:93]")
    A("s_cbranch_scc1 L_oa")

    def send_ind():
        A("s_mov_b64 exec, s[76:77]")
        A("s_cbranch_execnz L_ind")
        A("L_noind:")
    if indpos == 0:
        send_ind()
        A("s_mov_b64 exec, -1")
    stamp(7)
    for k in range(4):
        A(f"v_mul_f32 v{R+k}, v{GA+k}, v{W}")
    for i in range(1, 4):
        for k in (0, 2, 1, 3):
            A(f"v_fmac_f32 v{R+k}, v{GA+4*i+k}, v{W+i}")
    A(f"v_permlane16_swap_b32 v{R}, v{R+2}")
    nop(1)
    A(f"v_permlane16_swap_b32 v{R+1}, v{R+3}")
    A(f"v_add_f32 v{R}, v{R}, v{R+2}")
    A(f"v_add_f32 v{R+1}, v{R+1}, v{R+3}")
    allreduce([R, R + 1], "v_add_f32", [], steps=("r8",))
    A("s_mov_b64 exec, s[80:81]")
    A(f"v_cvt_pk_bf16_f32 v24, v{R}, v{R+1}")
    A("ds_write_b32 v147, v24")
    lds_set(9, F_ORDY, 23)
    if indpos == 1:
        send_ind()
        A("s_mov_b64 exec, -1")
    lds_wait4(F_ORDY, 1, 28, [f"ds_read_b128 v[{32+4*i}:{35+4*i}], v146 offset:{128*i}" for i in range(4)])
    for i in range(4):
        A(f"v_mfma_f32_16x16x32_bf16 v[{Y}:{Y+3}], v[{WF+4*i}:{WF+4*i+3}], v[{32+4*i}:{35+4*i}], v[{Y}:{Y+3}]")
    if indpos == 2:
        nop(5)
        send_ind()
    else:
        nop(7)
    A("s_mov_b64 exec, s[82:83]")
    for i in range(4):
        A(f"v_and_or_b32 v{Y+i}, v{Y+i}, s85, v{150+i}")
    A(f"buffer_store_dwordx4 v[{Y}:{Y+3}], v163, s[{SWS}:{SWS+3}], s74 offen sc1")
    if indpos == 3:
        send_ind()
    if wb in (1, 2):
        A(f"s_lshl_b32 s{sA}, s{sTw}, 8")
        A(f"s_add_u32 s{sA}, s{sA}, s{S_W}")
        A(f"s_cmp_lg_u32 s{sA}, {32*FX}")
        A("s_cbranch_scc1 L_nowb")
        if wb == 2:
            A("s_waitcnt vmcnt(0)")
        A("buffer_wbl2 sc1")
        A("s_waitcnt vmcnt(0)")
        A("L_nowb:")
    stamp(8)
    stamp_flush()
    A("s_endpgm")
    A("L_ind:")
    A(f"buffer_store_dword v164, v11, s[{SWS}:{SWS+3}], s78 offen sc1")
    if wb == 3:
        A("buffer_wbl2 sc1")
    A("s_branch L_noind")
    A("L_abort:")
    A("s_endpgm")
    sT = 66
    loader_rest()
    A("L_end:")
    nv = 168
    A('.section .rodata,"a"')
    A(".p2align 6")
    A(f".amdhsa_kernel {KNAME}")
    A(f"  .amdhsa_next_free_vgpr {nv}")
    A("  .amdhsa_next_free_sgpr 102")
    A(f"  .amdhsa_accum_offset {nv}")
    A("  .amdhsa_group_segment_fixed_size 0")
    A("  .amdhsa_kernarg_size 96")
    A("  .amdhsa_user_sgpr_count 2")
    A("  .amdhsa_user_sgpr_kernarg_segment_ptr 1")
    A("  .amdhsa_system_sgpr_workgroup_id_x 1")
    A(".end_amdhsa_kernel")
    out = []
    for ln in L:
        if ln.startswith((";", ".", " ")) or ln.endswith(":") or "\n" in ln:
            out.append(ln)
        else:
            out.append("    " + ln)
    return "\n".join(out) + "\n"


if __name__ == "__main__":
    kw = eval("dict(" + (sys.argv[2] if len(sys.argv) > 2 else "") + ")")
    open(sys.argv[1], "w").write(gen(**kw))
FINAL_WAVE = 2
```

```python
import sys
from gen_kernel import HEADER, KNAME

L_TILE = 0x20000
L_XN = 0x24000
L_Q = 0x24800
L_H = 0x24C00
L_FLAG = 0x24E00
F_LANDED, F_QPUB, F_HRDY, F_YDONE, F_DONE, F_QRDY, F_MRDY, F_PRDY, F_TILE = 0, 4, 8, 12, 16, 32, 48, 64, 80
F_BREQ = 84
L_M = L_FLAG + 128
L_L = L_FLAG + 192
LDS_BYTES = 0x24F00
W_EPOCH = 0x0
W_ML = 0x4000
W_O = 0x10000
W_Y = 0x90000
W_Q = 0x110000
W_QB = 0x150000
W_F = 0x190000
W_STAMP = 0x200000
WS_BYTES = 0x300000

LOG2E = 0x3FB8AA3B
SCALE = 0x3DB504F3
SPIN_MAX = 1 << 22


def gen(NL=20, stamps=False, AUXNL=2, pK="nt", pW="nt", diag=None, TRIG=124, codepf=True, findry=True,
        fast=True, QB_EVERY=8, FFN_AT=20, GATH_AT=52, ML_AT=88, noffn=False, taildry=True, nowt=False, yearly=False, skew=None, nogu=False, pF=None):
    L = []
    A = L.append
    uid = [0]
    role = ["pro"]

    def lab(p):
        uid[0] += 1
        return f"L_{p}_{uid[0]}"

    def nop(n):
        while n > 0:
            k = min(n, 16)
            A(f"s_nop {k-1}")
            n -= k

    def srd(r, p, nbytes):
        A(f"s_mov_b32 s{r}, s{p}")
        A(f"s_mov_b32 s{r+1}, s{p+1}")
        A(f"s_mov_b32 s{r+2}, {hex(nbytes)}")
        A(f"s_mov_b32 s{r+3}, 0x20000")

    VST = 200

    def stamp(i):
        if diag is not None and role[0] == "aux" and diag == i:
            A("s_memrealtime s[88:89]")
            A("s_waitcnt lgkmcnt(0)")
        if not stamps:
            return
        A("s_memrealtime s[98:99]")
        A("s_waitcnt lgkmcnt(0)")
        A(f"v_writelane_b32 v{VST}, s98, {i}")

    def stamp_flush():
        if not stamps:
            return
        A("s_mov_b64 exec, -1")
        A(f"s_sub_u32 s97, {hex(SPIN_MAX)}, s15")
        A(f"v_writelane_b32 v{VST}, s97, 16")
        srd(92, P_WS, WS_BYTES)
        A("s_lshl_b32 s97, s2, 3")
        A("s_add_u32 s97, s97, s3")
        A("s_lshl_b32 s97, s97, 8")
        A(f"s_add_u32 s97, s97, {hex(W_STAMP)}")
        A(f"v_lshlrev_b32 v{VST+1}, 2, v0")
        A(f"buffer_store_dword v{VST}, v{VST+1}, s[92:95], s97 offen")
        A("s_waitcnt vmcnt(0)")

    def spin_guard():
        A("s_sub_u32 s15, s15, 1")
        A("s_cbranch_scc1 L_abort")

    def lds_wait(off, thr, vt, st):
        l = lab("w")
        A(f"{l}:")
        A(f"ds_read_b32 v{vt}, v8 offset:{off}")
        spin_guard()
        A("s_waitcnt lgkmcnt(0)")
        A(f"v_readfirstlane_b32 s{st}, v{vt}")
        A(f"s_cmp_ge_i32 s{st}, {thr}")
        A(f"s_cbranch_scc0 {l}")

    def lds_wait4(off, thr, vq, extra=()):
        l = lab("w4")
        A(f"{l}:")
        A(f"ds_read_b128 v[{vq}:{vq+3}], v8 offset:{off}")
        for e in extra:
            A(e)
        spin_guard()
        A(f"s_waitcnt lgkmcnt({len(extra)})")
        A(f"v_min3_i32 v{vq}, v{vq}, v{vq+1}, v{vq+2}")
        A(f"v_min_i32 v{vq}, v{vq}, v{vq+3}")
        A(f"v_cmp_gt_i32 vcc, {thr}, v{vq}")
        if extra:
            A("s_waitcnt lgkmcnt(0)")
        A(f"s_cbranch_vccnz {l}")

    def lds_set(addr_v, off, val_v):
        A("s_mov_b64 exec, 1")
        A(f"ds_write_b32 v{addr_v}, v{val_v} offset:{off}")
        A("s_mov_b64 exec, -1")

    def allreduce(regs, op, tmps, steps=("x1", "x2", "hm", "m", "p16", "p32")):
        dpp = {"x1": "quad_perm:[1,0,3,2]", "x2": "quad_perm:[2,3,0,1]", "hm": "row_half_mirror", "m": "row_mirror",
               "r4": "row_ror:4", "r8": "row_ror:8"}
        for st in steps:
            if st in dpp:
                nop(max(0, 3 - len(regs)))
                for r in regs:
                    A(f"{op}_dpp v{r}, v{r}, v{r} {dpp[st]} row_mask:0xf bank_mask:0xf")
            else:
                ins = "v_permlane16_swap_b32" if st == "p16" else "v_permlane32_swap_b32"
                for r, t in zip(regs, tmps):
                    A(f"v_mov_b32 v{t}, v{r}")
                nop(max(0, 3 - len(regs)))
                for r, t in zip(regs, tmps):
                    A(f"{ins} v{r}, v{t}")
                nop(1)
                for r, t in zip(regs, tmps):
                    A(f"{op} v{r}, v{r}, v{t}")

    def make_tag(s, v):
        A(f"v_readfirstlane_b32 s{s}, v{v}")
        A(f"s_add_u32 s{s}, s{s}, 0x4d2b7f35")

    def local_tag(dst, tag):
        A(f"s_getreg_b32 s{dst}, hwreg(HW_REG_XCC_ID, 0, 4)")
        A(f"s_mul_i32 s{dst}, s{dst}, 0x10001")
        A(f"s_xor_b32 s{dst}, s{dst}, s{tag}")

    def store_by(sloc, ins):
        l1, l2 = lab("far"), lab("st")
        A(f"s_cmp_eq_u32 s{sloc}, 2")
        A(f"s_cbranch_scc0 {l1}")
        for i in ins:
            A(i)
        A(f"s_branch {l2}")
        A(f"{l1}:")
        for i in ins:
            A(i + " sc1")
        A(f"{l2}:")

    def tag_check(base, n, stag, t1, t2):
        for i in range(n):
            A(f"v_xor_b32 v{base+1+2*i}, s{stag}, v{base+1+2*i}")
        r = [base + 1 + 2 * i for i in range(n)]
        if n == 8:
            A(f"v_or3_b32 v{t1}, v{r[0]}, v{r[1]}, v{r[2]}")
            A(f"v_or3_b32 v{t2}, v{r[3]}, v{r[4]}, v{r[5]}")
            A(f"v_or3_b32 v{t1}, v{t1}, v{r[6]}, v{r[7]}")
            A(f"v_or_b32 v{t1}, v{t1}, v{t2}")
        else:
            A(f"v_or3_b32 v{t1}, v{r[0]}, v{r[1]}, v{r[2]}")
            A(f"v_or_b32 v{t1}, v{t1}, v{r[3]}")
        A(f"v_cmp_ne_u32 vcc, 0, v{t1}")

    def vaddr_T0(dst, t1, t2, t3):
        A(f"v_lshrrev_b32 v{t1}, 2, v0")
        A(f"v_and_b32 v{t2}, 7, v{t1}")
        A(f"v_lshlrev_b32 v{t2}, 1, v{t2}")
        A(f"v_lshrrev_b32 v{t3}, 5, v0")
        A(f"v_or_b32 v{t2}, v{t2}, v{t3}")
        A(f"v_bfe_u32 v{t3}, v0, 1, 1")
        A(f"v_xor_b32 v{t2}, v{t2}, v{t3}")
        A(f"v_lshlrev_b32 v{t2}, 4, v{t2}")
        A(f"v_lshl_or_b32 v{dst}, v{t1}, 8, v{t2}")
        A(f"v_and_b32 v{t3}, 1, v0")
        A(f"v_lshl_or_b32 v{dst}, v{t3}, 3, v{dst}")

    def unpack(dst, src):
        A(f"v_lshlrev_b32 v{dst}, 16, v{src}")
        A(f"v_and_b32 v{dst+1}, 0xffff0000, v{src}")

    P_X, P_K, P_V, P_WQ, P_WO, P_BX, P_G, P_U, P_D, P_OUT, P_DBG, P_WS = range(16, 40, 2)
    S_KVH, S_J, S_B, S_S, S_RB, S_CH, S_W = 4, 5, 6, 7, 8, 9, 10

    A(HEADER)
    A(f"; @launch grid=(256,1,1) block=(512,1,1) lds={LDS_BYTES}")
    A('.amdgcn_target "amdgcn-amd-amdhsa--gfx950"')
    A(".text")
    A(f".globl {KNAME}")
    A(".p2align 8")
    A(f".type {KNAME},@function")
    A(f"{KNAME}:")
    A("s_cmp_ge_u32 s2, 256")
    A("s_cbranch_scc1 L_abort")
    A("s_load_dwordx16 s[16:31], s[0:1], 0")
    A("s_load_dwordx8 s[32:39], s[0:1], 64")
    if stamps:
        A("s_memrealtime s[98:99]")
        A(f"v_mov_b32 v{VST}, 0")
    if diag is not None:
        A("s_memrealtime s[90:91]")
    A(f"s_lshr_b32 s{S_J}, s2, 3")
    if codepf:
        A("s_getpc_b64 s[80:81]")
        A(f"s_lshl_b32 s6, s{S_J}, 9")
        A("v_subrev_u32 v2, 448, v0")
        A("v_cmp_gt_u32 vcc, 4, v2")
        A("v_lshl_add_u32 v2, v2, 7, s6")
        A(f"v_min_u32 v2, L_end-{KNAME}-64, v2")
        A("s_and_b64 exec, exec, vcc")
        A("s_cbranch_execz L_nopf")
        A("global_load_dword v165, v2, s[80:81]")
        A("L_nopf:")
        A("s_mov_b64 exec, -1")
    A("v_lshrrev_b32 v1, 6, v0")
    A("v_and_b32 v0, 63, v0")
    A("v_readfirstlane_b32 s3, v1")
    A(f"v_mov_b32 v8, {hex(L_FLAG)}")
    A("v_lshl_add_u32 v9, v0, 2, v8")
    A("v_mov_b32 v11, 0")
    A("ds_write_b32 v9, v11")
    A(f"s_and_b32 s{S_KVH}, s2, 7")
    A(f"s_lshr_b32 s{S_B}, s{S_J}, 4")
    A(f"s_and_b32 s{S_S}, s{S_J}, 15")
    A(f"s_lshr_b32 s{S_RB}, s{S_J}, 1")
    A(f"s_and_b32 s{S_CH}, s{S_J}, 1")
    A(f"s_lshl_b32 s{S_W}, s{S_KVH}, 5")
    A(f"s_add_u32 s{S_W}, s{S_W}, s{S_J}")
    A(f"s_mov_b32 s15, {hex(SPIN_MAX)}")
    A("v_lshrrev_b32 v1, 4, v0")
    A("v_and_b32 v2, 15, v0")
    A("v_lshlrev_b32 v3, 1, v1")
    A("v_xor_b32 v2, v2, v3")
    A("v_lshlrev_b32 v2, 4, v2")
    A("v_lshl_or_b32 v4, v1, 8, v2")
    A("v_xor_b32 v5, 0x80, v4")
    A("v_xor_b32 v6, 16, v4")
    A("v_xor_b32 v7, 0x90, v4")
    A("v_lshlrev_b32 v10, 4, v0")
    sO1, sO2, sN, sL, sBase, sT = 60, 61, 62, 63, 64, 66
    A(f"s_lshl_b32 s{sBase}, s{S_B}, 3")
    A(f"s_add_u32 s{sBase}, s{sBase}, s{S_KVH}")
    A(f"s_lshl_b32 s{sBase}, s{sBase}, 4")
    A(f"s_add_u32 s{sBase}, s{sBase}, s{S_S}")
    A(f"s_lshl_b32 s{sBase}, s{sBase}, 1")
    A(f"s_add_u32 s{sBase}, s{sBase}, s{S_B}")
    A(f"s_lshl_b32 s{sBase}, s{sBase}, 1")
    A(f"s_bfe_u32 s{sT}, s{S_S}, 0x10002")
    A(f"s_add_u32 s{sBase}, s{sBase}, s{sT}")
    A(f"s_lshl_b32 s{sBase}, s{sBase}, 17")
    A(f"s_mov_b32 s{sO1}, s{sBase}")
    A("s_mov_b32 s42, 0x8000000")
    A("s_mov_b32 s43, 0x20000")
    A(f"s_mov_b32 s{sN}, 0")
    A(f"s_mov_b32 s{sL}, 0")
    A("v_mov_b32 v16, 0"); A("v_mov_b32 v17, 0"); A("v_mov_b32 v18, 0"); A("v_mov_b32 v19, 0")
    A("s_waitcnt lgkmcnt(0)")
    if stamps:
        A(f"v_writelane_b32 v{VST}, s98, 0")
    A("s_barrier")
    A("s_cmp_lg_u32 s3, 0")
    A("s_cbranch_scc1 L_roles")

    role[0] = "ld"
    A("s_setprio 3")
    A(f"s_mov_b64 s[40:41], s[{P_K}:{P_K+1}]")
    pub_i = (NL - 1) % 8
    pub_d = (pub_i - NL + 1) // 8
    A("L_slot:")
    A("s_waitcnt lgkmcnt(0)")
    A("v_min3_i32 v20, v16, v17, v18")
    A("v_min_i32 v20, v20, v19")
    A(f"s_mov_b32 m0, s{sL}")
    A(f"v_readfirstlane_b32 s{sT}, v20")
    A(f"ds_read_b128 v[16:19], v8 offset:{F_DONE}")
    A(f"s_add_u32 s{sT}, s{sT}, 16")
    A(f"s_cmp_lt_i32 s{sN}, s{sT}")
    A("s_cbranch_scc0 L_full")
    extra = {
        0: [f"s_add_u32 s{sO2}, s{sO1}, 0x8000", f"s_add_i32 s{sT}, s{sN}, {pub_d}", f"v_mov_b32 v21, s{sT}"],
        3: [f"s_add_u32 m0, s{sL}, 0x1000"],
        4: [f"s_add_u32 s{sN}, s{sN}, 1", f"s_and_b32 s{sO1}, s{sN}, 7", f"s_lshl_b32 s{sO1}, s{sO1}, 12"],
        5: [f"s_and_b32 s{sT}, s{sN}, 0x38", f"s_lshl_b32 s{sT}, s{sT}, 13", f"s_or_b32 s{sO1}, s{sO1}, s{sT}"],
        6: [f"s_xor_b32 s{sO1}, s{sO1}, s{sBase}", f"s_add_u32 s{sL}, s{sL}, 0x2000", f"s_and_b32 s{sL}, s{sL}, 0x1ffff"],
    }
    for i in range(8):
        A(f"s_waitcnt vmcnt({NL-1})")
        A(f"buffer_load_dwordx4 v{4+(i&3)}, s[40:43], s{sO1 if i < 4 else sO2} offen offset:{(i&3)*1024} {pK} lds")
        for e in extra.get(i, []):
            A(e)
        if i == pub_i:
            lds_set(8, F_LANDED, 21)
    if stamps:
        for n, k in ((1, 3), (16, 4), (32, 5), (64, 6), (96, 7)):
            l = lab("st")
            A(f"s_cmp_lg_u32 s{sN}, {n}"); A(f"s_cbranch_scc1 {l}"); stamp(k); A(f"{l}:")
    A(f"s_and_b32 s{sT}, s{sN}, 63")
    A("s_cbranch_scc1 L_slot")
    A(f"s_mov_b64 s[40:41], s[{P_V}:{P_V+1}]")
    A(f"s_cmp_lt_u32 s{sN}, 128")
    A("s_cbranch_scc1 L_slot")
    stamp(1)
    A("s_mov_b64 exec, 1")
    for x in range(127 + pub_d + 1, 129):
        A(f"v_mov_b32 v21, {x}")
        A(f"s_waitcnt vmcnt({(128 - x) * 8})")
        A(f"ds_write_b32 v8, v21 offset:{F_LANDED}")
    stamp(2)
    stamp_flush()
    A("s_endpgm")
    A("L_full:")
    spin_guard()
    A("s_branch L_slot")

    A("L_roles:")
    A("s_cmp_lg_u32 s3, 1")
    A("s_cbranch_scc1 L_other")
    role[0] = "aux"
    SWQ, SX, SWS, SG, SU, SOUT = 40, 44, 48, 52, 56, 60
    sO, sTag, sA, sB2, sThr, sLoc = 64, 65, 66, 67, 75, 84
    XB, TF = 64, 96
    if diag is not None:
        A("s_mov_b32 s88, s90")
    A("s_setprio 2")
    srd(SX, P_X, 2048)
    A(f"buffer_load_dwordx4 v[16:19], v10, s[{SX}:{SX+3}], 0 offen")
    A(f"buffer_load_dwordx4 v[20:23], v10, s[{SX}:{SX+3}], 0 offen offset:1024")
    srd(SWQ, P_WQ, 512 * 4096 * 2)
    A("v_lshrrev_b32 v12, 3, v0")
    A("v_and_b32 v13, 7, v0")
    A("v_xor_b32 v13, v13, v3")
    A("v_lshlrev_b32 v13, 4, v13")
    A("v_lshl_or_b32 v14, v12, 13, v13")
    A(f"s_lshr_b32 s{sB2}, s{S_J}, 3")
    A(f"s_lshl_b32 s{sO}, s{sB2}, 20")
    A(f"s_lshl_b32 s{sA}, s{S_KVH}, 10")
    A(f"s_add_u32 s{sO}, s{sO}, s{sA}")
    A(f"s_and_b32 s{sA}, s{S_J}, 7")
    A(f"s_lshl_b32 s{sA}, s{sA}, 7")
    A(f"s_add_u32 s{sO}, s{sO}, s{sA}")
    A(f"s_mov_b32 s{sA}, {hex(L_TILE)}")
    lw = lab("wq")
    A(f"{lw}:")
    A(f"s_mov_b32 m0, s{sA}")
    A(f"s_add_u32 s{sA}, s{sA}, 0x400")
    A(f"buffer_load_dwordx4 v14, s[{SWQ}:{SWQ+3}], s{sO} offen {pW} lds")
    A(f"s_add_u32 s{sO}, s{sO}, 0x10000")
    A(f"s_cmp_lt_u32 s{sA}, {hex(L_TILE + 0x4000)}")
    A(f"s_cbranch_scc1 {lw}")
    srd(SWS, P_WS, WS_BYTES)
    A(f"buffer_load_dword v24, v11, s[{SWS}:{SWS+3}], 0 offen sc1")
    stamp(1)
    A(f"v_add_u32 v25, {hex(L_XN)}, v10")
    A("v_bfe_u32 v15, v0, 3, 1")
    A("v_lshlrev_b32 v26, 10, v15")
    A("v_lshl_add_u32 v26, v1, 3, v26")
    A(f"v_add_u32 v26, {hex(L_XN)}, v26")
    A(f"s_lshl_b32 s{sA}, s{sB2}, 8")
    A(f"v_add_u32 v28, s{sA}, v26")
    A(f"s_and_b32 s{sA}, s{S_J}, 7")
    A(f"s_lshl_b32 s{sA}, s{sA}, 7")
    A(f"v_add_u32 v26, s{sA}, v26")
    A("v_lshrrev_b32 v29, 2, v0")
    A("v_lshlrev_b32 v29, 7, v29")
    A("v_bfe_u32 v30, v0, 3, 2")
    A("v_lshl_or_b32 v29, v30, 5, v29")
    A("v_and_b32 v30, 3, v0")
    A("v_lshl_or_b32 v29, v30, 3, v29")
    A(f"v_add_u32 v160, {hex(L_TILE)}, v29")
    for T in range(1, 4):
        A(f"v_xor_b32 v{160+T}, {32*T}, v160")
    A("v_bfe_u32 v30, v0, 1, 2")
    A("v_lshlrev_b32 v27, 7, v30")
    A("v_lshl_or_b32 v27, v1, 5, v27")
    A("v_and_b32 v30, 1, v0")
    A("v_lshl_or_b32 v27, v30, 4, v27")
    A("v_lshl_or_b32 v31, v15, 14, v27")
    A(f"s_lshl_b32 s{sO}, s{S_KVH}, 15")
    A(f"s_lshl_b32 s{sA}, s{S_J}, 9")
    A(f"s_add_u32 s{sO}, s{sO}, s{sA}")
    A(f"s_add_u32 s{sO}, s{sO}, {hex(W_Q)}")
    A("s_mov_b32 s68, 0xaaaaaaaa"); A("s_mov_b32 s69, s68")
    A("s_mov_b32 s70, 0xcccccccc"); A("s_mov_b32 s71, s70")
    A("s_mov_b32 s72, 0xf0f0f0f0"); A("s_mov_b32 s73, s72")
    A("s_waitcnt vmcnt(17)")
    stamp(2)
    XF = 32
    for b in range(2):
        for i in range(4):
            unpack(XF + 8 * b + 2 * i, 16 + 4 * b + i)
    for b in range(2):
        A(f"v_add_f32 v{48+b}, v{XF+8*b}, v{XF+8*b+1}")
    for i in range(2, 8):
        for b in range(2):
            A(f"v_add_f32 v{48+b}, v{48+b}, v{XF+8*b+i}")
    allreduce([48, 49], "v_add_f32", [50, 51])
    for b in range(2):
        A(f"v_mul_f32 v{48+b}, 0x3b000000, v{48+b}")
    for i in range(8):
        for b in range(2):
            A(f"v_sub_f32 v{52+b}, v{XF+8*b+i}, v{48+b}")
        for b in range(2):
            A(f"{'v_mul_f32' if i == 0 else 'v_fmac_f32'} v{54+b}, v{52+b}, v{52+b}")
    allreduce([54, 55], "v_add_f32", [50, 51])
    for b in range(2):
        A(f"v_mul_f32 v{54+b}, 0x3b000000, v{54+b}")
    A("v_cvt_pk_bf16_f32 v50, v48, v49")
    A("v_cvt_pk_bf16_f32 v51, v54, v55")
    unpack(48, 50)
    unpack(54, 51)
    A("v_add_f32 v54, 0x3727c5ac, v54"); A("v_add_f32 v55, 0x3727c5ac, v55")
    A("v_cvt_pk_bf16_f32 v51, v54, v55")
    unpack(54, 51)
    A("v_sqrt_f32 v54, v54"); A("v_sqrt_f32 v55, v55")
    nop(1)
    A("v_cvt_pk_bf16_f32 v51, v54, v55")
    unpack(54, 51)
    A("v_rcp_f32 v54, v54"); A("v_rcp_f32 v55, v55")
    for b in range(2):
        for i in range(8):
            A(f"v_sub_f32 v{XF+8*b+i}, v{XF+8*b+i}, v{48+b}")
        for i in range(4):
            A(f"v_cvt_pk_bf16_f32 v{56+4*b+i}, v{XF+8*b+2*i}, v{XF+8*b+2*i+1}")
        for i in range(4):
            unpack(XF + 8 * b + 2 * i, 56 + 4 * b + i)
        for i in range(8):
            A(f"v_mul_f32 v{XF+8*b+i}, v{XF+8*b+i}, v{54+b}")
        for i in range(4):
            A(f"v_cvt_pk_bf16_f32 v{56+4*b+i}, v{XF+8*b+2*i}, v{XF+8*b+2*i+1}")
        A(f"ds_write_b128 v25, v[{56+4*b}:{59+4*b}] offset:{1024*b}")
    A("s_waitcnt lgkmcnt(0)")
    for s in range(4):
        A(f"ds_read2_b64 v[{XB+4*s}:{XB+4*s+3}], v28 offset0:{8*s} offset1:{8*s+4}")
    stamp(3)
    A("s_waitcnt vmcnt(0)")
    stamp(4)

    def tile_mfma(acc_of, b_of, first):
        for hf in range(2):
            for s in range(2 * hf, 2 * hf + 2):
                for T in range(4):
                    r = TF + 16 * s + 4 * T
                    A(f"ds_read_b64_tr_b16 v[{r}:{r+1}], v{160+T} offset:{s*4096}")
                    A(f"ds_read_b64_tr_b16 v[{r+2}:{r+3}], v{160+T} offset:{s*4096+2048}")
                if s == 2 * hf:
                    A("s_waitcnt lgkmcnt(4)")
            A("s_waitcnt lgkmcnt(0)")
            for s in range(2 * hf, 2 * hf + 2):
                for T in range(4):
                    r = TF + 16 * s + 4 * T
                    d = acc_of(s, T)
                    c = "0" if first(s) else f"v[{d}:{d+3}]"
                    A(f"v_mfma_f32_16x16x32_bf16 v[{d}:{d+3}], v[{r}:{r+3}], v[{b_of(s)}:{b_of(s)+3}], {c}")

    def select_granule(D, out):
        for T in range(4):
            A(f"v_cndmask_b32 v{D+4*T}, v{D+4*T}, v{D+2+4*T}, s[68:69]")
            A(f"v_cndmask_b32 v{D+1+4*T}, v{D+1+4*T}, v{D+3+4*T}, s[68:69]")
        for T in (0, 2):
            A(f"v_cndmask_b32 v{D+4*T}, v{D+4*T}, v{D+4+4*T}, s[70:71]")
            A(f"v_cndmask_b32 v{D+1+4*T}, v{D+1+4*T}, v{D+5+4*T}, s[70:71]")
        A(f"v_cndmask_b32 v{out}, v{D}, v{D+8}, s[72:73]")
        A(f"v_cndmask_b32 v{out+2}, v{D+1}, v{D+9}, s[72:73]")

    tile_mfma(lambda s, T: 32 + 4 * T, lambda s: XB + 4 * s, lambda s: s == 0)
    make_tag(sTag, 24)
    local_tag(sA, sTag)
    A(f"v_mov_b32 v17, s{sA}")
    A(f"v_mov_b32 v19, s{sA}")
    select_granule(32, 16)
    A(f"buffer_store_dwordx4 v[16:19], v31, s[{SWS}:{SWS+3}], s{sO} offen")
    A("v_mov_b32 v80, 1")
    lds_set(8, F_QPUB, 80)
    A("s_setprio 0")
    A(f"s_add_u32 s{sO}, s{sO}, {hex(W_QB - W_Q)}")
    A(f"v_mov_b32 v17, s{sTag}")
    A(f"v_mov_b32 v19, s{sTag}")
    A(f"s_mov_b32 s{sB2}, 1")
    stamp(5)
    A("L_qserve:")
    A(f"ds_read_b128 v[44:47], v8 offset:{F_QRDY}")
    A(f"ds_read_b32 v48, v8 offset:{F_BREQ}")
    spin_guard()
    A("s_waitcnt lgkmcnt(0)")
    A("v_min3_i32 v44, v44, v45, v46")
    A("v_min_i32 v44, v44, v47")
    A(f"v_readfirstlane_b32 s{sA}, v48")
    A(f"v_readfirstlane_b32 s{sLoc}, v44")
    A(f"s_and_b32 s{sA}, s{sA}, s{sB2}")
    A("s_cbranch_scc0 L_qnob")
    A(f"buffer_store_dwordx4 v[16:19], v31, s[{SWS}:{SWS+3}], s{sO} offen sc1")
    A(f"s_mov_b32 s{sB2}, 0")
    A("L_qnob:")
    A(f"s_cmp_eq_u32 s{sLoc}, 0")
    A("s_cbranch_scc1 L_qserve")
    if skew is not None:
        A("v_mov_b32 v44, s90"); A("s_lshl_b32 s87, s2, 2"); A(f"s_add_u32 s87, s87, {hex(W_STAMP)}")
        A("s_mov_b64 exec, 1"); A(f"buffer_store_dword v44, v11, s[{SWS}:{SWS+3}], s87 offen sc1"); A("s_mov_b64 exec, -1")
    A(f"s_cmp_ge_u32 s{S_KVH}, {0 if noffn else 7}")
    A("s_cbranch_scc1 L_noffn1")
    for s in range(2):
        A(f"ds_read2_b64 v[{XB+4*s}:{XB+4*s+3}], v26 offset0:{8*s} offset1:{8*s+4}")
    srd(SG, P_G, 0 if nogu else 512 * 1792 * 2)
    A("v_mul_u32_u24 v14, 3584, v12")
    A("v_add_u32 v14, v14, v13")
    A(f"v_mov_b32 v21, s{sTag}")
    A(f"v_mov_b32 v23, s{sTag}")
    A(f"s_and_b32 s{sB2}, s{S_J}, 7")
    A(f"s_mul_i32 s{sB2}, s{sB2}, {64*3584}")
    A(f"s_lshr_b32 s{sA}, s{S_W}, 3")
    A(f"s_lshl_b32 s{sA}, s{sA}, 7")
    A(f"s_add_u32 s{sB2}, s{sB2}, s{sA}")
    A(f"s_mov_b32 s{sO}, s{sB2}")
    lds_wait(F_DONE, FFN_AT, 44, sA)
    stamp(6)
    A(f"s_mov_b32 s{sA}, {hex(L_TILE)}")
    lw = lab("ft")
    A(f"{lw}:")
    A(f"s_mov_b32 m0, s{sA}")
    A(f"s_waitcnt vmcnt({AUXNL-1})")
    A(f"buffer_load_dwordx4 v14, s[{SG}:{SG+3}], s{sO} offen {pW if pF is None else pF} lds")
    A(f"s_add_u32 s{sA}, s{sA}, 0x400")
    A(f"s_add_u32 s{sO}, s{sO}, {8*3584}")
    A(f"s_and_b32 s74, s{sA}, 0x1fff")
    A(f"s_cbranch_scc1 {lw}")
    A(f"s_mov_b64 s[{SG}:{SG+1}], s[{P_U}:{P_U+1}]")
    A(f"s_mov_b32 s{sO}, s{sB2}")
    A(f"s_cmp_lt_u32 s{sA}, {hex(L_TILE + 0x4000)}")
    A(f"s_cbranch_scc1 {lw}")
    A("v_lshl_or_b32 v30, v15, 9, v27")
    A(f"s_lshl_b32 s{sO}, s{S_W}, 11")
    A(f"s_add_u32 s{sO}, s{sO}, {hex(W_F)}")
    A("s_waitcnt vmcnt(0)")
    tile_mfma(lambda s, T: 32 + 16 * (s >> 1) + 4 * T, lambda s: XB + 4 * (s & 1), lambda s: s in (0, 2))
    select_granule(32, 16)
    select_granule(48, 20)
    store_by(sLoc, [f"buffer_store_dwordx4 v[16:19], v30, s[{SWS}:{SWS+3}], s{sO} offen",
                    f"buffer_store_dwordx4 v[20:23], v30, s[{SWS}:{SWS+3}], s{sO} offen offset:1024"])
    A("L_noffn1:")
    lds_set(8, F_TILE, 80)
    stamp(7)
    lds_wait(F_DONE, GATH_AT, 44, sA)
    A("v_mov_b32 v40, 0")
    A("v_mov_b32 v41, 0")
    A(f"s_cmp_ge_u32 s{S_KVH}, {0 if noffn else 7}")
    A("s_cbranch_scc1 L_noffn2")
    A("v_and_b32 v30, 7, v0")
    A("v_lshlrev_b32 v30, 11, v30")
    A("v_lshl_or_b32 v30, v15, 9, v30")
    A("v_lshl_or_b32 v30, v1, 5, v30")
    A(f"s_lshr_b32 s{sO}, s{S_W}, 3")
    A(f"s_lshl_b32 s{sO}, s{sO}, 14")
    A(f"s_and_b32 s{sA}, s{S_RB}, 3")
    A(f"s_lshl_b32 s{sA}, s{sA}, 7")
    A(f"s_add_u32 s{sO}, s{sO}, s{sA}")
    A(f"s_add_u32 s{sO}, s{sO}, {hex(W_F)}")
    lq = lab("fpoll")
    A(f"{lq}:")
    for i, off in enumerate((0, 16, 1024, 1040)):
        A(f"buffer_load_dwordx4 v[{44+4*i}:{47+4*i}], v30, s[{SWS}:{SWS+3}], s{sO} offen offset:{off} sc1")
    spin_guard()
    A("s_waitcnt vmcnt(0)")
    tag_check(44, 8, sTag, 60, 61)
    A(f"s_cbranch_vccnz {lq}")
    allreduce([44 + 2 * i for i in range(8)], "v_add_f32", [], steps=("x1", "x2", "hm"))
    for i in range(4):
        A(f"v_cvt_pk_bf16_f32 v40, v{44+4*i}, v{46+4*i}")
        unpack(32 + 2 * i, 40)
    A("s_mov_b32 s68, 0x3d372713")
    A("s_mov_b32 s69, 0xc0135761")
    for i in range(4):
        A(f"v_mul_f32 v{44+i}, v{32+i}, v{32+i}")
        A(f"v_fma_f32 v{44+i}, v{44+i}, s68, 1.0")
        A(f"v_mul_f32 v{44+i}, v{44+i}, v{32+i}")
        A(f"v_mul_f32 v{44+i}, s69, v{44+i}")
        A(f"v_exp_f32 v{44+i}, v{44+i}")
    nop(1)
    for i in range(4):
        A(f"v_add_f32 v{44+i}, 1.0, v{44+i}")
    for i in range(4):
        A(f"v_rcp_f32 v{44+i}, v{44+i}")
    nop(1)
    for i in range(4):
        A(f"v_mul_f32 v{32+i}, v{32+i}, v{44+i}")
    for r in (32, 34):
        A(f"v_cvt_pk_bf16_f32 v40, v{r}, v{r+1}")
        unpack(r, 40)
    for i in range(4):
        A(f"v_mul_f32 v{32+i}, v{32+i}, v{36+i}")
    A("v_cvt_pk_bf16_f32 v40, v32, v33")
    A("v_cvt_pk_bf16_f32 v41, v34, v35")
    A("L_noffn2:")
    A("v_lshlrev_b32 v42, 3, v0")
    A(f"v_add_u32 v43, {hex(L_H)}, v42")
    A("ds_write_b64 v43, v[40:41]")
    lds_set(8, F_HRDY, 80)
    srd(SOUT, P_OUT, 2048)
    A(f"s_lshl_b32 s{sO}, s{S_W}, 3")
    A(f"buffer_load_dwordx2 v[52:53], v11, s[{SX}:{SX+3}], s{sO} offen")
    for i in range(4):
        A(f"s_bfe_u32 s{70+i}, s{sTag}, {hex(0x80000 + 8*i)}")
    A(f"s_lshr_b32 s{sA}, s{S_KVH}, 2")
    A(f"s_lshl_b32 s{sA}, s{sA}, 18")
    A(f"s_and_b32 s{sB2}, s{S_W}, 127")
    A(f"s_lshl_b32 s{sB2}, s{sB2}, 4")
    A(f"s_add_u32 s{sA}, s{sA}, s{sB2}")
    A(f"s_add_u32 s{sA}, s{sA}, {hex(W_Y)}")
    A(f"s_add_u32 s{sB2}, s{sA}, 0x20000")
    A("v_lshlrev_b32 v41, 11, v0")
    A("s_waitcnt vmcnt(0)")
    unpack(56, 52)
    unpack(58, 53)
    A(f"v_mov_b32 v60, s{sTag}")
    stamp(8)
    A(f"s_mov_b32 s{sThr}, -1")
    A("s_cmp_eq_u32 s2, 0")
    A("s_cselect_b32 s78, 1, 0")
    A("s_mov_b32 s79, 0")
    if findry:
        A("s_branch L_ysum")
    A("L_fin_real:")
    A(f"s_mov_b32 s{sThr}, -2")
    A("s_waitcnt vmcnt(0)")
    A("s_mov_b64 exec, -1")
    lds_wait(F_LANDED, 128, 44, 68) if yearly else lds_wait(F_YDONE, 1, 44, 68)
    A("s_setprio 3")
    A("s_mov_b64 vcc, -1")
    stamp(9)
    A("L_ypoll:")
    A("s_mov_b64 exec, vcc")
    A(f"buffer_load_dwordx4 v[44:47], v41, s[{SWS}:{SWS+3}], s{sA} offen sc1")
    A(f"buffer_load_dwordx4 v[48:51], v41, s[{SWS}:{SWS+3}], s{sB2} offen sc1")
    spin_guard()
    A("s_waitcnt vmcnt(0)")
    for i in range(8):
        A(f"v_xor_b32 v{44+i}, s{70+(i&3)}, v{44+i}")
    A("v_or3_b32 v52, v44, v45, v46")
    A("v_or3_b32 v53, v47, v48, v49")
    A("v_or3_b32 v52, v52, v50, v51")
    A("v_or_b32 v52, v52, v53")
    A("v_and_b32 v52, 0xff, v52")
    A("v_cmp_ne_u32 vcc, 0, v52")
    A("s_cbranch_vccnz L_ypoll")
    A("s_mov_b64 exec, -1")
    stamp(10)
    A("L_ysum:")
    for i in range(4):
        A(f"v_add_f32 v{44+i}, v{44+i}, v{48+i}")
    allreduce([44, 45, 46, 47], "v_add_f32", [48, 49, 50, 51])
    for i in range(4):
        A(f"v_add_f32 v{44+i}, v{44+i}, v{56+i}")
    A("v_cvt_pk_bf16_f32 v48, v44, v45")
    A("v_cvt_pk_bf16_f32 v49, v46, v47")
    A("s_mov_b64 exec, 1")
    A(f"buffer_store_dwordx2 v[48:49], v11, s[{SOUT}:{SOUT+3}], s{sO} offen")
    A(f"s_cmp_eq_u32 s{sThr}, -1")
    A("s_cbranch_scc1 L_fin_real")
    le = lab("noep")
    A("s_mov_b64 exec, s[78:79]")
    A(f"s_cbranch_execz {le}")
    A(f"buffer_store_dword v60, v11, s[{SWS}:{SWS+3}], 0 offen sc1")
    A(f"{le}:")
    stamp(11)
    stamp_flush()
    if diag is not None:
        A("s_sub_u32 s88, s88, s90")
        if skew is not None:
            A("s_mov_b64 exec, -1"); A(f"s_mov_b32 s87, {hex(W_STAMP)}"); A("v_lshlrev_b32 v44, 2, v0")
            A(f"buffer_load_dword v45, v44, s[{SWS}:{SWS+3}], s87 offen sc1"); A("s_waitcnt vmcnt(0)")
            A("v_subrev_u32 v45, s90, v45"); A("v_mov_b32 v46, v45")
            allreduce([45], "v_min_i32", [47])
            nop(1)
            A("v_readfirstlane_b32 s86, v45"); A(f"v_readlane_b32 s87, v46, {skew}")
            A("s_sub_u32 s87, s87, s86"); A("s_mul_i32 s87, s87, 20"); A("s_add_u32 s88, s88, s87"); A("s_add_u32 s88, s88, s86")
        A("s_add_u32 s88, s88, 10000")
        A("L_diag:")
        A("s_memrealtime s[86:87]")
        A("s_waitcnt lgkmcnt(0)")
        A("s_sub_u32 s86, s86, s90")
        A("s_cmp_lt_u32 s86, s88")
        A("s_cbranch_scc1 L_diag")
    A("s_endpgm")

    role[0] = "cons"
    SWS = 48
    sC, sLd, sTg, sL2E, sSc, sA, sB2, sTag, sLoc = 60, 61, 62, 63, 64, 65, 66, 67, 84
    AV, VDN, AK = 6, 9, 144
    S, O, KF, Q, SV = 16, 24, 32, 64, 128
    VF, PF = 32, 40
    vM, vNM, vL, vT, vT2, vPW, vPR = 152, 153, 154, 155, 156, 157, 158
    A("L_other:")
    srd(SWS, P_WS, WS_BYTES)
    A(f"buffer_load_dword v164, v11, s[{SWS}:{SWS+3}], 0 offen sc1")
    A("s_cmp_ge_u32 s3, 6")
    A("s_cbranch_scc1 L_tail")
    A("s_setprio 1")
    A(f"s_sub_u32 s{sC}, s3, 2")
    A(f"s_lshr_b32 s69, s{S_W}, 4")
    A("s_lshl_b32 s69, s69, 14")
    A(f"s_lshl_b32 s{sA}, s{sC}, 10")
    A(f"s_add_u32 s69, s69, s{sA}")
    A(f"s_add_u32 s69, s69, {hex(W_Q)}")
    if True:
        A("v_lshrrev_b32 v12, 3, v0")
        A("v_and_b32 v13, 7, v0")
        A("v_lshlrev_b32 v13, 7, v13")
        A("v_lshl_or_b32 v12, v12, 12, v13")
        A("s_mov_b32 exec_hi, 0")
        A(f"buffer_load_dword v166, v12, s[{SWS}:{SWS+3}], s69 offen sc1")
        A("s_mov_b32 exec_hi, -1")
    A("s_add_u32 s70, s69, 0x1000")
    A("s_add_u32 s71, s69, 0x2000")
    A("s_add_u32 s72, s69, 0x3000")
    A(f"s_mov_b32 s{sL2E}, {hex(LOG2E)}")
    A(f"s_mov_b32 s{sSc}, {hex(SCALE)}")
    A("v_and_b32 v15, 3, v0")
    A("v_lshlrev_b32 v160, 9, v15")
    A(f"v_bfe_u32 v{vT2}, v0, 2, 1")
    A(f"v_lshl_or_b32 v160, v{vT2}, 6, v160")
    A("v_lshl_or_b32 v160, v1, 4, v160")
    A(f"s_lshl_b32 s68, s{S_W}, 11")
    A(f"s_lshl_b32 s{sA}, s{sC}, 7")
    A(f"s_add_u32 s68, s68, s{sA}")
    A(f"s_add_u32 s68, s68, {hex(W_O)}")
    A(f"s_lshl_b32 s73, s{S_KVH}, 2")
    A(f"s_add_u32 s73, s73, s{sC}")
    A("s_lshl_b32 s73, s73, 1")
    A(f"s_add_u32 s73, s73, s{S_B}")
    A("s_lshl_b32 s73, s73, 3")
    A(f"s_and_b32 s{sA}, s{S_S}, 7")
    A(f"s_add_u32 s73, s73, s{sA}")
    A("s_lshl_b32 s73, s73, 1")
    A(f"s_lshr_b32 s{sA}, s{S_S}, 3")
    A(f"s_add_u32 s73, s73, s{sA}")
    A("s_lshl_b32 s73, s73, 4")
    A(f"s_add_u32 s73, s73, {hex(W_ML)}")
    A(f"v_lshlrev_b32 v{vPR}, 4, v15")
    A(f"v_lshl_or_b32 v{vPR}, v1, 6, v{vPR}")
    A(f"v_add_u32 v{vPR}, {hex(L_TILE)}, v{vPR}")
    A(f"v_bfe_u32 v{vT}, v0, 2, 2")
    A(f"v_lshl_add_u32 v{vPW}, v{vT}, 10, v{vPR}")
    A(f"s_lshl_b32 s{sA}, s{sC}, 8")
    A(f"v_add_u32 v{vPW}, s{sA}, v{vPW}")
    A(f"s_add_u32 s{sA}, s{sA}, {hex(L_Q)}")
    A(f"v_lshl_add_u32 v2, v0, 2, s{sA}")
    A("v_lshlrev_b32 v3, 8, v15")
    A("v_lshl_add_u32 v3, v1, 6, v3")
    A(f"v_add_u32 v3, {hex(L_Q)}, v3")
    A("v_lshl_add_u32 v4, v15, 4, v8")
    A(f"s_lshl_b32 s{sA}, s{sC}, 2")
    A(f"v_add_u32 v5, s{sA}, v4")
    A(f"v_add_u32 v{VDN}, s{sA}, v8")
    A("v_and_b32 v14, 15, v0")
    A("v_and_b32 v12, 7, v0")
    A("v_lshlrev_b32 v12, 1, v12")
    A("v_bfe_u32 v13, v0, 3, 1")
    A("v_or_b32 v12, v12, v13")
    A("v_lshlrev_b32 v13, 2, v1")
    A("v_xor_b32 v12, v12, v13")
    A("v_lshlrev_b32 v12, 4, v12")
    A("v_lshl_or_b32 v12, v14, 8, v12")
    A(f"s_lshl_b32 s{sA}, s{sC}, 13")
    A(f"v_or_b32 v{AK}, s{sA}, v12")
    for s in range(1, 8):
        A(f"v_xor_b32 v{AK+s}, {hex(16*(s&3) + 0x10000*(s>>2))}, v{AK}")
    vaddr_T0(13, 12, 14, 15)
    A(f"s_lshl_b32 s{sA}, s{sC}, 6")
    A(f"v_xor_b32 v{AV}, s{sA}, v13")
    A(f"v_xor_b32 v{AV+1}, 32, v{AV}")
    A(f"s_mov_b32 s{sLd}, 0")
    A(f"s_sub_u32 s{sTg}, s{sC}, 3")
    A(f"v_mov_b32 v{vM}, 0xff800000")
    A(f"v_mov_b32 v{vL}, 0")
    for i in range(8):
        A(f"v_mov_b32 v{O+i}, 0")
    A("s_mov_b32 s76, 0x000f000f"); A("s_mov_b32 s77, s76")
    for g in range(1, 4):
        A(f"s_lshl_b64 s[{76+2*g}:{77+2*g}], s[76:77], {4*g}")
    A("v_mov_b32 v159, 1")
    A("s_waitcnt vmcnt(0)")
    make_tag(sTag, 164)
    local_tag(74, sTag)
    stamp(1)
    lds_wait(F_QPUB, 1, vT, sA)
    stamp(5)
    A("s_mov_b64 vcc, -1")
    A(f"s_mov_b32 s{sB2}, 0")
    A("L_qpoll:")
    A(f"s_add_u32 s{sB2}, s{sB2}, 1")
    A(f"s_and_b32 s{sA}, s{sB2}, {(QB_EVERY - 1) if fast else 0}")
    A(f"s_cselect_b32 s{sA}, 0, {hex(W_QB - W_Q)}")
    A(f"s_cselect_b32 s75, s74, s{sTag}")
    A("s_cselect_b64 exec, 0, 1")
    A(f"ds_write_b32 v8, v159 offset:{F_BREQ}")
    A("s_mov_b64 exec, vcc")
    A(f"v_add_u32 v15, s{sA}, v10")
    for kb in range(4):
        A(f"buffer_load_dwordx4 v[{KF+4*kb}:{KF+4*kb+3}], v15, s[{SWS}:{SWS+3}], s{69+kb} offen sc1")
    spin_guard()
    A("s_waitcnt vmcnt(0)")
    tag_check(KF, 8, 75, vT, vT2)
    A("s_cbranch_vccnz L_qpoll")
    A("s_mov_b64 exec, -1")
    stamp(6)
    for kb in range(1, 4):
        A(f"v_add_f32 v{KF}, v{KF}, v{KF+4*kb}")
        A(f"v_add_f32 v{KF+2}, v{KF+2}, v{KF+4*kb+2}")
    A(f"v_cvt_pk_bf16_f32 v{vT}, v{KF}, v{KF+2}")
    A(f"ds_write_b32 v2, v{vT}")
    A(f"s_cmp_lt_u32 s{sB2}, {QB_EVERY if fast else 0}")
    A(f"s_cselect_b32 s{sA}, 2, 1")
    A(f"v_mov_b32 v{vT2}, s{sA}")
    lds_set(VDN, F_QRDY, vT2)
    lds_wait4(F_QRDY, 1, S, [f"ds_read_b128 v[{KF+4*s}:{KF+4*s+3}], v3 offset:{16*s}" for s in range(4)])
    A(f"v_readfirstlane_b32 s{sLoc}, v{S}")
    for g in range(4):
        for i in range(16):
            A(f"v_cndmask_b32 v{Q+16*g+i}, 0, v{KF+i}, s[{76+2*g}:{77+2*g}]")
    stamp(2)

    def wait_landed(tgt):
        lo, ls = lab("lo"), lab("ls")
        A(f"s_cmp_ge_i32 s{sLd}, {tgt}")
        A(f"s_cbranch_scc1 {lo}")
        A(f"{ls}:")
        A(f"ds_read_b32 v{vT}, v8 offset:{F_LANDED}")
        spin_guard()
        A("s_waitcnt lgkmcnt(0)")
        A(f"v_readfirstlane_b32 s{sLd}, v{vT}")
        A(f"s_cmp_ge_i32 s{sLd}, {tgt}")
        A(f"s_cbranch_scc0 {ls}")
        A(f"{lo}:")

    A("L_kwin:")
    for g in range(4):
        A(f"s_add_u32 s{sTg}, s{sTg}, 4")
        wait_landed(f"s{sTg}")
        for t in range(2):
            for s in range(4):
                r = KF + 16 * t + 4 * s
                A(f"ds_read_b128 v[{r}:{r+3}], v{AK + 4*(g>>1) + s} offset:{(g&1)*32768 + t*4096}")
        A(f"s_add_u32 s{sA}, s{sTg}, 3")
        A(f"s_min_u32 s{sA}, s{sA}, 64")
        A(f"v_mov_b32 v{vT2}, s{sA}")
        for t in range(2):
            A(f"s_waitcnt lgkmcnt({4 if t == 0 else 0})")
            if t == 1:
                lds_set(VDN, F_DONE, vT2)
            for s in range(4):
                r = KF + 16 * t + 4 * s
                c = "0" if (g == 0 and s == 0) else f"v[{S+4*t}:{S+4*t+3}]"
                q = Q + 16 * g + 4 * s
                A(f"v_mfma_f32_16x16x32_bf16 v[{S+4*t}:{S+4*t+3}], v[{r}:{r+3}], v[{q}:{q+3}], {c}")
    for i in range(12):
        A(f"v_mov_b32 v{SV+i}, v{SV+4+i}")
    for i in range(4):
        A(f"v_cvt_pk_bf16_f32 v{SV+12+i}, v{S+2*i}, v{S+2*i+1}")
    for i in range(4):
        unpack(S + 2 * i, SV + 12 + i)
    for i in range(8):
        A(f"v_mul_f32 v{S+i}, s{sSc}, v{S+i}")
    for i in range(4):
        A(f"v_cvt_pk_bf16_f32 v{SV+12+i}, v{S+2*i}, v{S+2*i+1}")
    A(f"v_max3_f32 v{vM}, v{vM}, v{S}, v{S+1}")
    A(f"v_max3_f32 v{vT}, v{S+2}, v{S+3}, v{S+4}")
    A(f"v_max3_f32 v{vM}, v{vM}, v{S+5}, v{S+6}")
    A(f"v_max3_f32 v{vM}, v{vM}, v{vT}, v{S+7}")
    A(f"s_cmp_lt_u32 s{sTg}, 60")
    A("s_cbranch_scc1 L_kwin")
    stamp(3)
    for i in range(4):
        A(f"v_mov_b32 v{KF+8+i}, -1")
    A("s_mov_b32 exec_lo, 0x00ff00ff"); A("s_mov_b32 exec_hi, 0x00ff00ff")
    store_by(sLoc, [f"buffer_store_dwordx4 v[{KF+8}:{KF+11}], v160, s[{SWS}:{SWS+3}], s68 offen"])
    A("s_mov_b64 exec, -1")
    allreduce([vM], "v_max_f32", [vT], steps=("r4", "r8", "p16", "p32"))
    A("s_mov_b64 exec, 15")
    A(f"ds_write_b32 v5, v{vM} offset:{L_M - L_FLAG}")
    lds_set(VDN, F_MRDY, 159)
    lds_wait(F_TILE, 1, vT, sA)
    lds_wait4(F_MRDY, 1, S, [f"ds_read_b128 v[{S+4}:{S+7}], v4 offset:{L_M - L_FLAG}"])
    A(f"v_max3_f32 v{vM}, v{S+4}, v{S+5}, v{S+6}")
    A(f"v_max_f32 v{vM}, v{vM}, v{S+7}")
    A(f"v_cvt_pk_bf16_f32 v{vM}, v{vM}, v{vM}")
    A(f"v_and_b32 v{vM}, 0xffff0000, v{vM}")
    A(f"v_mul_f32 v{vM}, s{sL2E}, v{vM}")
    A(f"s_mov_b32 s{sA}, 4")
    A("L_pwin:")
    for i in range(4):
        unpack(S + 2 * i, SV + i)
    for i in range(8):
        A(f"v_fma_f32 v{S+i}, v{S+i}, s{sL2E}, -v{vM}")
    for i in range(8):
        A(f"v_exp_f32 v{S+i}, v{S+i}")
    for i in range(12):
        A(f"v_mov_b32 v{SV+i}, v{SV+4+i}")
    A("s_waitcnt lgkmcnt(0)")
    for i in range(4):
        A(f"v_cvt_pk_bf16_f32 v{KF+i}, v{S+2*i}, v{S+2*i+1}")
    A(f"ds_write_b128 v{vPW}, v[{KF}:{KF+3}]")
    for i in range(8):
        A(f"v_add_f32 v{vL}, v{vL}, v{S+i}")
    A(f"v_add_u32 v{vPW}, 0x1000, v{vPW}")
    A(f"s_sub_u32 s{sA}, s{sA}, 1")
    A(f"s_cmp_lg_u32 s{sA}, 0")
    A("s_cbranch_scc1 L_pwin")
    allreduce([vL], "v_add_f32", [vT], steps=("r4", "r8", "p16", "p32"))
    A("s_mov_b64 exec, 15")
    A(f"ds_write_b32 v5, v{vL} offset:{L_L - L_FLAG}")
    A("s_waitcnt vmcnt(0)")
    lds_set(VDN, F_PRDY, 159)
    lds_wait4(F_PRDY, 1, S, [f"ds_read_b128 v[{S+4}:{S+7}], v4 offset:{L_L - L_FLAG}"])
    A(f"v_add_f32 v{S+4}, v{S+4}, v{S+5}")
    A(f"v_add_f32 v{S+6}, v{S+6}, v{S+7}")
    A(f"v_mov_b32 v{S}, v{vM}")
    A(f"v_mov_b32 v{S+1}, s{sTag}")
    A(f"v_add_f32 v{S+2}, v{S+4}, v{S+6}")
    A(f"v_mov_b32 v{S+3}, s{sTag}")
    A(f"s_lshl_b64 exec, 1, s{sC}")
    store_by(sLoc, [f"buffer_store_dwordx4 v[{S}:{S+3}], v11, s[{SWS}:{SWS+3}], s73 offen"])
    A("s_mov_b64 exec, -1")
    A(f"s_mov_b32 s{sTg}, 64")
    stamp(7)
    A("L_vwin:")
    for g in range(4):
        A(f"ds_read_b128 v[{PF}:{PF+3}], v{vPR} offset:{g*256}")
        A(f"s_add_u32 s{sTg}, s{sTg}, 1")
        wait_landed(f"s{sTg}")
        for tt in range(2):
            for h in range(2):
                r = VF + 4 * tt + 2 * h
                A(f"ds_read_b64_tr_b16 v[{r}:{r+1}], v{AV+tt} offset:{g*8192 + h*4096}")
        A(f"v_mov_b32 v{vT2}, s{sTg}")
        for tt in range(2):
            A(f"s_waitcnt lgkmcnt({2 if tt == 0 else 0})")
            A(f"v_mfma_f32_16x16x32_bf16 v[{O+4*tt}:{O+4*tt+3}], v[{VF+4*tt}:{VF+4*tt+3}], v[{PF}:{PF+3}], v[{O+4*tt}:{O+4*tt+3}]")
        lds_set(VDN, F_DONE, vT2)
    A(f"s_cmp_eq_u32 s{sTg}, 128")
    A("s_cbranch_scc1 L_vend")
    for tt in range(2):
        A(f"v_add_u32 v{AV+tt}, 0x8000, v{AV+tt}")
        A(f"v_and_b32 v{AV+tt}, 0x1ffff, v{AV+tt}")
    A(f"v_add_u32 v{vPR}, 0x400, v{vPR}")
    A("s_branch L_vwin")
    A("L_vend:")
    A(f"s_cmp_eq_u32 s{sLoc}, 2")
    nop(2)
    for i in range(4):
        A(f"v_mov_b32_dpp v{O+i}, v{O+4+i} row_shr:4 row_mask:0xf bank_mask:0x2")
    A("s_mov_b32 exec_lo, 0x00ff00ff"); A("s_mov_b32 exec_hi, 0x00ff00ff")
    A("s_cbranch_scc0 L_o_far")
    A(f"buffer_store_dwordx4 v[{O}:{O+3}], v160, s[{SWS}:{SWS+3}], s68 offen")
    A("L_o_end:")
    stamp(4)
    stamp_flush()
    A("s_endpgm")
    A("L_o_far:")
    A(f"buffer_store_dwordx4 v[{O}:{O+3}], v160, s[{SWS}:{SWS+3}], s68 offen sc1")
    A("s_branch L_o_end")

    role[0] = "tail"
    SWO, SD = 40, 44
    sTw, sThr, sDry, sA, sB2, sTag, sWo, sDo = 60, 61, 62, 65, 66, 67, 63, 64
    GO, WF, DF, Y = 32, 64, 96, 112
    A("L_tail:")
    A(f"s_sub_u32 s{sTw}, s3, 6")
    srd(SWO, P_WO, 0 if nowt else 4096 * 512 * 2)
    srd(SD, P_D, 0 if nowt else 1792 * 512 * 2)
    A("v_lshl_or_b32 v4, v1, 10, v2")
    A("v_xor_b32 v5, 0x80, v4"); A("v_add_u32 v5, 3072, v5")
    A("v_xor_b32 v6, 16, v4"); A("v_add_u32 v6, 6144, v6")
    A("v_xor_b32 v7, 0x90, v4"); A("v_add_u32 v7, 9216, v7")
    A(f"s_lshl_b32 s{sB2}, s{S_CH}, 1")
    A(f"s_add_u32 s{sB2}, s{sB2}, s{sTw}")
    A(f"s_lshl_b32 s{sB2}, s{sB2}, 8")
    A(f"s_lshr_b32 s{sWo}, s{S_W}, 1")
    A(f"s_lshl_b32 s{sWo}, s{sWo}, 15")
    A(f"s_add_u32 s{sWo}, s{sWo}, s{sB2}")
    A(f"s_add_u32 s82, s{sWo}, 0x4000")
    A(f"s_lshr_b32 s{sDo}, s{S_W}, 1")
    A(f"s_lshl_b32 s{sDo}, s{sDo}, 14")
    A(f"s_add_u32 s{sDo}, s{sDo}, s{sB2}")
    A(f"s_cmp_lt_u32 s{S_KVH}, 7")
    A(f"s_cselect_b32 s{sDo}, s{sDo}, 0")
    A(f"s_cselect_b32 s{SD+2}, s{SD+2}, 0")
    A(f"s_lshl_b32 s83, s{sTw}, 13")
    A(f"s_lshl_b32 s84, s{sTw}, 12")
    A("s_add_u32 s84, s84, 0x4000")
    vaddr_T0(13, 12, 14, 15)
    for T in range(8):
        A(f"v_xor_b32 v12, {32*T}, v13")
        A(f"v_add_u32 v{144+T}, s83, v12")
        A(f"v_add_u32 v{152+T}, s84, v12")
    A("v_lshlrev_b32 v14, 3, v0")
    A(f"v_add_u32 v14, {hex(L_H)}, v14")
    A("v_and_b32 v161, 15, v0")
    A("v_lshlrev_b32 v161, 5, v161")
    A(f"s_lshr_b32 s69, s{S_W}, 3")
    A("s_lshl_b32 s69, s69, 9")
    A(f"s_add_u32 s69, s69, {hex(W_ML)}")
    A("v_and_b32 v162, 7, v0")
    A("v_lshlrev_b32 v162, 11, v162")
    A("v_bfe_u32 v12, v0, 3, 1")
    A("v_lshl_or_b32 v162, v12, 15, v162")
    A("v_lshl_or_b32 v162, v1, 4, v162")
    A(f"s_lshl_b32 s70, s{S_KVH}, 16")
    A(f"s_lshl_b32 s{sA}, s{S_RB}, 7")
    A(f"s_add_u32 s70, s70, s{sA}")
    A(f"s_add_u32 s70, s70, {hex(W_O)}")
    A("s_add_u32 s71, s70, 0x4000")
    A("v_lshlrev_b32 v163, 18, v12")
    A("v_bfe_u32 v12, v0, 2, 1")
    A("v_lshl_or_b32 v163, v12, 6, v163")
    A("v_lshl_or_b32 v163, v1, 4, v163")
    A(f"s_lshl_b32 s72, s{S_W}, 10")
    A(f"s_lshl_b32 s{sA}, s{sTw}, 9")
    A(f"s_add_u32 s72, s72, s{sA}")
    A(f"s_add_u32 s72, s72, {hex(W_Y)}")
    A("s_mov_b64 exec, 1")
    A(f"buffer_load_dword v18, v11, s[{SWO}:{SWO+3}], s{sWo} offen {pW}")
    A(f"buffer_load_dword v19, v11, s[{SD}:{SD+3}], s{sDo} offen {pW}")
    A("s_mov_b64 exec, -1")
    A("s_waitcnt vmcnt(0)")
    make_tag(sTag, 164)
    A("s_mov_b32 s85, 0xffffff00")
    for i in range(4):
        A(f"v_bfe_u32 v{52+i}, s{sTag}, {8*i}, 8")
    stamp(1)
    lds_wait(F_DONE, ML_AT, 20, sA)
    lds_wait(F_HRDY, 1, 20, sA)
    A("ds_read_b64 v[24:25], v14")
    lq = lab("mlpoll")
    A(f"{lq}:")
    A("s_waitcnt vmcnt(0)")
    A(f"buffer_load_dwordx4 v[16:19], v161, s[{SWS}:{SWS+3}], s69 offen sc1")
    A(f"buffer_load_dwordx4 v[20:23], v161, s[{SWS}:{SWS+3}], s69 offen offset:16 sc1")
    spin_guard()
    A("s_waitcnt vmcnt(0)")
    tag_check(16, 4, sTag, 26, 27)
    A(f"s_cbranch_vccnz {lq}")
    A("v_max_f32 v26, v16, v20")
    allreduce([26], "v_max_f32", [27], steps=("x1", "x2", "hm"))
    A("v_sub_f32 v16, v16, v26")
    A("v_sub_f32 v20, v20, v26")
    A("v_exp_f32 v16, v16")
    A("v_exp_f32 v20, v20")
    nop(1)
    A("v_mul_f32 v27, v16, v18")
    A("v_fmac_f32 v27, v20, v22")
    allreduce([27], "v_add_f32", [26], steps=("x1", "x2", "hm"))
    A("v_rcp_f32 v27, v27")
    A("v_mov_b32 v23, 1")
    A("v_mul_f32 v16, v16, v27")
    A("v_mul_f32 v18, v20, v27")
    stamp(5)
    A(f"s_mov_b32 s{sDry}, 1")
    A(f"s_mov_b32 s{sThr}, -1")
    if taildry:
        A("s_branch L_t_frag")
    A("L_tail_real:")
    A(f"s_mov_b32 s{sDry}, 0")
    A(f"s_mov_b32 s{sThr}, -2")
    stamp(9)
    lds_wait4(F_DONE, TRIG, 28)
    A("s_setprio 2")
    stamp(3)
    A("s_mov_b32 m0, s83")
    nop(1)
    for i in range(4):
        A(f"buffer_load_dwordx4 v{4+i}, s[{SWO}:{SWO+3}], s{sWo} offen offset:{i*1024} {pW} lds")
    A("s_add_u32 m0, s83, 0x1000")
    nop(1)
    for i in range(4):
        A(f"buffer_load_dwordx4 v{4+i}, s[{SWO}:{SWO+3}], s82 offen offset:{i*1024} {pW} lds")
    A("s_mov_b32 m0, s84")
    nop(1)
    for i in range(4):
        A(f"buffer_load_dwordx4 v{4+i}, s[{SD}:{SD+3}], s{sDo} offen offset:{i*1024} {pW} lds")
    A("s_waitcnt vmcnt(0)")
    stamp(4)
    A("L_t_frag:")

    def o_loads():
        A(f"buffer_load_dwordx4 v[{GO}:{GO+3}], v162, s[{SWS}:{SWS+3}], s70 offen sc1")
        A(f"buffer_load_dwordx4 v[{GO+4}:{GO+7}], v162, s[{SWS}:{SWS+3}], s70 offen offset:64 sc1")
        A(f"buffer_load_dwordx4 v[{GO+8}:{GO+11}], v162, s[{SWS}:{SWS+3}], s71 offen sc1")
        A(f"buffer_load_dwordx4 v[{GO+12}:{GO+15}], v162, s[{SWS}:{SWS+3}], s71 offen offset:64 sc1")
    o_loads()
    for T in range(8):
        A(f"ds_read_b64_tr_b16 v[{DF+2*T}:{DF+2*T+1}], v{152+T}")
    for T in range(3):
        A(f"ds_read_b64_tr_b16 v[{WF+4*T}:{WF+4*T+1}], v{144+T}")
        A(f"ds_read_b64_tr_b16 v[{WF+4*T+2}:{WF+4*T+3}], v{144+T} offset:4096")
    A("s_waitcnt lgkmcnt(5)")
    for T in range(3, 8):
        A(f"ds_read_b64_tr_b16 v[{WF+4*T}:{WF+4*T+1}], v{144+T}")
        A(f"ds_read_b64_tr_b16 v[{WF+4*T+2}:{WF+4*T+3}], v{144+T} offset:4096")
    for T in range(8):
        A(f"v_mfma_f32_16x16x16_bf16 v[{Y+4*T}:{Y+4*T+3}], v[{DF+2*T}:{DF+2*T+1}], v[24:25], 0")
    stamp(6)
    lq, lq2 = lab("opoll"), lab("ochk")
    A(f"s_branch {lq2}")
    A(f"{lq}:")
    A("s_mov_b64 exec, vcc")
    o_loads()
    spin_guard()
    A(f"{lq2}:")
    A("s_waitcnt vmcnt(0) lgkmcnt(0)")
    A(f"v_max3_u32 v20, v{GO}, v{GO+1}, v{GO+2}")
    A(f"v_max3_u32 v21, v{GO+3}, v{GO+4}, v{GO+5}")
    A(f"v_max3_u32 v22, v{GO+6}, v{GO+7}, v{GO+8}")
    A(f"v_max3_u32 v20, v20, v{GO+9}, v{GO+10}")
    A(f"v_max3_u32 v21, v21, v{GO+11}, v{GO+12}")
    A(f"v_max3_u32 v22, v22, v{GO+13}, v{GO+14}")
    A(f"v_max3_u32 v20, v20, v21, v{GO+15}")
    A("v_max_u32 v20, v20, v22")
    A(f"v_cmp_lt_u32 vcc, s{sThr}, v20")
    A(f"s_cbranch_vccnz {lq}")
    A("s_mov_b64 exec, -1")
    stamp(7)
    for i in range(8):
        A(f"v_mul_f32 v{GO+i}, v{GO+i}, v16")
    for i in range(8):
        A(f"v_fmac_f32 v{GO+i}, v{GO+8+i}, v18")
    allreduce([GO + i for i in range(8)], "v_add_f32", [], steps=("x1", "x2", "hm"))
    for i in range(4):
        A(f"v_cvt_pk_bf16_f32 v{48+i}, v{GO+2*i}, v{GO+2*i+1}")
    A(f"s_cmp_lg_u32 s{sDry}, 0")
    nop(1)
    for T in range(8):
        A(f"v_mfma_f32_16x16x32_bf16 v[{Y+4*T}:{Y+4*T+3}], v[{WF+4*T}:{WF+4*T+3}], v[48:51], v[{Y+4*T}:{Y+4*T+3}]")
    A("s_cbranch_scc1 L_tail_real")
    A("s_mov_b32 exec_lo, 0x11111111"); A("s_mov_b32 exec_hi, 0x11111111")
    for u in range(4):
        for i in range(4):
            A(f"v_mov_b32_dpp v{Y+8*u+i}, v{Y+8*u+4+i} quad_perm:[0,1,2,3] row_mask:0xf bank_mask:0xa")
        for i in range(4):
            A(f"v_and_or_b32 v{Y+8*u+i}, v{Y+8*u+i}, s85, v{52+i}")
        A(f"buffer_store_dwordx4 v[{Y+8*u}:{Y+8*u+3}], v163, s[{SWS}:{SWS+3}], s72 offen offset:{128*u} sc1")
    A("s_mov_b64 exec, 1")
    A(f"ds_write_b32 v8, v23 offset:{F_YDONE}")
    stamp(8)
    stamp_flush()
    A("L_abort:")
    A("s_endpgm")
    A("L_end:")
    nv = 208 if stamps else 168
    A('.section .rodata,"a"')
    A(".p2align 6")
    A(f".amdhsa_kernel {KNAME}")
    A(f"  .amdhsa_next_free_vgpr {nv}")
    A("  .amdhsa_next_free_sgpr 102")
    A(f"  .amdhsa_accum_offset {nv}")
    A("  .amdhsa_group_segment_fixed_size 0")
    A("  .amdhsa_kernarg_size 96")
    A("  .amdhsa_user_sgpr_count 2")
    A("  .amdhsa_user_sgpr_kernarg_segment_ptr 1")
    A("  .amdhsa_system_sgpr_workgroup_id_x 1")
    A(".end_amdhsa_kernel")
    out = []
    for ln in L:
        if ln.startswith((";", ".", " ")) or ln.endswith(":") or "\n" in ln:
            out.append(ln)
        else:
            out.append("    " + ln)
    return "\n".join(out) + "\n"


if __name__ == "__main__":
    kw = eval("dict(" + (sys.argv[2] if len(sys.argv) > 2 else "") + ")")
    open(sys.argv[1], "w").write(gen(**kw))
```

```python
import sys
from gen_kernel import HEADER, KNAME

L_TILE = 0x20000
L_T2 = 0x1C000
L_DN = 0x24000
L_XN = 0x26000
L_Q = 0x26800
L_OX = 0x26C00
L_FLAG = 0x26E00
F_ORDY, F_DONE, F_QRDY, F_MRDY, F_PRDY, F_TILE, F_BREQ, F_CTL, F_HRDY, F_WRDY = 0, 16, 32, 48, 64, 80, 84, 88, 96, 112
L_M = L_FLAG + 128
L_L = L_FLAG + 192
F_LANDED = 256
F_ISS = 92
LB = 4
LDS_BYTES = 0x27000
W_EPOCH = 0x0
W_PROG = 0x1000
W_MARK = 0x1400
W_IND = 0x2000
W_ML = 0x4000
W_O = 0x10000
W_Y = 0x90000
W_Q = 0x110000
W_QB = 0x150000
W_F = 0x190000
W_STAMP = 0x200000
WS_BYTES = 0x300000

LOG2E = 0x3FB8AA3B
SCALE = 0x3DB504F3
SPIN_MAX = 1 << 20


def gen(NLS=(16, 18, 20, 22, 24, 26), idx0=2, gain=1.0, bias=2.37, ctl=True, NL0=24, stamps=False, pK="nt", pW="nt", diag=None, TRIG=126,
        codepf=True, fast=True, QB_EVERY=8, GATH_AT=24, ML_AT=88, noffn=False, nowt=False,
        FX=7, boost7=-0.15, touch=True, early=False, indpos=1, ind=True, opre=False, boostE=0.15, thr=(-9, -9, -9), slp=0, slpc=0, endn=0, endadd=0, rot=0, wb=0, wearly=False, ocap=0, icap=0, curve=False, idxS=0, tdelay=0, fine=False, retouch=0, gate=False, MARK_AT=0, cw=True, pads=True, spec=True, kvtouch=True, yall=True):
    L = []
    A = L.append
    uid = [0]
    role = ["pro"]

    def lab(p):
        uid[0] += 1
        return f"L_{p}_{uid[0]}"

    def nop(n):
        while n > 0:
            k = min(n, 16)
            A(f"s_nop {k-1}")
            n -= k

    def srd(r, p, nbytes):
        A(f"s_mov_b32 s{r}, s{p}")
        A(f"s_mov_b32 s{r+1}, s{p+1}")
        A(f"s_mov_b32 s{r+2}, {hex(nbytes)}")
        A(f"s_mov_b32 s{r+3}, 0x20000")

    VST = 166

    def stamp(i):
        if diag is not None and role[0] == "cons" and diag == i:
            A("s_memrealtime s[88:89]")
            A("s_waitcnt lgkmcnt(0)")
        if not stamps:
            return
        A("s_memrealtime s[98:99]")
        A("s_waitcnt lgkmcnt(0)")
        A(f"v_writelane_b32 v{VST}, s98, {i}")

    def stamp_flush():
        if not stamps:
            return
        A("s_mov_b64 exec, -1")
        A(f"s_sub_u32 s97, {hex(SPIN_MAX)}, s15")
        A(f"v_writelane_b32 v{VST}, s97, 16")
        srd(92, P_WS, WS_BYTES)
        A("s_lshl_b32 s97, s2, 4")
        A("s_add_u32 s97, s97, s3")
        A("s_lshl_b32 s97, s97, 8")
        A(f"s_add_u32 s97, s97, {hex(W_STAMP)}")
        A(f"v_lshlrev_b32 v{VST+1}, 2, v0")
        A(f"buffer_store_dword v{VST}, v{VST+1}, s[92:95], s97 offen")
        A("s_waitcnt vmcnt(0)")

    def spin_guard():
        A("s_sub_u32 s15, s15, 1")
        A("s_cbranch_scc1 L_abort")

    def lds_wait(off, thr, vt, st):
        l = lab("w")
        A(f"{l}:")
        if slp and role[0] == "tail":
            A(f"s_sleep {slp}")
        A(f"ds_read_b32 v{vt}, v8 offset:{off}")
        spin_guard()
        A("s_waitcnt lgkmcnt(0)")
        A(f"v_readfirstlane_b32 s{st}, v{vt}")
        A(f"s_cmp_ge_i32 s{st}, {thr}")
        A(f"s_cbranch_scc0 {l}")

    def lds_wait4(off, thr, vq, extra=()):
        l = lab("w4")
        A(f"{l}:")
        A(f"ds_read_b128 v[{vq}:{vq+3}], v8 offset:{off}")
        for e in extra:
            A(e)
        spin_guard()
        A(f"s_waitcnt lgkmcnt({len(extra)})")
        A(f"v_min3_i32 v{vq}, v{vq}, v{vq+1}, v{vq+2}")
        A(f"v_min_i32 v{vq}, v{vq}, v{vq+3}")
        A(f"v_cmp_gt_i32 vcc, {thr}, v{vq}")
        if extra:
            A("s_waitcnt lgkmcnt(0)")
        A(f"s_cbranch_vccnz {l}")

    def lds_set(addr_v, off, val_v):
        A("s_mov_b64 exec, 1")
        A(f"ds_write_b32 v{addr_v}, v{val_v} offset:{off}")
        A("s_mov_b64 exec, -1")

    def allreduce(regs, op, tmps, steps=("x1", "x2", "hm", "m", "p16", "p32")):
        dpp = {"x1": "quad_perm:[1,0,3,2]", "x2": "quad_perm:[2,3,0,1]", "hm": "row_half_mirror", "m": "row_mirror",
               "r4": "row_ror:4", "r8": "row_ror:8"}
        for st in steps:
            if st in dpp:
                nop(max(0, 3 - len(regs)))
                for r in regs:
                    A(f"{op}_dpp v{r}, v{r}, v{r} {dpp[st]} row_mask:0xf bank_mask:0xf")
            else:
                ins = "v_permlane16_swap_b32" if st == "p16" else "v_permlane32_swap_b32"
                for r, t in zip(regs, tmps):
                    A(f"v_mov_b32 v{t}, v{r}")
                nop(max(0, 3 - len(regs)))
                for r, t in zip(regs, tmps):
                    A(f"{ins} v{r}, v{t}")
                nop(1)
                for r, t in zip(regs, tmps):
                    A(f"{op} v{r}, v{r}, v{t}")

    def make_tag(s, v):
        A(f"v_readfirstlane_b32 s{s}, v{v}")
        A(f"s_add_u32 s{s}, s{s}, 0x4d2b7f35")

    def local_tag(dst, tag):
        A(f"s_getreg_b32 s{dst}, hwreg(HW_REG_XCC_ID, 0, 4)")
        A(f"s_mul_i32 s{dst}, s{dst}, 0x10001")
        A(f"s_xor_b32 s{dst}, s{dst}, s{tag}")

    def store_by(sloc, ins):
        l1, l2 = lab("far"), lab("st")
        A(f"s_cmp_eq_u32 s{sloc}, 2")
        A(f"s_cbranch_scc0 {l1}")
        for i in ins:
            A(i)
        A(f"s_branch {l2}")
        A(f"{l1}:")
        for i in ins:
            A(i + " sc1")
        A(f"{l2}:")

    def tag_check(base, n, stag, t1, t2):
        for i in range(n):
            A(f"v_xor_b32 v{base+1+2*i}, s{stag}, v{base+1+2*i}")
        r = [base + 1 + 2 * i for i in range(n)]
        if n == 8:
            A(f"v_or3_b32 v{t1}, v{r[0]}, v{r[1]}, v{r[2]}")
            A(f"v_or3_b32 v{t2}, v{r[3]}, v{r[4]}, v{r[5]}")
            A(f"v_or3_b32 v{t1}, v{t1}, v{r[6]}, v{r[7]}")
            A(f"v_or_b32 v{t1}, v{t1}, v{t2}")
        else:
            A(f"v_or3_b32 v{t1}, v{r[0]}, v{r[1]}, v{r[2]}")
            A(f"v_or_b32 v{t1}, v{t1}, v{r[3]}")
        A(f"v_cmp_ne_u32 vcc, 0, v{t1}")

    def byte_check(base, n, sb, t):
        for i in range(n):
            A(f"v_xor_b32 v{base+i}, s{sb+(i&3)}, v{base+i}")
        A(f"v_or3_b32 v{t}, v{base}, v{base+1}, v{base+2}")
        for i in range(3, n - 1, 2):
            A(f"v_or3_b32 v{t}, v{t}, v{base+i}, v{base+i+1}")
        A(f"v_or_b32 v{t}, v{t}, v{base+n-1}")
        A(f"v_and_b32 v{t}, 0xff, v{t}")
        A(f"v_cmp_ne_u32 vcc, 0, v{t}")

    def vaddr_T0(dst, t1, t2, t3):
        A(f"v_lshrrev_b32 v{t1}, 2, v0")
        A(f"v_and_b32 v{t2}, 7, v{t1}")
        A(f"v_lshlrev_b32 v{t2}, 1, v{t2}")
        A(f"v_lshrrev_b32 v{t3}, 5, v0")
        A(f"v_or_b32 v{t2}, v{t2}, v{t3}")
        A(f"v_bfe_u32 v{t3}, v0, 1, 1")
        A(f"v_xor_b32 v{t2}, v{t2}, v{t3}")
        A(f"v_lshlrev_b32 v{t2}, 4, v{t2}")
        A(f"v_lshl_or_b32 v{dst}, v{t1}, 8, v{t2}")
        A(f"v_and_b32 v{t3}, 1, v0")
        A(f"v_lshl_or_b32 v{dst}, v{t3}, 3, v{dst}")

    def prog_addr(d, t):
        A(f"s_lshr_b32 s{d}, s{S_W}, 4")
        A(f"s_lshl_b32 s{d}, s{d}, 2")
        A(f"s_and_b32 s{t}, s{S_S}, 3")
        A(f"s_add_u32 s{d}, s{d}, s{t}")
        A(f"s_lshl_b32 s{d}, s{d}, 4")
        A(f"s_and_b32 s{t}, s{S_S}, 12")
        A(f"s_add_u32 s{d}, s{d}, s{t}")
        A(f"s_add_u32 s{d}, s{d}, {hex(W_PROG)}")

    def unpack(dst, src):
        A(f"v_lshlrev_b32 v{dst}, 16, v{src}")
        A(f"v_and_b32 v{dst+1}, 0xffff0000, v{src}")

    P_X, P_K, P_V, P_WQ, P_WO, P_BX, P_G, P_U, P_D, P_OUT, P_DBG, P_WS = range(16, 40, 2)
    S_KVH, S_J, S_B, S_S, S_RB, S_CH, S_W = 4, 5, 6, 7, 8, 9, 10

    A(HEADER)
    A(f"; @launch grid=(256,1,1) block=(640,1,1) lds={LDS_BYTES}")
    A('.amdgcn_target "amdgcn-amd-amdhsa--gfx950"')
    A(".text")
    A(f".globl {KNAME}")
    A(".p2align 8")
    A(f".type {KNAME},@function")
    A(f"{KNAME}:")
    A("s_cmp_ge_u32 s2, 256")
    A("s_cbranch_scc1 L_abort")
    A("s_load_dwordx16 s[16:31], s[0:1], 0")
    A("s_load_dwordx8 s[32:39], s[0:1], 64")
    if stamps:
        A("s_memrealtime s[98:99]")
        A(f"v_mov_b32 v{VST}, 0")
    if diag is not None:
        A("s_memrealtime s[90:91]")
    A(f"s_lshr_b32 s{S_J}, s2, 3")
    if codepf:
        A("s_getpc_b64 s[80:81]")
        A(f"s_lshl_b32 s6, s{S_J}, 9")
        A("v_subrev_u32 v2, 448, v0")
        A("v_cmp_gt_u32 vcc, 4, v2")
        A("v_lshl_add_u32 v2, v2, 7, s6")
        A(f"v_min_u32 v2, L_end-{KNAME}-64, v2")
        A("s_and_b64 exec, exec, vcc")
        A("s_cbranch_execz L_nopf")
        A("global_load_dword v165, v2, s[80:81]")
        A("L_nopf:")
        A("s_mov_b64 exec, -1")
    A("v_lshrrev_b32 v1, 6, v0")
    A("v_and_b32 v0, 63, v0")
    A("v_readfirstlane_b32 s3, v1")
    A(f"v_mov_b32 v8, {hex(L_FLAG)}")
    A("v_lshl_add_u32 v9, v0, 2, v8")
    A("v_mov_b32 v11, 0")
    A("ds_write_b32 v9, v11")
    A(f"ds_write_b32 v9, v11 offset:{F_LANDED}")
    if rot:
        A(f"s_add_u32 s{S_KVH}, s2, {rot}")
        A(f"s_and_b32 s{S_KVH}, s{S_KVH}, 7")
    else:
        A(f"s_and_b32 s{S_KVH}, s2, 7")
    A(f"s_lshr_b32 s{S_B}, s{S_J}, 4")
    A(f"s_and_b32 s{S_S}, s{S_J}, 15")
    A(f"s_lshl_b32 s{S_W}, s{S_KVH}, 5")
    A(f"s_add_u32 s{S_W}, s{S_W}, s{S_J}")
    A(f"s_mov_b32 s15, {hex(SPIN_MAX)}")
    A("v_lshrrev_b32 v1, 4, v0")
    A("v_lshlrev_b32 v3, 1, v1")
    A("v_lshlrev_b32 v10, 4, v0")
    sO1, sO2, sN, sNc, sBase, sTt, sT, sIdx, sEv = 60, 61, 62, 63, 64, 65, 66, 68, 69
    sSmp, sPrevF, sPs, sPl, sCen = 70, 71, 72, 73, 74
    A("v_lshrrev_b32 v12, 3, v0")
    A("v_and_b32 v13, 7, v0")
    A("v_xor_b32 v13, v13, v3")
    A("v_lshlrev_b32 v13, 4, v13")
    A("v_lshl_or_b32 v4, v12, 13, v13")
    for i in range(1, 4):
        A(f"v_add_u32 v{4+i}, {i*(0x10000-1024)}, v4")
    A(f"s_lshr_b32 s{sT}, s{S_J}, 3")
    A(f"s_lshl_b32 s{sO1}, s{sT}, 10")
    A(f"s_add_u32 s{sO1}, s{sO1}, s{S_KVH}")
    A(f"s_lshl_b32 s{sO1}, s{sO1}, 3")
    A(f"s_and_b32 s{sT}, s{S_J}, 7")
    A(f"s_add_u32 s{sO1}, s{sO1}, s{sT}")
    A(f"s_lshl_b32 s{sO1}, s{sO1}, 7")
    A(f"s_mov_b32 s42, {hex(512*4096*2)}")
    A("s_mov_b32 s43, 0x20000")
    A("s_mov_b32 s46, 2048")
    A("s_mov_b32 s47, 0x20000")
    A(f"s_mov_b32 m0, {hex(L_TILE)}")
    A("s_cmp_lg_u32 s3, 0")
    A("s_waitcnt lgkmcnt(0)")
    if stamps:
        A(f"v_writelane_b32 v{VST}, s98, 0")
    A("s_cbranch_scc1 L_roles")

    role[0] = "ld"
    A(f"s_mov_b64 s[40:41], s[{P_WQ}:{P_WQ+1}]")
    A("s_setprio 3")
    A("L_ldq:")
    for i in range(4):
        A(f"buffer_load_dwordx4 v{4+i}, s[40:43], s{sO1} offen offset:{i*1024} {pW} lds")
    A("s_add_u32 m0, m0, 0x1000")
    A(f"s_add_u32 s{sO1}, s{sO1}, 0x40000")
    A(f"s_cmp_lt_u32 m0, {hex(L_TILE + 0x4000)}")
    A("s_cbranch_scc1 L_ldq")
    A("s_barrier")
    if fine:
        stamp(3)
    A("v_mul_u32_u24 v4, 3584, v12")
    A("v_add_u32 v4, v4, v13")
    for i in range(1, 4):
        A(f"v_add_u32 v{4+i}, {i*(8*3584-1024)}, v4")
    A(f"s_mul_i32 s{sO2}, s{sT}, {64*3584}")
    A(f"s_lshr_b32 s{sT}, s{S_W}, 3")
    A(f"s_lshl_b32 s{sT}, s{sT}, 7")
    A(f"s_add_u32 s{sO2}, s{sO2}, s{sT}")
    A(f"s_cmp_lt_u32 s{S_KVH}, {0 if noffn else 7}")
    A(f"s_cselect_b32 s42, {hex(512*1792*2)}, 0")
    A(f"s_mov_b64 s[40:41], s[{P_G}:{P_G+1}]")
    A(f"s_mov_b32 m0, {hex(L_T2)}")
    A("L_ldf2:")
    A(f"s_mov_b32 s{sO1}, s{sO2}")
    A("L_ldf:")
    for i in range(4):
        A(f"s_waitcnt vmcnt({NL0-1})")
        A(f"buffer_load_dwordx4 v{4+i}, s[40:43], s{sO1} offen offset:{i*1024} {pW} lds")
    A("s_add_u32 m0, m0, 0x1000")
    A(f"s_add_u32 s{sO1}, s{sO1}, {32*3584}")
    A("s_bitcmp1_b32 m0, 12")
    A("s_cbranch_scc1 L_ldf")
    A(f"s_mov_b64 s[40:41], s[{P_U}:{P_U+1}]")
    A("s_bitcmp1_b32 m0, 13")
    A("s_cbranch_scc1 L_ldf2")
    if fine:
        stamp(8)
    A("v_and_b32 v2, 15, v0")
    A("v_xor_b32 v2, v2, v3")
    A("v_lshlrev_b32 v2, 4, v2")
    A("v_lshl_or_b32 v4, v1, 8, v2")
    A("v_xor_b32 v5, 0x80, v4")
    A("v_xor_b32 v6, 16, v4")
    A("v_xor_b32 v7, 0x90, v4")
    A(f"s_lshl_b32 s{sBase}, s{S_B}, 3")
    A(f"s_add_u32 s{sBase}, s{sBase}, s{S_KVH}")
    A(f"s_lshl_b32 s{sBase}, s{sBase}, 4")
    A(f"s_add_u32 s{sBase}, s{sBase}, s{S_S}")
    A(f"s_lshl_b32 s{sBase}, s{sBase}, 1")
    A(f"s_add_u32 s{sBase}, s{sBase}, s{S_B}")
    A(f"s_lshl_b32 s{sBase}, s{sBase}, 1")
    A(f"s_bfe_u32 s{sT}, s{S_S}, 0x10002")
    A(f"s_add_u32 s{sBase}, s{sBase}, s{sT}")
    A(f"s_lshl_b32 s{sBase}, s{sBase}, 17")
    A(f"s_mov_b32 s{sO1}, s{sBase}")
    A("s_mov_b32 s42, 0x8000000")
    A(f"s_mov_b64 s[40:41], s[{P_K}:{P_K+1}]")
    A(f"s_mov_b32 s{sN}, 0")
    A(f"s_mov_b32 s{sTt}, 0")
    A("s_mov_b32 m0, 0")
    A(f"s_mov_b32 s{sEv}, 2")
    A(f"s_mov_b32 s{sNc}, 2")
    A(f"s_mov_b32 s{sIdx}, {idxS}")
    A(f"s_mov_b64 s[44:45], s[{P_WS}:{P_WS+1}]")
    A(f"s_mov_b32 s46, {hex(WS_BYTES)}")
    A("v_lshlrev_b32 v14, 3, v0")
    A("v_mov_b32 v22, 0")
    A(f"ds_read_b128 v[16:19], v8 offset:{F_DONE}")
    NV = len(NLS)
    extra = {
        0: [f"s_add_u32 s{sO2}, s{sO1}, 0x8000"],
        1: [f"s_or_b32 s{sTt}, s{sTt}, 0x8000", f"s_add_u32 s{sTt}, s{sTt}, 0x1000"],
        2: [f"s_and_b32 s{sTt}, s{sTt}, 0x77000"],
        3: ["s_add_u32 m0, m0, 0x1000"],
        4: [f"s_xor_b32 s{sO1}, s{sTt}, s{sBase}"],
        5: [f"s_add_u32 s{sN}, s{sN}, 1"],
        6: [f"s_add_u32 s{sT}, m0, 0x1000"],
        7: [f"s_and_b32 m0, s{sT}, 0x1ffff"],
    }

    def body(k):
        NL = NLS[k]
        pub_i = (NL - 1) % 8
        pub_d = (pub_i - NL + 1) // 8
        A(f"v_add_u32 v21, {pub_d + LB - 1}, v22")
        A(f"L_body{k}:")
        for i in range(8):
            A(f"s_waitcnt vmcnt({NL-1})")
            A(f"buffer_load_dwordx4 v{4+(i&3)}, s[40:43], s{sO1 if i < 4 else sO2} offen offset:{(i&3)*1024} {pK} lds")
            if i == 0:
                A("v_add_u32 v21, 1, v21")
            if i == pub_i:
                A(f"ds_max_i32 v9, v21 offset:{F_LANDED}")
            for e in extra.get(i, []):
                A(e)
        A(f"s_cmp_lg_u32 s{sN}, s{sEv}")
        A(f"s_cbranch_scc1 L_body{k}")

    A("L_def:")
    body(idx0)
    A("L_event:")
    if stamps:
        A(f"s_and_b32 s{sT}, s{sN}, 15"); A("s_cbranch_scc0 L_ldst")
        A("L_ldst_back:")
    A(f"s_bitcmp1_b32 s{sN}, 7")
    A("s_cbranch_scc1 L_drain")
    A(f"s_cmp_eq_u32 s{sN}, s{sNc}")
    A("s_cbranch_scc1 L_ctl")
    A("L_event2:")
    A("s_waitcnt lgkmcnt(0)")
    A("v_min3_i32 v20, v16, v17, v18")
    A("v_min_i32 v20, v20, v19")
    A(f"s_bitcmp1_b32 s{sN}, 6")
    A(f"v_readfirstlane_b32 s{sT}, v20")
    A("L_event3:")
    A(f"ds_read_b128 v[16:19], v8 offset:{F_DONE}")
    A(f"s_cselect_b64 s[40:41], s[{P_V}:{P_V+1}], s[40:41]")
    A(f"s_cmp_eq_u32 s{sT}, 0")
    A(f"s_cselect_b32 s{sEv}, {12 if wearly else 14}, 16")
    A(f"s_add_u32 s{sT}, s{sT}, s{sEv}")
    A(f"s_or_b32 s{sEv}, s{sN}, {15 if stamps else 63}")
    A(f"s_add_u32 s{sEv}, s{sEv}, 1")
    A(f"s_min_u32 s{sEv}, s{sEv}, s{sT}")
    A(f"s_min_u32 s{sEv}, s{sEv}, s{sNc}")
    A(f"v_mov_b32 v22, s{sN}")
    A(f"s_cmp_le_u32 s{sEv}, s{sN}")
    A("s_cbranch_scc1 L_full")
    A(f"s_cmp_eq_u32 s{sIdx}, 0")
    A("s_cbranch_scc1 L_def")
    A("s_branch L_var")
    A("L_full:")
    spin_guard()
    A("s_branch L_event2")
    A("L_roles:")
    A("s_cmp_lg_u32 s3, 1")
    A("s_cbranch_scc1 L_roles2")
    A(f"s_mov_b64 s[44:45], s[{P_X}:{P_X+1}]")
    A("s_setprio 2")
    A("buffer_load_dwordx4 v[16:19], v10, s[44:47], 0 offen")
    A("buffer_load_dwordx4 v[20:23], v10, s[44:47], 0 offen offset:1024")
    A("L_roles2:")
    A("s_barrier")
    A("s_cbranch_scc1 L_other")
    A("s_branch L_aux")
    A("L_drain:")

    def iss(k):
        if TRIG == 0:
            A(f"s_cmp_ge_i32 s{sIdx}, {k}")
            A("s_cselect_b64 exec, 1, 0")
            A(f"ds_write_b32 v8, v21 offset:{F_ISS}")
            A("s_mov_b64 exec, -1")
    iss(thr[0])
    stamp(1)
    for x in range(125, 129):
        A(f"v_mov_b32 v21, {x + LB}")
        if gate and x == 128 and MARK_AT:
            A("v_mov_b32 v24, 200")
            A("s_mov_b64 exec, 1")
            A(f"s_waitcnt vmcnt({MARK_AT})")
            A(f"buffer_store_dword v24, v11, s[44:47], s{sPs} offen")
            A("s_waitcnt vmcnt(1)")
        else:
            A(f"s_waitcnt vmcnt({(128 - x) * 8})")
        A(f"ds_max_i32 v9, v21 offset:{F_LANDED}")
        if x >= 126:
            iss((thr[1], thr[2], -9)[x - 126])
    if gate and not MARK_AT:
        A("v_mov_b32 v24, 200")
        A("s_mov_b64 exec, 1")
        A(f"buffer_store_dword v24, v11, s[44:47], s{sPs} offen")
    stamp(2)
    stamp_flush()
    A("s_endpgm")

    if stamps:
        A("L_ldst:")
        for n, k in ((16, 4), (32, 5), (64, 6), (96, 7)):
            l = lab("st")
            A(f"s_cmp_lg_u32 s{sN}, {n}"); A(f"s_cbranch_scc1 {l}"); stamp(k); A(f"{l}:")
        A("s_branch L_ldst_back")

    def loader_rest():
        A("L_ctl:")
        A(f"s_cmp_eq_u32 s{sN}, 2")
        A("s_cbranch_scc1 L_ctl_init")
        if curve:
            A("s_memrealtime s[98:99]")
            A(f"s_lshr_b32 s97, s{sN}, 2")
            A("s_add_u32 s97, s97, 20")
            A("s_mov_b32 s96, m0")
            A("s_mov_b32 m0, s97")
        A("s_waitcnt lgkmcnt(0)")
        if curve:
            A(f"v_writelane_b32 v{VST}, s98, m0")
            A("s_mov_b32 m0, s96")
        A("v_add_u32 v15, v12, v13")
        A(f"v_mov_b32 v24, s{sN}")
        A("v_readfirstlane_b32 s78, v23")
        A("s_mov_b64 exec, 1")
        A(f"buffer_store_dword v24, v11, s[44:47], s{sPs} offen")
        A("s_mov_b64 exec, 0xffff")
        A("v_add_u32_dpp v15, v15, v15 quad_perm:[1,0,3,2] row_mask:0xf bank_mask:0xf")
        A(f"buffer_load_dwordx2 v[12:13], v14, s[44:47], s{sPl} offen sc1")
        A(f"ds_read_b32 v23, v8 offset:{F_CTL}")
        A("v_add_u32_dpp v15, v15, v15 quad_perm:[2,3,0,1] row_mask:0xf bank_mask:0xf")
        A("v_min3_i32 v20, v16, v17, v18")
        A(f"s_add_u32 s{sNc}, s{sNc}, 4")
        A("v_add_u32_dpp v15, v15, v15 row_half_mirror row_mask:0xf bank_mask:0xf")
        A("v_min_i32 v20, v20, v19")
        A(f"s_add_u32 s{sSmp}, s{sSmp}, {4*32*int(gain*256)}")
        A("v_add_u32_dpp v15, v15, v15 row_mirror row_mask:0xf bank_mask:0xf")
        A(f"v_readfirstlane_b32 s{sT}, v20")
        A("v_readfirstlane_b32 s76, v15")
        A("s_mov_b64 exec, -1")
        A(f"s_mul_i32 s76, s76, {int(gain*256)}")
        A(f"s_sub_i32 s76, s76, s{sSmp}")
        A("s_ashr_i32 s76, s76, 13")
        if endn:
            A(f"s_cmp_ge_u32 s{sN}, {endn}")
            A(f"s_cselect_b32 s77, {endadd}, 0")
            A("s_add_i32 s76, s76, s77")
        A(f"s_max_i32 s76, s76, {-idx0}")
        A(f"s_min_i32 s76, s76, {NV-1-idx0}")
        A(f"s_cmp_eq_u32 s{sPrevF}, {2 if ctl else 3}")
        A(f"s_cselect_b32 s{sIdx}, s76, s{sIdx}")
        A(f"s_mov_b32 s{sPrevF}, s78")
        A(f"s_bitcmp1_b32 s{sN}, 6")
        A("s_branch L_event3")
        A("L_ctl_init:")
        if fine:
            stamp(9)
        prog_addr(sPs, sPl)
        A(f"s_and_b32 s{sPl}, s{sPs}, 0xffffff80")
        A(f"s_lshr_b32 s{sNc}, s{S_J}, 2")
        A(f"s_add_u32 s{sNc}, s{sNc}, s{S_J}")
        A(f"s_and_b32 s{sNc}, s{sNc}, 3")
        A(f"s_add_u32 s{sNc}, s{sNc}, 3")
        A(f"s_mov_b32 s{sPrevF}, 0")
        A(f"s_sub_u32 s{sSmp}, s{sNc}, 8")
        A(f"s_mul_i32 s{sSmp}, s{sSmp}, {32*int(gain*256)}")
        A(f"s_cmp_eq_u32 s{S_KVH}, 7")
        A(f"s_cselect_b32 s{sCen}, {int(boost7 * 256 * 32)}, 0")
        A(f"s_add_u32 s{sCen}, s{sCen}, {int((0.5 + bias * gain) * 256 * 32)}")
        A(f"s_sub_u32 s{sSmp}, s{sSmp}, s{sCen}")
        if boostE:
            A(f"s_getreg_b32 s{sCen}, hwreg(HW_REG_XCC_ID, 0, 1)")
            A(f"s_mul_i32 s{sCen}, s{sCen}, {int(boostE * 256 * 32)}")
            A(f"s_add_u32 s{sSmp}, s{sSmp}, s{sCen}")
        A("v_mov_b32 v12, 0"); A("v_mov_b32 v13, 0"); A("v_mov_b32 v23, 0")
        A("s_branch L_event2")
        A("L_var:")
        others = [i for i in range(NV) if i != idx0]

        def tree(lst):
            if len(lst) == 1:
                body(lst[0])
                A("s_branch L_event")
                return
            mid = len(lst) // 2
            l = lab("tr")
            A(f"s_cmp_ge_i32 s{sIdx}, {lst[mid] - idx0}")
            A(f"s_cbranch_scc1 {l}")
            tree(lst[:mid])
            A(f"{l}:")
            tree(lst[mid:])
        tree(others)

    role[0] = "aux"
    SWQ, SX, SWS, SG, SU, SOUT = 40, 44, 48, 52, 56, 60
    sO, sTag, sA, sB2, sThr, sLoc = 64, 65, 66, 67, 75, 84
    XB, TF = 64, 96
    A("L_aux:")
    A(f"s_lshr_b32 s{sB2}, s{S_J}, 3")
    srd(SWS, P_WS, WS_BYTES)
    A(f"buffer_load_dword v24, v11, s[{SWS}:{SWS+3}], 0 offen sc1")
    prog_addr(76, 77)
    A("s_mov_b64 exec, 1")
    A(f"buffer_store_dword v11, v11, s[{SWS}:{SWS+3}], s76 offen")
    A("s_mov_b64 exec, -1")
    stamp(1)
    A(f"v_add_u32 v25, {hex(L_XN)}, v10")
    A("v_bfe_u32 v15, v0, 3, 1")
    A("v_lshlrev_b32 v26, 10, v15")
    A("v_lshl_add_u32 v26, v1, 3, v26")
    A(f"v_add_u32 v26, {hex(L_XN)}, v26")
    A(f"s_lshl_b32 s{sA}, s{sB2}, 8")
    A(f"v_add_u32 v28, s{sA}, v26")
    A(f"s_and_b32 s{sA}, s{S_J}, 7")
    A(f"s_lshl_b32 s{sA}, s{sA}, 7")
    A(f"v_add_u32 v26, s{sA}, v26")
    A("v_lshrrev_b32 v29, 2, v0")
    A("v_lshlrev_b32 v29, 7, v29")
    A("v_bfe_u32 v30, v0, 3, 2")
    A("v_lshl_or_b32 v29, v30, 5, v29")
    A("v_and_b32 v30, 3, v0")
    A("v_lshl_or_b32 v29, v30, 3, v29")
    A(f"v_add_u32 v160, {hex(L_TILE)}, v29")
    for T in range(1, 4):
        A(f"v_xor_b32 v{160+T}, {32*T}, v160")
    A("v_lshlrev_b32 v27, 6, v30")
    A("v_lshl_or_b32 v27, v1, 4, v27")
    A("v_lshl_or_b32 v31, v15, 13, v27")
    A(f"s_lshl_b32 s{sO}, s{S_KVH}, 14")
    A(f"s_lshl_b32 s{sA}, s{S_J}, 8")
    A(f"s_add_u32 s{sO}, s{sO}, s{sA}")
    A(f"s_add_u32 s{sO}, s{sO}, {hex(W_Q)}")
    for i in range(4):
        A(f"s_mov_b32 s{78+i}, {hex(0x07060500 + i)}")
    if True:
        A(f"buffer_load_dword v89, v31, s[{SWS}:{SWS+3}], s{sO} offen sc1")
    A("s_mov_b32 s68, 0xaaaaaaaa"); A("s_mov_b32 s69, s68")
    A("s_mov_b32 s70, 0xcccccccc"); A("s_mov_b32 s71, s70")
    A("s_mov_b32 s72, 0xf0f0f0f0"); A("s_mov_b32 s73, s72")
    A(f"s_waitcnt vmcnt(3)")
    stamp(2)
    XF = 32
    for b in range(2):
        for i in range(4):
            unpack(XF + 8 * b + 2 * i, 16 + 4 * b + i)
    for b in range(2):
        A(f"v_add_f32 v{48+b}, v{XF+8*b}, v{XF+8*b+1}")
    for i in range(2, 8):
        for b in range(2):
            A(f"v_add_f32 v{48+b}, v{48+b}, v{XF+8*b+i}")
    allreduce([48, 49], "v_add_f32", [50, 51])
    for b in range(2):
        A(f"v_mul_f32 v{48+b}, 0x3b000000, v{48+b}")
    for i in range(8):
        for b in range(2):
            A(f"v_sub_f32 v{52+b}, v{XF+8*b+i}, v{48+b}")
        for b in range(2):
            A(f"{'v_mul_f32' if i == 0 else 'v_fmac_f32'} v{54+b}, v{52+b}, v{52+b}")
    allreduce([54, 55], "v_add_f32", [50, 51])
    for b in range(2):
        A(f"v_mul_f32 v{54+b}, 0x3b000000, v{54+b}")
    A("v_cvt_pk_bf16_f32 v50, v48, v49")
    A("v_cvt_pk_bf16_f32 v51, v54, v55")
    unpack(48, 50)
    unpack(54, 51)
    A("v_add_f32 v54, 0x3727c5ac, v54"); A("v_add_f32 v55, 0x3727c5ac, v55")
    A("v_cvt_pk_bf16_f32 v51, v54, v55")
    unpack(54, 51)
    A("v_sqrt_f32 v54, v54"); A("v_sqrt_f32 v55, v55")
    nop(1)
    A("v_cvt_pk_bf16_f32 v51, v54, v55")
    unpack(54, 51)
    A("v_rcp_f32 v54, v54"); A("v_rcp_f32 v55, v55")
    for b in range(2):
        for i in range(8):
            A(f"v_sub_f32 v{XF+8*b+i}, v{XF+8*b+i}, v{48+b}")
        for i in range(4):
            A(f"v_cvt_pk_bf16_f32 v{56+4*b+i}, v{XF+8*b+2*i}, v{XF+8*b+2*i+1}")
        for i in range(4):
            unpack(XF + 8 * b + 2 * i, 56 + 4 * b + i)
        for i in range(8):
            A(f"v_mul_f32 v{XF+8*b+i}, v{XF+8*b+i}, v{54+b}")
        for i in range(4):
            A(f"v_cvt_pk_bf16_f32 v{56+4*b+i}, v{XF+8*b+2*i}, v{XF+8*b+2*i+1}")
        A(f"ds_write_b128 v25, v[{56+4*b}:{59+4*b}] offset:{1024*b}")
    A("s_waitcnt lgkmcnt(0)")
    for s in range(4):
        A(f"ds_read2_b64 v[{XB+4*s}:{XB+4*s+3}], v28 offset0:{8*s} offset1:{8*s+4}")
    for s in range(2):
        A(f"ds_read2_b64 v[{XB+16+4*s}:{XB+16+4*s+3}], v26 offset0:{8*s} offset1:{8*s+4}")
    stamp(3)
    lds_wait(F_LANDED, 2, 44, sA)
    A("s_waitcnt vmcnt(0)")
    stamp(4)

    def tile_mfma(acc_of, b_of, first):
        for hf in range(2):
            for s in range(2 * hf, 2 * hf + 2):
                for T in range(4):
                    r = TF + 16 * s + 4 * T
                    A(f"ds_read_b64_tr_b16 v[{r}:{r+1}], v{160+T} offset:{s*4096}")
                    A(f"ds_read_b64_tr_b16 v[{r+2}:{r+3}], v{160+T} offset:{s*4096+2048}")
                if s == 2 * hf:
                    A("s_waitcnt lgkmcnt(4)")
            A("s_waitcnt lgkmcnt(0)")
            for s in range(2 * hf, 2 * hf + 2):
                for T in range(4):
                    r = TF + 16 * s + 4 * T
                    d = acc_of(s, T)
                    c = "0" if first(s) else f"v[{d}:{d+3}]"
                    A(f"v_mfma_f32_16x16x32_bf16 v[{d}:{d+3}], v[{r}:{r+3}], v[{b_of(s)}:{b_of(s)+3}], {c}")

    def select_quad(D, out):
        for T in (0, 2):
            for r in range(4):
                A(f"v_cndmask_b32 v{D+4*T+r}, v{D+4*T+r}, v{D+4*T+4+r}, s[68:69]")
        for r in range(4):
            A(f"v_cndmask_b32 v{out+r}, v{D+r}, v{D+8+r}, s[70:71]")
        for r in range(4):
            A(f"v_add_u32 v{out+r}, 0x80, v{out+r}")

    def put_tag(dst, src, vtag):
        for r in range(4):
            A(f"v_perm_b32 v{dst+r}, v{src+r}, v{vtag}, s{78+r}")

    tile_mfma(lambda s, T: 32 + 4 * T, lambda s: XB + 4 * s, lambda s: s == 0)
    make_tag(sTag, 24)
    local_tag(sA, sTag)
    A(f"v_mov_b32 v90, s{sA}")
    A(f"v_mov_b32 v91, s{sTag}")
    select_quad(32, 16)
    put_tag(20, 16, 90)
    A("s_not_b64 exec, s[72:73]")
    A(f"buffer_store_dwordx4 v[20:23], v31, s[{SWS}:{SWS+3}], s{sO} offen")
    A("s_mov_b64 exec, -1")
    A("v_mov_b32 v88, 1")
    A("s_setprio 0")
    A(f"s_add_u32 s{sO}, s{sO}, {hex(W_QB - W_Q)}")
    put_tag(16, 16, 91)
    A(f"s_mov_b32 s{sB2}, 1")
    stamp(5)
    for T in range(4):
        A(f"v_add_u32 v{160+T}, {L_T2 - L_TILE}, v{160+T}")
    lds_wait(F_LANDED, 4, 44, sA)
    tile_mfma(lambda s, T: 32 + 16 * (s >> 1) + 4 * T, lambda s: XB + 16 + 4 * (s & 1), lambda s: s in (0, 2))
    lds_set(8, F_TILE, 88)
    nop(2)
    for i in range(16):
        A(f"v_cndmask_b32 v{32+i}, v{32+i}, v{48+i}, s[72:73]")
    select_quad(32, 92)
    put_tag(92, 92, 91)
    stamp(6)
    A("L_qserve:")
    A(f"ds_read_b128 v[44:47], v8 offset:{F_QRDY}")
    A(f"ds_read_b32 v48, v8 offset:{F_BREQ}")
    spin_guard()
    A("s_waitcnt lgkmcnt(0)")
    A("v_min3_i32 v44, v44, v45, v46")
    A("v_min_i32 v44, v44, v47")
    A(f"v_readfirstlane_b32 s{sA}, v48")
    A(f"v_readfirstlane_b32 s{sLoc}, v44")
    A(f"s_and_b32 s{sA}, s{sA}, s{sB2}")
    A("s_cbranch_scc0 L_qnob")
    A("s_not_b64 exec, s[72:73]")
    A(f"buffer_store_dwordx4 v[16:19], v31, s[{SWS}:{SWS+3}], s{sO} offen sc1")
    A("s_mov_b64 exec, -1")
    A(f"s_mov_b32 s{sB2}, 0")
    A("L_qnob:")
    A(f"s_cmp_eq_u32 s{sLoc}, 0")
    A("s_cbranch_scc1 L_qserve")
    A(f"s_cmp_ge_u32 s{S_KVH}, {0 if noffn else 7}")
    A("s_cbranch_scc1 L_noffn1")
    A("v_lshl_or_b32 v30, v15, 8, v27")
    A("v_bfe_u32 v29, v0, 2, 1")
    A("v_lshl_or_b32 v30, v29, 9, v30")
    A(f"s_lshl_b32 s{sO}, s{S_W}, 10")
    A(f"s_add_u32 s{sO}, s{sO}, {hex(W_F)}")
    store_by(sLoc, [f"buffer_store_dwordx4 v[92:95], v30, s[{SWS}:{SWS+3}], s{sO} offen"])
    A("L_noffn1:")
    stamp(7)
    stamp_flush()
    A("s_endpgm")

    role[0] = "cons"
    SWS = 48
    sC, sLd, sTg, sL2E, sSc, sA, sB2, sTag, sLoc = 60, 61, 62, 63, 64, 65, 66, 67, 84
    AV, VDN, AK = 6, 9, 144
    S, O, KF, Q, SV = 16, 24, 32, 64, 128
    VF, PF = 32, 40
    vM, vNM, vL, vT, vT2, vPW, vPR = 152, 153, 154, 155, 156, 157, 158
    A("L_other:")
    srd(SWS, P_WS, WS_BYTES)
    A(f"buffer_load_dword v164, v11, s[{SWS}:{SWS+3}], 0 offen sc1")
    A("s_cmp_ge_u32 s3, 6")
    A("s_cbranch_scc1 L_tail")
    if pads:
        A("s_mov_b64 exec, 0")
        A("s_branch L_vlast")
        A("L_cpad:")
        A("s_mov_b64 exec, -1")
    A("s_setprio 1")
    A(f"s_sub_u32 s{sC}, s3, 2")
    A(f"s_lshr_b32 s69, s{S_W}, 4")
    A("s_lshl_b32 s69, s69, 13")
    A(f"s_lshl_b32 s{sA}, s{sC}, 9")
    A(f"s_add_u32 s69, s69, s{sA}")
    A(f"s_add_u32 s69, s69, {hex(W_Q)}")
    A("s_add_u32 s70, s69, 0x1000")
    A("v_lshrrev_b32 v12, 5, v0")
    A("v_and_b32 v165, 0x1f0, v10")
    A("v_lshl_or_b32 v165, v12, 11, v165")
    A(f"s_mov_b32 s{sL2E}, {hex(LOG2E)}")
    A(f"s_mov_b32 s{sSc}, {hex(SCALE)}")
    A("v_and_b32 v15, 3, v0")
    A("v_lshlrev_b32 v160, 9, v15")
    A(f"v_bfe_u32 v{vT2}, v0, 2, 1")
    A(f"v_lshl_or_b32 v160, v{vT2}, 6, v160")
    A("v_lshl_or_b32 v160, v1, 4, v160")
    A(f"s_lshl_b32 s68, s{S_W}, 11")
    A(f"s_lshl_b32 s{sA}, s{sC}, 7")
    A(f"s_add_u32 s68, s68, s{sA}")
    A(f"s_add_u32 s68, s68, {hex(W_O)}")
    A(f"s_lshl_b32 s73, s{S_KVH}, 2")
    A(f"s_add_u32 s73, s73, s{sC}")
    A("s_lshl_b32 s73, s73, 1")
    A(f"s_add_u32 s73, s73, s{S_B}")
    A("s_lshl_b32 s73, s73, 2")
    A(f"s_and_b32 s{sA}, s{S_S}, 3")
    A(f"s_add_u32 s73, s73, s{sA}")
    A("s_lshl_b32 s73, s73, 2")
    A(f"s_lshr_b32 s{sA}, s{S_S}, 2")
    A(f"s_add_u32 s73, s73, s{sA}")
    A("s_lshl_b32 s73, s73, 4")
    A(f"s_add_u32 s73, s73, {hex(W_ML)}")
    A(f"v_lshlrev_b32 v{vPR}, 4, v15")
    A(f"v_lshl_or_b32 v{vPR}, v1, 6, v{vPR}")
    A(f"v_add_u32 v{vPR}, {hex(L_TILE)}, v{vPR}")
    A(f"v_bfe_u32 v{vT}, v0, 2, 2")
    A(f"v_lshl_add_u32 v{vPW}, v{vT}, 10, v{vPR}")
    A(f"s_lshl_b32 s{sA}, s{sC}, 8")
    A(f"v_add_u32 v{vPW}, s{sA}, v{vPW}")
    A(f"s_add_u32 s{sA}, s{sA}, {hex(L_Q)}")
    A(f"v_lshl_add_u32 v2, v0, 3, s{sA}")
    A("v_lshlrev_b32 v3, 8, v15")
    A("v_lshl_add_u32 v3, v1, 6, v3")
    A(f"v_add_u32 v3, {hex(L_Q)}, v3")
    A("v_lshl_add_u32 v4, v15, 4, v8")
    A(f"s_lshl_b32 s{sA}, s{sC}, 2")
    A(f"v_add_u32 v5, s{sA}, v4")
    A(f"v_add_u32 v{VDN}, s{sA}, v8")
    A("v_and_b32 v14, 15, v0")
    A("v_and_b32 v12, 7, v0")
    A("v_lshlrev_b32 v12, 1, v12")
    A("v_bfe_u32 v13, v0, 3, 1")
    A("v_or_b32 v12, v12, v13")
    A("v_lshlrev_b32 v13, 2, v1")
    A("v_xor_b32 v12, v12, v13")
    A("v_lshlrev_b32 v12, 4, v12")
    A("v_lshl_or_b32 v12, v14, 8, v12")
    A(f"s_lshl_b32 s{sA}, s{sC}, 13")
    A(f"v_or_b32 v{AK}, s{sA}, v12")
    for s in range(1, 8):
        A(f"v_xor_b32 v{AK+s}, {hex(16*(s&3) + 0x10000*(s>>2))}, v{AK}")
    vaddr_T0(13, 12, 14, 15)
    A(f"s_lshl_b32 s{sA}, s{sC}, 6")
    A(f"v_xor_b32 v{AV}, s{sA}, v13")
    A(f"v_xor_b32 v{AV+1}, 32, v{AV}")
    A(f"s_mov_b32 s{sLd}, 0")
    A(f"s_sub_u32 s{sTg}, s{sC}, 3")
    A(f"v_mov_b32 v{vM}, 0xff800000")
    A(f"v_mov_b32 v{vL}, 0")
    for i in range(8):
        A(f"v_mov_b32 v{O+i}, 0")
    A("s_mov_b32 s76, 0x000f000f"); A("s_mov_b32 s77, s76")
    for g in range(1, 4):
        A(f"s_lshl_b64 s[{76+2*g}:{77+2*g}], s[76:77], {4*g}")
    A("v_mov_b32 v159, 1")
    if diag is not None:
        A("s_mov_b32 s88, s90")
    SX, SOUT = 40, 44
    vYA = 153
    srd(SX, P_X, 2048)
    srd(SOUT, P_OUT, 2048)
    A(f"s_lshl_b32 s85, s{S_J}, 2")
    A(f"s_add_u32 s85, s85, s{sC}")
    A("s_lshl_b32 s85, s85, 4")
    A("v_and_b32 v12, 1, v0")
    A("v_bfe_u32 v13, v0, 2, 2")
    A("v_lshlrev_b32 v13, 1, v13")
    A("v_lshl_or_b32 v161, v12, 3, v13")
    A("v_lshrrev_b32 v13, 1, v0")
    A("v_lshlrev_b32 v13, 11, v13")
    A(f"v_lshl_or_b32 v{vYA}, v12, 4, v13")
    A("v_lshrrev_b32 v163, 3, v0")
    A("v_lshlrev_b32 v163, 7, v163")
    A(f"s_lshl_b32 s52, s{S_B}, 16")
    A("s_and_b32 s53, s85, 0x3ff")
    A("s_lshl_b32 s53, s53, 1")
    A("s_add_u32 s52, s52, s53")
    A(f"s_add_u32 s52, s52, {hex(W_Y)}")
    A(f"s_mov_b32 s59, {hex(W_IND)}")
    A(f"s_lshl_b32 s58, s{S_W}, 2")
    A(f"s_add_u32 s58, s58, {hex(W_MARK)}")
    A("s_and_b32 s53, s58, 0xffffff80")
    A(f"s_cmp_lg_u32 s{S_KVH}, {FX}")
    A("s_cbranch_scc1 L_nofin")
    A(f"buffer_load_ushort v162, v161, s[{SX}:{SX+3}], s85 offen")
    A("s_mov_b64 exec, 1")
    A(f"buffer_store_short v11, v161, s[{SOUT}:{SOUT+3}], s85 offen")
    A("s_mov_b64 exec, -1")
    A("L_nofin:")
    A("s_waitcnt vmcnt(0)")
    make_tag(sTag, 164)
    local_tag(74, sTag)
    for i in range(4):
        A(f"s_bfe_u32 s{54+i}, s{sTag}, {hex(0x80000 + 8*i)}")
    A("v_lshlrev_b32 v162, 16, v162")
    A(f"v_mov_b32 v164, s{sTag}")
    stamp(1)
    lds_wait(F_TILE, 1, vT, sA)
    stamp(5)
    A("s_mov_b64 vcc, -1")
    A(f"s_mov_b32 s{sB2}, 0")
    A("L_qpoll:")
    A(f"s_add_u32 s{sB2}, s{sB2}, 1")
    A(f"s_and_b32 s{sA}, s{sB2}, {(QB_EVERY - 1) if fast else 0}")
    A(f"s_cselect_b32 s{sA}, 0, {hex(W_QB - W_Q)}")
    A(f"s_cselect_b32 s75, s74, s{sTag}")
    A("s_cselect_b64 exec, 0, 1")
    A(f"ds_write_b32 v8, v159 offset:{F_BREQ}")
    A("s_mov_b64 exec, vcc")
    A(f"v_add_u32 v15, s{sA}, v165")
    for i in range(2):
        A(f"buffer_load_dwordx4 v[{KF+4*i}:{KF+4*i+3}], v15, s[{SWS}:{SWS+3}], s{69+i} offen sc1")
    for i in range(4):
        A(f"s_bfe_u32 s{92+i}, s75, {hex(0x80000 + 8*i)}")
    spin_guard()
    A("s_waitcnt vmcnt(0)")
    byte_check(KF, 8, 92, vT)
    A("s_cbranch_vccnz L_qpoll")
    A("s_mov_b64 exec, -1")
    stamp(6)
    for k in range(4):
        A(f"v_add_f32 v{KF+k}, v{KF+k}, v{KF+4+k}")
    allreduce([KF + k for k in range(4)], "v_add_f32", [KF + 4 + k for k in range(4)], steps=("p32",))
    A(f"v_cvt_pk_bf16_f32 v{KF+8}, v{KF}, v{KF+1}")
    A(f"v_cvt_pk_bf16_f32 v{KF+9}, v{KF+2}, v{KF+3}")
    A("s_mov_b32 exec_hi, 0")
    A(f"ds_write_b64 v2, v[{KF+8}:{KF+9}]")
    A("s_mov_b32 exec_hi, -1")
    A(f"s_cmp_lt_u32 s{sB2}, {QB_EVERY if fast else 0}")
    A(f"s_cselect_b32 s{sA}, 2, 1")
    A(f"v_mov_b32 v{vT2}, s{sA}")
    lds_set(VDN, F_QRDY, vT2)
    lds_wait4(F_QRDY, 1, S, [f"ds_read_b128 v[{KF+4*s}:{KF+4*s+3}], v3 offset:{16*s}" for s in range(4)])
    A(f"v_readfirstlane_b32 s{sLoc}, v{S}")
    lds_set(8, F_CTL, S)
    if wearly:
        lds_wait4(F_WRDY, 2, S)
    for g in range(4):
        for i in range(16):
            A(f"v_cndmask_b32 v{Q+16*g+i}, 0, v{KF+i}, s[{76+2*g}:{77+2*g}]")
    stamp(2)

    def wait_landed(tgt):
        lo, ls = lab("lo"), lab("ls")
        A(f"s_cmp_ge_i32 s{sLd}, {tgt}")
        A(f"s_cbranch_scc1 {lo}")
        A(f"{ls}:")
        if slpc:
            A(f"s_sleep {slpc}")
        A(f"ds_read_b32 v{vT}, v8 offset:{F_LANDED}")
        spin_guard()
        A("s_waitcnt lgkmcnt(0)")
        A(f"v_readfirstlane_b32 s{sLd}, v{vT}")
        A(f"s_sub_u32 s{sLd}, s{sLd}, {LB}")
        A(f"s_cmp_ge_i32 s{sLd}, {tgt}")
        A(f"s_cbranch_scc0 {ls}")
        A(f"{lo}:")

    A("L_kwin:")
    for g in range(4):
        A(f"s_add_u32 s{sTg}, s{sTg}, 4")
        wait_landed(f"s{sTg}")
        for t in range(2):
            for s in range(4):
                r = KF + 16 * t + 4 * s
                A(f"ds_read_b128 v[{r}:{r+3}], v{AK + 4*(g>>1) + s} offset:{(g&1)*32768 + t*4096}")
        A(f"s_add_u32 s{sA}, s{sTg}, 3")
        A(f"s_min_u32 s{sA}, s{sA}, 64")
        A(f"v_mov_b32 v{vT2}, s{sA}")
        for t in range(2):
            A(f"s_waitcnt lgkmcnt({4 if t == 0 else 0})")
            if t == 1:
                lds_set(VDN, F_DONE, vT2)
            for s in range(4):
                r = KF + 16 * t + 4 * s
                c = "0" if (g == 0 and s == 0) else f"v[{S+4*t}:{S+4*t+3}]"
                q = Q + 16 * g + 4 * s
                A(f"v_mfma_f32_16x16x32_bf16 v[{S+4*t}:{S+4*t+3}], v[{r}:{r+3}], v[{q}:{q+3}], {c}")
    for i in range(12):
        A(f"v_mov_b32 v{SV+i}, v{SV+4+i}")
    for i in range(4):
        A(f"v_cvt_pk_bf16_f32 v{SV+12+i}, v{S+2*i}, v{S+2*i+1}")
    for i in range(4):
        unpack(S + 2 * i, SV + 12 + i)
    for i in range(8):
        A(f"v_mul_f32 v{S+i}, s{sSc}, v{S+i}")
    for i in range(4):
        A(f"v_cvt_pk_bf16_f32 v{SV+12+i}, v{S+2*i}, v{S+2*i+1}")
    A(f"v_max3_f32 v{vM}, v{vM}, v{S}, v{S+1}")
    A(f"v_max3_f32 v{vT}, v{S+2}, v{S+3}, v{S+4}")
    A(f"v_max3_f32 v{vM}, v{vM}, v{S+5}, v{S+6}")
    A(f"v_max3_f32 v{vM}, v{vM}, v{vT}, v{S+7}")
    A(f"s_cmp_lt_u32 s{sTg}, 60")
    A("s_cbranch_scc1 L_kwin")
    stamp(3)
    for i in range(4):
        A(f"v_mov_b32 v{KF+8+i}, -1")
    A("s_mov_b32 exec_lo, 0x00ff00ff"); A("s_mov_b32 exec_hi, 0x00ff00ff")
    store_by(sLoc, [f"buffer_store_dwordx4 v[{KF+8}:{KF+11}], v160, s[{SWS}:{SWS+3}], s68 offen"])
    A("s_mov_b64 exec, -1")
    allreduce([vM], "v_max_f32", [vT], steps=("r4", "r8", "p16", "p32"))
    A("s_mov_b64 exec, 15")
    A(f"ds_write_b32 v5, v{vM} offset:{L_M - L_FLAG}")
    lds_set(VDN, F_MRDY, 159)
    lds_wait4(F_HRDY, 1, S)
    lds_wait4(F_MRDY, 1, S, [f"ds_read_b128 v[{S+4}:{S+7}], v4 offset:{L_M - L_FLAG}"])
    A(f"v_max3_f32 v{vM}, v{S+4}, v{S+5}, v{S+6}")
    A(f"v_max_f32 v{vM}, v{vM}, v{S+7}")
    A(f"v_cvt_pk_bf16_f32 v{vM}, v{vM}, v{vM}")
    A(f"v_and_b32 v{vM}, 0xffff0000, v{vM}")
    A(f"v_mul_f32 v{vM}, s{sL2E}, v{vM}")
    A(f"s_mov_b32 s{sA}, 4")
    A("L_pwin:")
    for i in range(4):
        unpack(S + 2 * i, SV + i)
    for i in range(8):
        A(f"v_fma_f32 v{S+i}, v{S+i}, s{sL2E}, -v{vM}")
    for i in range(8):
        A(f"v_exp_f32 v{S+i}, v{S+i}")
    for i in range(12):
        A(f"v_mov_b32 v{SV+i}, v{SV+4+i}")
    A("s_waitcnt lgkmcnt(0)")
    for i in range(4):
        A(f"v_cvt_pk_bf16_f32 v{KF+i}, v{S+2*i}, v{S+2*i+1}")
    A(f"ds_write_b128 v{vPW}, v[{KF}:{KF+3}]")
    for i in range(8):
        A(f"v_add_f32 v{vL}, v{vL}, v{S+i}")
    A(f"v_add_u32 v{vPW}, 0x1000, v{vPW}")
    A(f"s_sub_u32 s{sA}, s{sA}, 1")
    A(f"s_cmp_lg_u32 s{sA}, 0")
    A("s_cbranch_scc1 L_pwin")
    allreduce([vL], "v_add_f32", [vT], steps=("r4", "r8", "p16", "p32"))
    A("s_mov_b64 exec, 15")
    A(f"ds_write_b32 v5, v{vL} offset:{L_L - L_FLAG}")
    A("s_waitcnt vmcnt(0)")
    lds_set(VDN, F_PRDY, 159)
    lds_wait4(F_PRDY, 1, S, [f"ds_read_b128 v[{S+4}:{S+7}], v4 offset:{L_L - L_FLAG}"])
    A(f"v_add_f32 v{S+4}, v{S+4}, v{S+5}")
    A(f"v_add_f32 v{S+6}, v{S+6}, v{S+7}")
    A(f"v_mov_b32 v{S}, v{vM}")
    A(f"v_mov_b32 v{S+1}, s{sTag}")
    A(f"v_add_f32 v{S+2}, v{S+4}, v{S+6}")
    A(f"v_mov_b32 v{S+3}, s{sTag}")
    A(f"s_lshl_b64 exec, 1, s{sC}")
    store_by(sLoc, [f"buffer_store_dwordx4 v[{S}:{S+3}], v11, s[{SWS}:{SWS+3}], s73 offen"])
    A("s_mov_b64 exec, -1")
    A(f"s_mov_b32 s{sTg}, 64")
    stamp(7)
    def v_reads(g):
        return [f"ds_read_b64_tr_b16 v[{VF+4*tt+2*h}:{VF+4*tt+2*h+1}], v{AV+tt} offset:{g*8192 + h*4096}" for tt in range(2) for h in range(2)]

    def v_mfma(tt):
        A(f"v_mfma_f32_16x16x32_bf16 v[{O+4*tt}:{O+4*tt+3}], v[{VF+4*tt}:{VF+4*tt+3}], v[{PF}:{PF+3}], v[{O+4*tt}:{O+4*tt+3}]")

    A("L_vwin:")
    for g in range(4):
        A(f"ds_read_b128 v[{PF}:{PF+3}], v{vPR} offset:{g*256}")
        A(f"s_add_u32 s{sTg}, s{sTg}, 1")
        if g == 3:
            A(f"s_cmp_eq_u32 s{sTg}, 128")
            A("s_cbranch_scc1 L_vlast")
        wait_landed(f"s{sTg}")
        for r in v_reads(g):
            A(r)
        A(f"v_mov_b32 v{vT2}, s{sTg}")
        for tt in range(2):
            A(f"s_waitcnt lgkmcnt({2 if tt == 0 else 0})")
            v_mfma(tt)
        lds_set(VDN, F_DONE, vT2)
    for tt in range(2):
        A(f"v_add_u32 v{AV+tt}, 0x8000, v{AV+tt}")
        A(f"v_and_b32 v{AV+tt}, 0x1ffff, v{AV+tt}")
    A(f"v_add_u32 v{vPR}, 0x400, v{vPR}")
    A("s_branch L_vwin")
    A(".p2align 6")
    A("L_vlast:")
    if pads:
        A("s_cbranch_execz L_cpad")
    if spec:
        A("L_vl2:")
        A(f"ds_read_b32 v{vT}, v8 offset:{F_LANDED}")
        for r in v_reads(3):
            A(r)
        spin_guard()
        A("s_waitcnt lgkmcnt(4)")
        A(f"v_cmp_gt_i32 vcc, {128 + LB}, v{vT}")
        A("s_cbranch_vccnz L_vl2")
    else:
        wait_landed(128)
        for r in v_reads(3):
            A(r)
    for tt in range(2):
        A(f"s_waitcnt lgkmcnt({2 if tt == 0 else 0})")
        v_mfma(tt)
    A(f"s_cmp_eq_u32 s{sLoc}, 2")
    A("s_mov_b32 s86, 0x00ff00ff")
    A("s_mov_b32 s87, s86")
    nop(5)
    for i in range(4):
        A(f"v_mov_b32_dpp v{O+i}, v{O+4+i} row_shr:4 row_mask:0xf bank_mask:0x2")
    A("s_mov_b64 exec, s[86:87]")
    A("s_cbranch_scc0 L_o_far")
    A(f"buffer_store_dwordx4 v[{O}:{O+3}], v160, s[{SWS}:{SWS+3}], s68 offen")
    A("L_o_pub:")
    if opre == 3:
        A(f"v_mov_b32 v{vT2}, 128")
        lds_set(VDN, F_DONE, vT2)
    stamp(4)
    if early:
        A(f"s_cmp_lg_u32 s{sC}, 0")
        A("s_cbranch_scc1 L_o_end")
        A("s_mov_b64 exec, 1")
        A(f"buffer_store_dword v164, v11, s[{SWS}:{SWS+3}], s58 offen")
        A("s_mov_b64 exec, 0xff")
        A(f"buffer_load_dwordx4 v[{S}:{S+3}], v10, s[{SWS}:{SWS+3}], s53 offen sc1")
        A(f"s_lshl_b32 s{sA}, s{S_KVH}, 7")
        A(f"s_add_u32 s{sA}, s{sA}, s59")
        A("s_waitcnt vmcnt(0)")
        A(f"v_min3_u32 v{vT}, v{S}, v{S+1}, v{S+2}")
        A(f"v_max3_u32 v{vT2}, v{S}, v{S+1}, v{S+2}")
        A(f"v_min_u32 v{vT}, v{vT}, v{S+3}")
        A(f"v_max_u32 v{vT2}, v{vT2}, v{S+3}")
        A(f"v_cmp_ne_u32 vcc, v164, v{vT}")
        A(f"v_cmp_ne_u32 s[86:87], v164, v{vT2}")
        A("s_or_b64 vcc, vcc, s[86:87]")
        A("s_cbranch_scc1 L_o_end")
        A("s_mov_b64 exec, 1")
        A(f"buffer_store_dword v164, v11, s[{SWS}:{SWS+3}], s{sA} offen sc1")
        stamp(12)
    A("L_o_end:")
    A(f"s_cmp_lg_u32 s{S_KVH}, {FX}")
    A("s_cbranch_scc1 L_c_end")
    A("s_mov_b64 exec, -1")
    lds_wait4(F_ORDY, 1, S)
    stamp(9)
    YG = 32
    A("s_mov_b64 s[86:87], -1")
    if not ind:
        A("s_branch L_ypoll")
    A("v_not_b32 v13, v164")
    A("L_ipoll:")
    if not yall:
        A("s_mov_b64 exec, s[86:87]")
    A(f"buffer_load_dword v13, v163, s[{SWS}:{SWS+3}], s59 offen sc1")
    spin_guard()
    A(f"s_waitcnt vmcnt({icap})")
    if yall:
        A("v_cmp_ne_u32 vcc, v164, v13")
        A("s_cbranch_vccnz L_ipoll")
        stamp(13)
        A("L_ypoll:")
    else:
        A("v_cmp_eq_u32 vcc, v164, v13")
        A("s_and_b64 exec, exec, vcc")
        A("s_cbranch_execz L_ipoll")
    A(f"buffer_load_dwordx4 v[{YG}:{YG+3}], v{vYA}, s[{SWS}:{SWS+3}], s52 offen sc1")
    spin_guard()
    A("s_waitcnt vmcnt(0)")
    for k in range(4):
        A(f"v_xor_b32 v{YG+k}, s{54+k}, v{YG+k}")
    A(f"v_or3_b32 v{vT}, v{YG}, v{YG+1}, v{YG+2}")
    A(f"v_or_b32 v{vT}, v{vT}, v{YG+3}")
    A(f"v_and_b32 v{vT}, 0xff, v{vT}")
    if yall:
        A(f"v_cmp_ne_u32 vcc, 0, v{vT}")
        A("s_and_b64 exec, exec, vcc")
        A("s_cbranch_scc1 L_ypoll")
    else:
        A(f"v_cmp_eq_u32 vcc, 0, v{vT}")
        A("s_andn2_b64 s[86:87], s[86:87], vcc")
        A("s_cbranch_scc1 L_ipoll")
    A("s_mov_b64 exec, -1")
    stamp(10)
    A(f"v_add_f32_dpp v{YG+4}, v{YG}, v{YG} row_ror:12 row_mask:0xf bank_mask:0x5")
    A(f"v_add_f32_dpp v{YG+5}, v{YG+2}, v{YG+2} row_ror:12 row_mask:0xf bank_mask:0x5")
    nop(1)
    A(f"v_add_f32_dpp v{YG+4}, v{YG+1}, v{YG+1} row_ror:4 row_mask:0xf bank_mask:0xa")
    A(f"v_add_f32_dpp v{YG+5}, v{YG+3}, v{YG+3} row_ror:4 row_mask:0xf bank_mask:0xa")
    nop(1)
    A(f"v_add_f32_dpp v{YG+6}, v{YG+4}, v{YG+4} row_ror:8 row_mask:0xf bank_mask:0x3")
    nop(2)
    A(f"v_add_f32_dpp v{YG+6}, v{YG+5}, v{YG+5} row_ror:8 row_mask:0xf bank_mask:0xc")
    allreduce([YG + 6], "v_add_f32", [YG + 7], steps=("x2", "p16", "p32"))
    A(f"v_add_f32 v{YG+6}, v{YG+6}, v162")
    A("s_mov_b64 exec, 0x3333")
    A(f"v_cvt_pk_bf16_f32 v{YG+6}, v{YG+6}, v{YG+6}")
    A(f"buffer_store_short v{YG+6}, v161, s[{SOUT}:{SOUT+3}], s85 offen")
    A("s_cmp_lg_u32 s85, 0")
    A("s_cbranch_scc1 L_c_st")
    A("s_mov_b64 exec, 1")
    A(f"buffer_store_dword v164, v11, s[{SWS}:{SWS+3}], 0 offen")
    A("L_c_st:")
    stamp(11)
    A("L_c_end:")
    stamp_flush()
    if diag is not None:
        A("s_sub_u32 s88, s88, s90")
        A("s_add_u32 s88, s88, 10000")
        A("L_diag:")
        A("s_memrealtime s[86:87]")
        A("s_waitcnt lgkmcnt(0)")
        A("s_sub_u32 s86, s86, s90")
        A("s_cmp_lt_u32 s86, s88")
        A("s_cbranch_scc1 L_diag")
    A("s_endpgm")
    A("L_o_far:")
    A(f"buffer_store_dwordx4 v[{O}:{O+3}], v160, s[{SWS}:{SWS+3}], s68 offen sc1")
    A("s_branch L_o_pub")

    role[0] = "tail"
    SWO, SD = 40, 44
    sTw, sA, sB2, sTag, sWo, sDo, sO = 60, 65, 66, 67, 63, 64, 61
    GA, GB, WF, DF, HB, Y, R, W = 64, 80, 96, 112, 120, 128, 132, 136
    A("L_tail:")
    if pads:
        A("s_mov_b64 exec, 0")
        A("s_branch L_tend")
        A("L_tpad:")
        A("s_mov_b64 exec, -1")
    A(f"s_sub_u32 s{sTw}, s3, 6")
    srd(SWO, P_WO, 0 if nowt else 4096 * 512 * 2)
    srd(SD, P_D, 0 if nowt else 1792 * 512 * 2)
    A("v_lshl_or_b32 v4, v12, 10, v13")
    for i in range(1, 4):
        A(f"v_add_u32 v{4+i}, {i*(8192-1024)}, v4")
    A(f"s_lshr_b32 s{sO}, s{S_W}, 3")
    A(f"s_lshl_b32 s{sDo}, s{sO}, 2")
    A(f"s_add_u32 s{sDo}, s{sDo}, s{sTw}")
    A(f"s_lshl_b32 s{sWo}, s{sDo}, 15")
    A(f"s_lshl_b32 s{sDo}, s{sDo}, 14")
    A(f"s_and_b32 s{sB2}, s{S_J}, 7")
    A(f"s_lshl_b32 s{sA}, s{sB2}, 7")
    A(f"s_add_u32 s{sWo}, s{sWo}, s{sA}")
    A(f"s_add_u32 s{sDo}, s{sDo}, s{sA}")
    A(f"s_cmp_lt_u32 s{S_KVH}, 7")
    A(f"s_cselect_b32 s{sDo}, s{sDo}, 0")
    A(f"s_cselect_b32 s{SD+2}, s{SD+2}, 0")
    A(f"s_lshl_b32 s83, s{sTw}, 12")
    A(f"s_lshl_b32 s84, s{sTw}, 11")
    A(f"s_add_u32 m0, s84, {hex(L_DN)}")
    A(f"s_lshl_b32 s69, s{sO}, 9")
    if tdelay:
        lds_wait(F_LANDED, tdelay, 20, sA)
    for i in range(2):
        A(f"buffer_load_dwordx4 v{4+i}, s[{SD}:{SD+3}], s{sDo} offen offset:{i*1024} {pW} lds")
    if wearly:
        A("s_add_u32 m0, s83, 0x18000")
        nop(1)
        for i in range(4):
            A(f"buffer_load_dwordx4 v{4+i}, s[{SWO}:{SWO+3}], s{sWo} offen offset:{i*1024} {pW} lds")
    A(f"s_add_u32 s69, s69, {hex(W_ML)}")
    A("v_lshlrev_b32 v14, 7, v0")
    l1, l2, l3 = lab("tt"), lab("tt"), lab("tt")
    A(f"s_cmp_ge_u32 s{sTw}, 2")
    A(f"s_cbranch_scc1 {l1}")
    if touch:
        A(f"s_lshl_b32 s{sA}, s{S_W}, 11")
        A(f"s_lshr_b32 s{sA}, s{sA}, s{sTw}")
        A(f"s_mul_i32 s70, s{sTw}, {hex(W_F - W_O)}")
        A(f"s_add_u32 s{sA}, s{sA}, s70")
        A(f"s_add_u32 s{sA}, s{sA}, {hex(W_O)}")
        A(f"s_lshl_b32 s70, s{sTw}, 3")
        A("s_lshr_b64 exec, 0xffff, s70")
        A(f"buffer_load_dword v17, v14, s[{SWS}:{SWS+3}], s{sA} offen sc1")
    A(f"s_branch {l3}")
    A(f"{l1}:")
    A(f"s_cmp_eq_u32 s{sTw}, 2")
    A(f"s_cbranch_scc0 {l2}")
    A("s_mov_b64 exec, 15")
    A(f"buffer_load_dword v17, v14, s[{SWS}:{SWS+3}], s69 offen sc1")
    A(f"s_lshl_b32 s{sA}, s{S_KVH}, 7")
    A(f"s_add_u32 s{sA}, s{sA}, {hex(W_MARK)}")
    A("s_mov_b64 exec, 1")
    A(f"buffer_load_dword v18, v11, s[{SWS}:{SWS+3}], s{sA} offen sc1")
    A(f"s_branch {l3}")
    A(f"{l2}:")
    A("s_mov_b64 exec, 1")
    A(f"buffer_load_dword v17, v11, s[{SWO}:{SWO+3}], s{sWo} offen {pW}")
    if kvtouch:
        srd(52, P_K, 0x8000000)
        srd(56, P_V, 0x8000000)
        A(f"s_lshl_b32 s{sA}, s{S_B}, 3")
        A(f"s_add_u32 s{sA}, s{sA}, s{S_KVH}")
        A(f"s_lshl_b32 s{sA}, s{sA}, 4")
        A(f"s_add_u32 s{sA}, s{sA}, s{S_S}")
        A(f"s_lshl_b32 s{sA}, s{sA}, 19")
        A(f"buffer_load_dword v18, v11, s[52:55], s{sA} offen nt")
        A(f"buffer_load_dword v19, v11, s[56:59], s{sA} offen nt")
    A(f"{l3}:")
    A("s_mov_b64 exec, -1")
    A("v_lshrrev_b32 v144, 2, v0")
    A("v_lshlrev_b32 v144, 7, v144")
    A("v_bfe_u32 v14, v0, 3, 2")
    A(f"v_xor_b32 v14, s{sTw}, v14")
    A("v_lshl_or_b32 v144, v14, 5, v144")
    A("v_and_b32 v2, 3, v0")
    A("v_lshl_or_b32 v144, v2, 3, v144")
    A(f"v_add_u32 v145, {hex(L_DN)}, v144")
    A("v_bfe_u32 v15, v0, 3, 1")
    A("v_lshlrev_b32 v161, 6, v12")
    A("v_lshrrev_b32 v14, 5, v0")
    A("v_bfe_u32 v3, v0, 3, 2")
    A("v_and_b32 v162, 7, v0")
    A("v_lshlrev_b32 v162, 4, v162")
    A("v_lshl_or_b32 v162, v3, 11, v162")
    A("v_lshl_or_b32 v162, v14, 15, v162")
    A(f"s_lshl_b32 s70, s{S_KVH}, 7")
    A(f"s_lshr_b32 s{sA}, s{S_J}, 3")
    A(f"s_add_u32 s70, s70, s{sA}")
    A("s_lshl_b32 s70, s70, 2")
    A(f"s_add_u32 s70, s70, s{sTw}")
    A("s_lshl_b32 s70, s70, 7")
    A(f"s_add_u32 s70, s70, {hex(W_O)}")
    for i in range(1, 4):
        A(f"s_add_u32 s{70+i}, s70, {i*8192}")
    A("v_lshlrev_b32 v146, 6, v15")
    A("v_lshl_or_b32 v146, v1, 4, v146")
    A(f"v_add_u32 v146, {hex(L_OX)}, v146")
    A("v_lshlrev_b32 v147, 6, v14")
    A("v_lshl_or_b32 v147, v2, 4, v147")
    A("v_bfe_u32 v14, v0, 2, 1")
    A("v_lshl_or_b32 v147, v14, 3, v147")
    A("v_bfe_u32 v14, v0, 4, 1")
    A("v_lshl_or_b32 v147, v14, 2, v147")
    A(f"s_lshl_b32 s{sA}, s{sTw}, 7")
    A(f"v_add_u32 v147, s{sA}, v147")
    A(f"v_add_u32 v147, {hex(L_OX)}, v147")
    A("v_and_b32 v30, 7, v0")
    A("v_lshlrev_b32 v30, 10, v30")
    A("v_lshl_or_b32 v30, v15, 8, v30")
    A("v_lshl_or_b32 v30, v1, 4, v30")
    A(f"s_lshl_b32 s75, s{sO}, 7")
    A(f"s_add_u32 s75, s75, s{sTw}")
    A("s_lshl_b32 s75, s75, 6")
    A(f"s_add_u32 s75, s75, {hex(W_F)}")
    A("v_lshlrev_b32 v163, 16, v15")
    A("v_lshl_or_b32 v163, v1, 4, v163")
    A(f"s_lshl_b32 s74, s{S_W}, 2")
    A(f"s_add_u32 s74, s74, s{sTw}")
    A("s_lshl_b32 s74, s74, 6")
    A(f"s_add_u32 s74, s74, {hex(W_Y)}")
    A("v_lshlrev_b32 v148, 3, v0")
    A(f"v_add_u32 v148, {hex(L_XN)}, v148")
    A(f"s_lshl_b32 s{sA}, s{sTw}, 9")
    A(f"v_add_u32 v149, s{sA}, v148")
    A(f"s_lshl_b32 s{sA}, s{sTw}, 2")
    A(f"v_add_u32 v9, s{sA}, v8")
    A("v_mov_b32 v23, 1")
    A("s_waitcnt vmcnt(0)")
    make_tag(sTag, 164)
    A("s_mov_b32 s85, 0xffffff00")
    A(f"v_mov_b32 v164, s{sTag}")
    A(f"s_lshl_b32 s78, s{S_KVH}, 7")
    A(f"s_add_u32 s78, s78, {hex(W_IND)}")
    for i in range(4):
        A(f"v_bfe_u32 v{150+i}, s{sTag}, {8*i}, 8")
    if wearly:
        lds_set(9, F_WRDY, 23)
        A("v_add_u32 v144, 0x18000, v144")
        lds_wait4(F_WRDY, 1, 16, [f"ds_read_b64_tr_b16 v[{WF+2*i}:{WF+2*i+1}], v144 offset:{2048*i}" for i in range(8)])
        A("v_mov_b32 v20, 2")
        lds_set(9, F_WRDY, 20)
    stamp(1)
    A(f"s_lshl_b32 s{sB2}, s{sTw}, 2")
    A(f"s_add_u32 s{sB2}, s{sB2}, {GATH_AT}")
    lds_wait(F_DONE, f"s{sB2}", 20, sA)
    A("v_mov_b32 v40, 0")
    A("v_mov_b32 v41, 0")
    A(f"s_cmp_ge_u32 s{S_KVH}, {0 if noffn else 7}")
    A("s_cbranch_scc1 L_noffn2")
    for i in range(4):
        A(f"s_bfe_u32 s{86+i}, s{sTag}, {hex(0x80000 + 8*i)}")
    lq = lab("fpoll")
    A(f"{lq}:")
    for i in range(2):
        A(f"buffer_load_dwordx4 v[{44+4*i}:{47+4*i}], v30, s[{SWS}:{SWS+3}], s75 offen offset:{512*i} sc1")
    spin_guard()
    A("s_waitcnt vmcnt(0)")
    byte_check(44, 8, 86, 60)
    A(f"s_cbranch_vccnz {lq}")
    allreduce([44 + i for i in range(8)], "v_add_f32", [], steps=("x1", "x2", "hm"))
    for i in range(4):
        A(f"v_cvt_pk_bf16_f32 v40, v{44+2*i}, v{45+2*i}")
        unpack(32 + 2 * i, 40)
    A("s_mov_b32 s80, 0x3d372713")
    A("s_mov_b32 s81, 0xc0135761")
    for i in range(4):
        A(f"v_mul_f32 v{44+i}, v{32+i}, v{32+i}")
        A(f"v_fma_f32 v{44+i}, v{44+i}, s80, 1.0")
        A(f"v_mul_f32 v{44+i}, v{44+i}, v{32+i}")
        A(f"v_mul_f32 v{44+i}, s81, v{44+i}")
        A(f"v_exp_f32 v{44+i}, v{44+i}")
    nop(1)
    for i in range(4):
        A(f"v_add_f32 v{44+i}, 1.0, v{44+i}")
    for i in range(4):
        A(f"v_rcp_f32 v{44+i}, v{44+i}")
    nop(1)
    for i in range(4):
        A(f"v_mul_f32 v{32+i}, v{32+i}, v{44+i}")
    for r in (32, 34):
        A(f"v_cvt_pk_bf16_f32 v40, v{r}, v{r+1}")
        unpack(r, 40)
    for i in range(4):
        A(f"v_mul_f32 v{32+i}, v{32+i}, v{36+i}")
    A("v_cvt_pk_bf16_f32 v40, v32, v33")
    A("v_cvt_pk_bf16_f32 v41, v34, v35")
    A("L_noffn2:")
    A("ds_write_b64 v149, v[40:41]")
    lds_set(9, F_HRDY, 23)
    lds_wait4(F_HRDY, 1, 28, [f"ds_read_b64 v[{HB+2*i}:{HB+2*i+1}], v148 offset:{512*i}" for i in range(4)] +
              [f"ds_read_b64_tr_b16 v[{DF+2*i}:{DF+2*i+1}], v145 offset:{2048*i}" for i in range(4)])
    A(f"v_mfma_f32_16x16x32_bf16 v[{Y}:{Y+3}], v[{DF}:{DF+3}], v[{HB}:{HB+3}], 0")
    A(f"v_mfma_f32_16x16x32_bf16 v[{Y}:{Y+3}], v[{DF+4}:{DF+7}], v[{HB+4}:{HB+7}], v[{Y}:{Y+3}]")
    stamp(2)
    lds_wait(F_DONE, ML_AT, 20, sA)
    lds_wait(F_CTL, 1, 20, 79)
    A("s_mov_b32 s62, s79")
    lq = lab("mlpoll")
    A(f"{lq}:")
    for i in range(4):
        A(f"buffer_load_dwordx4 v[{44+4*i}:{47+4*i}], v161, s[{SWS}:{SWS+3}], s69 offen offset:{16*i} sc1")
    spin_guard()
    A("s_waitcnt vmcnt(0)")
    tag_check(44, 8, sTag, 60, 61)
    A(f"s_cbranch_vccnz {lq}")
    A("v_max3_f32 v26, v44, v48, v52")
    A("v_max_f32 v26, v26, v56")
    allreduce([26], "v_max_f32", [27], steps=("r8", "p16"))
    for i in range(4):
        A(f"v_sub_f32 v{W+i}, v{44+4*i}, v26")
    for i in range(4):
        A(f"v_exp_f32 v{W+i}, v{W+i}")
    A(f"v_mul_f32 v27, v{W}, v46")
    for i in range(1, 4):
        A(f"v_fmac_f32 v27, v{W+i}, v{46+4*i}")
    allreduce([27], "v_add_f32", [26], steps=("r8", "p16"))
    A("v_rcp_f32 v27, v27")
    A(f"s_add_u32 s76, s{S_J}, s{sTw}")
    if early:
        A("s_lshr_b32 s79, s79, 1")
        A("s_add_u32 s76, s76, s79")
    A("s_cmp_eq_u32 s76, 0")
    A("s_cselect_b64 s[76:77], 1, 0")
    for i in range(4):
        A(f"v_mul_f32 v{W+i}, v{W+i}, v27")
    A("s_mov_b32 m0, s83")
    A("s_mov_b32 s80, 0x00ff00ff"); A("s_mov_b32 s81, s80")
    A("s_mov_b32 s82, 0x01010101"); A("s_mov_b32 s83, s82")
    if retouch:
        lds_wait(F_DONE, retouch, 20, sA)
        A(f"s_lshl_b32 s{sA}, s{S_W}, 2")
        A(f"s_add_u32 s{sA}, s{sA}, s{sTw}")
        A(f"s_lshl_b32 s{sA}, s{sA}, 9")
        A(f"s_add_u32 s{sA}, s{sA}, {hex(W_O)}")
        A("v_lshlrev_b32 v14, 7, v0")
        A("s_mov_b64 exec, 15")
        A(f"buffer_load_dword v17, v14, s[{SWS}:{SWS+3}], s{sA} offen sc1")
        A("s_mov_b64 exec, -1")
    if gate:
        A("v_lshlrev_b32 v155, 4, v12")
        A(f"s_lshl_b32 s68, s{S_KVH}, 7")
        A(f"s_add_u32 s68, s68, {hex(W_PROG)}")
        A("s_cmp_eq_u32 s62, 2")
        A("s_cselect_b32 s62, 200, 0")
    if slp:
        lds_wait(F_DONE, 120, 20, sA)
    stamp(5)
    A("s_branch L_tend")
    A(".p2align 6")
    A("L_tend:")
    if pads:
        A("s_cbranch_execz L_tpad")
    if TRIG == 0:
        lds_wait4(F_DONE, 114, 28)
        lds_wait(F_ISS, 1, 28, sA)
    elif TRIG < 128:
        lds_wait4(F_DONE, TRIG, 28)
    else:
        lds_wait(F_LANDED, 128 + LB, 28, sA)
    A("s_setprio 2")
    stamp(3)
    for i in range(0 if wearly else 4):
        A(f"buffer_load_dwordx4 v{4+i}, s[{SWO}:{SWO+3}], s{sWo} offen offset:{i*1024} {pW} lds")

    def o_load(i):
        A(f"buffer_load_dwordx4 v[{GA+4*i}:{GA+4*i+3}], v162, s[{SWS}:{SWS+3}], s{70+i} offen sc1")

    def m_load():
        A(f"buffer_load_dwordx4 v[156:159], v155, s[{SWS}:{SWS+3}], s68 offen sc1")

    if gate:
        m_load()
        for i in range(16):
            A(f"v_mov_b32 v{GA+i}, -1")
        A("s_waitcnt vmcnt(1)")
    else:
        if opre == 2:
            lds_wait(F_LANDED, 128 + LB, 28, sA)
        elif opre == 3:
            lds_wait4(F_DONE, 128, 28)
        elif opre in (4, 5, 6):
            A(f"s_waitcnt vmcnt({opre - 3})")
        if not opre:
            A("s_waitcnt vmcnt(0)")
        for i in range(4):
            o_load(i)
        if opre:
            A("s_waitcnt vmcnt(4)")
    if not wearly:
        lds_set(9, F_WRDY, 23)
    stamp(4)
    wfrag = [f"ds_read_b64_tr_b16 v[{WF+2*i}:{WF+2*i+1}], v144 offset:{2048*i}" for i in range(8)]
    if gate:
        A("s_waitcnt vmcnt(0)")
        for i in range(4):
            A(f"v_cmp_le_u32 vcc, s62, v{156+i}")
            A("s_mov_b64 exec, vcc")
            o_load(i)
            A("s_mov_b64 exec, -1")
        m_load()
    if not wearly:
        lds_wait4(F_WRDY, 1, 28, wfrag)
    stamp(6)
    if ocap:
        A("s_waitcnt vmcnt(0)")
    A("s_branch L_ob")
    A("L_oa:")
    if gate:
        A("s_waitcnt vmcnt(0)")
        for i in range(4):
            A(f"v_cmp_le_u32 s[{52+2*i}:{53+2*i}], s62, v{156+i}")
    for i in range(4):
        if gate:
            A(f"s_and_b64 exec, s[{86+2*i}:{87+2*i}], s[{52+2*i}:{53+2*i}]")
        else:
            A(f"s_mov_b64 exec, s[{86+2*i}:{87+2*i}]")
        o_load(i)
    A("s_mov_b64 exec, -1")
    if gate:
        m_load()
    spin_guard()
    A("L_ob:")
    for i in range(4):
        if ocap:
            if i == 0:
                A(f"s_waitcnt vmcnt({ocap})")
        elif cw:
            A(f"s_waitcnt vmcnt({3-i+(1 if gate else 0)})")
        elif i == 0:
            A(f"s_waitcnt vmcnt({1 if gate else 0})")
        A(f"v_max3_u32 v20, v{GA+4*i}, v{GA+4*i+1}, v{GA+4*i+2}")
        A(f"v_max_u32 v20, v20, v{GA+4*i+3}")
        A(f"v_cmp_eq_u32 s[{86+2*i}:{87+2*i}], -1, v20")
    A("s_or_b64 s[94:95], s[86:87], s[88:89]")
    A("s_or_b64 s[94:95], s[94:95], s[90:91]")
    A("s_or_b64 s[94:95], s[94:95], s[92:93]")
    A("s_cbranch_scc1 L_oa")

    def send_ind():
        A("s_mov_b64 exec, s[76:77]")
        A("s_cbranch_execnz L_ind")
        A("L_noind:")
    if indpos == 0:
        send_ind()
        A("s_mov_b64 exec, -1")
    stamp(7)
    for k in range(4):
        A(f"v_mul_f32 v{R+k}, v{GA+k}, v{W}")
    for i in range(1, 4):
        for k in (0, 2, 1, 3):
            A(f"v_fmac_f32 v{R+k}, v{GA+4*i+k}, v{W+i}")
    A(f"v_permlane16_swap_b32 v{R}, v{R+2}")
    nop(1)
    A(f"v_permlane16_swap_b32 v{R+1}, v{R+3}")
    A(f"v_add_f32 v{R}, v{R}, v{R+2}")
    A(f"v_add_f32 v{R+1}, v{R+1}, v{R+3}")
    allreduce([R, R + 1], "v_add_f32", [], steps=("r8",))
    A("s_mov_b64 exec, s[80:81]")
    A(f"v_cvt_pk_bf16_f32 v24, v{R}, v{R+1}")
    A("ds_write_b32 v147, v24")
    lds_set(9, F_ORDY, 23)
    if indpos == 1:
        send_ind()
        A("s_mov_b64 exec, -1")
    lds_wait4(F_ORDY, 1, 28, [f"ds_read_b128 v[{32+4*i}:{35+4*i}], v146 offset:{128*i}" for i in range(4)])
    for i in range(4):
        A(f"v_mfma_f32_16x16x32_bf16 v[{Y}:{Y+3}], v[{WF+4*i}:{WF+4*i+3}], v[{32+4*i}:{35+4*i}], v[{Y}:{Y+3}]")
    if indpos == 2:
        nop(5)
        send_ind()
    else:
        nop(7)
    A("s_mov_b64 exec, s[82:83]")
    for i in range(4):
        A(f"v_and_or_b32 v{Y+i}, v{Y+i}, s85, v{150+i}")
    A(f"buffer_store_dwordx4 v[{Y}:{Y+3}], v163, s[{SWS}:{SWS+3}], s74 offen sc1")
    if indpos == 3:
        send_ind()
    if wb in (1, 2):
        A(f"s_lshl_b32 s{sA}, s{sTw}, 8")
        A(f"s_add_u32 s{sA}, s{sA}, s{S_W}")
        A(f"s_cmp_lg_u32 s{sA}, {32*FX}")
        A("s_cbranch_scc1 L_nowb")
        if wb == 2:
            A("s_waitcnt vmcnt(0)")
        A("buffer_wbl2 sc1")
        A("s_waitcnt vmcnt(0)")
        A("L_nowb:")
    stamp(8)
    stamp_flush()
    A("s_endpgm")
    A("L_ind:")
    A(f"buffer_store_dword v164, v11, s[{SWS}:{SWS+3}], s78 offen sc1")
    if wb == 3:
        A("buffer_wbl2 sc1")
    A("s_branch L_noind")
    A("L_abort:")
    A("s_endpgm")
    sT = 66
    loader_rest()
    A("L_end:")
    nv = 168
    A('.section .rodata,"a"')
    A(".p2align 6")
    A(f".amdhsa_kernel {KNAME}")
    A(f"  .amdhsa_next_free_vgpr {nv}")
    A("  .amdhsa_next_free_sgpr 102")
    A(f"  .amdhsa_accum_offset {nv}")
    A("  .amdhsa_group_segment_fixed_size 0")
    A("  .amdhsa_kernarg_size 96")
    A("  .amdhsa_user_sgpr_count 2")
    A("  .amdhsa_user_sgpr_kernarg_segment_ptr 1")
    A("  .amdhsa_system_sgpr_workgroup_id_x 1")
    A(".end_amdhsa_kernel")
    out = []
    for ln in L:
        if ln.startswith((";", ".", " ")) or ln.endswith(":") or "\n" in ln:
            out.append(ln)
        else:
            out.append("    " + ln)
    return "\n".join(out) + "\n"


if __name__ == "__main__":
    kw = eval("dict(" + (sys.argv[2] if len(sys.argv) > 2 else "") + ")")
    open(sys.argv[1], "w").write(gen(**kw))
FINAL_WAVE = 2
```

```python
import sys
from gen_kernel import HEADER, KNAME

L_TILE = 0x20000
L_T2 = 0x1C000
L_DN = 0x24000
L_XN = 0x26000
L_Q = 0x26800
L_OX = 0x26C00
L_FLAG = 0x26E00
F_ORDY, F_DONE, F_QRDY, F_MRDY, F_PRDY, F_TILE, F_BREQ, F_CTL, F_HRDY, F_WRDY = 0, 16, 32, 48, 64, 80, 84, 88, 96, 112
L_M = L_FLAG + 128
L_L = L_FLAG + 192
F_LANDED = 256
F_ISS = 92
LB = 4
LDS_BYTES = 0x27000
W_EPOCH = 0x0
W_PROG = 0x1000
W_MARK = 0x3000
W_IND = 0x2000
W_ML = 0x4000
W_O = 0x10000
W_Y = 0x90000
W_Q = W_O
W_F = W_O + 1024
W_QB = 0x110000
W_STAMP = 0x200000
WS_BYTES = 0x300000

LOG2E = 0x3FB8AA3B
SCALE = 0x3DB504F3
SPIN_MAX = 1 << 20


def gen(NLS=(16, 18, 20, 22, 24, 26), idx0=2, gain=1.0, bias=2.37, ctl=True, NL0=24, stamps=False, pK="nt", pW="nt", diag=None, TRIG=126,
        codepf=True, fast=True, QB_EVERY=8, GATH_AT=24, ML_AT=88, noffn=False, nowt=False,
        FX=0, boost7=0, touch=True, early=False, indpos=1, ind=True, opre=False, boostE=0.15, thr=(-9, -9, -9), slp=0, slpc=0, endn=0, endadd=0, rot=7, wb=0, wearly=False, ocap=0, icap=0, curve=False, idxS=0, tdelay=0, fine=False, retouch=0, gate=False, MARK_AT=0, CLR_CHK=104, xdev=None, cw=True, pads=True, spec=True, kvtouch=True, yall=True):
    L = []
    A = L.append
    uid = [0]
    role = ["pro"]

    def lab(p):
        uid[0] += 1
        return f"L_{p}_{uid[0]}"

    def nop(n):
        while n > 0:
            k = min(n, 16)
            A(f"s_nop {k-1}")
            n -= k

    def srd(r, p, nbytes):
        A(f"s_mov_b32 s{r}, s{p}")
        A(f"s_mov_b32 s{r+1}, s{p+1}")
        A(f"s_mov_b32 s{r+2}, {hex(nbytes)}")
        A(f"s_mov_b32 s{r+3}, 0x20000")

    VST = 166

    def stamp(i):
        if diag is not None and role[0] == "cons" and diag == i:
            A("s_memrealtime s[88:89]")
            A("s_waitcnt lgkmcnt(0)")
        if not stamps:
            return
        A("s_memrealtime s[98:99]")
        A("s_waitcnt lgkmcnt(0)")
        A(f"v_writelane_b32 v{VST}, s98, {i}")

    def stamp_flush():
        if not stamps:
            return
        A("s_mov_b64 exec, -1")
        A(f"s_sub_u32 s97, {hex(SPIN_MAX)}, s15")
        A(f"v_writelane_b32 v{VST}, s97, 16")
        srd(92, P_WS, WS_BYTES)
        A("s_lshl_b32 s97, s2, 4")
        A("s_add_u32 s97, s97, s3")
        A("s_lshl_b32 s97, s97, 8")
        A(f"s_add_u32 s97, s97, {hex(W_STAMP)}")
        A(f"v_lshlrev_b32 v{VST+1}, 2, v0")
        A(f"buffer_store_dword v{VST}, v{VST+1}, s[92:95], s97 offen")
        A("s_waitcnt vmcnt(0)")

    def spin_guard():
        A("s_sub_u32 s15, s15, 1")
        A("s_cbranch_scc1 L_abort")

    def lds_wait(off, thr, vt, st):
        l = lab("w")
        A(f"{l}:")
        if slp and role[0] == "tail":
            A(f"s_sleep {slp}")
        A(f"ds_read_b32 v{vt}, v8 offset:{off}")
        spin_guard()
        A("s_waitcnt lgkmcnt(0)")
        A(f"v_readfirstlane_b32 s{st}, v{vt}")
        A(f"s_cmp_ge_i32 s{st}, {thr}")
        A(f"s_cbranch_scc0 {l}")

    def lds_wait4(off, thr, vq, extra=()):
        l = lab("w4")
        A(f"{l}:")
        A(f"ds_read_b128 v[{vq}:{vq+3}], v8 offset:{off}")
        for e in extra:
            A(e)
        spin_guard()
        A(f"s_waitcnt lgkmcnt({len(extra)})")
        A(f"v_min3_i32 v{vq}, v{vq}, v{vq+1}, v{vq+2}")
        A(f"v_min_i32 v{vq}, v{vq}, v{vq+3}")
        A(f"v_cmp_gt_i32 vcc, {thr}, v{vq}")
        if extra:
            A("s_waitcnt lgkmcnt(0)")
        A(f"s_cbranch_vccnz {l}")

    def lds_set(addr_v, off, val_v):
        A("s_mov_b64 exec, 1")
        A(f"ds_write_b32 v{addr_v}, v{val_v} offset:{off}")
        A("s_mov_b64 exec, -1")

    def allreduce(regs, op, tmps, steps=("x1", "x2", "hm", "m", "p16", "p32")):
        dpp = {"x1": "quad_perm:[1,0,3,2]", "x2": "quad_perm:[2,3,0,1]", "hm": "row_half_mirror", "m": "row_mirror",
               "r4": "row_ror:4", "r8": "row_ror:8"}
        for st in steps:
            if st in dpp:
                nop(max(0, 3 - len(regs)))
                for r in regs:
                    A(f"{op}_dpp v{r}, v{r}, v{r} {dpp[st]} row_mask:0xf bank_mask:0xf")
            else:
                ins = "v_permlane16_swap_b32" if st == "p16" else "v_permlane32_swap_b32"
                for r, t in zip(regs, tmps):
                    A(f"v_mov_b32 v{t}, v{r}")
                nop(max(0, 3 - len(regs)))
                for r, t in zip(regs, tmps):
                    A(f"{ins} v{r}, v{t}")
                nop(1)
                for r, t in zip(regs, tmps):
                    A(f"{op} v{r}, v{r}, v{t}")

    def make_tag(s, v):
        A(f"v_readfirstlane_b32 s{s}, v{v}")
        A(f"s_add_u32 s{s}, s{s}, 0x4d2b7f35")

    def local_tag(dst, tag):
        A(f"s_getreg_b32 s{dst}, hwreg(HW_REG_XCC_ID, 0, 4)")
        A(f"s_mul_i32 s{dst}, s{dst}, 0x10001")
        A(f"s_xor_b32 s{dst}, s{dst}, s{tag}")

    def store_by(sloc, ins):
        l1, l2 = lab("far"), lab("st")
        A(f"s_cmp_eq_u32 s{sloc}, 2")
        A(f"s_cbranch_scc0 {l1}")
        for i in ins:
            A(i)
        A(f"s_branch {l2}")
        A(f"{l1}:")
        for i in ins:
            A(i + " sc1")
        A(f"{l2}:")

    def tag_check(base, n, stag, t1, t2):
        for i in range(n):
            A(f"v_xor_b32 v{base+1+2*i}, s{stag}, v{base+1+2*i}")
        r = [base + 1 + 2 * i for i in range(n)]
        if n == 8:
            A(f"v_or3_b32 v{t1}, v{r[0]}, v{r[1]}, v{r[2]}")
            A(f"v_or3_b32 v{t2}, v{r[3]}, v{r[4]}, v{r[5]}")
            A(f"v_or3_b32 v{t1}, v{t1}, v{r[6]}, v{r[7]}")
            A(f"v_or_b32 v{t1}, v{t1}, v{t2}")
        else:
            A(f"v_or3_b32 v{t1}, v{r[0]}, v{r[1]}, v{r[2]}")
            A(f"v_or_b32 v{t1}, v{t1}, v{r[3]}")
        A(f"v_cmp_ne_u32 vcc, 0, v{t1}")

    def byte_check(base, n, sb, t):
        for i in range(n):
            A(f"v_xor_b32 v{base+i}, s{sb+(i&3)}, v{base+i}")
        A(f"v_or3_b32 v{t}, v{base}, v{base+1}, v{base+2}")
        for i in range(3, n - 1, 2):
            A(f"v_or3_b32 v{t}, v{t}, v{base+i}, v{base+i+1}")
        A(f"v_or_b32 v{t}, v{t}, v{base+n-1}")
        A(f"v_and_b32 v{t}, 0xff, v{t}")
        A(f"v_cmp_ne_u32 vcc, 0, v{t}")

    def vaddr_T0(dst, t1, t2, t3):
        A(f"v_lshrrev_b32 v{t1}, 2, v0")
        A(f"v_and_b32 v{t2}, 7, v{t1}")
        A(f"v_lshlrev_b32 v{t2}, 1, v{t2}")
        A(f"v_lshrrev_b32 v{t3}, 5, v0")
        A(f"v_or_b32 v{t2}, v{t2}, v{t3}")
        A(f"v_bfe_u32 v{t3}, v0, 1, 1")
        A(f"v_xor_b32 v{t2}, v{t2}, v{t3}")
        A(f"v_lshlrev_b32 v{t2}, 4, v{t2}")
        A(f"v_lshl_or_b32 v{dst}, v{t1}, 8, v{t2}")
        A(f"v_and_b32 v{t3}, 1, v0")
        A(f"v_lshl_or_b32 v{dst}, v{t3}, 3, v{dst}")

    def prog_addr(d, t):
        A(f"s_lshr_b32 s{d}, s{S_W}, 4")
        A(f"s_lshl_b32 s{d}, s{d}, 2")
        A(f"s_and_b32 s{t}, s{S_S}, 3")
        A(f"s_add_u32 s{d}, s{d}, s{t}")
        A(f"s_lshl_b32 s{d}, s{d}, 4")
        A(f"s_and_b32 s{t}, s{S_S}, 12")
        A(f"s_add_u32 s{d}, s{d}, s{t}")
        A(f"s_add_u32 s{d}, s{d}, {hex(W_PROG)}")

    def unpack(dst, src):
        A(f"v_lshlrev_b32 v{dst}, 16, v{src}")
        A(f"v_and_b32 v{dst+1}, 0xffff0000, v{src}")

    P_X, P_K, P_V, P_WQ, P_WO, P_BX, P_G, P_U, P_D, P_OUT, P_DBG, P_WS = range(16, 40, 2)
    S_KVH, S_J, S_B, S_S, S_RB, S_CH, S_W = 4, 5, 6, 7, 8, 9, 10

    A(HEADER)
    A(f"; @launch grid=(256,1,1) block=(640,1,1) lds={LDS_BYTES}")
    A('.amdgcn_target "amdgcn-amd-amdhsa--gfx950"')
    A(".text")
    A(f".globl {KNAME}")
    A(".p2align 8")
    A(f".type {KNAME},@function")
    A(f"{KNAME}:")
    A("s_cmp_ge_u32 s2, 256")
    A("s_cbranch_scc1 L_abort")
    A("s_load_dwordx16 s[16:31], s[0:1], 0")
    A("s_load_dwordx8 s[32:39], s[0:1], 64")
    if stamps:
        A("s_memrealtime s[98:99]")
        A(f"v_mov_b32 v{VST}, 0")
    if diag is not None:
        A("s_memrealtime s[90:91]")
    A(f"s_lshr_b32 s{S_J}, s2, 3")
    if codepf:
        A("s_getpc_b64 s[80:81]")
        A(f"s_lshl_b32 s6, s{S_J}, 9")
        A("v_subrev_u32 v2, 448, v0")
        A("v_cmp_gt_u32 vcc, 4, v2")
        A("v_lshl_add_u32 v2, v2, 7, s6")
        A(f"v_min_u32 v2, L_end-{KNAME}-64, v2")
        A("s_and_b64 exec, exec, vcc")
        A("s_cbranch_execz L_nopf")
        A("global_load_dword v165, v2, s[80:81]")
        A("L_nopf:")
        A("s_mov_b64 exec, -1")
    A("v_lshrrev_b32 v1, 6, v0")
    A("v_and_b32 v0, 63, v0")
    A("v_readfirstlane_b32 s3, v1")
    A(f"v_mov_b32 v8, {hex(L_FLAG)}")
    A("v_lshl_add_u32 v9, v0, 2, v8")
    A("v_mov_b32 v11, 0")
    A("ds_write_b32 v9, v11")
    A(f"ds_write_b32 v9, v11 offset:{F_LANDED}")
    if rot:
        A(f"s_add_u32 s{S_KVH}, s2, {rot}")
        A(f"s_and_b32 s{S_KVH}, s{S_KVH}, 7")
    else:
        A(f"s_and_b32 s{S_KVH}, s2, 7")
    A(f"s_lshr_b32 s{S_B}, s{S_J}, 4")
    A(f"s_and_b32 s{S_S}, s{S_J}, 15")
    A(f"s_lshl_b32 s{S_W}, s{S_KVH}, 5")
    A(f"s_add_u32 s{S_W}, s{S_W}, s{S_J}")
    A(f"s_mov_b32 s15, {hex(SPIN_MAX)}")
    A("v_lshrrev_b32 v1, 4, v0")
    A("v_lshlrev_b32 v3, 1, v1")
    A("v_lshlrev_b32 v10, 4, v0")
    sO1, sO2, sN, sNc, sBase, sTt, sT, sIdx, sEv = 60, 61, 62, 63, 64, 65, 66, 68, 69
    sSmp, sPrevF, sPs, sPl, sCen = 70, 71, 72, 73, 74
    A("v_lshrrev_b32 v12, 3, v0")
    A("v_and_b32 v13, 7, v0")
    A("v_xor_b32 v13, v13, v3")
    A("v_lshlrev_b32 v13, 4, v13")
    A("v_lshl_or_b32 v4, v12, 13, v13")
    for i in range(1, 4):
        A(f"v_add_u32 v{4+i}, {i*(0x10000-1024)}, v4")
    A(f"s_lshr_b32 s{sT}, s{S_J}, 3")
    A(f"s_lshl_b32 s{sO1}, s{sT}, 10")
    A(f"s_add_u32 s{sO1}, s{sO1}, s{S_KVH}")
    A(f"s_lshl_b32 s{sO1}, s{sO1}, 3")
    A(f"s_and_b32 s{sT}, s{S_J}, 7")
    A(f"s_add_u32 s{sO1}, s{sO1}, s{sT}")
    A(f"s_lshl_b32 s{sO1}, s{sO1}, 7")
    A(f"s_mov_b32 s42, {hex(512*4096*2)}")
    A("s_mov_b32 s43, 0x20000")
    A("s_mov_b32 s46, 2048")
    A("s_mov_b32 s47, 0x20000")
    A(f"s_mov_b32 m0, {hex(L_TILE)}")
    A("s_cmp_lg_u32 s3, 0")
    A("s_waitcnt lgkmcnt(0)")
    if stamps:
        A(f"v_writelane_b32 v{VST}, s98, 0")
    A("s_cbranch_scc1 L_roles")

    role[0] = "ld"
    A(f"s_mov_b64 s[40:41], s[{P_WQ}:{P_WQ+1}]")
    A("s_setprio 3")
    A("L_ldq:")
    for i in range(4):
        A(f"buffer_load_dwordx4 v{4+i}, s[40:43], s{sO1} offen offset:{i*1024} {pW} lds")
    A("s_add_u32 m0, m0, 0x1000")
    A(f"s_add_u32 s{sO1}, s{sO1}, 0x40000")
    A(f"s_cmp_lt_u32 m0, {hex(L_TILE + 0x4000)}")
    A("s_cbranch_scc1 L_ldq")
    A("s_barrier")
    if fine:
        stamp(3)
    A("v_mul_u32_u24 v4, 3584, v12")
    A("v_add_u32 v4, v4, v13")
    for i in range(1, 4):
        A(f"v_add_u32 v{4+i}, {i*(8*3584-1024)}, v4")
    A(f"s_mul_i32 s{sO2}, s{sT}, {64*3584}")
    A(f"s_lshr_b32 s{sT}, s{S_W}, 3")
    A(f"s_lshl_b32 s{sT}, s{sT}, 7")
    A(f"s_add_u32 s{sO2}, s{sO2}, s{sT}")
    A(f"s_cmp_lt_u32 s{S_KVH}, {0 if noffn else 7}")
    A(f"s_cselect_b32 s42, {hex(512*1792*2)}, 0")
    A(f"s_mov_b64 s[40:41], s[{P_G}:{P_G+1}]")
    A(f"s_mov_b32 m0, {hex(L_T2)}")
    A("L_ldf2:")
    A(f"s_mov_b32 s{sO1}, s{sO2}")
    A("L_ldf:")
    for i in range(4):
        A(f"s_waitcnt vmcnt({NL0-1})")
        A(f"buffer_load_dwordx4 v{4+i}, s[40:43], s{sO1} offen offset:{i*1024} {pW} lds")
    A("s_add_u32 m0, m0, 0x1000")
    A(f"s_add_u32 s{sO1}, s{sO1}, {32*3584}")
    A("s_bitcmp1_b32 m0, 12")
    A("s_cbranch_scc1 L_ldf")
    A(f"s_mov_b64 s[40:41], s[{P_U}:{P_U+1}]")
    A("s_bitcmp1_b32 m0, 13")
    A("s_cbranch_scc1 L_ldf2")
    if fine:
        stamp(8)
    A("v_and_b32 v2, 15, v0")
    A("v_xor_b32 v2, v2, v3")
    A("v_lshlrev_b32 v2, 4, v2")
    A("v_lshl_or_b32 v4, v1, 8, v2")
    A("v_xor_b32 v5, 0x80, v4")
    A("v_xor_b32 v6, 16, v4")
    A("v_xor_b32 v7, 0x90, v4")
    A(f"s_lshl_b32 s{sBase}, s{S_B}, 3")
    A(f"s_add_u32 s{sBase}, s{sBase}, s{S_KVH}")
    A(f"s_lshl_b32 s{sBase}, s{sBase}, 4")
    A(f"s_add_u32 s{sBase}, s{sBase}, s{S_S}")
    A(f"s_lshl_b32 s{sBase}, s{sBase}, 1")
    A(f"s_add_u32 s{sBase}, s{sBase}, s{S_B}")
    A(f"s_lshl_b32 s{sBase}, s{sBase}, 1")
    A(f"s_bfe_u32 s{sT}, s{S_S}, 0x10002")
    A(f"s_add_u32 s{sBase}, s{sBase}, s{sT}")
    A(f"s_lshl_b32 s{sBase}, s{sBase}, 17")
    A(f"s_mov_b32 s{sO1}, s{sBase}")
    A("s_mov_b32 s42, 0x8000000")
    A(f"s_mov_b64 s[40:41], s[{P_K}:{P_K+1}]")
    A(f"s_mov_b32 s{sN}, 0")
    A(f"s_mov_b32 s{sTt}, 0")
    A("s_mov_b32 m0, 0")
    A(f"s_mov_b32 s{sEv}, 2")
    A(f"s_mov_b32 s{sNc}, 2")
    A(f"s_mov_b32 s{sIdx}, {idxS}")
    A(f"s_mov_b64 s[44:45], s[{P_WS}:{P_WS+1}]")
    A(f"s_mov_b32 s46, {hex(WS_BYTES)}")
    A("v_lshlrev_b32 v14, 3, v0")
    A("v_mov_b32 v22, 0")
    A(f"ds_read_b128 v[16:19], v8 offset:{F_DONE}")
    NV = len(NLS)
    extra = {
        0: [f"s_add_u32 s{sO2}, s{sO1}, 0x8000"],
        1: [f"s_or_b32 s{sTt}, s{sTt}, 0x8000", f"s_add_u32 s{sTt}, s{sTt}, 0x1000"],
        2: [f"s_and_b32 s{sTt}, s{sTt}, 0x77000"],
        3: ["s_add_u32 m0, m0, 0x1000"],
        4: [f"s_xor_b32 s{sO1}, s{sTt}, s{sBase}"],
        5: [f"s_add_u32 s{sN}, s{sN}, 1"],
        6: [f"s_add_u32 s{sT}, m0, 0x1000"],
        7: [f"s_and_b32 m0, s{sT}, 0x1ffff"],
    }

    def body(k):
        NL = NLS[k]
        pub_i = (NL - 1) % 8
        pub_d = (pub_i - NL + 1) // 8
        A(f"v_add_u32 v21, {pub_d + LB - 1}, v22")
        A(f"L_body{k}:")
        for i in range(8):
            A(f"s_waitcnt vmcnt({NL-1})")
            A(f"buffer_load_dwordx4 v{4+(i&3)}, s[40:43], s{sO1 if i < 4 else sO2} offen offset:{(i&3)*1024} {pK} lds")
            if i == 0:
                A("v_add_u32 v21, 1, v21")
            if i == pub_i:
                A(f"ds_max_i32 v9, v21 offset:{F_LANDED}")
            for e in extra.get(i, []):
                A(e)
        A(f"s_cmp_lg_u32 s{sN}, s{sEv}")
        A(f"s_cbranch_scc1 L_body{k}")

    A("L_def:")
    body(idx0)
    A("L_event:")
    if stamps:
        A(f"s_and_b32 s{sT}, s{sN}, 15"); A("s_cbranch_scc0 L_ldst")
        A("L_ldst_back:")
    A(f"s_bitcmp1_b32 s{sN}, 7")
    A("s_cbranch_scc1 L_drain")
    A(f"s_cmp_eq_u32 s{sN}, s{sNc}")
    A("s_cbranch_scc1 L_ctl")
    A("L_event2:")
    A("s_waitcnt lgkmcnt(0)")
    A("v_min3_i32 v20, v16, v17, v18")
    A("v_min_i32 v20, v20, v19")
    A(f"s_bitcmp1_b32 s{sN}, 6")
    A(f"v_readfirstlane_b32 s{sT}, v20")
    A("L_event3:")
    A(f"ds_read_b128 v[16:19], v8 offset:{F_DONE}")
    A(f"s_cselect_b64 s[40:41], s[{P_V}:{P_V+1}], s[40:41]")
    A(f"s_cmp_eq_u32 s{sT}, 0")
    A(f"s_cselect_b32 s{sEv}, {12 if wearly else 14}, 16")
    A(f"s_add_u32 s{sT}, s{sT}, s{sEv}")
    A(f"s_or_b32 s{sEv}, s{sN}, {15 if stamps else 63}")
    A(f"s_add_u32 s{sEv}, s{sEv}, 1")
    A(f"s_min_u32 s{sEv}, s{sEv}, s{sT}")
    A(f"s_min_u32 s{sEv}, s{sEv}, s{sNc}")
    A(f"v_mov_b32 v22, s{sN}")
    A(f"s_cmp_le_u32 s{sEv}, s{sN}")
    A("s_cbranch_scc1 L_full")
    A(f"s_cmp_eq_u32 s{sIdx}, 0")
    A("s_cbranch_scc1 L_def")
    A("s_branch L_var")
    A("L_full:")
    spin_guard()
    A("s_branch L_event2")
    A("L_roles:")
    A("s_cmp_lg_u32 s3, 1")
    A("s_cbranch_scc1 L_roles2")
    A(f"s_mov_b64 s[44:45], s[{P_X}:{P_X+1}]")
    A("s_setprio 2")
    A("buffer_load_dwordx4 v[16:19], v10, s[44:47], 0 offen")
    A("buffer_load_dwordx4 v[20:23], v10, s[44:47], 0 offen offset:1024")
    A("L_roles2:")
    A("s_barrier")
    A("s_cbranch_scc1 L_other")
    A("s_branch L_aux")
    A("L_drain:")

    def iss(k):
        if TRIG == 0:
            A(f"s_cmp_ge_i32 s{sIdx}, {k}")
            A("s_cselect_b64 exec, 1, 0")
            A(f"ds_write_b32 v8, v21 offset:{F_ISS}")
            A("s_mov_b64 exec, -1")
    iss(thr[0])
    stamp(1)
    for x in range(125, 129):
        A(f"v_mov_b32 v21, {x + LB}")
        if gate and x == 128 and MARK_AT:
            A("v_mov_b32 v24, 200")
            A("s_mov_b64 exec, 1")
            A(f"s_waitcnt vmcnt({MARK_AT})")
            A(f"buffer_store_dword v24, v11, s[44:47], s{sPs} offen")
            A("s_waitcnt vmcnt(1)")
        else:
            A(f"s_waitcnt vmcnt({(128 - x) * 8})")
        A(f"ds_max_i32 v9, v21 offset:{F_LANDED}")
        if x >= 126:
            iss((thr[1], thr[2], -9)[x - 126])
    if gate and not MARK_AT:
        A("v_mov_b32 v24, 200")
        A("s_mov_b64 exec, 1")
        A(f"buffer_store_dword v24, v11, s[44:47], s{sPs} offen")
    if xdev is not None:
        A("s_memrealtime s[98:99]"); A("s_lshl_b32 s97, s2, 2"); A(f"s_add_u32 s97, s97, {hex(W_STAMP)}")
        A("s_waitcnt lgkmcnt(0)")
        A("L_xd0:"); A("s_memrealtime s[94:95]"); A("s_waitcnt lgkmcnt(0)"); A("s_sub_u32 s94, s94, s90"); A("s_cmp_lt_u32 s94, 5000"); A("s_cbranch_scc1 L_xd0")
        A("v_mov_b32 v24, s98"); A("s_mov_b64 exec, 1"); A("buffer_store_dword v24, v11, s[44:47], s97 offen sc1")
    stamp(2)
    stamp_flush()
    A("s_endpgm")

    if stamps:
        A("L_ldst:")
        for n, k in ((16, 4), (32, 5), (64, 6), (96, 7)):
            l = lab("st")
            A(f"s_cmp_lg_u32 s{sN}, {n}"); A(f"s_cbranch_scc1 {l}"); stamp(k); A(f"{l}:")
        A("s_branch L_ldst_back")

    def loader_rest():
        A("L_ctl:")
        A(f"s_cmp_eq_u32 s{sN}, 2")
        A("s_cbranch_scc1 L_ctl_init")
        if curve:
            A("s_memrealtime s[98:99]")
            A(f"s_lshr_b32 s97, s{sN}, 2")
            A("s_add_u32 s97, s97, 20")
            A("s_mov_b32 s96, m0")
            A("s_mov_b32 m0, s97")
        A("s_waitcnt lgkmcnt(0)")
        if curve:
            A(f"v_writelane_b32 v{VST}, s98, m0")
            A("s_mov_b32 m0, s96")
        A("v_add_u32 v15, v12, v13")
        A(f"v_mov_b32 v24, s{sN}")
        A("v_readfirstlane_b32 s78, v23")
        A("s_mov_b64 exec, 1")
        A(f"buffer_store_dword v24, v11, s[44:47], s{sPs} offen")
        A("s_mov_b64 exec, 0xffff")
        A("v_add_u32_dpp v15, v15, v15 quad_perm:[1,0,3,2] row_mask:0xf bank_mask:0xf")
        A(f"buffer_load_dwordx2 v[12:13], v14, s[44:47], s{sPl} offen sc1")
        A(f"ds_read_b32 v23, v8 offset:{F_CTL}")
        A("v_add_u32_dpp v15, v15, v15 quad_perm:[2,3,0,1] row_mask:0xf bank_mask:0xf")
        A("v_min3_i32 v20, v16, v17, v18")
        A(f"s_add_u32 s{sNc}, s{sNc}, 4")
        A("v_add_u32_dpp v15, v15, v15 row_half_mirror row_mask:0xf bank_mask:0xf")
        A("v_min_i32 v20, v20, v19")
        A(f"s_add_u32 s{sSmp}, s{sSmp}, {4*32*int(gain*256)}")
        A("v_add_u32_dpp v15, v15, v15 row_mirror row_mask:0xf bank_mask:0xf")
        A(f"v_readfirstlane_b32 s{sT}, v20")
        A("v_readfirstlane_b32 s76, v15")
        A("s_mov_b64 exec, -1")
        A(f"s_mul_i32 s76, s76, {int(gain*256)}")
        A(f"s_sub_i32 s76, s76, s{sSmp}")
        A("s_ashr_i32 s76, s76, 13")
        if endn:
            A(f"s_cmp_ge_u32 s{sN}, {endn}")
            A(f"s_cselect_b32 s77, {endadd}, 0")
            A("s_add_i32 s76, s76, s77")
        A(f"s_max_i32 s76, s76, {-idx0}")
        A(f"s_min_i32 s76, s76, {NV-1-idx0}")
        A(f"s_cmp_eq_u32 s{sPrevF}, {2 if ctl else 3}")
        A(f"s_cselect_b32 s{sIdx}, s76, s{sIdx}")
        A(f"s_mov_b32 s{sPrevF}, s78")
        A(f"s_bitcmp1_b32 s{sN}, 6")
        A("s_branch L_event3")
        A("L_ctl_init:")
        if fine:
            stamp(9)
        prog_addr(sPs, sPl)
        A(f"s_and_b32 s{sPl}, s{sPs}, 0xffffff80")
        A(f"s_lshr_b32 s{sNc}, s{S_J}, 2")
        A(f"s_add_u32 s{sNc}, s{sNc}, s{S_J}")
        A(f"s_and_b32 s{sNc}, s{sNc}, 3")
        A(f"s_add_u32 s{sNc}, s{sNc}, 3")
        A(f"s_mov_b32 s{sPrevF}, 0")
        A(f"s_sub_u32 s{sSmp}, s{sNc}, 8")
        A(f"s_mul_i32 s{sSmp}, s{sSmp}, {32*int(gain*256)}")
        A(f"s_cmp_eq_u32 s{S_KVH}, 7")
        A(f"s_cselect_b32 s{sCen}, {int(boost7 * 256 * 32)}, 0")
        A(f"s_add_u32 s{sCen}, s{sCen}, {int((0.5 + bias * gain) * 256 * 32)}")
        A(f"s_sub_u32 s{sSmp}, s{sSmp}, s{sCen}")
        if boostE:
            A(f"s_getreg_b32 s{sCen}, hwreg(HW_REG_XCC_ID, 0, 1)")
            A(f"s_mul_i32 s{sCen}, s{sCen}, {int(boostE * 256 * 32)}")
            A(f"s_add_u32 s{sSmp}, s{sSmp}, s{sCen}")
        A("v_mov_b32 v12, 0"); A("v_mov_b32 v13, 0"); A("v_mov_b32 v23, 0")
        A("s_branch L_event2")
        A("L_var:")
        others = [i for i in range(NV) if i != idx0]

        def tree(lst):
            if len(lst) == 1:
                body(lst[0])
                A("s_branch L_event")
                return
            mid = len(lst) // 2
            l = lab("tr")
            A(f"s_cmp_ge_i32 s{sIdx}, {lst[mid] - idx0}")
            A(f"s_cbranch_scc1 {l}")
            tree(lst[:mid])
            A(f"{l}:")
            tree(lst[mid:])
        tree(others)

    role[0] = "aux"
    SWQ, SX, SWS, SG, SU, SOUT = 40, 44, 48, 52, 56, 60
    sO, sTag, sA, sB2, sThr, sLoc = 64, 65, 66, 67, 75, 84
    XB, TF = 64, 96
    A("L_aux:")
    A(f"s_lshr_b32 s{sB2}, s{S_J}, 3")
    srd(SWS, P_WS, WS_BYTES)
    A(f"buffer_load_dword v24, v11, s[{SWS}:{SWS+3}], 0 offen sc1")
    prog_addr(76, 77)
    A("s_mov_b64 exec, 1")
    A(f"buffer_store_dword v11, v11, s[{SWS}:{SWS+3}], s76 offen")
    A("s_mov_b64 exec, -1")
    stamp(1)
    A(f"v_add_u32 v25, {hex(L_XN)}, v10")
    A("v_bfe_u32 v15, v0, 3, 1")
    A("v_lshlrev_b32 v26, 10, v15")
    A("v_lshl_add_u32 v26, v1, 3, v26")
    A(f"v_add_u32 v26, {hex(L_XN)}, v26")
    A(f"s_lshl_b32 s{sA}, s{sB2}, 8")
    A(f"v_add_u32 v28, s{sA}, v26")
    A(f"s_and_b32 s{sA}, s{S_J}, 7")
    A(f"s_lshl_b32 s{sA}, s{sA}, 7")
    A(f"v_add_u32 v26, s{sA}, v26")
    A("v_lshrrev_b32 v29, 2, v0")
    A("v_lshlrev_b32 v29, 7, v29")
    A("v_bfe_u32 v30, v0, 3, 2")
    A("v_lshl_or_b32 v29, v30, 5, v29")
    A("v_and_b32 v30, 3, v0")
    A("v_lshl_or_b32 v29, v30, 3, v29")
    A(f"v_add_u32 v160, {hex(L_TILE)}, v29")
    for T in range(1, 4):
        A(f"v_xor_b32 v{160+T}, {32*T}, v160")
    A("v_lshlrev_b32 v27, 6, v30")
    A("v_lshl_or_b32 v27, v1, 4, v27")
    A("v_bfe_u32 v30, v0, 1, 2")
    A("v_lshlrev_b32 v31, 7, v30")
    A("v_lshl_or_b32 v31, v1, 5, v31")
    A("v_and_b32 v30, 1, v0")
    A("v_lshl_or_b32 v31, v30, 4, v31")
    A("v_lshl_or_b32 v31, v15, 9, v31")
    A(f"s_lshl_b32 s{sO}, s{S_W}, 11")
    A(f"s_add_u32 s{sO}, s{sO}, {hex(W_Q)}")
    for i in range(4):
        A(f"s_mov_b32 s{78+i}, {hex(0x07060500 + i)}")
    if True:
        A(f"buffer_load_dword v89, v31, s[{SWS}:{SWS+3}], s{sO} offen sc1")
    A("s_mov_b32 s68, 0xaaaaaaaa"); A("s_mov_b32 s69, s68")
    A("s_mov_b32 s70, 0xcccccccc"); A("s_mov_b32 s71, s70")
    A("s_mov_b32 s72, 0xf0f0f0f0"); A("s_mov_b32 s73, s72")
    A(f"s_waitcnt vmcnt(3)")
    stamp(2)
    XF = 32
    for b in range(2):
        for i in range(4):
            unpack(XF + 8 * b + 2 * i, 16 + 4 * b + i)
    for b in range(2):
        A(f"v_add_f32 v{48+b}, v{XF+8*b}, v{XF+8*b+1}")
    for i in range(2, 8):
        for b in range(2):
            A(f"v_add_f32 v{48+b}, v{48+b}, v{XF+8*b+i}")
    allreduce([48, 49], "v_add_f32", [50, 51])
    for b in range(2):
        A(f"v_mul_f32 v{48+b}, 0x3b000000, v{48+b}")
    for i in range(8):
        for b in range(2):
            A(f"v_sub_f32 v{52+b}, v{XF+8*b+i}, v{48+b}")
        for b in range(2):
            A(f"{'v_mul_f32' if i == 0 else 'v_fmac_f32'} v{54+b}, v{52+b}, v{52+b}")
    allreduce([54, 55], "v_add_f32", [50, 51])
    for b in range(2):
        A(f"v_mul_f32 v{54+b}, 0x3b000000, v{54+b}")
    A("v_cvt_pk_bf16_f32 v50, v48, v49")
    A("v_cvt_pk_bf16_f32 v51, v54, v55")
    unpack(48, 50)
    unpack(54, 51)
    A("v_add_f32 v54, 0x3727c5ac, v54"); A("v_add_f32 v55, 0x3727c5ac, v55")
    A("v_cvt_pk_bf16_f32 v51, v54, v55")
    unpack(54, 51)
    A("v_sqrt_f32 v54, v54"); A("v_sqrt_f32 v55, v55")
    nop(1)
    A("v_cvt_pk_bf16_f32 v51, v54, v55")
    unpack(54, 51)
    A("v_rcp_f32 v54, v54"); A("v_rcp_f32 v55, v55")
    for b in range(2):
        for i in range(8):
            A(f"v_sub_f32 v{XF+8*b+i}, v{XF+8*b+i}, v{48+b}")
        for i in range(4):
            A(f"v_cvt_pk_bf16_f32 v{56+4*b+i}, v{XF+8*b+2*i}, v{XF+8*b+2*i+1}")
        for i in range(4):
            unpack(XF + 8 * b + 2 * i, 56 + 4 * b + i)
        for i in range(8):
            A(f"v_mul_f32 v{XF+8*b+i}, v{XF+8*b+i}, v{54+b}")
        for i in range(4):
            A(f"v_cvt_pk_bf16_f32 v{56+4*b+i}, v{XF+8*b+2*i}, v{XF+8*b+2*i+1}")
        A(f"ds_write_b128 v25, v[{56+4*b}:{59+4*b}] offset:{1024*b}")
    A("s_waitcnt lgkmcnt(0)")
    for s in range(4):
        A(f"ds_read2_b64 v[{XB+4*s}:{XB+4*s+3}], v28 offset0:{8*s} offset1:{8*s+4}")
    for s in range(2):
        A(f"ds_read2_b64 v[{XB+16+4*s}:{XB+16+4*s+3}], v26 offset0:{8*s} offset1:{8*s+4}")
    stamp(3)
    lds_wait(F_LANDED, 2, 44, sA)
    A("s_waitcnt vmcnt(0)")
    stamp(4)

    def tile_mfma(acc_of, b_of, first):
        for hf in range(2):
            for s in range(2 * hf, 2 * hf + 2):
                for T in range(4):
                    r = TF + 16 * s + 4 * T
                    A(f"ds_read_b64_tr_b16 v[{r}:{r+1}], v{160+T} offset:{s*4096}")
                    A(f"ds_read_b64_tr_b16 v[{r+2}:{r+3}], v{160+T} offset:{s*4096+2048}")
                if s == 2 * hf:
                    A("s_waitcnt lgkmcnt(4)")
            A("s_waitcnt lgkmcnt(0)")
            for s in range(2 * hf, 2 * hf + 2):
                for T in range(4):
                    r = TF + 16 * s + 4 * T
                    d = acc_of(s, T)
                    c = "0" if first(s) else f"v[{d}:{d+3}]"
                    A(f"v_mfma_f32_16x16x32_bf16 v[{d}:{d+3}], v[{r}:{r+3}], v[{b_of(s)}:{b_of(s)+3}], {c}")

    def select_quad(D, out):
        for T in (0, 2):
            for r in range(4):
                A(f"v_cndmask_b32 v{D+4*T+r}, v{D+4*T+r}, v{D+4*T+4+r}, s[68:69]")
        for r in range(4):
            A(f"v_cndmask_b32 v{out+r}, v{D+r}, v{D+8+r}, s[70:71]")
        for r in range(4):
            A(f"v_add_u32 v{out+r}, 0x80, v{out+r}")

    def select_granule(D, out):
        for T in range(4):
            A(f"v_cndmask_b32 v{D+4*T}, v{D+4*T}, v{D+2+4*T}, s[68:69]")
            A(f"v_cndmask_b32 v{D+1+4*T}, v{D+1+4*T}, v{D+3+4*T}, s[68:69]")
        for T in (0, 2):
            A(f"v_cndmask_b32 v{D+4*T}, v{D+4*T}, v{D+4+4*T}, s[70:71]")
            A(f"v_cndmask_b32 v{D+1+4*T}, v{D+1+4*T}, v{D+5+4*T}, s[70:71]")
        A(f"v_cndmask_b32 v{out}, v{D}, v{D+8}, s[72:73]")
        A(f"v_cndmask_b32 v{out+2}, v{D+1}, v{D+9}, s[72:73]")

    def put_tag(dst, src, vtag):
        for r in range(4):
            A(f"v_perm_b32 v{dst+r}, v{src+r}, v{vtag}, s{78+r}")

    tile_mfma(lambda s, T: 32 + 4 * T, lambda s: XB + 4 * s, lambda s: s == 0)
    make_tag(sTag, 24)
    local_tag(sA, sTag)
    A(f"v_mov_b32 v17, s{sA}")
    A(f"v_mov_b32 v19, s{sA}")
    select_granule(32, 16)
    A(f"buffer_store_dwordx4 v[16:19], v31, s[{SWS}:{SWS+3}], s{sO} offen")
    A("v_mov_b32 v88, 1")
    A("s_setprio 0")
    A(f"s_add_u32 s{sO}, s{sO}, {hex(W_QB - W_Q)}")
    A(f"v_mov_b32 v17, s{sTag}")
    A(f"v_mov_b32 v19, s{sTag}")
    A(f"s_mov_b32 s{sB2}, 1")
    stamp(5)
    for T in range(4):
        A(f"v_add_u32 v{160+T}, {L_T2 - L_TILE}, v{160+T}")
    lds_wait(F_LANDED, 4, 44, sA)
    tile_mfma(lambda s, T: 32 + 16 * (s >> 1) + 4 * T, lambda s: XB + 16 + 4 * (s & 1), lambda s: s in (0, 2))
    lds_set(8, F_TILE, 88)
    nop(2)
    for i in range(16):
        A(f"v_cndmask_b32 v{32+i}, v{32+i}, v{48+i}, s[72:73]")
    select_quad(32, 92)
    put_tag(92, 92, 17)
    stamp(6)
    A("L_qserve:")
    A(f"ds_read_b128 v[44:47], v8 offset:{F_QRDY}")
    A(f"ds_read_b32 v48, v8 offset:{F_BREQ}")
    spin_guard()
    A("s_waitcnt lgkmcnt(0)")
    A("v_min3_i32 v44, v44, v45, v46")
    A("v_min_i32 v44, v44, v47")
    A(f"v_readfirstlane_b32 s{sA}, v48")
    A(f"v_readfirstlane_b32 s{sLoc}, v44")
    A(f"s_and_b32 s{sA}, s{sA}, s{sB2}")
    A("s_cbranch_scc0 L_qnob")
    A(f"buffer_store_dwordx4 v[16:19], v31, s[{SWS}:{SWS+3}], s{sO} offen sc1")
    A(f"s_mov_b32 s{sB2}, 0")
    A("L_qnob:")
    A(f"s_cmp_eq_u32 s{sLoc}, 0")
    A("s_cbranch_scc1 L_qserve")
    A(f"s_cmp_ge_u32 s{S_KVH}, {0 if noffn else 7}")
    A("s_cbranch_scc1 L_noffn1")
    A("v_lshl_or_b32 v30, v15, 8, v27")
    A("v_bfe_u32 v29, v0, 2, 1")
    A("v_lshl_or_b32 v30, v29, 9, v30")
    A(f"s_lshl_b32 s{sO}, s{S_W}, 11")
    A(f"s_add_u32 s{sO}, s{sO}, {hex(W_F)}")
    store_by(sLoc, [f"buffer_store_dwordx4 v[92:95], v30, s[{SWS}:{SWS+3}], s{sO} offen"])
    A("L_noffn1:")
    stamp(7)
    stamp_flush()
    A("s_endpgm")

    role[0] = "cons"
    SWS = 48
    sC, sLd, sTg, sL2E, sSc, sA, sB2, sTag, sLoc = 60, 61, 62, 63, 64, 65, 66, 67, 84
    AV, VDN, AK = 6, 9, 144
    S, O, KF, Q, SV = 16, 24, 32, 64, 128
    VF, PF = 32, 40
    vM, vNM, vL, vT, vT2, vPW, vPR = 152, 153, 154, 155, 156, 157, 158
    A("L_other:")
    srd(SWS, P_WS, WS_BYTES)
    A(f"buffer_load_dword v164, v11, s[{SWS}:{SWS+3}], 0 offen sc1")
    A("s_cmp_ge_u32 s3, 6")
    A("s_cbranch_scc1 L_tail")
    if pads:
        A("s_mov_b64 exec, 0")
        A("s_branch L_vlast")
        A("L_cpad:")
        A("s_mov_b64 exec, -1")
    A("s_setprio 1")
    A(f"s_sub_u32 s{sC}, s3, 2")
    A(f"s_lshl_b32 s69, s{S_KVH}, 4")
    A(f"s_add_u32 s69, s69, s{sC}")
    A("s_lshl_b32 s69, s69, 3")
    A(f"s_add_u32 s69, s69, s{S_B}")
    A("s_lshl_b32 s69, s69, 9")
    A(f"s_add_u32 s69, s69, {hex(W_Q)}")
    for kb in range(1, 4):
        A(f"s_add_u32 s{69+kb}, s69, {kb*0x4000}")
    A("v_lshrrev_b32 v12, 5, v0")
    A("v_and_b32 v165, 0x1f0, v10")
    A("v_lshl_or_b32 v165, v12, 11, v165")
    A(f"s_mov_b32 s{sL2E}, {hex(LOG2E)}")
    A(f"s_mov_b32 s{sSc}, {hex(SCALE)}")
    A("v_and_b32 v15, 3, v0")
    A("v_lshlrev_b32 v160, 9, v15")
    A(f"v_bfe_u32 v{vT2}, v0, 2, 1")
    A(f"v_lshl_or_b32 v160, v{vT2}, 6, v160")
    A("v_lshl_or_b32 v160, v1, 4, v160")
    A(f"s_lshl_b32 s68, s{S_W}, 11")
    A(f"s_lshl_b32 s{sA}, s{sC}, 7")
    A(f"s_add_u32 s68, s68, s{sA}")
    A(f"s_add_u32 s68, s68, {hex(W_O)}")
    A(f"s_lshl_b32 s73, s{S_KVH}, 2")
    A(f"s_add_u32 s73, s73, s{sC}")
    A("s_lshl_b32 s73, s73, 1")
    A(f"s_add_u32 s73, s73, s{S_B}")
    A("s_lshl_b32 s73, s73, 2")
    A(f"s_and_b32 s{sA}, s{S_S}, 3")
    A(f"s_add_u32 s73, s73, s{sA}")
    A("s_lshl_b32 s73, s73, 2")
    A(f"s_lshr_b32 s{sA}, s{S_S}, 2")
    A(f"s_add_u32 s73, s73, s{sA}")
    A("s_lshl_b32 s73, s73, 4")
    A(f"s_add_u32 s73, s73, {hex(W_ML)}")
    A(f"v_lshlrev_b32 v{vPR}, 4, v15")
    A(f"v_lshl_or_b32 v{vPR}, v1, 6, v{vPR}")
    A(f"v_add_u32 v{vPR}, {hex(L_TILE)}, v{vPR}")
    A(f"v_bfe_u32 v{vT}, v0, 2, 2")
    A(f"v_lshl_add_u32 v{vPW}, v{vT}, 10, v{vPR}")
    A(f"s_lshl_b32 s{sA}, s{sC}, 8")
    A(f"v_add_u32 v{vPW}, s{sA}, v{vPW}")
    A(f"s_add_u32 s{sA}, s{sA}, {hex(L_Q)}")
    A(f"v_lshl_add_u32 v2, v0, 2, s{sA}")
    A("v_lshlrev_b32 v3, 8, v15")
    A("v_lshl_add_u32 v3, v1, 6, v3")
    A(f"v_add_u32 v3, {hex(L_Q)}, v3")
    A("v_lshl_add_u32 v4, v15, 4, v8")
    A(f"s_lshl_b32 s{sA}, s{sC}, 2")
    A(f"v_add_u32 v5, s{sA}, v4")
    A(f"v_add_u32 v{VDN}, s{sA}, v8")
    A("v_and_b32 v14, 15, v0")
    A("v_and_b32 v12, 7, v0")
    A("v_lshlrev_b32 v12, 1, v12")
    A("v_bfe_u32 v13, v0, 3, 1")
    A("v_or_b32 v12, v12, v13")
    A("v_lshlrev_b32 v13, 2, v1")
    A("v_xor_b32 v12, v12, v13")
    A("v_lshlrev_b32 v12, 4, v12")
    A("v_lshl_or_b32 v12, v14, 8, v12")
    A(f"s_lshl_b32 s{sA}, s{sC}, 13")
    A(f"v_or_b32 v{AK}, s{sA}, v12")
    for s in range(1, 8):
        A(f"v_xor_b32 v{AK+s}, {hex(16*(s&3) + 0x10000*(s>>2))}, v{AK}")
    vaddr_T0(13, 12, 14, 15)
    A(f"s_lshl_b32 s{sA}, s{sC}, 6")
    A(f"v_xor_b32 v{AV}, s{sA}, v13")
    A(f"v_xor_b32 v{AV+1}, 32, v{AV}")
    A(f"s_mov_b32 s{sLd}, 0")
    A(f"s_sub_u32 s{sTg}, s{sC}, 3")
    A(f"v_mov_b32 v{vM}, 0xff800000")
    A(f"v_mov_b32 v{vL}, 0")
    for i in range(8):
        A(f"v_mov_b32 v{O+i}, 0")
    A("s_mov_b32 s76, 0x000f000f"); A("s_mov_b32 s77, s76")
    for g in range(1, 4):
        A(f"s_lshl_b64 s[{76+2*g}:{77+2*g}], s[76:77], {4*g}")
    A("v_mov_b32 v159, 1")
    if diag is not None:
        A("s_mov_b32 s88, s90")
    SX, SOUT = 40, 44
    vYA = 153
    srd(SX, P_X, 2048)
    srd(SOUT, P_OUT, 2048)
    A(f"s_lshl_b32 s85, s{S_J}, 2")
    A(f"s_add_u32 s85, s85, s{sC}")
    A("s_lshl_b32 s85, s85, 4")
    A("v_and_b32 v12, 1, v0")
    A("v_bfe_u32 v13, v0, 2, 2")
    A("v_lshlrev_b32 v13, 1, v13")
    A("v_lshl_or_b32 v161, v12, 3, v13")
    A("v_lshrrev_b32 v13, 1, v0")
    A("v_lshlrev_b32 v13, 11, v13")
    A(f"v_lshl_or_b32 v{vYA}, v12, 4, v13")
    A("v_lshrrev_b32 v163, 3, v0")
    A("v_lshlrev_b32 v163, 7, v163")
    A(f"s_lshl_b32 s52, s{S_B}, 16")
    A("s_and_b32 s53, s85, 0x3ff")
    A("s_lshl_b32 s53, s53, 1")
    A("s_add_u32 s52, s52, s53")
    A(f"s_add_u32 s52, s52, {hex(W_Y)}")
    A(f"s_mov_b32 s59, {hex(W_IND)}")
    A(f"s_lshl_b32 s58, s{S_W}, 2")
    A(f"s_add_u32 s58, s58, {hex(W_MARK)}")
    A("s_and_b32 s53, s58, 0xffffff80")
    A(f"s_cmp_lg_u32 s{S_KVH}, {FX}")
    A("s_cbranch_scc1 L_nofin")
    A(f"buffer_load_ushort v162, v161, s[{SX}:{SX+3}], s85 offen")
    A("s_mov_b64 exec, 1")
    A(f"buffer_store_short v11, v161, s[{SOUT}:{SOUT+3}], s85 offen")
    A("s_mov_b64 exec, -1")
    A("L_nofin:")
    A("s_waitcnt vmcnt(0)")
    make_tag(sTag, 164)
    local_tag(74, sTag)
    for i in range(4):
        A(f"s_bfe_u32 s{54+i}, s{sTag}, {hex(0x80000 + 8*i)}")
    A("v_lshlrev_b32 v162, 16, v162")
    A(f"v_mov_b32 v164, s{sTag}")
    stamp(1)
    lds_wait(F_TILE, 1, vT, sA)
    stamp(5)
    A("s_mov_b64 vcc, -1")
    A(f"s_mov_b32 s{sB2}, 0")
    A("L_qpoll:")
    A(f"s_add_u32 s{sB2}, s{sB2}, 1")
    A(f"s_and_b32 s{sA}, s{sB2}, {(QB_EVERY - 1) if fast else 0}")
    A(f"s_cselect_b32 s{sA}, 0, {hex(W_QB - W_Q)}")
    A(f"s_cselect_b32 s75, s74, s{sTag}")
    A("s_cselect_b64 exec, 0, 1")
    A(f"ds_write_b32 v8, v159 offset:{F_BREQ}")
    A("s_mov_b64 exec, vcc")
    A(f"v_add_u32 v15, s{sA}, v165")
    for kb in range(4):
        A(f"buffer_load_dwordx4 v[{KF+4*kb}:{KF+4*kb+3}], v15, s[{SWS}:{SWS+3}], s{69+kb} offen sc1")
    spin_guard()
    A("s_waitcnt vmcnt(0)")
    tag_check(KF, 8, 75, vT, vT2)
    A("s_cbranch_vccnz L_qpoll")
    A("s_mov_b64 exec, -1")
    stamp(6)
    for kb in range(1, 4):
        A(f"v_add_f32 v{KF}, v{KF}, v{KF+4*kb}")
        A(f"v_add_f32 v{KF+2}, v{KF+2}, v{KF+4*kb+2}")
    A(f"v_cvt_pk_bf16_f32 v{vT}, v{KF}, v{KF+2}")
    A(f"ds_write_b32 v2, v{vT}")
    A(f"s_cmp_lt_u32 s{sB2}, {QB_EVERY if fast else 0}")
    A(f"s_cselect_b32 s{sA}, 2, 1")
    A(f"v_mov_b32 v{vT2}, s{sA}")
    lds_set(VDN, F_QRDY, vT2)
    lds_wait4(F_QRDY, 1, S, [f"ds_read_b128 v[{KF+4*s}:{KF+4*s+3}], v3 offset:{16*s}" for s in range(4)])
    A(f"v_readfirstlane_b32 s{sLoc}, v{S}")
    lds_set(8, F_CTL, S)
    if wearly:
        lds_wait4(F_WRDY, 2, S)
    for g in range(4):
        for i in range(16):
            A(f"v_cndmask_b32 v{Q+16*g+i}, 0, v{KF+i}, s[{76+2*g}:{77+2*g}]")
    stamp(2)

    def wait_landed(tgt):
        lo, ls = lab("lo"), lab("ls")
        A(f"s_cmp_ge_i32 s{sLd}, {tgt}")
        A(f"s_cbranch_scc1 {lo}")
        A(f"{ls}:")
        if slpc:
            A(f"s_sleep {slpc}")
        A(f"ds_read_b32 v{vT}, v8 offset:{F_LANDED}")
        spin_guard()
        A("s_waitcnt lgkmcnt(0)")
        A(f"v_readfirstlane_b32 s{sLd}, v{vT}")
        A(f"s_sub_u32 s{sLd}, s{sLd}, {LB}")
        A(f"s_cmp_ge_i32 s{sLd}, {tgt}")
        A(f"s_cbranch_scc0 {ls}")
        A(f"{lo}:")

    A("L_kwin:")
    for g in range(4):
        A(f"s_add_u32 s{sTg}, s{sTg}, 4")
        wait_landed(f"s{sTg}")
        for t in range(2):
            for s in range(4):
                r = KF + 16 * t + 4 * s
                A(f"ds_read_b128 v[{r}:{r+3}], v{AK + 4*(g>>1) + s} offset:{(g&1)*32768 + t*4096}")
        A(f"s_add_u32 s{sA}, s{sTg}, 3")
        A(f"s_min_u32 s{sA}, s{sA}, 64")
        A(f"v_mov_b32 v{vT2}, s{sA}")
        for t in range(2):
            A(f"s_waitcnt lgkmcnt({4 if t == 0 else 0})")
            if t == 1:
                lds_set(VDN, F_DONE, vT2)
            for s in range(4):
                r = KF + 16 * t + 4 * s
                c = "0" if (g == 0 and s == 0) else f"v[{S+4*t}:{S+4*t+3}]"
                q = Q + 16 * g + 4 * s
                A(f"v_mfma_f32_16x16x32_bf16 v[{S+4*t}:{S+4*t+3}], v[{r}:{r+3}], v[{q}:{q+3}], {c}")
    for i in range(12):
        A(f"v_mov_b32 v{SV+i}, v{SV+4+i}")
    for i in range(4):
        A(f"v_cvt_pk_bf16_f32 v{SV+12+i}, v{S+2*i}, v{S+2*i+1}")
    for i in range(4):
        unpack(S + 2 * i, SV + 12 + i)
    for i in range(8):
        A(f"v_mul_f32 v{S+i}, s{sSc}, v{S+i}")
    for i in range(4):
        A(f"v_cvt_pk_bf16_f32 v{SV+12+i}, v{S+2*i}, v{S+2*i+1}")
    A(f"v_max3_f32 v{vM}, v{vM}, v{S}, v{S+1}")
    A(f"v_max3_f32 v{vT}, v{S+2}, v{S+3}, v{S+4}")
    A(f"v_max3_f32 v{vM}, v{vM}, v{S+5}, v{S+6}")
    A(f"v_max3_f32 v{vM}, v{vM}, v{vT}, v{S+7}")
    A(f"s_cmp_lt_u32 s{sTg}, 60")
    A("s_cbranch_scc1 L_kwin")
    stamp(3)
    allreduce([vM], "v_max_f32", [vT], steps=("r4", "r8", "p16", "p32"))
    A("s_mov_b64 exec, 15")
    A(f"ds_write_b32 v5, v{vM} offset:{L_M - L_FLAG}")
    lds_set(VDN, F_MRDY, 159)
    lds_wait4(F_HRDY, 1, S)
    lds_wait4(F_MRDY, 1, S, [f"ds_read_b128 v[{S+4}:{S+7}], v4 offset:{L_M - L_FLAG}"])
    A(f"v_max3_f32 v{vM}, v{S+4}, v{S+5}, v{S+6}")
    A(f"v_max_f32 v{vM}, v{vM}, v{S+7}")
    A(f"v_cvt_pk_bf16_f32 v{vM}, v{vM}, v{vM}")
    A(f"v_and_b32 v{vM}, 0xffff0000, v{vM}")
    A(f"v_mul_f32 v{vM}, s{sL2E}, v{vM}")
    A(f"s_mov_b32 s{sA}, 4")
    A("L_pwin:")
    for i in range(4):
        unpack(S + 2 * i, SV + i)
    for i in range(8):
        A(f"v_fma_f32 v{S+i}, v{S+i}, s{sL2E}, -v{vM}")
    for i in range(8):
        A(f"v_exp_f32 v{S+i}, v{S+i}")
    for i in range(12):
        A(f"v_mov_b32 v{SV+i}, v{SV+4+i}")
    A("s_waitcnt lgkmcnt(0)")
    for i in range(4):
        A(f"v_cvt_pk_bf16_f32 v{KF+i}, v{S+2*i}, v{S+2*i+1}")
    A(f"ds_write_b128 v{vPW}, v[{KF}:{KF+3}]")
    for i in range(8):
        A(f"v_add_f32 v{vL}, v{vL}, v{S+i}")
    A(f"v_add_u32 v{vPW}, 0x1000, v{vPW}")
    A(f"s_sub_u32 s{sA}, s{sA}, 1")
    A(f"s_cmp_lg_u32 s{sA}, 0")
    A("s_cbranch_scc1 L_pwin")
    allreduce([vL], "v_add_f32", [vT], steps=("r4", "r8", "p16", "p32"))
    A("s_mov_b64 exec, 15")
    A(f"ds_write_b32 v5, v{vL} offset:{L_L - L_FLAG}")
    A("s_waitcnt vmcnt(0)")
    lds_set(VDN, F_PRDY, 159)
    lds_wait4(F_PRDY, 1, S, [f"ds_read_b128 v[{S+4}:{S+7}], v4 offset:{L_L - L_FLAG}"])
    A(f"v_add_f32 v{S+4}, v{S+4}, v{S+5}")
    A(f"v_add_f32 v{S+6}, v{S+6}, v{S+7}")
    A(f"v_mov_b32 v{S}, v{vM}")
    A(f"v_mov_b32 v{S+1}, s{sTag}")
    A(f"v_add_f32 v{S+2}, v{S+4}, v{S+6}")
    A(f"v_mov_b32 v{S+3}, s{sTag}")
    A(f"s_lshl_b64 exec, 1, s{sC}")
    store_by(sLoc, [f"buffer_store_dwordx4 v[{S}:{S+3}], v11, s[{SWS}:{SWS+3}], s73 offen"])
    A("s_mov_b64 exec, -1")
    A(f"s_mov_b32 s{sTg}, 64")
    stamp(7)
    def v_reads(g):
        return [f"ds_read_b64_tr_b16 v[{VF+4*tt+2*h}:{VF+4*tt+2*h+1}], v{AV+tt} offset:{g*8192 + h*4096}" for tt in range(2) for h in range(2)]

    def v_mfma(tt):
        A(f"v_mfma_f32_16x16x32_bf16 v[{O+4*tt}:{O+4*tt+3}], v[{VF+4*tt}:{VF+4*tt+3}], v[{PF}:{PF+3}], v[{O+4*tt}:{O+4*tt+3}]")

    A("L_vwin:")
    for g in range(4):
        A(f"ds_read_b128 v[{PF}:{PF+3}], v{vPR} offset:{g*256}")
        A(f"s_add_u32 s{sTg}, s{sTg}, 1")
        if g == 3:
            A(f"s_cmp_eq_u32 s{sTg}, 128")
            A("s_cbranch_scc1 L_vlast")
        wait_landed(f"s{sTg}")
        for r in v_reads(g):
            A(r)
        A(f"v_mov_b32 v{vT2}, s{sTg}")
        for tt in range(2):
            A(f"s_waitcnt lgkmcnt({2 if tt == 0 else 0})")
            v_mfma(tt)
        lds_set(VDN, F_DONE, vT2)
    for tt in range(2):
        A(f"v_add_u32 v{AV+tt}, 0x8000, v{AV+tt}")
        A(f"v_and_b32 v{AV+tt}, 0x1ffff, v{AV+tt}")
    A(f"v_add_u32 v{vPR}, 0x400, v{vPR}")
    A(f"s_cmp_lg_u32 s{sTg}, 120")
    A("s_cbranch_scc1 L_vwin")
    lds_wait4(F_HRDY, 2, S)
    A("s_branch L_vwin")
    A(".p2align 6")
    A("L_vlast:")
    if pads:
        A("s_cbranch_execz L_cpad")
    if spec:
        A("L_vl2:")
        A(f"ds_read_b32 v{vT}, v8 offset:{F_LANDED}")
        for r in v_reads(3):
            A(r)
        spin_guard()
        A("s_waitcnt lgkmcnt(4)")
        A(f"v_cmp_gt_i32 vcc, {128 + LB}, v{vT}")
        A("s_cbranch_vccnz L_vl2")
    else:
        wait_landed(128)
        for r in v_reads(3):
            A(r)
    for tt in range(2):
        A(f"s_waitcnt lgkmcnt({2 if tt == 0 else 0})")
        v_mfma(tt)
    A(f"s_cmp_eq_u32 s{sLoc}, 2")
    A("s_mov_b32 s86, 0x00ff00ff")
    A("s_mov_b32 s87, s86")
    nop(5)
    for i in range(4):
        A(f"v_mov_b32_dpp v{O+i}, v{O+4+i} row_shr:4 row_mask:0xf bank_mask:0x2")
    A("s_mov_b64 exec, s[86:87]")
    A("s_cbranch_scc0 L_o_far")
    A(f"buffer_store_dwordx4 v[{O}:{O+3}], v160, s[{SWS}:{SWS+3}], s68 offen")
    A("L_o_pub:")
    if opre == 3:
        A(f"v_mov_b32 v{vT2}, 128")
        lds_set(VDN, F_DONE, vT2)
    stamp(4)
    if early:
        A(f"s_cmp_lg_u32 s{sC}, 0")
        A("s_cbranch_scc1 L_o_end")
        A("s_mov_b64 exec, 1")
        A(f"buffer_store_dword v164, v11, s[{SWS}:{SWS+3}], s58 offen")
        A("s_mov_b64 exec, 0xff")
        A(f"buffer_load_dwordx4 v[{S}:{S+3}], v10, s[{SWS}:{SWS+3}], s53 offen sc1")
        A(f"s_lshl_b32 s{sA}, s{S_KVH}, 7")
        A(f"s_add_u32 s{sA}, s{sA}, s59")
        A("s_waitcnt vmcnt(0)")
        A(f"v_min3_u32 v{vT}, v{S}, v{S+1}, v{S+2}")
        A(f"v_max3_u32 v{vT2}, v{S}, v{S+1}, v{S+2}")
        A(f"v_min_u32 v{vT}, v{vT}, v{S+3}")
        A(f"v_max_u32 v{vT2}, v{vT2}, v{S+3}")
        A(f"v_cmp_ne_u32 vcc, v164, v{vT}")
        A(f"v_cmp_ne_u32 s[86:87], v164, v{vT2}")
        A("s_or_b64 vcc, vcc, s[86:87]")
        A("s_cbranch_scc1 L_o_end")
        A("s_mov_b64 exec, 1")
        A(f"buffer_store_dword v164, v11, s[{SWS}:{SWS+3}], s{sA} offen sc1")
        stamp(12)
    A("L_o_end:")
    A(f"s_cmp_lg_u32 s{S_KVH}, {FX}")
    A("s_cbranch_scc1 L_c_end")
    A("s_mov_b64 exec, -1")
    lds_wait4(F_ORDY, 1, S)
    stamp(9)
    YG = 32
    A("s_mov_b64 s[86:87], -1")
    if not ind:
        A("s_branch L_ypoll")
    A("v_not_b32 v13, v164")
    A("L_ipoll:")
    if not yall:
        A("s_mov_b64 exec, s[86:87]")
    A(f"buffer_load_dword v13, v163, s[{SWS}:{SWS+3}], s59 offen sc1")
    spin_guard()
    A(f"s_waitcnt vmcnt({icap})")
    if yall:
        A("v_cmp_ne_u32 vcc, v164, v13")
        A("s_cbranch_vccnz L_ipoll")
        stamp(13)
        A("L_ypoll:")
    else:
        A("v_cmp_eq_u32 vcc, v164, v13")
        A("s_and_b64 exec, exec, vcc")
        A("s_cbranch_execz L_ipoll")
    A(f"buffer_load_dwordx4 v[{YG}:{YG+3}], v{vYA}, s[{SWS}:{SWS+3}], s52 offen sc1")
    spin_guard()
    A("s_waitcnt vmcnt(0)")
    for k in range(4):
        A(f"v_xor_b32 v{YG+k}, s{54+k}, v{YG+k}")
    A(f"v_or3_b32 v{vT}, v{YG}, v{YG+1}, v{YG+2}")
    A(f"v_or_b32 v{vT}, v{vT}, v{YG+3}")
    A(f"v_and_b32 v{vT}, 0xff, v{vT}")
    if yall:
        A(f"v_cmp_ne_u32 vcc, 0, v{vT}")
        A("s_and_b64 exec, exec, vcc")
        A("s_cbranch_scc1 L_ypoll")
    else:
        A(f"v_cmp_eq_u32 vcc, 0, v{vT}")
        A("s_andn2_b64 s[86:87], s[86:87], vcc")
        A("s_cbranch_scc1 L_ipoll")
    A("s_mov_b64 exec, -1")
    stamp(10)
    A(f"v_add_f32_dpp v{YG+4}, v{YG}, v{YG} row_ror:12 row_mask:0xf bank_mask:0x5")
    A(f"v_add_f32_dpp v{YG+5}, v{YG+2}, v{YG+2} row_ror:12 row_mask:0xf bank_mask:0x5")
    nop(1)
    A(f"v_add_f32_dpp v{YG+4}, v{YG+1}, v{YG+1} row_ror:4 row_mask:0xf bank_mask:0xa")
    A(f"v_add_f32_dpp v{YG+5}, v{YG+3}, v{YG+3} row_ror:4 row_mask:0xf bank_mask:0xa")
    nop(1)
    A(f"v_add_f32_dpp v{YG+6}, v{YG+4}, v{YG+4} row_ror:8 row_mask:0xf bank_mask:0x3")
    nop(2)
    A(f"v_add_f32_dpp v{YG+6}, v{YG+5}, v{YG+5} row_ror:8 row_mask:0xf bank_mask:0xc")
    allreduce([YG + 6], "v_add_f32", [YG + 7], steps=("x2", "p16", "p32"))
    A(f"v_add_f32 v{YG+6}, v{YG+6}, v162")
    A("s_mov_b64 exec, 0x3333")
    A(f"v_cvt_pk_bf16_f32 v{YG+6}, v{YG+6}, v{YG+6}")
    A(f"buffer_store_short v{YG+6}, v161, s[{SOUT}:{SOUT+3}], s85 offen")
    A("s_cmp_lg_u32 s85, 0")
    A("s_cbranch_scc1 L_c_st")
    A("s_mov_b64 exec, 1")
    A(f"buffer_store_dword v164, v11, s[{SWS}:{SWS+3}], 0 offen")
    A("L_c_st:")
    stamp(11)
    A("L_c_end:")
    stamp_flush()
    if diag is not None:
        A("s_sub_u32 s88, s88, s90")
        if xdev is not None:
            A("s_cmp_lg_u32 s2, 1"); A("s_cbranch_scc1 L_abort")
            A("L_xd1:"); A("s_memrealtime s[86:87]"); A("s_waitcnt lgkmcnt(0)"); A("s_sub_u32 s86, s86, s90"); A("s_cmp_lt_u32 s86, 7000"); A("s_cbranch_scc1 L_xd1")
            A("s_mov_b64 exec, -1"); A(f"s_mov_b32 s87, {hex(W_STAMP)}"); A("v_lshlrev_b32 v44, 2, v0")
            for i in range(4): A(f"buffer_load_dword v{45+i}, v44, s[{SWS}:{SWS+3}], s87 offen offset:{256*i} sc1")
            A("s_waitcnt vmcnt(0)")
            for i in range(4): A(f"v_subrev_u32 v{45+i}, s90, v{45+i}")
            A("v_max3_i32 v52, v45, v46, v47"); A("v_max_i32 v52, v52, v48")
            A("v_add_u32 v45, v45, v46"); A("v_add_u32 v47, v47, v48"); A("v_add_u32 v45, v45, v47")
            allreduce([45], "v_add_u32", [50], steps=("r8", "p16", "p32"))
            A("v_mov_b32 v46, v45"); A("v_mov_b32 v51, v45")
            allreduce([46], "v_add_u32", [50], steps=("x1", "x2", "hm"))
            allreduce([51], "v_max_i32", [50], steps=("x1", "x2", "hm"))
            allreduce([52], "v_max_i32", [50])
            nop(1)
            if xdev < 8: A(f"v_readlane_b32 s86, v45, {xdev}")
            elif xdev == 8: A("v_readlane_b32 s86, v51, 0")
            else: A("v_readlane_b32 s86, v52, 0"); A("s_lshl_b32 s86, s86, 5")
            A("v_readlane_b32 s87, v46, 0")
            A("s_lshl_b32 s86, s86, 3"); A("s_sub_i32 s86, s86, s87"); A("s_mul_i32 s86, s86, 20"); A("s_ashr_i32 s88, s86, 8")
        A("s_add_u32 s88, s88, 10000")
        A("L_diag:")
        A("s_memrealtime s[86:87]")
        A("s_waitcnt lgkmcnt(0)")
        A("s_sub_u32 s86, s86, s90")
        A("s_cmp_lt_u32 s86, s88")
        A("s_cbranch_scc1 L_diag")
    A("s_endpgm")
    A("L_o_far:")
    A(f"buffer_store_dwordx4 v[{O}:{O+3}], v160, s[{SWS}:{SWS+3}], s68 offen sc1")
    A("s_branch L_o_pub")

    role[0] = "tail"
    SWO, SD = 40, 44
    sTw, sA, sB2, sTag, sWo, sDo, sO = 60, 65, 66, 67, 63, 64, 61
    GA, GB, WF, DF, HB, Y, R, W = 64, 80, 96, 112, 120, 128, 132, 136
    A("L_tail:")
    if pads:
        A("s_mov_b64 exec, 0")
        A("s_branch L_tend")
        A("L_tpad:")
        A("s_mov_b64 exec, -1")
    A(f"s_sub_u32 s{sTw}, s3, 6")
    srd(SWO, P_WO, 0 if nowt else 4096 * 512 * 2)
    srd(SD, P_D, 0 if nowt else 1792 * 512 * 2)
    A("v_lshl_or_b32 v4, v12, 10, v13")
    for i in range(1, 4):
        A(f"v_add_u32 v{4+i}, {i*(8192-1024)}, v4")
    A(f"s_lshr_b32 s{sO}, s{S_W}, 3")
    A(f"s_lshl_b32 s{sDo}, s{sO}, 2")
    A(f"s_add_u32 s{sDo}, s{sDo}, s{sTw}")
    A(f"s_lshl_b32 s{sWo}, s{sDo}, 15")
    A(f"s_lshl_b32 s{sDo}, s{sDo}, 14")
    A(f"s_and_b32 s{sB2}, s{S_J}, 7")
    A(f"s_lshl_b32 s{sA}, s{sB2}, 7")
    A(f"s_add_u32 s{sWo}, s{sWo}, s{sA}")
    A(f"s_add_u32 s{sDo}, s{sDo}, s{sA}")
    A(f"s_cmp_lt_u32 s{S_KVH}, 7")
    A(f"s_cselect_b32 s{sDo}, s{sDo}, 0")
    A(f"s_cselect_b32 s{SD+2}, s{SD+2}, 0")
    A(f"s_lshl_b32 s83, s{sTw}, 12")
    A(f"s_lshl_b32 s84, s{sTw}, 11")
    A(f"s_add_u32 m0, s84, {hex(L_DN)}")
    A(f"s_lshl_b32 s69, s{sO}, 9")
    if tdelay:
        lds_wait(F_LANDED, tdelay, 20, sA)
    for i in range(2):
        A(f"buffer_load_dwordx4 v{4+i}, s[{SD}:{SD+3}], s{sDo} offen offset:{i*1024} {pW} lds")
    if wearly:
        A("s_add_u32 m0, s83, 0x18000")
        nop(1)
        for i in range(4):
            A(f"buffer_load_dwordx4 v{4+i}, s[{SWO}:{SWO+3}], s{sWo} offen offset:{i*1024} {pW} lds")
    A(f"s_add_u32 s69, s69, {hex(W_ML)}")
    A("v_lshlrev_b32 v14, 7, v0")
    l1, l2, l3 = lab("tt"), lab("tt"), lab("tt")
    A(f"s_lshl_b32 s96, s{S_KVH}, 2")
    A(f"s_add_u32 s96, s96, s{sTw}")
    A("s_lshl_b32 s96, s96, 7")
    A(f"s_add_u32 s96, s96, {hex(W_MARK)}")
    A("s_mov_b64 exec, 1")
    A(f"buffer_load_dword v16, v11, s[{SWS}:{SWS+3}], s96 offen sc1")
    A(f"s_cmp_eq_u32 s{sTw}, 0")
    A(f"s_cbranch_scc1 {l3}")
    A(f"s_cmp_ge_u32 s{sTw}, 2")
    A(f"s_cbranch_scc1 {l1}")
    A(f"s_lshl_b32 s{sA}, s{S_W}, 11")
    A(f"s_add_u32 s{sA}, s{sA}, {hex(W_F)}")
    A("s_mov_b64 exec, 0xff")
    A(f"buffer_load_dword v17, v14, s[{SWS}:{SWS+3}], s{sA} offen sc1")
    A(f"s_branch {l3}")
    A(f"{l1}:")
    A(f"s_cmp_eq_u32 s{sTw}, 2")
    A(f"s_cbranch_scc0 {l2}")
    A("s_mov_b64 exec, 15")
    A(f"buffer_load_dword v17, v14, s[{SWS}:{SWS+3}], s69 offen sc1")
    A(f"s_branch {l3}")
    A(f"{l2}:")
    A("s_mov_b64 exec, 1")
    A(f"buffer_load_dword v17, v11, s[{SWO}:{SWO+3}], s{sWo} offen {pW}")
    if kvtouch:
        srd(52, P_K, 0x8000000)
        srd(56, P_V, 0x8000000)
        A(f"s_lshl_b32 s{sA}, s{S_B}, 3")
        A(f"s_add_u32 s{sA}, s{sA}, s{S_KVH}")
        A(f"s_lshl_b32 s{sA}, s{sA}, 4")
        A(f"s_add_u32 s{sA}, s{sA}, s{S_S}")
        A(f"s_lshl_b32 s{sA}, s{sA}, 19")
        A(f"buffer_load_dword v18, v11, s[52:55], s{sA} offen nt")
        A(f"buffer_load_dword v19, v11, s[56:59], s{sA} offen nt")
    A(f"{l3}:")
    A("s_mov_b64 exec, -1")
    A("v_lshrrev_b32 v144, 2, v0")
    A("v_lshlrev_b32 v144, 7, v144")
    A("v_bfe_u32 v14, v0, 3, 2")
    A(f"v_xor_b32 v14, s{sTw}, v14")
    A("v_lshl_or_b32 v144, v14, 5, v144")
    A("v_and_b32 v2, 3, v0")
    A("v_lshl_or_b32 v144, v2, 3, v144")
    A(f"v_add_u32 v145, {hex(L_DN)}, v144")
    A("v_bfe_u32 v15, v0, 3, 1")
    A("v_lshlrev_b32 v161, 6, v12")
    A("v_lshrrev_b32 v14, 5, v0")
    A("v_bfe_u32 v3, v0, 3, 2")
    A("v_and_b32 v162, 7, v0")
    A("v_lshlrev_b32 v162, 4, v162")
    A("v_lshl_or_b32 v162, v3, 11, v162")
    A("v_lshl_or_b32 v162, v14, 15, v162")
    A(f"s_lshl_b32 s70, s{S_KVH}, 7")
    A(f"s_lshr_b32 s{sA}, s{S_J}, 3")
    A(f"s_add_u32 s70, s70, s{sA}")
    A("s_lshl_b32 s70, s70, 2")
    A(f"s_add_u32 s70, s70, s{sTw}")
    A("s_lshl_b32 s70, s70, 7")
    A(f"s_add_u32 s70, s70, {hex(W_O)}")
    for i in range(1, 4):
        A(f"s_add_u32 s{70+i}, s70, {i*8192}")
    A("v_lshlrev_b32 v146, 6, v15")
    A("v_lshl_or_b32 v146, v1, 4, v146")
    A(f"v_add_u32 v146, {hex(L_OX)}, v146")
    A("v_lshlrev_b32 v147, 6, v14")
    A("v_lshl_or_b32 v147, v2, 4, v147")
    A("v_bfe_u32 v14, v0, 2, 1")
    A("v_lshl_or_b32 v147, v14, 3, v147")
    A("v_bfe_u32 v14, v0, 4, 1")
    A("v_lshl_or_b32 v147, v14, 2, v147")
    A(f"s_lshl_b32 s{sA}, s{sTw}, 7")
    A(f"v_add_u32 v147, s{sA}, v147")
    A(f"v_add_u32 v147, {hex(L_OX)}, v147")
    A("v_and_b32 v30, 7, v0")
    A("v_lshlrev_b32 v154, 4, v30")
    A("v_lshl_or_b32 v154, v12, 9, v154")
    A("v_lshlrev_b32 v30, 11, v30")
    A("v_lshl_or_b32 v30, v15, 8, v30")
    A("v_lshl_or_b32 v30, v1, 4, v30")
    A(f"s_lshl_b32 s75, s{sO}, 8")
    A(f"s_add_u32 s75, s75, s{sTw}")
    A("s_lshl_b32 s75, s75, 6")
    A(f"s_add_u32 s75, s75, {hex(W_F)}")
    A("v_lshlrev_b32 v163, 16, v15")
    A("v_lshl_or_b32 v163, v1, 4, v163")
    A(f"s_lshl_b32 s74, s{S_W}, 2")
    A(f"s_add_u32 s74, s74, s{sTw}")
    A("s_lshl_b32 s74, s74, 6")
    A(f"s_add_u32 s74, s74, {hex(W_Y)}")
    A("v_lshlrev_b32 v148, 3, v0")
    A(f"v_add_u32 v148, {hex(L_XN)}, v148")
    A(f"s_lshl_b32 s{sA}, s{sTw}, 9")
    A(f"v_add_u32 v149, s{sA}, v148")
    A(f"s_lshl_b32 s{sA}, s{sTw}, 2")
    A(f"v_add_u32 v9, s{sA}, v8")
    A("v_mov_b32 v23, 1")
    A("s_waitcnt vmcnt(0)")
    make_tag(sTag, 164)
    A("s_mov_b32 s85, 0xffffff00")
    A(f"v_mov_b32 v164, s{sTag}")
    A(f"s_lshl_b32 s78, s{S_KVH}, 7")
    A(f"s_add_u32 s78, s78, {hex(W_IND)}")
    for i in range(4):
        A(f"v_bfe_u32 v{150+i}, s{sTag}, {8*i}, 8")
    if wearly:
        lds_set(9, F_WRDY, 23)
        A("v_add_u32 v144, 0x18000, v144")
        lds_wait4(F_WRDY, 1, 16, [f"ds_read_b64_tr_b16 v[{WF+2*i}:{WF+2*i+1}], v144 offset:{2048*i}" for i in range(8)])
        A("v_mov_b32 v20, 2")
        lds_set(9, F_WRDY, 20)
    stamp(1)
    A(f"s_lshl_b32 s{sB2}, s{sTw}, 2")
    A(f"s_add_u32 s{sB2}, s{sB2}, {GATH_AT}")
    lds_wait(F_DONE, f"s{sB2}", 20, sA)
    A("v_mov_b32 v40, 0")
    A("v_mov_b32 v41, 0")
    A(f"s_cmp_ge_u32 s{S_KVH}, {0 if noffn else 7}")
    A("s_cbranch_scc1 L_noffn2")
    for i in range(4):
        A(f"s_bfe_u32 s{86+i}, s{sTag}, {hex(0x80000 + 8*i)}")
    lq = lab("fpoll")
    A(f"{lq}:")
    for i in range(2):
        A(f"buffer_load_dwordx4 v[{44+4*i}:{47+4*i}], v30, s[{SWS}:{SWS+3}], s75 offen offset:{512*i} sc1")
    spin_guard()
    A("s_waitcnt vmcnt(0)")
    byte_check(44, 8, 86, 60)
    A(f"s_cbranch_vccnz {lq}")
    allreduce([44 + i for i in range(8)], "v_add_f32", [], steps=("x1", "x2", "hm"))
    for i in range(4):
        A(f"v_cvt_pk_bf16_f32 v40, v{44+2*i}, v{45+2*i}")
        unpack(32 + 2 * i, 40)
    A("s_mov_b32 s80, 0x3d372713")
    A("s_mov_b32 s81, 0xc0135761")
    for i in range(4):
        A(f"v_mul_f32 v{44+i}, v{32+i}, v{32+i}")
        A(f"v_fma_f32 v{44+i}, v{44+i}, s80, 1.0")
        A(f"v_mul_f32 v{44+i}, v{44+i}, v{32+i}")
        A(f"v_mul_f32 v{44+i}, s81, v{44+i}")
        A(f"v_exp_f32 v{44+i}, v{44+i}")
    nop(1)
    for i in range(4):
        A(f"v_add_f32 v{44+i}, 1.0, v{44+i}")
    for i in range(4):
        A(f"v_rcp_f32 v{44+i}, v{44+i}")
    nop(1)
    for i in range(4):
        A(f"v_mul_f32 v{32+i}, v{32+i}, v{44+i}")
    for r in (32, 34):
        A(f"v_cvt_pk_bf16_f32 v40, v{r}, v{r+1}")
        unpack(r, 40)
    for i in range(4):
        A(f"v_mul_f32 v{32+i}, v{32+i}, v{36+i}")
    A("v_cvt_pk_bf16_f32 v40, v32, v33")
    A("v_cvt_pk_bf16_f32 v41, v34, v35")
    A("L_noffn2:")
    A("ds_write_b64 v149, v[40:41]")
    lds_set(9, F_HRDY, 23)
    lds_wait4(F_HRDY, 1, 28, [f"ds_read_b64 v[{HB+2*i}:{HB+2*i+1}], v148 offset:{512*i}" for i in range(4)] +
              [f"ds_read_b64_tr_b16 v[{DF+2*i}:{DF+2*i+1}], v145 offset:{2048*i}" for i in range(4)])
    A(f"v_mfma_f32_16x16x32_bf16 v[{Y}:{Y+3}], v[{DF}:{DF+3}], v[{HB}:{HB+3}], 0")
    A(f"v_mfma_f32_16x16x32_bf16 v[{Y}:{Y+3}], v[{DF+4}:{DF+7}], v[{HB+4}:{HB+7}], v[{Y}:{Y+3}]")
    stamp(2)
    lds_wait(F_DONE, ML_AT, 20, sA)
    lds_wait(F_CTL, 1, 20, 79)
    A("s_mov_b32 s62, s79")
    lq = lab("mlpoll")
    A(f"{lq}:")
    for i in range(4):
        A(f"buffer_load_dwordx4 v[{44+4*i}:{47+4*i}], v161, s[{SWS}:{SWS+3}], s69 offen offset:{16*i} sc1")
    spin_guard()
    A("s_waitcnt vmcnt(0)")
    tag_check(44, 8, sTag, 60, 61)
    A(f"s_cbranch_vccnz {lq}")
    for i in range(4):
        A(f"v_mov_b32 v{16+i}, -1")
    A(f"s_lshl_b32 s{sA}, s{S_W}, 4")
    A(f"s_add_u32 s{sA}, s{sA}, s{sTw}")
    A(f"s_lshl_b32 s{sA}, s{sA}, 7")
    A(f"s_add_u32 s{sA}, s{sA}, {hex(W_O)}")
    A("s_mov_b32 exec_hi, 0")
    store_by(62, [f"buffer_store_dwordx4 v[16:19], v154, s[{SWS}:{SWS+3}], s{sA} offen"])
    A(f"s_lshl_b32 s{sA}, s{S_J}, 2")
    A(f"s_add_u32 s{sA}, s{sA}, s96")
    A("s_mov_b64 exec, 1")
    A("v_mov_b32 v20, 2")
    A("s_waitcnt vmcnt(0)")
    store_by(62, [f"buffer_store_dword v164, v11, s[{SWS}:{SWS+3}], s{sA} offen"])
    lds_set(9, F_HRDY, 20)
    A("v_max3_f32 v26, v44, v48, v52")
    A("v_max_f32 v26, v26, v56")
    allreduce([26], "v_max_f32", [27], steps=("r8", "p16"))
    for i in range(4):
        A(f"v_sub_f32 v{W+i}, v{44+4*i}, v26")
    for i in range(4):
        A(f"v_exp_f32 v{W+i}, v{W+i}")
    A(f"v_mul_f32 v27, v{W}, v46")
    for i in range(1, 4):
        A(f"v_fmac_f32 v27, v{W+i}, v{46+4*i}")
    allreduce([27], "v_add_f32", [26], steps=("r8", "p16"))
    A("v_rcp_f32 v27, v27")
    A(f"s_add_u32 s76, s{S_J}, s{sTw}")
    if early:
        A("s_lshr_b32 s79, s79, 1")
        A("s_add_u32 s76, s76, s79")
    A("s_cmp_eq_u32 s76, 0")
    A("s_cselect_b64 s[76:77], 1, 0")
    for i in range(4):
        A(f"v_mul_f32 v{W+i}, v{W+i}, v27")
    A("s_mov_b32 m0, s83")
    A("s_mov_b32 s80, 0x00ff00ff"); A("s_mov_b32 s81, s80")
    A("s_mov_b32 s82, 0x01010101"); A("s_mov_b32 s83, s82")
    lds_wait(F_DONE, CLR_CHK, 20, sA)
    A("v_lshlrev_b32 v14, 2, v0")
    A("s_mov_b32 exec_hi, 0")
    lq = lab("cpoll")
    A(f"{lq}:")
    A(f"buffer_load_dword v17, v14, s[{SWS}:{SWS+3}], s96 offen sc1")
    spin_guard()
    A("s_waitcnt vmcnt(0)")
    A("v_cmp_ne_u32 vcc, v164, v17")
    A(f"s_cbranch_vccnz {lq}")
    A("s_mov_b32 exec_hi, -1")
    if retouch:
        lds_wait(F_DONE, retouch, 20, sA)
        A(f"s_lshl_b32 s{sA}, s{S_W}, 2")
        A(f"s_add_u32 s{sA}, s{sA}, s{sTw}")
        A(f"s_lshl_b32 s{sA}, s{sA}, 9")
        A(f"s_add_u32 s{sA}, s{sA}, {hex(W_O)}")
        A("v_lshlrev_b32 v14, 7, v0")
        A("s_mov_b64 exec, 15")
        A(f"buffer_load_dword v17, v14, s[{SWS}:{SWS+3}], s{sA} offen sc1")
        A("s_mov_b64 exec, -1")
    if gate:
        A("v_lshlrev_b32 v155, 4, v12")
        A(f"s_lshl_b32 s68, s{S_KVH}, 7")
        A(f"s_add_u32 s68, s68, {hex(W_PROG)}")
        A("s_cmp_eq_u32 s62, 2")
        A("s_cselect_b32 s62, 200, 0")
    if slp:
        lds_wait(F_DONE, 120, 20, sA)
    stamp(5)
    A("s_branch L_tend")
    A(".p2align 6")
    A("L_tend:")
    if pads:
        A("s_cbranch_execz L_tpad")
    if TRIG == 0:
        lds_wait4(F_DONE, 114, 28)
        lds_wait(F_ISS, 1, 28, sA)
    elif TRIG < 128:
        lds_wait4(F_DONE, TRIG, 28)
    else:
        lds_wait(F_LANDED, 128 + LB, 28, sA)
    A("s_setprio 2")
    stamp(3)
    for i in range(0 if wearly else 4):
        A(f"buffer_load_dwordx4 v{4+i}, s[{SWO}:{SWO+3}], s{sWo} offen offset:{i*1024} {pW} lds")

    def o_load(i):
        A(f"buffer_load_dwordx4 v[{GA+4*i}:{GA+4*i+3}], v162, s[{SWS}:{SWS+3}], s{70+i} offen sc1")

    def m_load():
        A(f"buffer_load_dwordx4 v[156:159], v155, s[{SWS}:{SWS+3}], s68 offen sc1")

    if gate:
        m_load()
        for i in range(16):
            A(f"v_mov_b32 v{GA+i}, -1")
        A("s_waitcnt vmcnt(1)")
    else:
        if opre == 2:
            lds_wait(F_LANDED, 128 + LB, 28, sA)
        elif opre == 3:
            lds_wait4(F_DONE, 128, 28)
        elif opre in (4, 5, 6):
            A(f"s_waitcnt vmcnt({opre - 3})")
        if not opre:
            A("s_waitcnt vmcnt(0)")
        for i in range(4):
            o_load(i)
        if opre:
            A("s_waitcnt vmcnt(4)")
    if not wearly:
        lds_set(9, F_WRDY, 23)
    stamp(4)
    wfrag = [f"ds_read_b64_tr_b16 v[{WF+2*i}:{WF+2*i+1}], v144 offset:{2048*i}" for i in range(8)]
    if gate:
        A("s_waitcnt vmcnt(0)")
        for i in range(4):
            A(f"v_cmp_le_u32 vcc, s62, v{156+i}")
            A("s_mov_b64 exec, vcc")
            o_load(i)
            A("s_mov_b64 exec, -1")
        m_load()
    if not wearly:
        lds_wait4(F_WRDY, 1, 28, wfrag)
    stamp(6)
    if ocap:
        A("s_waitcnt vmcnt(0)")
    A("s_branch L_ob")
    A("L_oa:")
    if gate:
        A("s_waitcnt vmcnt(0)")
        for i in range(4):
            A(f"v_cmp_le_u32 s[{52+2*i}:{53+2*i}], s62, v{156+i}")
    for i in range(4):
        if gate:
            A(f"s_and_b64 exec, s[{86+2*i}:{87+2*i}], s[{52+2*i}:{53+2*i}]")
        else:
            A(f"s_mov_b64 exec, s[{86+2*i}:{87+2*i}]")
        o_load(i)
    A("s_mov_b64 exec, -1")
    if gate:
        m_load()
    spin_guard()
    A("L_ob:")
    for i in range(4):
        if ocap:
            if i == 0:
                A(f"s_waitcnt vmcnt({ocap})")
        elif cw:
            A(f"s_waitcnt vmcnt({3-i+(1 if gate else 0)})")
        elif i == 0:
            A(f"s_waitcnt vmcnt({1 if gate else 0})")
        A(f"v_max3_u32 v20, v{GA+4*i}, v{GA+4*i+1}, v{GA+4*i+2}")
        A(f"v_max_u32 v20, v20, v{GA+4*i+3}")
        A(f"v_cmp_eq_u32 s[{86+2*i}:{87+2*i}], -1, v20")
    A("s_or_b64 s[94:95], s[86:87], s[88:89]")
    A("s_or_b64 s[94:95], s[94:95], s[90:91]")
    A("s_or_b64 s[94:95], s[94:95], s[92:93]")
    A("s_cbranch_scc1 L_oa")

    def send_ind():
        A("s_mov_b64 exec, s[76:77]")
        A("s_cbranch_execnz L_ind")
        A("L_noind:")
    if indpos == 0:
        send_ind()
        A("s_mov_b64 exec, -1")
    stamp(7)
    for k in range(4):
        A(f"v_mul_f32 v{R+k}, v{GA+k}, v{W}")
    for i in range(1, 4):
        for k in (0, 2, 1, 3):
            A(f"v_fmac_f32 v{R+k}, v{GA+4*i+k}, v{W+i}")
    A(f"v_permlane16_swap_b32 v{R}, v{R+2}")
    nop(1)
    A(f"v_permlane16_swap_b32 v{R+1}, v{R+3}")
    A(f"v_add_f32 v{R}, v{R}, v{R+2}")
    A(f"v_add_f32 v{R+1}, v{R+1}, v{R+3}")
    allreduce([R, R + 1], "v_add_f32", [], steps=("r8",))
    A("s_mov_b64 exec, s[80:81]")
    A(f"v_cvt_pk_bf16_f32 v24, v{R}, v{R+1}")
    A("ds_write_b32 v147, v24")
    lds_set(9, F_ORDY, 23)
    if indpos == 1:
        send_ind()
        A("s_mov_b64 exec, -1")
    lds_wait4(F_ORDY, 1, 28, [f"ds_read_b128 v[{32+4*i}:{35+4*i}], v146 offset:{128*i}" for i in range(4)])
    for i in range(4):
        A(f"v_mfma_f32_16x16x32_bf16 v[{Y}:{Y+3}], v[{WF+4*i}:{WF+4*i+3}], v[{32+4*i}:{35+4*i}], v[{Y}:{Y+3}]")
    if indpos == 2:
        nop(5)
        send_ind()
    else:
        nop(7)
    A("s_mov_b64 exec, s[82:83]")
    for i in range(4):
        A(f"v_and_or_b32 v{Y+i}, v{Y+i}, s85, v{150+i}")
    A(f"buffer_store_dwordx4 v[{Y}:{Y+3}], v163, s[{SWS}:{SWS+3}], s74 offen sc1")
    if indpos == 3:
        send_ind()
    if wb in (1, 2):
        A(f"s_lshl_b32 s{sA}, s{sTw}, 8")
        A(f"s_add_u32 s{sA}, s{sA}, s{S_W}")
        A(f"s_cmp_lg_u32 s{sA}, {32*FX}")
        A("s_cbranch_scc1 L_nowb")
        if wb == 2:
            A("s_waitcnt vmcnt(0)")
        A("buffer_wbl2 sc1")
        A("s_waitcnt vmcnt(0)")
        A("L_nowb:")
    stamp(8)
    stamp_flush()
    A("s_endpgm")
    A("L_ind:")
    A(f"buffer_store_dword v164, v11, s[{SWS}:{SWS+3}], s78 offen sc1")
    if wb == 3:
        A("buffer_wbl2 sc1")
    A("s_branch L_noind")
    A("L_abort:")
    A("s_endpgm")
    sT = 66
    loader_rest()
    A("L_end:")
    nv = 168
    A('.section .rodata,"a"')
    A(".p2align 6")
    A(f".amdhsa_kernel {KNAME}")
    A(f"  .amdhsa_next_free_vgpr {nv}")
    A("  .amdhsa_next_free_sgpr 102")
    A(f"  .amdhsa_accum_offset {nv}")
    A("  .amdhsa_group_segment_fixed_size 0")
    A("  .amdhsa_kernarg_size 96")
    A("  .amdhsa_user_sgpr_count 2")
    A("  .amdhsa_user_sgpr_kernarg_segment_ptr 1")
    A("  .amdhsa_system_sgpr_workgroup_id_x 1")
    A(".end_amdhsa_kernel")
    out = []
    for ln in L:
        if ln.startswith((";", ".", " ")) or ln.endswith(":") or "\n" in ln:
            out.append(ln)
        else:
            out.append("    " + ln)
    return "\n".join(out) + "\n"


if __name__ == "__main__":
    kw = eval("dict(" + (sys.argv[2] if len(sys.argv) > 2 else "") + ")")
    open(sys.argv[1], "w").write(gen(**kw))
FINAL_WAVE = 2
```

```python
import sys
from gen_kernel import HEADER, KNAME

L_TILE = 0x20000
L_T2 = 0x1C000
L_DN = 0x24000
L_XN = 0x26000
L_Q = 0x26800
L_OX = 0x26C00
L_FLAG = 0x26E00
F_ORDY, F_DONE, F_QRDY, F_MRDY, F_PRDY, F_TILE, F_BREQ, F_CTL, F_HRDY, F_WRDY = 0, 16, 32, 48, 64, 80, 84, 88, 96, 112
L_M = L_FLAG + 128
L_L = L_FLAG + 192
F_LANDED = 256
F_ISS = 92
LB = 4
LDS_BYTES = 0x27000
W_EPOCH = 0x0
W_PROG = 0x1000
W_MARK = 0x3000
W_IND = 0x2000
W_ML = 0x4000
W_O = 0x10000
W_Y = 0x90000
W_Q = W_O
W_F = W_O + 1024
W_QB = 0x110000
W_STAMP = 0x200000
WS_BYTES = 0x300000

LOG2E = 0x3FB8AA3B
SCALE = 0x3DB504F3
SPIN_MAX = 1 << 20


def gen(NLS=(16, 18, 20, 22, 24, 26), idx0=2, gain=1.0, bias=2.37, ctl=True, NL0=24, stamps=False, pK="nt", pW="nt", diag=None, TRIG=126,
        codepf=True, fast=True, QB_EVERY=8, GATH_AT=24, ML_AT=88, noffn=False, nowt=False,
        FX=0, boost7=0, touch=True, early=False, indpos=1, ind=True, opre=False, boostE=0.15, thr=(-9, -9, -9), slp=0, slpc=0, endn=0, endadd=0, rot=7, wb=0, wearly=False, ocap=0, icap=0, curve=False, idxS=0, tdelay=0, fine=False, retouch=0, gate=False, MARK_AT=0, CLR_CHK=104, xdev=None, gb=(0, 0, 0, 0, 0, 0, 0, 0), cw=True, pads=True, spec=True, kvtouch=True, yall=True):
    L = []
    A = L.append
    uid = [0]
    role = ["pro"]

    def lab(p):
        uid[0] += 1
        return f"L_{p}_{uid[0]}"

    def nop(n):
        while n > 0:
            k = min(n, 16)
            A(f"s_nop {k-1}")
            n -= k

    def srd(r, p, nbytes):
        A(f"s_mov_b32 s{r}, s{p}")
        A(f"s_mov_b32 s{r+1}, s{p+1}")
        A(f"s_mov_b32 s{r+2}, {hex(nbytes)}")
        A(f"s_mov_b32 s{r+3}, 0x20000")

    VST = 166

    def stamp(i):
        if diag is not None and role[0] == "cons" and diag == i:
            A("s_memrealtime s[88:89]")
            A("s_waitcnt lgkmcnt(0)")
        if not stamps:
            return
        A("s_memrealtime s[98:99]")
        A("s_waitcnt lgkmcnt(0)")
        A(f"v_writelane_b32 v{VST}, s98, {i}")

    def stamp_flush():
        if not stamps:
            return
        A("s_mov_b64 exec, -1")
        A(f"s_sub_u32 s97, {hex(SPIN_MAX)}, s15")
        A(f"v_writelane_b32 v{VST}, s97, 16")
        srd(92, P_WS, WS_BYTES)
        A("s_lshl_b32 s97, s2, 4")
        A("s_add_u32 s97, s97, s3")
        A("s_lshl_b32 s97, s97, 8")
        A(f"s_add_u32 s97, s97, {hex(W_STAMP)}")
        A(f"v_lshlrev_b32 v{VST+1}, 2, v0")
        A(f"buffer_store_dword v{VST}, v{VST+1}, s[92:95], s97 offen")
        A("s_waitcnt vmcnt(0)")

    def spin_guard():
        A("s_sub_u32 s15, s15, 1")
        A("s_cbranch_scc1 L_abort")

    def lds_wait(off, thr, vt, st):
        l = lab("w")
        A(f"{l}:")
        if slp and role[0] == "tail":
            A(f"s_sleep {slp}")
        A(f"ds_read_b32 v{vt}, v8 offset:{off}")
        spin_guard()
        A("s_waitcnt lgkmcnt(0)")
        A(f"v_readfirstlane_b32 s{st}, v{vt}")
        A(f"s_cmp_ge_i32 s{st}, {thr}")
        A(f"s_cbranch_scc0 {l}")

    def lds_wait4(off, thr, vq, extra=()):
        l = lab("w4")
        A(f"{l}:")
        A(f"ds_read_b128 v[{vq}:{vq+3}], v8 offset:{off}")
        for e in extra:
            A(e)
        spin_guard()
        A(f"s_waitcnt lgkmcnt({len(extra)})")
        A(f"v_min3_i32 v{vq}, v{vq}, v{vq+1}, v{vq+2}")
        A(f"v_min_i32 v{vq}, v{vq}, v{vq+3}")
        A(f"v_cmp_gt_i32 vcc, {thr}, v{vq}")
        if extra:
            A("s_waitcnt lgkmcnt(0)")
        A(f"s_cbranch_vccnz {l}")

    def lds_set(addr_v, off, val_v):
        A("s_mov_b64 exec, 1")
        A(f"ds_write_b32 v{addr_v}, v{val_v} offset:{off}")
        A("s_mov_b64 exec, -1")

    def allreduce(regs, op, tmps, steps=("x1", "x2", "hm", "m", "p16", "p32")):
        dpp = {"x1": "quad_perm:[1,0,3,2]", "x2": "quad_perm:[2,3,0,1]", "hm": "row_half_mirror", "m": "row_mirror",
               "r4": "row_ror:4", "r8": "row_ror:8"}
        for st in steps:
            if st in dpp:
                nop(max(0, 3 - len(regs)))
                for r in regs:
                    A(f"{op}_dpp v{r}, v{r}, v{r} {dpp[st]} row_mask:0xf bank_mask:0xf")
            else:
                ins = "v_permlane16_swap_b32" if st == "p16" else "v_permlane32_swap_b32"
                for r, t in zip(regs, tmps):
                    A(f"v_mov_b32 v{t}, v{r}")
                nop(max(0, 3 - len(regs)))
                for r, t in zip(regs, tmps):
                    A(f"{ins} v{r}, v{t}")
                nop(1)
                for r, t in zip(regs, tmps):
                    A(f"{op} v{r}, v{r}, v{t}")

    def make_tag(s, v):
        A(f"v_readfirstlane_b32 s{s}, v{v}")
        A(f"s_add_u32 s{s}, s{s}, 0x4d2b7f35")

    def local_tag(dst, tag):
        A(f"s_getreg_b32 s{dst}, hwreg(HW_REG_XCC_ID, 0, 4)")
        A(f"s_mul_i32 s{dst}, s{dst}, 0x10001")
        A(f"s_xor_b32 s{dst}, s{dst}, s{tag}")

    def store_by(sloc, ins):
        l1, l2 = lab("far"), lab("st")
        A(f"s_cmp_eq_u32 s{sloc}, 2")
        A(f"s_cbranch_scc0 {l1}")
        for i in ins:
            A(i)
        A(f"s_branch {l2}")
        A(f"{l1}:")
        for i in ins:
            A(i + " sc1")
        A(f"{l2}:")

    def tag_check(base, n, stag, t1, t2):
        for i in range(n):
            A(f"v_xor_b32 v{base+1+2*i}, s{stag}, v{base+1+2*i}")
        r = [base + 1 + 2 * i for i in range(n)]
        if n == 8:
            A(f"v_or3_b32 v{t1}, v{r[0]}, v{r[1]}, v{r[2]}")
            A(f"v_or3_b32 v{t2}, v{r[3]}, v{r[4]}, v{r[5]}")
            A(f"v_or3_b32 v{t1}, v{t1}, v{r[6]}, v{r[7]}")
            A(f"v_or_b32 v{t1}, v{t1}, v{t2}")
        else:
            A(f"v_or3_b32 v{t1}, v{r[0]}, v{r[1]}, v{r[2]}")
            A(f"v_or_b32 v{t1}, v{t1}, v{r[3]}")
        A(f"v_cmp_ne_u32 vcc, 0, v{t1}")

    def byte_check(base, n, sb, t):
        for i in range(n):
            A(f"v_xor_b32 v{base+i}, s{sb+(i&3)}, v{base+i}")
        A(f"v_or3_b32 v{t}, v{base}, v{base+1}, v{base+2}")
        for i in range(3, n - 1, 2):
            A(f"v_or3_b32 v{t}, v{t}, v{base+i}, v{base+i+1}")
        A(f"v_or_b32 v{t}, v{t}, v{base+n-1}")
        A(f"v_and_b32 v{t}, 0xff, v{t}")
        A(f"v_cmp_ne_u32 vcc, 0, v{t}")

    def vaddr_T0(dst, t1, t2, t3):
        A(f"v_lshrrev_b32 v{t1}, 2, v0")
        A(f"v_and_b32 v{t2}, 7, v{t1}")
        A(f"v_lshlrev_b32 v{t2}, 1, v{t2}")
        A(f"v_lshrrev_b32 v{t3}, 5, v0")
        A(f"v_or_b32 v{t2}, v{t2}, v{t3}")
        A(f"v_bfe_u32 v{t3}, v0, 1, 1")
        A(f"v_xor_b32 v{t2}, v{t2}, v{t3}")
        A(f"v_lshlrev_b32 v{t2}, 4, v{t2}")
        A(f"v_lshl_or_b32 v{dst}, v{t1}, 8, v{t2}")
        A(f"v_and_b32 v{t3}, 1, v0")
        A(f"v_lshl_or_b32 v{dst}, v{t3}, 3, v{dst}")

    def prog_addr(d, t):
        A(f"s_lshr_b32 s{d}, s{S_W}, 4")
        A(f"s_lshl_b32 s{d}, s{d}, 2")
        A(f"s_and_b32 s{t}, s{S_S}, 3")
        A(f"s_add_u32 s{d}, s{d}, s{t}")
        A(f"s_lshl_b32 s{d}, s{d}, 4")
        A(f"s_and_b32 s{t}, s{S_S}, 12")
        A(f"s_add_u32 s{d}, s{d}, s{t}")
        A(f"s_add_u32 s{d}, s{d}, {hex(W_PROG)}")

    def unpack(dst, src):
        A(f"v_lshlrev_b32 v{dst}, 16, v{src}")
        A(f"v_and_b32 v{dst+1}, 0xffff0000, v{src}")

    P_X, P_K, P_V, P_WQ, P_WO, P_BX, P_G, P_U, P_D, P_OUT, P_DBG, P_WS = range(16, 40, 2)
    S_KVH, S_J, S_B, S_S, S_RB, S_CH, S_W = 4, 5, 6, 7, 8, 9, 10

    A(HEADER)
    A(f"; @launch grid=(256,1,1) block=(640,1,1) lds={LDS_BYTES}")
    A('.amdgcn_target "amdgcn-amd-amdhsa--gfx950"')
    A(".text")
    A(f".globl {KNAME}")
    A(".p2align 8")
    A(f".type {KNAME},@function")
    A(f"{KNAME}:")
    A("s_cmp_ge_u32 s2, 256")
    A("s_cbranch_scc1 L_abort")
    A("s_load_dwordx16 s[16:31], s[0:1], 0")
    A("s_load_dwordx8 s[32:39], s[0:1], 64")
    if stamps:
        A("s_memrealtime s[98:99]")
        A(f"v_mov_b32 v{VST}, 0")
    if diag is not None:
        A("s_memrealtime s[90:91]")
    A(f"s_lshr_b32 s{S_J}, s2, 3")
    if codepf:
        A("s_getpc_b64 s[80:81]")
        A(f"s_lshl_b32 s6, s{S_J}, 9")
        A("v_subrev_u32 v2, 448, v0")
        A("v_cmp_gt_u32 vcc, 4, v2")
        A("v_lshl_add_u32 v2, v2, 7, s6")
        A(f"v_min_u32 v2, L_end-{KNAME}-64, v2")
        A("s_and_b64 exec, exec, vcc")
        A("s_cbranch_execz L_nopf")
        A("global_load_dword v165, v2, s[80:81]")
        A("L_nopf:")
        A("s_mov_b64 exec, -1")
    A("v_lshrrev_b32 v1, 6, v0")
    A("v_and_b32 v0, 63, v0")
    A("v_readfirstlane_b32 s3, v1")
    A(f"v_mov_b32 v8, {hex(L_FLAG)}")
    A("v_lshl_add_u32 v9, v0, 2, v8")
    A("v_mov_b32 v11, 0")
    A("ds_write_b32 v9, v11")
    A(f"ds_write_b32 v9, v11 offset:{F_LANDED}")
    if rot:
        A(f"s_add_u32 s{S_KVH}, s2, {rot}")
        A(f"s_and_b32 s{S_KVH}, s{S_KVH}, 7")
    else:
        A(f"s_and_b32 s{S_KVH}, s2, 7")
    A(f"s_lshr_b32 s{S_B}, s{S_J}, 4")
    A(f"s_and_b32 s{S_S}, s{S_J}, 15")
    A(f"s_lshl_b32 s{S_W}, s{S_KVH}, 5")
    A(f"s_add_u32 s{S_W}, s{S_W}, s{S_J}")
    A(f"s_mov_b32 s15, {hex(SPIN_MAX)}")
    A("v_lshrrev_b32 v1, 4, v0")
    A("v_lshlrev_b32 v3, 1, v1")
    A("v_lshlrev_b32 v10, 4, v0")
    sO1, sO2, sN, sNc, sBase, sTt, sT, sIdx, sEv = 60, 61, 62, 63, 64, 65, 66, 68, 69
    sSmp, sPrevF, sPs, sPl, sCen = 70, 71, 72, 73, 74
    A("v_lshrrev_b32 v12, 3, v0")
    A("v_and_b32 v13, 7, v0")
    A("v_xor_b32 v13, v13, v3")
    A("v_lshlrev_b32 v13, 4, v13")
    A("v_lshl_or_b32 v4, v12, 13, v13")
    for i in range(1, 4):
        A(f"v_add_u32 v{4+i}, {i*(0x10000-1024)}, v4")
    A(f"s_lshr_b32 s{sT}, s{S_J}, 3")
    A(f"s_lshl_b32 s{sO1}, s{sT}, 10")
    A(f"s_add_u32 s{sO1}, s{sO1}, s{S_KVH}")
    A(f"s_lshl_b32 s{sO1}, s{sO1}, 3")
    A(f"s_and_b32 s{sT}, s{S_J}, 7")
    A(f"s_add_u32 s{sO1}, s{sO1}, s{sT}")
    A(f"s_lshl_b32 s{sO1}, s{sO1}, 7")
    A(f"s_mov_b32 s42, {hex(512*4096*2)}")
    A("s_mov_b32 s43, 0x20000")
    A("s_mov_b32 s46, 2048")
    A("s_mov_b32 s47, 0x20000")
    A(f"s_mov_b32 m0, {hex(L_TILE)}")
    A("s_cmp_lg_u32 s3, 0")
    A("s_waitcnt lgkmcnt(0)")
    if stamps:
        A(f"v_writelane_b32 v{VST}, s98, 0")
    A("s_cbranch_scc1 L_roles")

    role[0] = "ld"
    A(f"s_mov_b64 s[40:41], s[{P_WQ}:{P_WQ+1}]")
    A("s_setprio 3")
    A("L_ldq:")
    for i in range(4):
        A(f"buffer_load_dwordx4 v{4+i}, s[40:43], s{sO1} offen offset:{i*1024} {pW} lds")
    A("s_add_u32 m0, m0, 0x1000")
    A(f"s_add_u32 s{sO1}, s{sO1}, 0x40000")
    A(f"s_cmp_lt_u32 m0, {hex(L_TILE + 0x4000)}")
    A("s_cbranch_scc1 L_ldq")
    A("s_barrier")
    if fine:
        stamp(3)
    A("v_mul_u32_u24 v4, 3584, v12")
    A("v_add_u32 v4, v4, v13")
    for i in range(1, 4):
        A(f"v_add_u32 v{4+i}, {i*(8*3584-1024)}, v4")
    A(f"s_mul_i32 s{sO2}, s{sT}, {64*3584}")
    A(f"s_lshr_b32 s{sT}, s{S_W}, 3")
    A(f"s_lshl_b32 s{sT}, s{sT}, 7")
    A(f"s_add_u32 s{sO2}, s{sO2}, s{sT}")
    A(f"s_cmp_lt_u32 s{S_KVH}, {0 if noffn else 7}")
    A(f"s_cselect_b32 s42, {hex(512*1792*2)}, 0")
    A(f"s_mov_b64 s[40:41], s[{P_G}:{P_G+1}]")
    A(f"s_mov_b32 m0, {hex(L_T2)}")
    A("L_ldf2:")
    A(f"s_mov_b32 s{sO1}, s{sO2}")
    A("L_ldf:")
    for i in range(4):
        A(f"s_waitcnt vmcnt({NL0-1})")
        A(f"buffer_load_dwordx4 v{4+i}, s[40:43], s{sO1} offen offset:{i*1024} {pW} lds")
    A("s_add_u32 m0, m0, 0x1000")
    A(f"s_add_u32 s{sO1}, s{sO1}, {32*3584}")
    A("s_bitcmp1_b32 m0, 12")
    A("s_cbranch_scc1 L_ldf")
    A(f"s_mov_b64 s[40:41], s[{P_U}:{P_U+1}]")
    A("s_bitcmp1_b32 m0, 13")
    A("s_cbranch_scc1 L_ldf2")
    if fine:
        stamp(8)
    A("v_and_b32 v2, 15, v0")
    A("v_xor_b32 v2, v2, v3")
    A("v_lshlrev_b32 v2, 4, v2")
    A("v_lshl_or_b32 v4, v1, 8, v2")
    A("v_xor_b32 v5, 0x80, v4")
    A("v_xor_b32 v6, 16, v4")
    A("v_xor_b32 v7, 0x90, v4")
    A(f"s_lshl_b32 s{sBase}, s{S_B}, 3")
    A(f"s_add_u32 s{sBase}, s{sBase}, s{S_KVH}")
    A(f"s_lshl_b32 s{sBase}, s{sBase}, 4")
    A(f"s_add_u32 s{sBase}, s{sBase}, s{S_S}")
    A(f"s_lshl_b32 s{sBase}, s{sBase}, 1")
    A(f"s_add_u32 s{sBase}, s{sBase}, s{S_B}")
    A(f"s_lshl_b32 s{sBase}, s{sBase}, 1")
    A(f"s_bfe_u32 s{sT}, s{S_S}, 0x10002")
    A(f"s_add_u32 s{sBase}, s{sBase}, s{sT}")
    A(f"s_lshl_b32 s{sBase}, s{sBase}, 17")
    A(f"s_mov_b32 s{sO1}, s{sBase}")
    A("s_mov_b32 s42, 0x8000000")
    A(f"s_mov_b64 s[40:41], s[{P_K}:{P_K+1}]")
    A(f"s_mov_b32 s{sN}, 0")
    A(f"s_mov_b32 s{sTt}, 0")
    A("s_mov_b32 m0, 0")
    A(f"s_mov_b32 s{sEv}, 2")
    A(f"s_mov_b32 s{sNc}, 2")
    A(f"s_mov_b32 s{sIdx}, {idxS}")
    A(f"s_mov_b64 s[44:45], s[{P_WS}:{P_WS+1}]")
    A(f"s_mov_b32 s46, {hex(WS_BYTES)}")
    A("v_lshlrev_b32 v14, 3, v0")
    A("v_mov_b32 v22, 0")
    A(f"ds_read_b128 v[16:19], v8 offset:{F_DONE}")
    NV = len(NLS)
    extra = {
        0: [f"s_add_u32 s{sO2}, s{sO1}, 0x8000"],
        1: [f"s_or_b32 s{sTt}, s{sTt}, 0x8000", f"s_add_u32 s{sTt}, s{sTt}, 0x1000"],
        2: [f"s_and_b32 s{sTt}, s{sTt}, 0x77000"],
        3: ["s_add_u32 m0, m0, 0x1000"],
        4: [f"s_xor_b32 s{sO1}, s{sTt}, s{sBase}"],
        5: [f"s_add_u32 s{sN}, s{sN}, 1"],
        6: [f"s_add_u32 s{sT}, m0, 0x1000"],
        7: [f"s_and_b32 m0, s{sT}, 0x1ffff"],
    }

    def body(k):
        NL = NLS[k]
        pub_i = (NL - 1) % 8
        pub_d = (pub_i - NL + 1) // 8
        A(f"v_add_u32 v21, {pub_d + LB - 1}, v22")
        A(f"L_body{k}:")
        for i in range(8):
            A(f"s_waitcnt vmcnt({NL-1})")
            A(f"buffer_load_dwordx4 v{4+(i&3)}, s[40:43], s{sO1 if i < 4 else sO2} offen offset:{(i&3)*1024} {pK} lds")
            if i == 0:
                A("v_add_u32 v21, 1, v21")
            if i == pub_i:
                A(f"ds_max_i32 v9, v21 offset:{F_LANDED}")
            for e in extra.get(i, []):
                A(e)
        A(f"s_cmp_lg_u32 s{sN}, s{sEv}")
        A(f"s_cbranch_scc1 L_body{k}")

    A("L_def:")
    body(idx0)
    A("L_event:")
    if stamps:
        A(f"s_and_b32 s{sT}, s{sN}, 15"); A("s_cbranch_scc0 L_ldst")
        A("L_ldst_back:")
    A(f"s_bitcmp1_b32 s{sN}, 7")
    A("s_cbranch_scc1 L_drain")
    A(f"s_cmp_eq_u32 s{sN}, s{sNc}")
    A("s_cbranch_scc1 L_ctl")
    A("L_event2:")
    A("s_waitcnt lgkmcnt(0)")
    A("v_min3_i32 v20, v16, v17, v18")
    A("v_min_i32 v20, v20, v19")
    A(f"s_bitcmp1_b32 s{sN}, 6")
    A(f"v_readfirstlane_b32 s{sT}, v20")
    A("L_event3:")
    A(f"ds_read_b128 v[16:19], v8 offset:{F_DONE}")
    A(f"s_cselect_b64 s[40:41], s[{P_V}:{P_V+1}], s[40:41]")
    A(f"s_cmp_eq_u32 s{sT}, 0")
    A(f"s_cselect_b32 s{sEv}, {12 if wearly else 14}, 16")
    A(f"s_add_u32 s{sT}, s{sT}, s{sEv}")
    A(f"s_or_b32 s{sEv}, s{sN}, {15 if stamps else 63}")
    A(f"s_add_u32 s{sEv}, s{sEv}, 1")
    A(f"s_min_u32 s{sEv}, s{sEv}, s{sT}")
    A(f"s_min_u32 s{sEv}, s{sEv}, s{sNc}")
    A(f"v_mov_b32 v22, s{sN}")
    A(f"s_cmp_le_u32 s{sEv}, s{sN}")
    A("s_cbranch_scc1 L_full")
    A(f"s_cmp_eq_u32 s{sIdx}, 0")
    A("s_cbranch_scc1 L_def")
    A("s_branch L_var")
    A("L_full:")
    spin_guard()
    A("s_branch L_event2")
    A("L_roles:")
    A("s_cmp_lg_u32 s3, 1")
    A("s_cbranch_scc1 L_roles2")
    A(f"s_mov_b64 s[44:45], s[{P_X}:{P_X+1}]")
    A("s_setprio 2")
    A("buffer_load_dwordx4 v[16:19], v10, s[44:47], 0 offen")
    A("buffer_load_dwordx4 v[20:23], v10, s[44:47], 0 offen offset:1024")
    A("L_roles2:")
    A("s_barrier")
    A("s_cbranch_scc1 L_other")
    A("s_branch L_aux")
    A("L_drain:")

    def iss(k):
        if TRIG == 0:
            A(f"s_cmp_ge_i32 s{sIdx}, {k}")
            A("s_cselect_b64 exec, 1, 0")
            A(f"ds_write_b32 v8, v21 offset:{F_ISS}")
            A("s_mov_b64 exec, -1")
    iss(thr[0])
    stamp(1)
    for x in range(125, 129):
        A(f"v_mov_b32 v21, {x + LB}")
        if gate and x == 128 and MARK_AT:
            A("v_mov_b32 v24, 200")
            A("s_mov_b64 exec, 1")
            A(f"s_waitcnt vmcnt({MARK_AT})")
            A(f"buffer_store_dword v24, v11, s[44:47], s{sPs} offen")
            A("s_waitcnt vmcnt(1)")
        else:
            A(f"s_waitcnt vmcnt({(128 - x) * 8})")
        A(f"ds_max_i32 v9, v21 offset:{F_LANDED}")
        if x >= 126:
            iss((thr[1], thr[2], -9)[x - 126])
    if gate and not MARK_AT:
        A("v_mov_b32 v24, 200")
        A("s_mov_b64 exec, 1")
        A(f"buffer_store_dword v24, v11, s[44:47], s{sPs} offen")
    if xdev is not None:
        A("s_memrealtime s[98:99]"); A("s_lshl_b32 s97, s2, 2"); A(f"s_add_u32 s97, s97, {hex(W_STAMP)}")
        A("s_waitcnt lgkmcnt(0)")
        A("L_xd0:"); A("s_memrealtime s[94:95]"); A("s_waitcnt lgkmcnt(0)"); A("s_sub_u32 s94, s94, s90"); A("s_cmp_lt_u32 s94, 5000"); A("s_cbranch_scc1 L_xd0")
        A("v_mov_b32 v24, s98"); A("s_mov_b64 exec, 1"); A("buffer_store_dword v24, v11, s[44:47], s97 offen sc1")
    stamp(2)
    stamp_flush()
    A("s_endpgm")

    if stamps:
        A("L_ldst:")
        for n, k in ((16, 4), (32, 5), (64, 6), (96, 7)):
            l = lab("st")
            A(f"s_cmp_lg_u32 s{sN}, {n}"); A(f"s_cbranch_scc1 {l}"); stamp(k); A(f"{l}:")
        A("s_branch L_ldst_back")

    def loader_rest():
        A("L_ctl:")
        A(f"s_cmp_eq_u32 s{sN}, 2")
        A("s_cbranch_scc1 L_ctl_init")
        if curve:
            A("s_memrealtime s[98:99]")
            A(f"s_lshr_b32 s97, s{sN}, 2")
            A("s_add_u32 s97, s97, 20")
            A("s_mov_b32 s96, m0")
            A("s_mov_b32 m0, s97")
        A("s_waitcnt lgkmcnt(0)")
        if curve:
            A(f"v_writelane_b32 v{VST}, s98, m0")
            A("s_mov_b32 m0, s96")
        A("v_add_u32 v15, v12, v13")
        A(f"v_mov_b32 v24, s{sN}")
        A("v_readfirstlane_b32 s78, v23")
        A("s_mov_b64 exec, 1")
        A(f"buffer_store_dword v24, v11, s[44:47], s{sPs} offen")
        A("s_mov_b64 exec, 0xffff")
        A("v_add_u32_dpp v15, v15, v15 quad_perm:[1,0,3,2] row_mask:0xf bank_mask:0xf")
        A(f"buffer_load_dwordx2 v[12:13], v14, s[44:47], s{sPl} offen sc1")
        A(f"ds_read_b32 v23, v8 offset:{F_CTL}")
        A("v_add_u32_dpp v15, v15, v15 quad_perm:[2,3,0,1] row_mask:0xf bank_mask:0xf")
        A("v_min3_i32 v20, v16, v17, v18")
        A(f"s_add_u32 s{sNc}, s{sNc}, 4")
        A("v_add_u32_dpp v15, v15, v15 row_half_mirror row_mask:0xf bank_mask:0xf")
        A("v_min_i32 v20, v20, v19")
        A(f"s_add_u32 s{sSmp}, s{sSmp}, {4*32*int(gain*256)}")
        A("v_add_u32_dpp v15, v15, v15 row_mirror row_mask:0xf bank_mask:0xf")
        A(f"v_readfirstlane_b32 s{sT}, v20")
        A("v_readfirstlane_b32 s76, v15")
        A("s_mov_b64 exec, -1")
        A(f"s_mul_i32 s76, s76, {int(gain*256)}")
        A(f"s_sub_i32 s76, s76, s{sSmp}")
        A("s_ashr_i32 s76, s76, 13")
        if endn:
            A(f"s_cmp_ge_u32 s{sN}, {endn}")
            A(f"s_cselect_b32 s77, {endadd}, 0")
            A("s_add_i32 s76, s76, s77")
        A(f"s_max_i32 s76, s76, {-idx0}")
        A(f"s_min_i32 s76, s76, {NV-1-idx0}")
        A(f"s_cmp_eq_u32 s{sPrevF}, {2 if ctl else 3}")
        A(f"s_cselect_b32 s{sIdx}, s76, s{sIdx}")
        A(f"s_mov_b32 s{sPrevF}, s78")
        A(f"s_bitcmp1_b32 s{sN}, 6")
        A("s_branch L_event3")
        A("L_ctl_init:")
        if fine:
            stamp(9)
        prog_addr(sPs, sPl)
        A(f"s_and_b32 s{sPl}, s{sPs}, 0xffffff80")
        A(f"s_lshr_b32 s{sNc}, s{S_J}, 2")
        A(f"s_add_u32 s{sNc}, s{sNc}, s{S_J}")
        A(f"s_and_b32 s{sNc}, s{sNc}, 3")
        A(f"s_add_u32 s{sNc}, s{sNc}, 3")
        A(f"s_mov_b32 s{sPrevF}, 0")
        A(f"s_sub_u32 s{sSmp}, s{sNc}, 8")
        A(f"s_mul_i32 s{sSmp}, s{sSmp}, {32*int(gain*256)}")
        if any(gb):
            tab = sum((g + 8) << (4 * i) for i, g in enumerate(gb))
            A(f"s_and_b32 s{sCen}, s2, 7")
            A(f"s_lshl_b32 s{sCen}, s{sCen}, 2")
            A(f"s_lshr_b32 s{sCen}, {hex(tab)}, s{sCen}")
            A(f"s_and_b32 s{sCen}, s{sCen}, 15")
            A(f"s_sub_u32 s{sCen}, s{sCen}, 8")
            A(f"s_lshl_b32 s{sCen}, s{sCen}, 8")
        else:
            A(f"s_cmp_eq_u32 s{S_KVH}, 7")
            A(f"s_cselect_b32 s{sCen}, {int(boost7 * 256 * 32)}, 0")
        A(f"s_add_u32 s{sCen}, s{sCen}, {int((0.5 + bias * gain) * 256 * 32)}")
        A(f"s_sub_u32 s{sSmp}, s{sSmp}, s{sCen}")
        if boostE:
            A(f"s_getreg_b32 s{sCen}, hwreg(HW_REG_XCC_ID, 0, 1)")
            A(f"s_mul_i32 s{sCen}, s{sCen}, {int(boostE * 256 * 32)}")
            A(f"s_add_u32 s{sSmp}, s{sSmp}, s{sCen}")
        A("v_mov_b32 v12, 0"); A("v_mov_b32 v13, 0"); A("v_mov_b32 v23, 0")
        A("s_branch L_event2")
        A("L_var:")
        others = [i for i in range(NV) if i != idx0]

        def tree(lst):
            if len(lst) == 1:
                body(lst[0])
                A("s_branch L_event")
                return
            mid = len(lst) // 2
            l = lab("tr")
            A(f"s_cmp_ge_i32 s{sIdx}, {lst[mid] - idx0}")
            A(f"s_cbranch_scc1 {l}")
            tree(lst[:mid])
            A(f"{l}:")
            tree(lst[mid:])
        tree(others)

    role[0] = "aux"
    SWQ, SX, SWS, SG, SU, SOUT = 40, 44, 48, 52, 56, 60
    sO, sTag, sA, sB2, sThr, sLoc = 64, 65, 66, 67, 75, 84
    XB, TF = 64, 96
    A("L_aux:")
    A(f"s_lshr_b32 s{sB2}, s{S_J}, 3")
    srd(SWS, P_WS, WS_BYTES)
    A(f"buffer_load_dword v24, v11, s[{SWS}:{SWS+3}], 0 offen sc1")
    prog_addr(76, 77)
    A("s_mov_b64 exec, 1")
    A(f"buffer_store_dword v11, v11, s[{SWS}:{SWS+3}], s76 offen")
    A("s_mov_b64 exec, -1")
    stamp(1)
    A(f"v_add_u32 v25, {hex(L_XN)}, v10")
    A("v_bfe_u32 v15, v0, 3, 1")
    A("v_lshlrev_b32 v26, 10, v15")
    A("v_lshl_add_u32 v26, v1, 3, v26")
    A(f"v_add_u32 v26, {hex(L_XN)}, v26")
    A(f"s_lshl_b32 s{sA}, s{sB2}, 8")
    A(f"v_add_u32 v28, s{sA}, v26")
    A(f"s_and_b32 s{sA}, s{S_J}, 7")
    A(f"s_lshl_b32 s{sA}, s{sA}, 7")
    A(f"v_add_u32 v26, s{sA}, v26")
    A("v_lshrrev_b32 v29, 2, v0")
    A("v_lshlrev_b32 v29, 7, v29")
    A("v_bfe_u32 v30, v0, 3, 2")
    A("v_lshl_or_b32 v29, v30, 5, v29")
    A("v_and_b32 v30, 3, v0")
    A("v_lshl_or_b32 v29, v30, 3, v29")
    A(f"v_add_u32 v160, {hex(L_TILE)}, v29")
    for T in range(1, 4):
        A(f"v_xor_b32 v{160+T}, {32*T}, v160")
    A("v_lshlrev_b32 v27, 6, v30")
    A("v_lshl_or_b32 v27, v1, 4, v27")
    A("v_bfe_u32 v30, v0, 1, 2")
    A("v_lshlrev_b32 v31, 7, v30")
    A("v_lshl_or_b32 v31, v1, 5, v31")
    A("v_and_b32 v30, 1, v0")
    A("v_lshl_or_b32 v31, v30, 4, v31")
    A("v_lshl_or_b32 v31, v15, 9, v31")
    A(f"s_lshl_b32 s{sO}, s{S_W}, 11")
    A(f"s_add_u32 s{sO}, s{sO}, {hex(W_Q)}")
    for i in range(4):
        A(f"s_mov_b32 s{78+i}, {hex(0x07060500 + i)}")
    if True:
        A(f"buffer_load_dword v89, v31, s[{SWS}:{SWS+3}], s{sO} offen sc1")
    A("s_mov_b32 s68, 0xaaaaaaaa"); A("s_mov_b32 s69, s68")
    A("s_mov_b32 s70, 0xcccccccc"); A("s_mov_b32 s71, s70")
    A("s_mov_b32 s72, 0xf0f0f0f0"); A("s_mov_b32 s73, s72")
    A(f"s_waitcnt vmcnt(3)")
    stamp(2)
    XF = 32
    for b in range(2):
        for i in range(4):
            unpack(XF + 8 * b + 2 * i, 16 + 4 * b + i)
    for b in range(2):
        A(f"v_add_f32 v{48+b}, v{XF+8*b}, v{XF+8*b+1}")
    for i in range(2, 8):
        for b in range(2):
            A(f"v_add_f32 v{48+b}, v{48+b}, v{XF+8*b+i}")
    allreduce([48, 49], "v_add_f32", [50, 51])
    for b in range(2):
        A(f"v_mul_f32 v{48+b}, 0x3b000000, v{48+b}")
    for i in range(8):
        for b in range(2):
            A(f"v_sub_f32 v{52+b}, v{XF+8*b+i}, v{48+b}")
        for b in range(2):
            A(f"{'v_mul_f32' if i == 0 else 'v_fmac_f32'} v{54+b}, v{52+b}, v{52+b}")
    allreduce([54, 55], "v_add_f32", [50, 51])
    for b in range(2):
        A(f"v_mul_f32 v{54+b}, 0x3b000000, v{54+b}")
    A("v_cvt_pk_bf16_f32 v50, v48, v49")
    A("v_cvt_pk_bf16_f32 v51, v54, v55")
    unpack(48, 50)
    unpack(54, 51)
    A("v_add_f32 v54, 0x3727c5ac, v54"); A("v_add_f32 v55, 0x3727c5ac, v55")
    A("v_cvt_pk_bf16_f32 v51, v54, v55")
    unpack(54, 51)
    A("v_sqrt_f32 v54, v54"); A("v_sqrt_f32 v55, v55")
    nop(1)
    A("v_cvt_pk_bf16_f32 v51, v54, v55")
    unpack(54, 51)
    A("v_rcp_f32 v54, v54"); A("v_rcp_f32 v55, v55")
    for b in range(2):
        for i in range(8):
            A(f"v_sub_f32 v{XF+8*b+i}, v{XF+8*b+i}, v{48+b}")
        for i in range(4):
            A(f"v_cvt_pk_bf16_f32 v{56+4*b+i}, v{XF+8*b+2*i}, v{XF+8*b+2*i+1}")
        for i in range(4):
            unpack(XF + 8 * b + 2 * i, 56 + 4 * b + i)
        for i in range(8):
            A(f"v_mul_f32 v{XF+8*b+i}, v{XF+8*b+i}, v{54+b}")
        for i in range(4):
            A(f"v_cvt_pk_bf16_f32 v{56+4*b+i}, v{XF+8*b+2*i}, v{XF+8*b+2*i+1}")
        A(f"ds_write_b128 v25, v[{56+4*b}:{59+4*b}] offset:{1024*b}")
    A("s_waitcnt lgkmcnt(0)")
    for s in range(4):
        A(f"ds_read2_b64 v[{XB+4*s}:{XB+4*s+3}], v28 offset0:{8*s} offset1:{8*s+4}")
    for s in range(2):
        A(f"ds_read2_b64 v[{XB+16+4*s}:{XB+16+4*s+3}], v26 offset0:{8*s} offset1:{8*s+4}")
    stamp(3)
    lds_wait(F_LANDED, 2, 44, sA)
    A("s_waitcnt vmcnt(0)")
    stamp(4)

    def tile_mfma(acc_of, b_of, first):
        for hf in range(2):
            for s in range(2 * hf, 2 * hf + 2):
                for T in range(4):
                    r = TF + 16 * s + 4 * T
                    A(f"ds_read_b64_tr_b16 v[{r}:{r+1}], v{160+T} offset:{s*4096}")
                    A(f"ds_read_b64_tr_b16 v[{r+2}:{r+3}], v{160+T} offset:{s*4096+2048}")
                if s == 2 * hf:
                    A("s_waitcnt lgkmcnt(4)")
            A("s_waitcnt lgkmcnt(0)")
            for s in range(2 * hf, 2 * hf + 2):
                for T in range(4):
                    r = TF + 16 * s + 4 * T
                    d = acc_of(s, T)
                    c = "0" if first(s) else f"v[{d}:{d+3}]"
                    A(f"v_mfma_f32_16x16x32_bf16 v[{d}:{d+3}], v[{r}:{r+3}], v[{b_of(s)}:{b_of(s)+3}], {c}")

    def select_quad(D, out):
        for T in (0, 2):
            for r in range(4):
                A(f"v_cndmask_b32 v{D+4*T+r}, v{D+4*T+r}, v{D+4*T+4+r}, s[68:69]")
        for r in range(4):
            A(f"v_cndmask_b32 v{out+r}, v{D+r}, v{D+8+r}, s[70:71]")
        for r in range(4):
            A(f"v_add_u32 v{out+r}, 0x80, v{out+r}")

    def select_granule(D, out):
        for T in range(4):
            A(f"v_cndmask_b32 v{D+4*T}, v{D+4*T}, v{D+2+4*T}, s[68:69]")
            A(f"v_cndmask_b32 v{D+1+4*T}, v{D+1+4*T}, v{D+3+4*T}, s[68:69]")
        for T in (0, 2):
            A(f"v_cndmask_b32 v{D+4*T}, v{D+4*T}, v{D+4+4*T}, s[70:71]")
            A(f"v_cndmask_b32 v{D+1+4*T}, v{D+1+4*T}, v{D+5+4*T}, s[70:71]")
        A(f"v_cndmask_b32 v{out}, v{D}, v{D+8}, s[72:73]")
        A(f"v_cndmask_b32 v{out+2}, v{D+1}, v{D+9}, s[72:73]")

    def put_tag(dst, src, vtag):
        for r in range(4):
            A(f"v_perm_b32 v{dst+r}, v{src+r}, v{vtag}, s{78+r}")

    tile_mfma(lambda s, T: 32 + 4 * T, lambda s: XB + 4 * s, lambda s: s == 0)
    make_tag(sTag, 24)
    local_tag(sA, sTag)
    A(f"v_mov_b32 v17, s{sA}")
    A(f"v_mov_b32 v19, s{sA}")
    select_granule(32, 16)
    A(f"buffer_store_dwordx4 v[16:19], v31, s[{SWS}:{SWS+3}], s{sO} offen")
    A("v_mov_b32 v88, 1")
    A("s_setprio 0")
    A(f"s_add_u32 s{sO}, s{sO}, {hex(W_QB - W_Q)}")
    A(f"v_mov_b32 v17, s{sTag}")
    A(f"v_mov_b32 v19, s{sTag}")
    A(f"s_mov_b32 s{sB2}, 1")
    stamp(5)
    for T in range(4):
        A(f"v_add_u32 v{160+T}, {L_T2 - L_TILE}, v{160+T}")
    lds_wait(F_LANDED, 4, 44, sA)
    tile_mfma(lambda s, T: 32 + 16 * (s >> 1) + 4 * T, lambda s: XB + 16 + 4 * (s & 1), lambda s: s in (0, 2))
    lds_set(8, F_TILE, 88)
    nop(2)
    for i in range(16):
        A(f"v_cndmask_b32 v{32+i}, v{32+i}, v{48+i}, s[72:73]")
    select_quad(32, 92)
    put_tag(92, 92, 17)
    stamp(6)
    A("L_qserve:")
    A(f"ds_read_b128 v[44:47], v8 offset:{F_QRDY}")
    A(f"ds_read_b32 v48, v8 offset:{F_BREQ}")
    spin_guard()
    A("s_waitcnt lgkmcnt(0)")
    A("v_min3_i32 v44, v44, v45, v46")
    A("v_min_i32 v44, v44, v47")
    A(f"v_readfirstlane_b32 s{sA}, v48")
    A(f"v_readfirstlane_b32 s{sLoc}, v44")
    A(f"s_and_b32 s{sA}, s{sA}, s{sB2}")
    A("s_cbranch_scc0 L_qnob")
    A(f"buffer_store_dwordx4 v[16:19], v31, s[{SWS}:{SWS+3}], s{sO} offen sc1")
    A(f"s_mov_b32 s{sB2}, 0")
    A("L_qnob:")
    A(f"s_cmp_eq_u32 s{sLoc}, 0")
    A("s_cbranch_scc1 L_qserve")
    A(f"s_cmp_ge_u32 s{S_KVH}, {0 if noffn else 7}")
    A("s_cbranch_scc1 L_noffn1")
    A("v_lshl_or_b32 v30, v15, 8, v27")
    A("v_bfe_u32 v29, v0, 2, 1")
    A("v_lshl_or_b32 v30, v29, 9, v30")
    A(f"s_lshl_b32 s{sO}, s{S_W}, 11")
    A(f"s_add_u32 s{sO}, s{sO}, {hex(W_F)}")
    store_by(sLoc, [f"buffer_store_dwordx4 v[92:95], v30, s[{SWS}:{SWS+3}], s{sO} offen"])
    A("L_noffn1:")
    stamp(7)
    stamp_flush()
    A("s_endpgm")

    role[0] = "cons"
    SWS = 48
    sC, sLd, sTg, sL2E, sSc, sA, sB2, sTag, sLoc = 60, 61, 62, 63, 64, 65, 66, 67, 84
    AV, VDN, AK = 6, 9, 144
    S, O, KF, Q, SV = 16, 24, 32, 64, 128
    VF, PF = 32, 40
    vM, vNM, vL, vT, vT2, vPW, vPR = 152, 153, 154, 155, 156, 157, 158
    A("L_other:")
    srd(SWS, P_WS, WS_BYTES)
    A(f"buffer_load_dword v164, v11, s[{SWS}:{SWS+3}], 0 offen sc1")
    A("s_cmp_ge_u32 s3, 6")
    A("s_cbranch_scc1 L_tail")
    if pads:
        A("s_mov_b64 exec, 0")
        A("s_branch L_vlast")
        A("L_cpad:")
        A("s_mov_b64 exec, -1")
    A("s_setprio 1")
    A(f"s_sub_u32 s{sC}, s3, 2")
    A(f"s_lshl_b32 s69, s{S_KVH}, 4")
    A(f"s_add_u32 s69, s69, s{sC}")
    A("s_lshl_b32 s69, s69, 3")
    A(f"s_add_u32 s69, s69, s{S_B}")
    A("s_lshl_b32 s69, s69, 9")
    A(f"s_add_u32 s69, s69, {hex(W_Q)}")
    for kb in range(1, 4):
        A(f"s_add_u32 s{69+kb}, s69, {kb*0x4000}")
    A("v_lshrrev_b32 v12, 5, v0")
    A("v_and_b32 v165, 0x1f0, v10")
    A("v_lshl_or_b32 v165, v12, 11, v165")
    A(f"s_mov_b32 s{sL2E}, {hex(LOG2E)}")
    A(f"s_mov_b32 s{sSc}, {hex(SCALE)}")
    A("v_and_b32 v15, 3, v0")
    A("v_lshlrev_b32 v160, 9, v15")
    A(f"v_bfe_u32 v{vT2}, v0, 2, 1")
    A(f"v_lshl_or_b32 v160, v{vT2}, 6, v160")
    A("v_lshl_or_b32 v160, v1, 4, v160")
    A(f"s_lshl_b32 s68, s{S_W}, 11")
    A(f"s_lshl_b32 s{sA}, s{sC}, 7")
    A(f"s_add_u32 s68, s68, s{sA}")
    A(f"s_add_u32 s68, s68, {hex(W_O)}")
    A(f"s_lshl_b32 s73, s{S_KVH}, 2")
    A(f"s_add_u32 s73, s73, s{sC}")
    A("s_lshl_b32 s73, s73, 1")
    A(f"s_add_u32 s73, s73, s{S_B}")
    A("s_lshl_b32 s73, s73, 2")
    A(f"s_and_b32 s{sA}, s{S_S}, 3")
    A(f"s_add_u32 s73, s73, s{sA}")
    A("s_lshl_b32 s73, s73, 2")
    A(f"s_lshr_b32 s{sA}, s{S_S}, 2")
    A(f"s_add_u32 s73, s73, s{sA}")
    A("s_lshl_b32 s73, s73, 4")
    A(f"s_add_u32 s73, s73, {hex(W_ML)}")
    A(f"v_lshlrev_b32 v{vPR}, 4, v15")
    A(f"v_lshl_or_b32 v{vPR}, v1, 6, v{vPR}")
    A(f"v_add_u32 v{vPR}, {hex(L_TILE)}, v{vPR}")
    A(f"v_bfe_u32 v{vT}, v0, 2, 2")
    A(f"v_lshl_add_u32 v{vPW}, v{vT}, 10, v{vPR}")
    A(f"s_lshl_b32 s{sA}, s{sC}, 8")
    A(f"v_add_u32 v{vPW}, s{sA}, v{vPW}")
    A(f"s_add_u32 s{sA}, s{sA}, {hex(L_Q)}")
    A(f"v_lshl_add_u32 v2, v0, 2, s{sA}")
    A("v_lshlrev_b32 v3, 8, v15")
    A("v_lshl_add_u32 v3, v1, 6, v3")
    A(f"v_add_u32 v3, {hex(L_Q)}, v3")
    A("v_lshl_add_u32 v4, v15, 4, v8")
    A(f"s_lshl_b32 s{sA}, s{sC}, 2")
    A(f"v_add_u32 v5, s{sA}, v4")
    A(f"v_add_u32 v{VDN}, s{sA}, v8")
    A("v_and_b32 v14, 15, v0")
    A("v_and_b32 v12, 7, v0")
    A("v_lshlrev_b32 v12, 1, v12")
    A("v_bfe_u32 v13, v0, 3, 1")
    A("v_or_b32 v12, v12, v13")
    A("v_lshlrev_b32 v13, 2, v1")
    A("v_xor_b32 v12, v12, v13")
    A("v_lshlrev_b32 v12, 4, v12")
    A("v_lshl_or_b32 v12, v14, 8, v12")
    A(f"s_lshl_b32 s{sA}, s{sC}, 13")
    A(f"v_or_b32 v{AK}, s{sA}, v12")
    for s in range(1, 8):
        A(f"v_xor_b32 v{AK+s}, {hex(16*(s&3) + 0x10000*(s>>2))}, v{AK}")
    vaddr_T0(13, 12, 14, 15)
    A(f"s_lshl_b32 s{sA}, s{sC}, 6")
    A(f"v_xor_b32 v{AV}, s{sA}, v13")
    A(f"v_xor_b32 v{AV+1}, 32, v{AV}")
    A(f"s_mov_b32 s{sLd}, 0")
    A(f"s_sub_u32 s{sTg}, s{sC}, 3")
    A(f"v_mov_b32 v{vM}, 0xff800000")
    A(f"v_mov_b32 v{vL}, 0")
    for i in range(8):
        A(f"v_mov_b32 v{O+i}, 0")
    A("s_mov_b32 s76, 0x000f000f"); A("s_mov_b32 s77, s76")
    for g in range(1, 4):
        A(f"s_lshl_b64 s[{76+2*g}:{77+2*g}], s[76:77], {4*g}")
    A("v_mov_b32 v159, 1")
    if diag is not None:
        A("s_mov_b32 s88, s90")
    SX, SOUT = 40, 44
    vYA = 153
    srd(SX, P_X, 2048)
    srd(SOUT, P_OUT, 2048)
    A(f"s_lshl_b32 s85, s{S_J}, 2")
    A(f"s_add_u32 s85, s85, s{sC}")
    A("s_lshl_b32 s85, s85, 4")
    A("v_and_b32 v12, 1, v0")
    A("v_bfe_u32 v13, v0, 2, 2")
    A("v_lshlrev_b32 v13, 1, v13")
    A("v_lshl_or_b32 v161, v12, 3, v13")
    A("v_lshrrev_b32 v13, 1, v0")
    A("v_lshlrev_b32 v13, 11, v13")
    A(f"v_lshl_or_b32 v{vYA}, v12, 4, v13")
    A("v_lshrrev_b32 v163, 3, v0")
    A("v_lshlrev_b32 v163, 7, v163")
    A(f"s_lshl_b32 s52, s{S_B}, 16")
    A("s_and_b32 s53, s85, 0x3ff")
    A("s_lshl_b32 s53, s53, 1")
    A("s_add_u32 s52, s52, s53")
    A(f"s_add_u32 s52, s52, {hex(W_Y)}")
    A(f"s_mov_b32 s59, {hex(W_IND)}")
    A(f"s_lshl_b32 s58, s{S_W}, 2")
    A(f"s_add_u32 s58, s58, {hex(W_MARK)}")
    A("s_and_b32 s53, s58, 0xffffff80")
    A(f"s_cmp_lg_u32 s{S_KVH}, {FX}")
    A("s_cbranch_scc1 L_nofin")
    A(f"buffer_load_ushort v162, v161, s[{SX}:{SX+3}], s85 offen")
    A("s_mov_b64 exec, 1")
    A(f"buffer_store_short v11, v161, s[{SOUT}:{SOUT+3}], s85 offen")
    A("s_mov_b64 exec, -1")
    A("L_nofin:")
    A("s_waitcnt vmcnt(0)")
    make_tag(sTag, 164)
    local_tag(74, sTag)
    for i in range(4):
        A(f"s_bfe_u32 s{54+i}, s{sTag}, {hex(0x80000 + 8*i)}")
    A("v_lshlrev_b32 v162, 16, v162")
    A(f"v_mov_b32 v164, s{sTag}")
    stamp(1)
    lds_wait(F_TILE, 1, vT, sA)
    stamp(5)
    A("s_mov_b64 vcc, -1")
    A(f"s_mov_b32 s{sB2}, 0")
    A("L_qpoll:")
    A(f"s_add_u32 s{sB2}, s{sB2}, 1")
    A(f"s_and_b32 s{sA}, s{sB2}, {(QB_EVERY - 1) if fast else 0}")
    A(f"s_cselect_b32 s{sA}, 0, {hex(W_QB - W_Q)}")
    A(f"s_cselect_b32 s75, s74, s{sTag}")
    A("s_cselect_b64 exec, 0, 1")
    A(f"ds_write_b32 v8, v159 offset:{F_BREQ}")
    A("s_mov_b64 exec, vcc")
    A(f"v_add_u32 v15, s{sA}, v165")
    for kb in range(4):
        A(f"buffer_load_dwordx4 v[{KF+4*kb}:{KF+4*kb+3}], v15, s[{SWS}:{SWS+3}], s{69+kb} offen sc1")
    spin_guard()
    A("s_waitcnt vmcnt(0)")
    tag_check(KF, 8, 75, vT, vT2)
    A("s_cbranch_vccnz L_qpoll")
    A("s_mov_b64 exec, -1")
    stamp(6)
    for kb in range(1, 4):
        A(f"v_add_f32 v{KF}, v{KF}, v{KF+4*kb}")
        A(f"v_add_f32 v{KF+2}, v{KF+2}, v{KF+4*kb+2}")
    A(f"v_cvt_pk_bf16_f32 v{vT}, v{KF}, v{KF+2}")
    A(f"ds_write_b32 v2, v{vT}")
    A(f"s_cmp_lt_u32 s{sB2}, {QB_EVERY if fast else 0}")
    A(f"s_cselect_b32 s{sA}, 2, 1")
    A(f"v_mov_b32 v{vT2}, s{sA}")
    lds_set(VDN, F_QRDY, vT2)
    lds_wait4(F_QRDY, 1, S, [f"ds_read_b128 v[{KF+4*s}:{KF+4*s+3}], v3 offset:{16*s}" for s in range(4)])
    A(f"v_readfirstlane_b32 s{sLoc}, v{S}")
    lds_set(8, F_CTL, S)
    if wearly:
        lds_wait4(F_WRDY, 2, S)
    for g in range(4):
        for i in range(16):
            A(f"v_cndmask_b32 v{Q+16*g+i}, 0, v{KF+i}, s[{76+2*g}:{77+2*g}]")
    stamp(2)

    def wait_landed(tgt):
        lo, ls = lab("lo"), lab("ls")
        A(f"s_cmp_ge_i32 s{sLd}, {tgt}")
        A(f"s_cbranch_scc1 {lo}")
        A(f"{ls}:")
        if slpc:
            A(f"s_sleep {slpc}")
        A(f"ds_read_b32 v{vT}, v8 offset:{F_LANDED}")
        spin_guard()
        A("s_waitcnt lgkmcnt(0)")
        A(f"v_readfirstlane_b32 s{sLd}, v{vT}")
        A(f"s_sub_u32 s{sLd}, s{sLd}, {LB}")
        A(f"s_cmp_ge_i32 s{sLd}, {tgt}")
        A(f"s_cbranch_scc0 {ls}")
        A(f"{lo}:")

    A("L_kwin:")
    for g in range(4):
        A(f"s_add_u32 s{sTg}, s{sTg}, 4")
        wait_landed(f"s{sTg}")
        for t in range(2):
            for s in range(4):
                r = KF + 16 * t + 4 * s
                A(f"ds_read_b128 v[{r}:{r+3}], v{AK + 4*(g>>1) + s} offset:{(g&1)*32768 + t*4096}")
        A(f"s_add_u32 s{sA}, s{sTg}, 3")
        A(f"s_min_u32 s{sA}, s{sA}, 64")
        A(f"v_mov_b32 v{vT2}, s{sA}")
        for t in range(2):
            A(f"s_waitcnt lgkmcnt({4 if t == 0 else 0})")
            if t == 1:
                lds_set(VDN, F_DONE, vT2)
            for s in range(4):
                r = KF + 16 * t + 4 * s
                c = "0" if (g == 0 and s == 0) else f"v[{S+4*t}:{S+4*t+3}]"
                q = Q + 16 * g + 4 * s
                A(f"v_mfma_f32_16x16x32_bf16 v[{S+4*t}:{S+4*t+3}], v[{r}:{r+3}], v[{q}:{q+3}], {c}")
    for i in range(12):
        A(f"v_mov_b32 v{SV+i}, v{SV+4+i}")
    for i in range(4):
        A(f"v_cvt_pk_bf16_f32 v{SV+12+i}, v{S+2*i}, v{S+2*i+1}")
    for i in range(4):
        unpack(S + 2 * i, SV + 12 + i)
    for i in range(8):
        A(f"v_mul_f32 v{S+i}, s{sSc}, v{S+i}")
    for i in range(4):
        A(f"v_cvt_pk_bf16_f32 v{SV+12+i}, v{S+2*i}, v{S+2*i+1}")
    A(f"v_max3_f32 v{vM}, v{vM}, v{S}, v{S+1}")
    A(f"v_max3_f32 v{vT}, v{S+2}, v{S+3}, v{S+4}")
    A(f"v_max3_f32 v{vM}, v{vM}, v{S+5}, v{S+6}")
    A(f"v_max3_f32 v{vM}, v{vM}, v{vT}, v{S+7}")
    A(f"s_cmp_lt_u32 s{sTg}, 60")
    A("s_cbranch_scc1 L_kwin")
    stamp(3)
    allreduce([vM], "v_max_f32", [vT], steps=("r4", "r8", "p16", "p32"))
    A("s_mov_b64 exec, 15")
    A(f"ds_write_b32 v5, v{vM} offset:{L_M - L_FLAG}")
    lds_set(VDN, F_MRDY, 159)
    lds_wait4(F_HRDY, 1, S)
    lds_wait4(F_MRDY, 1, S, [f"ds_read_b128 v[{S+4}:{S+7}], v4 offset:{L_M - L_FLAG}"])
    A(f"v_max3_f32 v{vM}, v{S+4}, v{S+5}, v{S+6}")
    A(f"v_max_f32 v{vM}, v{vM}, v{S+7}")
    A(f"v_cvt_pk_bf16_f32 v{vM}, v{vM}, v{vM}")
    A(f"v_and_b32 v{vM}, 0xffff0000, v{vM}")
    A(f"v_mul_f32 v{vM}, s{sL2E}, v{vM}")
    A(f"s_mov_b32 s{sA}, 4")
    A("L_pwin:")
    for i in range(4):
        unpack(S + 2 * i, SV + i)
    for i in range(8):
        A(f"v_fma_f32 v{S+i}, v{S+i}, s{sL2E}, -v{vM}")
    for i in range(8):
        A(f"v_exp_f32 v{S+i}, v{S+i}")
    for i in range(12):
        A(f"v_mov_b32 v{SV+i}, v{SV+4+i}")
    A("s_waitcnt lgkmcnt(0)")
    for i in range(4):
        A(f"v_cvt_pk_bf16_f32 v{KF+i}, v{S+2*i}, v{S+2*i+1}")
    A(f"ds_write_b128 v{vPW}, v[{KF}:{KF+3}]")
    for i in range(8):
        A(f"v_add_f32 v{vL}, v{vL}, v{S+i}")
    A(f"v_add_u32 v{vPW}, 0x1000, v{vPW}")
    A(f"s_sub_u32 s{sA}, s{sA}, 1")
    A(f"s_cmp_lg_u32 s{sA}, 0")
    A("s_cbranch_scc1 L_pwin")
    allreduce([vL], "v_add_f32", [vT], steps=("r4", "r8", "p16", "p32"))
    A("s_mov_b64 exec, 15")
    A(f"ds_write_b32 v5, v{vL} offset:{L_L - L_FLAG}")
    A("s_waitcnt vmcnt(0)")
    lds_set(VDN, F_PRDY, 159)
    lds_wait4(F_PRDY, 1, S, [f"ds_read_b128 v[{S+4}:{S+7}], v4 offset:{L_L - L_FLAG}"])
    A(f"v_add_f32 v{S+4}, v{S+4}, v{S+5}")
    A(f"v_add_f32 v{S+6}, v{S+6}, v{S+7}")
    A(f"v_mov_b32 v{S}, v{vM}")
    A(f"v_mov_b32 v{S+1}, s{sTag}")
    A(f"v_add_f32 v{S+2}, v{S+4}, v{S+6}")
    A(f"v_mov_b32 v{S+3}, s{sTag}")
    A(f"s_lshl_b64 exec, 1, s{sC}")
    store_by(sLoc, [f"buffer_store_dwordx4 v[{S}:{S+3}], v11, s[{SWS}:{SWS+3}], s73 offen"])
    A("s_mov_b64 exec, -1")
    A(f"s_mov_b32 s{sTg}, 64")
    stamp(7)
    def v_reads(g):
        return [f"ds_read_b64_tr_b16 v[{VF+4*tt+2*h}:{VF+4*tt+2*h+1}], v{AV+tt} offset:{g*8192 + h*4096}" for tt in range(2) for h in range(2)]

    def v_mfma(tt):
        A(f"v_mfma_f32_16x16x32_bf16 v[{O+4*tt}:{O+4*tt+3}], v[{VF+4*tt}:{VF+4*tt+3}], v[{PF}:{PF+3}], v[{O+4*tt}:{O+4*tt+3}]")

    A("L_vwin:")
    for g in range(4):
        A(f"ds_read_b128 v[{PF}:{PF+3}], v{vPR} offset:{g*256}")
        A(f"s_add_u32 s{sTg}, s{sTg}, 1")
        if g == 3:
            A(f"s_cmp_eq_u32 s{sTg}, 128")
            A("s_cbranch_scc1 L_vlast")
        wait_landed(f"s{sTg}")
        for r in v_reads(g):
            A(r)
        A(f"v_mov_b32 v{vT2}, s{sTg}")
        for tt in range(2):
            A(f"s_waitcnt lgkmcnt({2 if tt == 0 else 0})")
            v_mfma(tt)
        lds_set(VDN, F_DONE, vT2)
    for tt in range(2):
        A(f"v_add_u32 v{AV+tt}, 0x8000, v{AV+tt}")
        A(f"v_and_b32 v{AV+tt}, 0x1ffff, v{AV+tt}")
    A(f"v_add_u32 v{vPR}, 0x400, v{vPR}")
    A(f"s_cmp_lg_u32 s{sTg}, 120")
    A("s_cbranch_scc1 L_vwin")
    lds_wait4(F_HRDY, 2, S)
    A("s_branch L_vwin")
    A(".p2align 6")
    A("L_vlast:")
    if pads:
        A("s_cbranch_execz L_cpad")
    if spec:
        A("L_vl2:")
        A(f"ds_read_b32 v{vT}, v8 offset:{F_LANDED}")
        for r in v_reads(3):
            A(r)
        spin_guard()
        A("s_waitcnt lgkmcnt(4)")
        A(f"v_cmp_gt_i32 vcc, {128 + LB}, v{vT}")
        A("s_cbranch_vccnz L_vl2")
    else:
        wait_landed(128)
        for r in v_reads(3):
            A(r)
    for tt in range(2):
        A(f"s_waitcnt lgkmcnt({2 if tt == 0 else 0})")
        v_mfma(tt)
    A(f"s_cmp_eq_u32 s{sLoc}, 2")
    A("s_mov_b32 s86, 0x00ff00ff")
    A("s_mov_b32 s87, s86")
    nop(5)
    for i in range(4):
        A(f"v_mov_b32_dpp v{O+i}, v{O+4+i} row_shr:4 row_mask:0xf bank_mask:0x2")
    A("s_mov_b64 exec, s[86:87]")
    A("s_cbranch_scc0 L_o_far")
    A(f"buffer_store_dwordx4 v[{O}:{O+3}], v160, s[{SWS}:{SWS+3}], s68 offen")
    A("L_o_pub:")
    if opre == 3:
        A(f"v_mov_b32 v{vT2}, 128")
        lds_set(VDN, F_DONE, vT2)
    stamp(4)
    if early:
        A(f"s_cmp_lg_u32 s{sC}, 0")
        A("s_cbranch_scc1 L_o_end")
        A("s_mov_b64 exec, 1")
        A(f"buffer_store_dword v164, v11, s[{SWS}:{SWS+3}], s58 offen")
        A("s_mov_b64 exec, 0xff")
        A(f"buffer_load_dwordx4 v[{S}:{S+3}], v10, s[{SWS}:{SWS+3}], s53 offen sc1")
        A(f"s_lshl_b32 s{sA}, s{S_KVH}, 7")
        A(f"s_add_u32 s{sA}, s{sA}, s59")
        A("s_waitcnt vmcnt(0)")
        A(f"v_min3_u32 v{vT}, v{S}, v{S+1}, v{S+2}")
        A(f"v_max3_u32 v{vT2}, v{S}, v{S+1}, v{S+2}")
        A(f"v_min_u32 v{vT}, v{vT}, v{S+3}")
        A(f"v_max_u32 v{vT2}, v{vT2}, v{S+3}")
        A(f"v_cmp_ne_u32 vcc, v164, v{vT}")
        A(f"v_cmp_ne_u32 s[86:87], v164, v{vT2}")
        A("s_or_b64 vcc, vcc, s[86:87]")
        A("s_cbranch_scc1 L_o_end")
        A("s_mov_b64 exec, 1")
        A(f"buffer_store_dword v164, v11, s[{SWS}:{SWS+3}], s{sA} offen sc1")
        stamp(12)
    A("L_o_end:")
    A(f"s_cmp_lg_u32 s{S_KVH}, {FX}")
    A("s_cbranch_scc1 L_c_end")
    A("s_mov_b64 exec, -1")
    lds_wait4(F_ORDY, 1, S)
    stamp(9)
    YG = 32
    A("s_mov_b64 s[86:87], -1")
    if not ind:
        A("s_branch L_ypoll")
    A("v_not_b32 v13, v164")
    A("L_ipoll:")
    if not yall:
        A("s_mov_b64 exec, s[86:87]")
    A(f"buffer_load_dword v13, v163, s[{SWS}:{SWS+3}], s59 offen sc1")
    spin_guard()
    A(f"s_waitcnt vmcnt({icap})")
    if yall:
        A("v_cmp_ne_u32 vcc, v164, v13")
        A("s_cbranch_vccnz L_ipoll")
        stamp(13)
        A("L_ypoll:")
    else:
        A("v_cmp_eq_u32 vcc, v164, v13")
        A("s_and_b64 exec, exec, vcc")
        A("s_cbranch_execz L_ipoll")
    A(f"buffer_load_dwordx4 v[{YG}:{YG+3}], v{vYA}, s[{SWS}:{SWS+3}], s52 offen sc1")
    spin_guard()
    A("s_waitcnt vmcnt(0)")
    for k in range(4):
        A(f"v_xor_b32 v{YG+k}, s{54+k}, v{YG+k}")
    A(f"v_or3_b32 v{vT}, v{YG}, v{YG+1}, v{YG+2}")
    A(f"v_or_b32 v{vT}, v{vT}, v{YG+3}")
    A(f"v_and_b32 v{vT}, 0xff, v{vT}")
    if yall:
        A(f"v_cmp_ne_u32 vcc, 0, v{vT}")
        A("s_and_b64 exec, exec, vcc")
        A("s_cbranch_scc1 L_ypoll")
    else:
        A(f"v_cmp_eq_u32 vcc, 0, v{vT}")
        A("s_andn2_b64 s[86:87], s[86:87], vcc")
        A("s_cbranch_scc1 L_ipoll")
    A("s_mov_b64 exec, -1")
    stamp(10)
    A(f"v_add_f32_dpp v{YG+4}, v{YG}, v{YG} row_ror:12 row_mask:0xf bank_mask:0x5")
    A(f"v_add_f32_dpp v{YG+5}, v{YG+2}, v{YG+2} row_ror:12 row_mask:0xf bank_mask:0x5")
    nop(1)
    A(f"v_add_f32_dpp v{YG+4}, v{YG+1}, v{YG+1} row_ror:4 row_mask:0xf bank_mask:0xa")
    A(f"v_add_f32_dpp v{YG+5}, v{YG+3}, v{YG+3} row_ror:4 row_mask:0xf bank_mask:0xa")
    nop(1)
    A(f"v_add_f32_dpp v{YG+6}, v{YG+4}, v{YG+4} row_ror:8 row_mask:0xf bank_mask:0x3")
    nop(2)
    A(f"v_add_f32_dpp v{YG+6}, v{YG+5}, v{YG+5} row_ror:8 row_mask:0xf bank_mask:0xc")
    allreduce([YG + 6], "v_add_f32", [YG + 7], steps=("x2", "p16", "p32"))
    A(f"v_add_f32 v{YG+6}, v{YG+6}, v162")
    A("s_mov_b64 exec, 0x3333")
    A(f"v_cvt_pk_bf16_f32 v{YG+6}, v{YG+6}, v{YG+6}")
    A(f"buffer_store_short v{YG+6}, v161, s[{SOUT}:{SOUT+3}], s85 offen")
    A("s_cmp_lg_u32 s85, 0")
    A("s_cbranch_scc1 L_c_st")
    A("s_mov_b64 exec, 1")
    A(f"buffer_store_dword v164, v11, s[{SWS}:{SWS+3}], 0 offen")
    A("L_c_st:")
    stamp(11)
    A("L_c_end:")
    stamp_flush()
    if diag is not None:
        A("s_sub_u32 s88, s88, s90")
        if xdev is not None:
            A("s_cmp_lg_u32 s2, 1"); A("s_cbranch_scc1 L_abort")
            A("L_xd1:"); A("s_memrealtime s[86:87]"); A("s_waitcnt lgkmcnt(0)"); A("s_sub_u32 s86, s86, s90"); A("s_cmp_lt_u32 s86, 7000"); A("s_cbranch_scc1 L_xd1")
            A("s_mov_b64 exec, -1"); A(f"s_mov_b32 s87, {hex(W_STAMP)}"); A("v_lshlrev_b32 v44, 2, v0")
            for i in range(4): A(f"buffer_load_dword v{45+i}, v44, s[{SWS}:{SWS+3}], s87 offen offset:{256*i} sc1")
            A("s_waitcnt vmcnt(0)")
            for i in range(4): A(f"v_subrev_u32 v{45+i}, s90, v{45+i}")
            A("v_max3_i32 v52, v45, v46, v47"); A("v_max_i32 v52, v52, v48")
            A("v_add_u32 v45, v45, v46"); A("v_add_u32 v47, v47, v48"); A("v_add_u32 v45, v45, v47")
            allreduce([45], "v_add_u32", [50], steps=("r8", "p16", "p32"))
            A("v_mov_b32 v46, v45"); A("v_mov_b32 v51, v45")
            allreduce([46], "v_add_u32", [50], steps=("x1", "x2", "hm"))
            allreduce([51], "v_max_i32", [50], steps=("x1", "x2", "hm"))
            allreduce([52], "v_max_i32", [50])
            nop(1)
            if xdev < 8: A(f"v_readlane_b32 s86, v45, {xdev}")
            elif xdev == 8: A("v_readlane_b32 s86, v51, 0")
            else: A("v_readlane_b32 s86, v52, 0"); A("s_lshl_b32 s86, s86, 5")
            A("v_readlane_b32 s87, v46, 0")
            A("s_lshl_b32 s86, s86, 3"); A("s_sub_i32 s86, s86, s87"); A("s_mul_i32 s86, s86, 20"); A("s_ashr_i32 s88, s86, 8")
        A("s_add_u32 s88, s88, 10000")
        A("L_diag:")
        A("s_memrealtime s[86:87]")
        A("s_waitcnt lgkmcnt(0)")
        A("s_sub_u32 s86, s86, s90")
        A("s_cmp_lt_u32 s86, s88")
        A("s_cbranch_scc1 L_diag")
    A("s_endpgm")
    A("L_o_far:")
    A(f"buffer_store_dwordx4 v[{O}:{O+3}], v160, s[{SWS}:{SWS+3}], s68 offen sc1")
    A("s_branch L_o_pub")

    role[0] = "tail"
    SWO, SD = 40, 44
    sTw, sA, sB2, sTag, sWo, sDo, sO = 60, 65, 66, 67, 63, 64, 61
    GA, GB, WF, DF, HB, Y, R, W = 64, 80, 96, 112, 120, 128, 132, 136
    A("L_tail:")
    if pads:
        A("s_mov_b64 exec, 0")
        A("s_branch L_tend")
        A("L_tpad:")
        A("s_mov_b64 exec, -1")
    A(f"s_sub_u32 s{sTw}, s3, 6")
    srd(SWO, P_WO, 0 if nowt else 4096 * 512 * 2)
    srd(SD, P_D, 0 if nowt else 1792 * 512 * 2)
    A("v_lshl_or_b32 v4, v12, 10, v13")
    for i in range(1, 4):
        A(f"v_add_u32 v{4+i}, {i*(8192-1024)}, v4")
    A(f"s_lshr_b32 s{sO}, s{S_W}, 3")
    A(f"s_lshl_b32 s{sDo}, s{sO}, 2")
    A(f"s_add_u32 s{sDo}, s{sDo}, s{sTw}")
    A(f"s_lshl_b32 s{sWo}, s{sDo}, 15")
    A(f"s_lshl_b32 s{sDo}, s{sDo}, 14")
    A(f"s_and_b32 s{sB2}, s{S_J}, 7")
    A(f"s_lshl_b32 s{sA}, s{sB2}, 7")
    A(f"s_add_u32 s{sWo}, s{sWo}, s{sA}")
    A(f"s_add_u32 s{sDo}, s{sDo}, s{sA}")
    A(f"s_cmp_lt_u32 s{S_KVH}, 7")
    A(f"s_cselect_b32 s{sDo}, s{sDo}, 0")
    A(f"s_cselect_b32 s{SD+2}, s{SD+2}, 0")
    A(f"s_lshl_b32 s83, s{sTw}, 12")
    A(f"s_lshl_b32 s84, s{sTw}, 11")
    A(f"s_add_u32 m0, s84, {hex(L_DN)}")
    A(f"s_lshl_b32 s69, s{sO}, 9")
    if tdelay:
        lds_wait(F_LANDED, tdelay, 20, sA)
    for i in range(2):
        A(f"buffer_load_dwordx4 v{4+i}, s[{SD}:{SD+3}], s{sDo} offen offset:{i*1024} {pW} lds")
    if wearly:
        A("s_add_u32 m0, s83, 0x18000")
        nop(1)
        for i in range(4):
            A(f"buffer_load_dwordx4 v{4+i}, s[{SWO}:{SWO+3}], s{sWo} offen offset:{i*1024} {pW} lds")
    A(f"s_add_u32 s69, s69, {hex(W_ML)}")
    A("v_lshlrev_b32 v14, 7, v0")
    l1, l2, l3 = lab("tt"), lab("tt"), lab("tt")
    A(f"s_lshl_b32 s96, s{S_KVH}, 2")
    A(f"s_add_u32 s96, s96, s{sTw}")
    A("s_lshl_b32 s96, s96, 7")
    A(f"s_add_u32 s96, s96, {hex(W_MARK)}")
    A("s_mov_b64 exec, 1")
    A(f"buffer_load_dword v16, v11, s[{SWS}:{SWS+3}], s96 offen sc1")
    A(f"s_cmp_eq_u32 s{sTw}, 0")
    A(f"s_cbranch_scc1 {l3}")
    A(f"s_cmp_ge_u32 s{sTw}, 2")
    A(f"s_cbranch_scc1 {l1}")
    A(f"s_lshl_b32 s{sA}, s{S_W}, 11")
    A(f"s_add_u32 s{sA}, s{sA}, {hex(W_F)}")
    A("s_mov_b64 exec, 0xff")
    A(f"buffer_load_dword v17, v14, s[{SWS}:{SWS+3}], s{sA} offen sc1")
    A(f"s_branch {l3}")
    A(f"{l1}:")
    A(f"s_cmp_eq_u32 s{sTw}, 2")
    A(f"s_cbranch_scc0 {l2}")
    A("s_mov_b64 exec, 15")
    A(f"buffer_load_dword v17, v14, s[{SWS}:{SWS+3}], s69 offen sc1")
    A(f"s_branch {l3}")
    A(f"{l2}:")
    A("s_mov_b64 exec, 1")
    A(f"buffer_load_dword v17, v11, s[{SWO}:{SWO+3}], s{sWo} offen {pW}")
    if kvtouch:
        srd(52, P_K, 0x8000000)
        srd(56, P_V, 0x8000000)
        A(f"s_lshl_b32 s{sA}, s{S_B}, 3")
        A(f"s_add_u32 s{sA}, s{sA}, s{S_KVH}")
        A(f"s_lshl_b32 s{sA}, s{sA}, 4")
        A(f"s_add_u32 s{sA}, s{sA}, s{S_S}")
        A(f"s_lshl_b32 s{sA}, s{sA}, 19")
        A(f"buffer_load_dword v18, v11, s[52:55], s{sA} offen nt")
        A(f"buffer_load_dword v19, v11, s[56:59], s{sA} offen nt")
    A(f"{l3}:")
    A("s_mov_b64 exec, -1")
    A("v_lshrrev_b32 v144, 2, v0")
    A("v_lshlrev_b32 v144, 7, v144")
    A("v_bfe_u32 v14, v0, 3, 2")
    A(f"v_xor_b32 v14, s{sTw}, v14")
    A("v_lshl_or_b32 v144, v14, 5, v144")
    A("v_and_b32 v2, 3, v0")
    A("v_lshl_or_b32 v144, v2, 3, v144")
    A(f"v_add_u32 v145, {hex(L_DN)}, v144")
    A("v_bfe_u32 v15, v0, 3, 1")
    A("v_lshlrev_b32 v161, 6, v12")
    A("v_lshrrev_b32 v14, 5, v0")
    A("v_bfe_u32 v3, v0, 3, 2")
    A("v_and_b32 v162, 7, v0")
    A("v_lshlrev_b32 v162, 4, v162")
    A("v_lshl_or_b32 v162, v3, 11, v162")
    A("v_lshl_or_b32 v162, v14, 15, v162")
    A(f"s_lshl_b32 s70, s{S_KVH}, 7")
    A(f"s_lshr_b32 s{sA}, s{S_J}, 3")
    A(f"s_add_u32 s70, s70, s{sA}")
    A("s_lshl_b32 s70, s70, 2")
    A(f"s_add_u32 s70, s70, s{sTw}")
    A("s_lshl_b32 s70, s70, 7")
    A(f"s_add_u32 s70, s70, {hex(W_O)}")
    for i in range(1, 4):
        A(f"s_add_u32 s{70+i}, s70, {i*8192}")
    A("v_lshlrev_b32 v146, 6, v15")
    A("v_lshl_or_b32 v146, v1, 4, v146")
    A(f"v_add_u32 v146, {hex(L_OX)}, v146")
    A("v_lshlrev_b32 v147, 6, v14")
    A("v_lshl_or_b32 v147, v2, 4, v147")
    A("v_bfe_u32 v14, v0, 2, 1")
    A("v_lshl_or_b32 v147, v14, 3, v147")
    A("v_bfe_u32 v14, v0, 4, 1")
    A("v_lshl_or_b32 v147, v14, 2, v147")
    A(f"s_lshl_b32 s{sA}, s{sTw}, 7")
    A(f"v_add_u32 v147, s{sA}, v147")
    A(f"v_add_u32 v147, {hex(L_OX)}, v147")
    A("v_and_b32 v30, 7, v0")
    A("v_lshlrev_b32 v154, 4, v30")
    A("v_lshl_or_b32 v154, v12, 9, v154")
    A("v_lshlrev_b32 v30, 11, v30")
    A("v_lshl_or_b32 v30, v15, 8, v30")
    A("v_lshl_or_b32 v30, v1, 4, v30")
    A(f"s_lshl_b32 s75, s{sO}, 8")
    A(f"s_add_u32 s75, s75, s{sTw}")
    A("s_lshl_b32 s75, s75, 6")
    A(f"s_add_u32 s75, s75, {hex(W_F)}")
    A("v_lshlrev_b32 v163, 16, v15")
    A("v_lshl_or_b32 v163, v1, 4, v163")
    A(f"s_lshl_b32 s74, s{S_W}, 2")
    A(f"s_add_u32 s74, s74, s{sTw}")
    A("s_lshl_b32 s74, s74, 6")
    A(f"s_add_u32 s74, s74, {hex(W_Y)}")
    A("v_lshlrev_b32 v148, 3, v0")
    A(f"v_add_u32 v148, {hex(L_XN)}, v148")
    A(f"s_lshl_b32 s{sA}, s{sTw}, 9")
    A(f"v_add_u32 v149, s{sA}, v148")
    A(f"s_lshl_b32 s{sA}, s{sTw}, 2")
    A(f"v_add_u32 v9, s{sA}, v8")
    A("v_mov_b32 v23, 1")
    A("s_waitcnt vmcnt(0)")
    make_tag(sTag, 164)
    A("s_mov_b32 s85, 0xffffff00")
    A(f"v_mov_b32 v164, s{sTag}")
    A(f"s_lshl_b32 s78, s{S_KVH}, 7")
    A(f"s_add_u32 s78, s78, {hex(W_IND)}")
    for i in range(4):
        A(f"v_bfe_u32 v{150+i}, s{sTag}, {8*i}, 8")
    if wearly:
        lds_set(9, F_WRDY, 23)
        A("v_add_u32 v144, 0x18000, v144")
        lds_wait4(F_WRDY, 1, 16, [f"ds_read_b64_tr_b16 v[{WF+2*i}:{WF+2*i+1}], v144 offset:{2048*i}" for i in range(8)])
        A("v_mov_b32 v20, 2")
        lds_set(9, F_WRDY, 20)
    stamp(1)
    A(f"s_lshl_b32 s{sB2}, s{sTw}, 2")
    A(f"s_add_u32 s{sB2}, s{sB2}, {GATH_AT}")
    lds_wait(F_DONE, f"s{sB2}", 20, sA)
    A("v_mov_b32 v40, 0")
    A("v_mov_b32 v41, 0")
    A(f"s_cmp_ge_u32 s{S_KVH}, {0 if noffn else 7}")
    A("s_cbranch_scc1 L_noffn2")
    for i in range(4):
        A(f"s_bfe_u32 s{86+i}, s{sTag}, {hex(0x80000 + 8*i)}")
    lq = lab("fpoll")
    A(f"{lq}:")
    for i in range(2):
        A(f"buffer_load_dwordx4 v[{44+4*i}:{47+4*i}], v30, s[{SWS}:{SWS+3}], s75 offen offset:{512*i} sc1")
    spin_guard()
    A("s_waitcnt vmcnt(0)")
    byte_check(44, 8, 86, 60)
    A(f"s_cbranch_vccnz {lq}")
    allreduce([44 + i for i in range(8)], "v_add_f32", [], steps=("x1", "x2", "hm"))
    for i in range(4):
        A(f"v_cvt_pk_bf16_f32 v40, v{44+2*i}, v{45+2*i}")
        unpack(32 + 2 * i, 40)
    A("s_mov_b32 s80, 0x3d372713")
    A("s_mov_b32 s81, 0xc0135761")
    for i in range(4):
        A(f"v_mul_f32 v{44+i}, v{32+i}, v{32+i}")
        A(f"v_fma_f32 v{44+i}, v{44+i}, s80, 1.0")
        A(f"v_mul_f32 v{44+i}, v{44+i}, v{32+i}")
        A(f"v_mul_f32 v{44+i}, s81, v{44+i}")
        A(f"v_exp_f32 v{44+i}, v{44+i}")
    nop(1)
    for i in range(4):
        A(f"v_add_f32 v{44+i}, 1.0, v{44+i}")
    for i in range(4):
        A(f"v_rcp_f32 v{44+i}, v{44+i}")
    nop(1)
    for i in range(4):
        A(f"v_mul_f32 v{32+i}, v{32+i}, v{44+i}")
    for r in (32, 34):
        A(f"v_cvt_pk_bf16_f32 v40, v{r}, v{r+1}")
        unpack(r, 40)
    for i in range(4):
        A(f"v_mul_f32 v{32+i}, v{32+i}, v{36+i}")
    A("v_cvt_pk_bf16_f32 v40, v32, v33")
    A("v_cvt_pk_bf16_f32 v41, v34, v35")
    A("L_noffn2:")
    A("ds_write_b64 v149, v[40:41]")
    lds_set(9, F_HRDY, 23)
    lds_wait4(F_HRDY, 1, 28, [f"ds_read_b64 v[{HB+2*i}:{HB+2*i+1}], v148 offset:{512*i}" for i in range(4)] +
              [f"ds_read_b64_tr_b16 v[{DF+2*i}:{DF+2*i+1}], v145 offset:{2048*i}" for i in range(4)])
    A(f"v_mfma_f32_16x16x32_bf16 v[{Y}:{Y+3}], v[{DF}:{DF+3}], v[{HB}:{HB+3}], 0")
    A(f"v_mfma_f32_16x16x32_bf16 v[{Y}:{Y+3}], v[{DF+4}:{DF+7}], v[{HB+4}:{HB+7}], v[{Y}:{Y+3}]")
    stamp(2)
    lds_wait(F_DONE, ML_AT, 20, sA)
    lds_wait(F_CTL, 1, 20, 79)
    A("s_mov_b32 s62, s79")
    lq = lab("mlpoll")
    A(f"{lq}:")
    for i in range(4):
        A(f"buffer_load_dwordx4 v[{44+4*i}:{47+4*i}], v161, s[{SWS}:{SWS+3}], s69 offen offset:{16*i} sc1")
    spin_guard()
    A("s_waitcnt vmcnt(0)")
    tag_check(44, 8, sTag, 60, 61)
    A(f"s_cbranch_vccnz {lq}")
    for i in range(4):
        A(f"v_mov_b32 v{16+i}, -1")
    A(f"s_lshl_b32 s{sA}, s{S_W}, 4")
    A(f"s_add_u32 s{sA}, s{sA}, s{sTw}")
    A(f"s_lshl_b32 s{sA}, s{sA}, 7")
    A(f"s_add_u32 s{sA}, s{sA}, {hex(W_O)}")
    A("s_mov_b32 exec_hi, 0")
    store_by(62, [f"buffer_store_dwordx4 v[16:19], v154, s[{SWS}:{SWS+3}], s{sA} offen"])
    A(f"s_lshl_b32 s{sA}, s{S_J}, 2")
    A(f"s_add_u32 s{sA}, s{sA}, s96")
    A("s_mov_b64 exec, 1")
    A("v_mov_b32 v20, 2")
    A("s_waitcnt vmcnt(0)")
    store_by(62, [f"buffer_store_dword v164, v11, s[{SWS}:{SWS+3}], s{sA} offen"])
    lds_set(9, F_HRDY, 20)
    A("v_max3_f32 v26, v44, v48, v52")
    A("v_max_f32 v26, v26, v56")
    allreduce([26], "v_max_f32", [27], steps=("r8", "p16"))
    for i in range(4):
        A(f"v_sub_f32 v{W+i}, v{44+4*i}, v26")
    for i in range(4):
        A(f"v_exp_f32 v{W+i}, v{W+i}")
    A(f"v_mul_f32 v27, v{W}, v46")
    for i in range(1, 4):
        A(f"v_fmac_f32 v27, v{W+i}, v{46+4*i}")
    allreduce([27], "v_add_f32", [26], steps=("r8", "p16"))
    A("v_rcp_f32 v27, v27")
    A(f"s_add_u32 s76, s{S_J}, s{sTw}")
    if early:
        A("s_lshr_b32 s79, s79, 1")
        A("s_add_u32 s76, s76, s79")
    A("s_cmp_eq_u32 s76, 0")
    A("s_cselect_b64 s[76:77], 1, 0")
    for i in range(4):
        A(f"v_mul_f32 v{W+i}, v{W+i}, v27")
    A("s_mov_b32 m0, s83")
    A("s_mov_b32 s80, 0x00ff00ff"); A("s_mov_b32 s81, s80")
    A("s_mov_b32 s82, 0x01010101"); A("s_mov_b32 s83, s82")
    lds_wait(F_DONE, CLR_CHK, 20, sA)
    A("v_lshlrev_b32 v14, 2, v0")
    A("s_mov_b32 exec_hi, 0")
    lq = lab("cpoll")
    A(f"{lq}:")
    A(f"buffer_load_dword v17, v14, s[{SWS}:{SWS+3}], s96 offen sc1")
    spin_guard()
    A("s_waitcnt vmcnt(0)")
    A("v_cmp_ne_u32 vcc, v164, v17")
    A(f"s_cbranch_vccnz {lq}")
    A("s_mov_b32 exec_hi, -1")
    if retouch:
        lds_wait(F_DONE, retouch, 20, sA)
        A(f"s_lshl_b32 s{sA}, s{S_W}, 2")
        A(f"s_add_u32 s{sA}, s{sA}, s{sTw}")
        A(f"s_lshl_b32 s{sA}, s{sA}, 9")
        A(f"s_add_u32 s{sA}, s{sA}, {hex(W_O)}")
        A("v_lshlrev_b32 v14, 7, v0")
        A("s_mov_b64 exec, 15")
        A(f"buffer_load_dword v17, v14, s[{SWS}:{SWS+3}], s{sA} offen sc1")
        A("s_mov_b64 exec, -1")
    if gate:
        A("v_lshlrev_b32 v155, 4, v12")
        A(f"s_lshl_b32 s68, s{S_KVH}, 7")
        A(f"s_add_u32 s68, s68, {hex(W_PROG)}")
        A("s_cmp_eq_u32 s62, 2")
        A("s_cselect_b32 s62, 200, 0")
    if slp:
        lds_wait(F_DONE, 120, 20, sA)
    stamp(5)
    A("s_branch L_tend")
    A(".p2align 6")
    A("L_tend:")
    if pads:
        A("s_cbranch_execz L_tpad")
    if TRIG == 0:
        lds_wait4(F_DONE, 114, 28)
        lds_wait(F_ISS, 1, 28, sA)
    elif TRIG < 128:
        lds_wait4(F_DONE, TRIG, 28)
    else:
        lds_wait(F_LANDED, 128 + LB, 28, sA)
    A("s_setprio 2")
    stamp(3)
    for i in range(0 if wearly else 4):
        A(f"buffer_load_dwordx4 v{4+i}, s[{SWO}:{SWO+3}], s{sWo} offen offset:{i*1024} {pW} lds")

    def o_load(i):
        A(f"buffer_load_dwordx4 v[{GA+4*i}:{GA+4*i+3}], v162, s[{SWS}:{SWS+3}], s{70+i} offen sc1")

    def m_load():
        A(f"buffer_load_dwordx4 v[156:159], v155, s[{SWS}:{SWS+3}], s68 offen sc1")

    if gate:
        m_load()
        for i in range(16):
            A(f"v_mov_b32 v{GA+i}, -1")
        A("s_waitcnt vmcnt(1)")
    else:
        if opre == 2:
            lds_wait(F_LANDED, 128 + LB, 28, sA)
        elif opre == 3:
            lds_wait4(F_DONE, 128, 28)
        elif opre in (4, 5, 6):
            A(f"s_waitcnt vmcnt({opre - 3})")
        if not opre:
            A("s_waitcnt vmcnt(0)")
        for i in range(4):
            o_load(i)
        if opre:
            A("s_waitcnt vmcnt(4)")
    if not wearly:
        lds_set(9, F_WRDY, 23)
    stamp(4)
    wfrag = [f"ds_read_b64_tr_b16 v[{WF+2*i}:{WF+2*i+1}], v144 offset:{2048*i}" for i in range(8)]
    if gate:
        A("s_waitcnt vmcnt(0)")
        for i in range(4):
            A(f"v_cmp_le_u32 vcc, s62, v{156+i}")
            A("s_mov_b64 exec, vcc")
            o_load(i)
            A("s_mov_b64 exec, -1")
        m_load()
    if not wearly:
        lds_wait4(F_WRDY, 1, 28, wfrag)
    stamp(6)
    if ocap:
        A("s_waitcnt vmcnt(0)")
    A("s_branch L_ob")
    A("L_oa:")
    if gate:
        A("s_waitcnt vmcnt(0)")
        for i in range(4):
            A(f"v_cmp_le_u32 s[{52+2*i}:{53+2*i}], s62, v{156+i}")
    for i in range(4):
        if gate:
            A(f"s_and_b64 exec, s[{86+2*i}:{87+2*i}], s[{52+2*i}:{53+2*i}]")
        else:
            A(f"s_mov_b64 exec, s[{86+2*i}:{87+2*i}]")
        o_load(i)
    A("s_mov_b64 exec, -1")
    if gate:
        m_load()
    spin_guard()
    A("L_ob:")
    for i in range(4):
        if ocap:
            if i == 0:
                A(f"s_waitcnt vmcnt({ocap})")
        elif cw:
            A(f"s_waitcnt vmcnt({3-i+(1 if gate else 0)})")
        elif i == 0:
            A(f"s_waitcnt vmcnt({1 if gate else 0})")
        A(f"v_max3_u32 v20, v{GA+4*i}, v{GA+4*i+1}, v{GA+4*i+2}")
        A(f"v_max_u32 v20, v20, v{GA+4*i+3}")
        A(f"v_cmp_eq_u32 s[{86+2*i}:{87+2*i}], -1, v20")
    A("s_or_b64 s[94:95], s[86:87], s[88:89]")
    A("s_or_b64 s[94:95], s[94:95], s[90:91]")
    A("s_or_b64 s[94:95], s[94:95], s[92:93]")
    A("s_cbranch_scc1 L_oa")

    def send_ind():
        A("s_mov_b64 exec, s[76:77]")
        A("s_cbranch_execnz L_ind")
        A("L_noind:")
    if indpos == 0:
        send_ind()
        A("s_mov_b64 exec, -1")
    stamp(7)
    for k in range(4):
        A(f"v_mul_f32 v{R+k}, v{GA+k}, v{W}")
    for i in range(1, 4):
        for k in (0, 2, 1, 3):
            A(f"v_fmac_f32 v{R+k}, v{GA+4*i+k}, v{W+i}")
    A(f"v_permlane16_swap_b32 v{R}, v{R+2}")
    nop(1)
    A(f"v_permlane16_swap_b32 v{R+1}, v{R+3}")
    A(f"v_add_f32 v{R}, v{R}, v{R+2}")
    A(f"v_add_f32 v{R+1}, v{R+1}, v{R+3}")
    allreduce([R, R + 1], "v_add_f32", [], steps=("r8",))
    A("s_mov_b64 exec, s[80:81]")
    A(f"v_cvt_pk_bf16_f32 v24, v{R}, v{R+1}")
    A("ds_write_b32 v147, v24")
    lds_set(9, F_ORDY, 23)
    if indpos == 1:
        send_ind()
        A("s_mov_b64 exec, -1")
    lds_wait4(F_ORDY, 1, 28, [f"ds_read_b128 v[{32+4*i}:{35+4*i}], v146 offset:{128*i}" for i in range(4)])
    for i in range(4):
        A(f"v_mfma_f32_16x16x32_bf16 v[{Y}:{Y+3}], v[{WF+4*i}:{WF+4*i+3}], v[{32+4*i}:{35+4*i}], v[{Y}:{Y+3}]")
    if indpos == 2:
        nop(5)
        send_ind()
    else:
        nop(7)
    A("s_mov_b64 exec, s[82:83]")
    for i in range(4):
        A(f"v_and_or_b32 v{Y+i}, v{Y+i}, s85, v{150+i}")
    A(f"buffer_store_dwordx4 v[{Y}:{Y+3}], v163, s[{SWS}:{SWS+3}], s74 offen sc1")
    if indpos == 3:
        send_ind()
    if wb in (1, 2):
        A(f"s_lshl_b32 s{sA}, s{sTw}, 8")
        A(f"s_add_u32 s{sA}, s{sA}, s{S_W}")
        A(f"s_cmp_lg_u32 s{sA}, {32*FX}")
        A("s_cbranch_scc1 L_nowb")
        if wb == 2:
            A("s_waitcnt vmcnt(0)")
        A("buffer_wbl2 sc1")
        A("s_waitcnt vmcnt(0)")
        A("L_nowb:")
    stamp(8)
    stamp_flush()
    A("s_endpgm")
    A("L_ind:")
    A(f"buffer_store_dword v164, v11, s[{SWS}:{SWS+3}], s78 offen sc1")
    if wb == 3:
        A("buffer_wbl2 sc1")
    A("s_branch L_noind")
    A("L_abort:")
    A("s_endpgm")
    sT = 66
    loader_rest()
    A("L_end:")
    nv = 168
    A('.section .rodata,"a"')
    A(".p2align 6")
    A(f".amdhsa_kernel {KNAME}")
    A(f"  .amdhsa_next_free_vgpr {nv}")
    A("  .amdhsa_next_free_sgpr 102")
    A(f"  .amdhsa_accum_offset {nv}")
    A("  .amdhsa_group_segment_fixed_size 0")
    A("  .amdhsa_kernarg_size 96")
    A("  .amdhsa_user_sgpr_count 2")
    A("  .amdhsa_user_sgpr_kernarg_segment_ptr 1")
    A("  .amdhsa_system_sgpr_workgroup_id_x 1")
    A(".end_amdhsa_kernel")
    out = []
    for ln in L:
        if ln.startswith((";", ".", " ")) or ln.endswith(":") or "\n" in ln:
            out.append(ln)
        else:
            out.append("    " + ln)
    return "\n".join(out) + "\n"


if __name__ == "__main__":
    kw = eval("dict(" + (sys.argv[2] if len(sys.argv) > 2 else "") + ")")
    open(sys.argv[1], "w").write(gen(**kw))
FINAL_WAVE = 2
```

```python
import sys
from gen_kernel import HEADER, KNAME

L_TILE = 0x20000
L_T2 = 0x1C000
L_DN = 0x24000
L_XN = 0x26000
L_Q = 0x26800
L_OX = 0x26C00
L_FLAG = 0x26E00
F_ORDY, F_DONE, F_QRDY, F_MRDY, F_PRDY, F_TILE, F_BREQ, F_CTL, F_HRDY, F_WRDY = 0, 16, 32, 48, 64, 80, 84, 88, 96, 112
L_M = L_FLAG + 128
L_L = L_FLAG + 192
F_LANDED = 256
F_ISS = 92
LB = 4
LDS_BYTES = 0x27000
W_EPOCH = 0x0
W_PROG = 0x1000
W_MARK = 0x3000
W_IND = 0x2000
W_ML = 0x4000
W_O = 0x10000
W_Y = 0xC0000
W_Q = W_O
W_F = W_O + 1024
W_QB = 0x110000
W_STAMP = 0x200000
WS_BYTES = 0x300000

LOG2E = 0x3FB8AA3B
SCALE = 0x3DB504F3
SPIN_MAX = 1 << 20


def gen(NLS=(16, 18, 20, 22, 24, 26), idx0=2, gain=1.0, bias=2.37, ctl=True, NL0=24, stamps=False, pK="nt", pW="nt", diag=None, TRIG=126,
        codepf=True, fast=True, QB_EVERY=8, GATH_AT=24, ML_AT=88, noffn=False, nowt=False,
        FX=0, boost7=0, touch=True, early=False, indpos=1, ind=True, opre=False, boostE=0.15, thr=(-9, -9, -9), slp=0, slpc=0, endn=0, endadd=0, rot=7, wb=0, wearly=False, ocap=0, icap=0, curve=False, idxS=0, tdelay=0, fine=False, retouch=0, gate=False, MARK_AT=0, CLR_CHK=104, xdev=None, amp=0, mix=0, ycopy=False, pt=False, gb=(0, 0, 0, 0, 0, 0, 0, 0), cw=True, pads=True, spec=True, kvtouch=True, yall=True):
    L = []
    A = L.append
    uid = [0]
    role = ["pro"]

    def lab(p):
        uid[0] += 1
        return f"L_{p}_{uid[0]}"

    def nop(n):
        while n > 0:
            k = min(n, 16)
            A(f"s_nop {k-1}")
            n -= k

    def srd(r, p, nbytes):
        A(f"s_mov_b32 s{r}, s{p}")
        A(f"s_mov_b32 s{r+1}, s{p+1}")
        A(f"s_mov_b32 s{r+2}, {hex(nbytes)}")
        A(f"s_mov_b32 s{r+3}, 0x20000")

    VST = 166

    def stamp(i):
        if diag is not None and role[0] == "cons" and diag == i:
            A("s_memrealtime s[88:89]")
            A("s_waitcnt lgkmcnt(0)")
        if not stamps:
            return
        A("s_memrealtime s[98:99]")
        A("s_waitcnt lgkmcnt(0)")
        A(f"v_writelane_b32 v{VST}, s98, {i}")

    def stamp_flush():
        if not stamps:
            return
        A("s_mov_b64 exec, -1")
        A(f"s_sub_u32 s97, {hex(SPIN_MAX)}, s15")
        A(f"v_writelane_b32 v{VST}, s97, 16")
        srd(92, P_WS, WS_BYTES)
        A("s_lshl_b32 s97, s2, 4")
        A("s_add_u32 s97, s97, s3")
        A("s_lshl_b32 s97, s97, 8")
        A(f"s_add_u32 s97, s97, {hex(W_STAMP)}")
        A(f"v_lshlrev_b32 v{VST+1}, 2, v0")
        A(f"buffer_store_dword v{VST}, v{VST+1}, s[92:95], s97 offen")
        A("s_waitcnt vmcnt(0)")

    def spin_guard():
        A("s_sub_u32 s15, s15, 1")
        A("s_cbranch_scc1 L_abort")

    def lds_wait(off, thr, vt, st):
        l = lab("w")
        A(f"{l}:")
        if slp and role[0] == "tail":
            A(f"s_sleep {slp}")
        A(f"ds_read_b32 v{vt}, v8 offset:{off}")
        spin_guard()
        A("s_waitcnt lgkmcnt(0)")
        A(f"v_readfirstlane_b32 s{st}, v{vt}")
        A(f"s_cmp_ge_i32 s{st}, {thr}")
        A(f"s_cbranch_scc0 {l}")

    def lds_wait4(off, thr, vq, extra=()):
        l = lab("w4")
        A(f"{l}:")
        A(f"ds_read_b128 v[{vq}:{vq+3}], v8 offset:{off}")
        for e in extra:
            A(e)
        spin_guard()
        A(f"s_waitcnt lgkmcnt({len(extra)})")
        A(f"v_min3_i32 v{vq}, v{vq}, v{vq+1}, v{vq+2}")
        A(f"v_min_i32 v{vq}, v{vq}, v{vq+3}")
        A(f"v_cmp_gt_i32 vcc, {thr}, v{vq}")
        if extra:
            A("s_waitcnt lgkmcnt(0)")
        A(f"s_cbranch_vccnz {l}")

    def lds_set(addr_v, off, val_v):
        A("s_mov_b64 exec, 1")
        A(f"ds_write_b32 v{addr_v}, v{val_v} offset:{off}")
        A("s_mov_b64 exec, -1")

    def allreduce(regs, op, tmps, steps=("x1", "x2", "hm", "m", "p16", "p32")):
        dpp = {"x1": "quad_perm:[1,0,3,2]", "x2": "quad_perm:[2,3,0,1]", "hm": "row_half_mirror", "m": "row_mirror",
               "r4": "row_ror:4", "r8": "row_ror:8"}
        for st in steps:
            if st in dpp:
                nop(max(0, 3 - len(regs)))
                for r in regs:
                    A(f"{op}_dpp v{r}, v{r}, v{r} {dpp[st]} row_mask:0xf bank_mask:0xf")
            else:
                ins = "v_permlane16_swap_b32" if st == "p16" else "v_permlane32_swap_b32"
                for r, t in zip(regs, tmps):
                    A(f"v_mov_b32 v{t}, v{r}")
                nop(max(0, 3 - len(regs)))
                for r, t in zip(regs, tmps):
                    A(f"{ins} v{r}, v{t}")
                nop(1)
                for r, t in zip(regs, tmps):
                    A(f"{op} v{r}, v{r}, v{t}")

    def make_tag(s, v):
        A(f"v_readfirstlane_b32 s{s}, v{v}")
        A(f"s_add_u32 s{s}, s{s}, 0x4d2b7f35")

    def local_tag(dst, tag):
        A(f"s_getreg_b32 s{dst}, hwreg(HW_REG_XCC_ID, 0, 4)")
        A(f"s_mul_i32 s{dst}, s{dst}, 0x10001")
        A(f"s_xor_b32 s{dst}, s{dst}, s{tag}")

    def store_by(sloc, ins):
        l1, l2 = lab("far"), lab("st")
        A(f"s_cmp_eq_u32 s{sloc}, 2")
        A(f"s_cbranch_scc0 {l1}")
        for i in ins:
            A(i)
        A(f"s_branch {l2}")
        A(f"{l1}:")
        for i in ins:
            A(i + " sc1")
        A(f"{l2}:")

    def tag_check(base, n, stag, t1, t2):
        for i in range(n):
            A(f"v_xor_b32 v{base+1+2*i}, s{stag}, v{base+1+2*i}")
        r = [base + 1 + 2 * i for i in range(n)]
        if n == 8:
            A(f"v_or3_b32 v{t1}, v{r[0]}, v{r[1]}, v{r[2]}")
            A(f"v_or3_b32 v{t2}, v{r[3]}, v{r[4]}, v{r[5]}")
            A(f"v_or3_b32 v{t1}, v{t1}, v{r[6]}, v{r[7]}")
            A(f"v_or_b32 v{t1}, v{t1}, v{t2}")
        else:
            A(f"v_or3_b32 v{t1}, v{r[0]}, v{r[1]}, v{r[2]}")
            A(f"v_or_b32 v{t1}, v{t1}, v{r[3]}")
        A(f"v_cmp_ne_u32 vcc, 0, v{t1}")

    def byte_check(base, n, sb, t):
        for i in range(n):
            A(f"v_xor_b32 v{base+i}, s{sb+(i&3)}, v{base+i}")
        A(f"v_or3_b32 v{t}, v{base}, v{base+1}, v{base+2}")
        for i in range(3, n - 1, 2):
            A(f"v_or3_b32 v{t}, v{t}, v{base+i}, v{base+i+1}")
        A(f"v_or_b32 v{t}, v{t}, v{base+n-1}")
        A(f"v_and_b32 v{t}, 0xff, v{t}")
        A(f"v_cmp_ne_u32 vcc, 0, v{t}")

    def vaddr_T0(dst, t1, t2, t3):
        A(f"v_lshrrev_b32 v{t1}, 2, v0")
        A(f"v_and_b32 v{t2}, 7, v{t1}")
        A(f"v_lshlrev_b32 v{t2}, 1, v{t2}")
        A(f"v_lshrrev_b32 v{t3}, 5, v0")
        A(f"v_or_b32 v{t2}, v{t2}, v{t3}")
        A(f"v_bfe_u32 v{t3}, v0, 1, 1")
        A(f"v_xor_b32 v{t2}, v{t2}, v{t3}")
        A(f"v_lshlrev_b32 v{t2}, 4, v{t2}")
        A(f"v_lshl_or_b32 v{dst}, v{t1}, 8, v{t2}")
        A(f"v_and_b32 v{t3}, 1, v0")
        A(f"v_lshl_or_b32 v{dst}, v{t3}, 3, v{dst}")

    def prog_addr(d, t):
        A(f"s_lshr_b32 s{d}, s{S_W}, 4")
        A(f"s_lshl_b32 s{d}, s{d}, 2")
        A(f"s_and_b32 s{t}, s{S_S}, 3")
        A(f"s_add_u32 s{d}, s{d}, s{t}")
        A(f"s_lshl_b32 s{d}, s{d}, 4")
        A(f"s_and_b32 s{t}, s{S_S}, 12")
        A(f"s_add_u32 s{d}, s{d}, s{t}")
        A(f"s_add_u32 s{d}, s{d}, {hex(W_PROG)}")

    def unpack(dst, src):
        A(f"v_lshlrev_b32 v{dst}, 16, v{src}")
        A(f"v_and_b32 v{dst+1}, 0xffff0000, v{src}")

    P_X, P_K, P_V, P_WQ, P_WO, P_BX, P_G, P_U, P_D, P_OUT, P_DBG, P_WS = range(16, 40, 2)
    S_KVH, S_J, S_B, S_S, S_RB, S_CH, S_W = 4, 5, 6, 7, 8, 9, 10

    A(HEADER)
    A(f"; @launch grid=(256,1,1) block=(640,1,1) lds={LDS_BYTES}")
    A('.amdgcn_target "amdgcn-amd-amdhsa--gfx950"')
    A(".text")
    A(f".globl {KNAME}")
    A(".p2align 8")
    A(f".type {KNAME},@function")
    A(f"{KNAME}:")
    A("s_cmp_ge_u32 s2, 256")
    A("s_cbranch_scc1 L_abort")
    A("s_load_dwordx16 s[16:31], s[0:1], 0")
    A("s_load_dwordx8 s[32:39], s[0:1], 64")
    if stamps:
        A("s_memrealtime s[98:99]")
        A(f"v_mov_b32 v{VST}, 0")
    if diag is not None:
        A("s_memrealtime s[90:91]")
    if pt:
        A("s_memtime s[84:85]")
    A(f"s_lshr_b32 s{S_J}, s2, 3")
    if codepf:
        A("s_getpc_b64 s[80:81]")
        A(f"s_lshl_b32 s6, s{S_J}, 9")
        A("v_subrev_u32 v2, 448, v0")
        A("v_cmp_gt_u32 vcc, 4, v2")
        A("v_lshl_add_u32 v2, v2, 7, s6")
        A(f"v_min_u32 v2, L_end-{KNAME}-64, v2")
        A("s_and_b64 exec, exec, vcc")
        A("s_cbranch_execz L_nopf")
        A("v_mov_b32 v3, 0")
        A("v_lshl_add_u64 v[2:3], v[2:3], 0, s[80:81]")
        A("global_load_dword v165, v[2:3], off")
        A("L_nopf:")
        A("s_mov_b64 exec, -1")
    A("v_lshrrev_b32 v1, 6, v0")
    A("v_and_b32 v0, 63, v0")
    A("v_readfirstlane_b32 s3, v1")
    A(f"v_mov_b32 v8, {hex(L_FLAG)}")
    A("v_lshl_add_u32 v9, v0, 2, v8")
    A("v_mov_b32 v11, 0")
    A("ds_write_b32 v9, v11")
    A(f"ds_write_b32 v9, v11 offset:{F_LANDED}")
    if rot:
        A(f"s_add_u32 s{S_KVH}, s2, {rot}")
        A(f"s_and_b32 s{S_KVH}, s{S_KVH}, 7")
    else:
        A(f"s_and_b32 s{S_KVH}, s2, 7")
    A(f"s_lshr_b32 s{S_B}, s{S_J}, 4")
    A(f"s_and_b32 s{S_S}, s{S_J}, 15")
    A(f"s_lshl_b32 s{S_W}, s{S_KVH}, 5")
    A(f"s_add_u32 s{S_W}, s{S_W}, s{S_J}")
    A(f"s_mov_b32 s15, {hex(SPIN_MAX)}")
    A("v_lshrrev_b32 v1, 4, v0")
    A("v_lshlrev_b32 v3, 1, v1")
    A("v_lshlrev_b32 v10, 4, v0")
    sO1, sO2, sN, sNc, sBase, sTt, sT, sIdx, sEv = 60, 61, 62, 63, 64, 65, 66, 68, 69
    sSmp, sPrevF, sPs, sPl, sCen = 70, 71, 72, 73, 74
    A("v_lshrrev_b32 v12, 3, v0")
    A("v_and_b32 v13, 7, v0")
    A("v_xor_b32 v13, v13, v3")
    A("v_lshlrev_b32 v13, 4, v13")
    A("v_lshl_or_b32 v4, v12, 13, v13")
    for i in range(1, 4):
        A(f"v_add_u32 v{4+i}, {i*(0x10000-1024)}, v4")
    A(f"s_lshr_b32 s{sT}, s{S_J}, 3")
    A(f"s_lshl_b32 s{sO1}, s{sT}, 10")
    A(f"s_add_u32 s{sO1}, s{sO1}, s{S_KVH}")
    A(f"s_lshl_b32 s{sO1}, s{sO1}, 3")
    A(f"s_and_b32 s{sT}, s{S_J}, 7")
    A(f"s_add_u32 s{sO1}, s{sO1}, s{sT}")
    A(f"s_lshl_b32 s{sO1}, s{sO1}, 7")
    A(f"s_mov_b32 s42, {hex(512*4096*2)}")
    A("s_mov_b32 s43, 0x20000")
    A("s_mov_b32 s46, 2048")
    A("s_mov_b32 s47, 0x20000")
    A(f"s_mov_b32 m0, {hex(L_TILE)}")
    A("s_cmp_lg_u32 s3, 0")
    if pt:
        A("s_memtime s[86:87]")
    A("s_waitcnt lgkmcnt(0)")
    if stamps:
        A(f"v_writelane_b32 v{VST}, s98, 0")
    A("s_cbranch_scc1 L_roles")

    role[0] = "ld"
    A(f"s_mov_b64 s[40:41], s[{P_WQ}:{P_WQ+1}]")
    A("s_setprio 3")
    if pt:
        A("s_memtime s[88:89]")
    A("L_ldq:")
    for i in range(4):
        A(f"buffer_load_dwordx4 v{4+i}, s[40:43], s{sO1} offen offset:{i*1024} {pW} lds")
    A("s_add_u32 m0, m0, 0x1000")
    A(f"s_add_u32 s{sO1}, s{sO1}, 0x40000")
    A(f"s_cmp_lt_u32 m0, {hex(L_TILE + 0x4000)}")
    A("s_cbranch_scc1 L_ldq")
    if pt:
        A("s_memtime s[90:91]")
    A("s_barrier")
    if pt:
        A("s_memtime s[92:93]")
        A("s_waitcnt lgkmcnt(0)")
        for i in range(4):
            A(f"s_sub_u32 s{86+2*i}, s{86+2*i}, s84")
            A(f"v_writelane_b32 v{VST}, s{86+2*i}, {56+i}")
    if fine:
        stamp(3)
    A("v_mul_u32_u24 v4, 3584, v12")
    A("v_add_u32 v4, v4, v13")
    for i in range(1, 4):
        A(f"v_add_u32 v{4+i}, {i*(8*3584-1024)}, v4")
    A(f"s_mul_i32 s{sO2}, s{sT}, {64*3584}")
    A(f"s_lshr_b32 s{sT}, s{S_W}, 3")
    A(f"s_lshl_b32 s{sT}, s{sT}, 7")
    A(f"s_add_u32 s{sO2}, s{sO2}, s{sT}")
    A(f"s_cmp_lt_u32 s{S_KVH}, {0 if noffn else 7}")
    A(f"s_cselect_b32 s42, {hex(512*1792*2)}, 0")
    A(f"s_mov_b64 s[40:41], s[{P_G}:{P_G+1}]")
    A(f"s_mov_b32 m0, {hex(L_T2)}")
    A("L_ldf2:")
    A(f"s_mov_b32 s{sO1}, s{sO2}")
    A("L_ldf:")
    for i in range(4):
        A(f"s_waitcnt vmcnt({NL0-1})")
        A(f"buffer_load_dwordx4 v{4+i}, s[40:43], s{sO1} offen offset:{i*1024} {pW} lds")
    A("s_add_u32 m0, m0, 0x1000")
    A(f"s_add_u32 s{sO1}, s{sO1}, {32*3584}")
    A("s_bitcmp1_b32 m0, 12")
    A("s_cbranch_scc1 L_ldf")
    A(f"s_mov_b64 s[40:41], s[{P_U}:{P_U+1}]")
    A("s_bitcmp1_b32 m0, 13")
    A("s_cbranch_scc1 L_ldf2")
    if fine:
        stamp(8)
    A("v_and_b32 v2, 15, v0")
    A("v_xor_b32 v2, v2, v3")
    A("v_lshlrev_b32 v2, 4, v2")
    A("v_lshl_or_b32 v4, v1, 8, v2")
    A("v_xor_b32 v5, 0x80, v4")
    A("v_xor_b32 v6, 16, v4")
    A("v_xor_b32 v7, 0x90, v4")
    A(f"s_lshl_b32 s{sBase}, s{S_B}, 3")
    A(f"s_add_u32 s{sBase}, s{sBase}, s{S_KVH}")
    A(f"s_lshl_b32 s{sBase}, s{sBase}, 4")
    A(f"s_add_u32 s{sBase}, s{sBase}, s{S_S}")
    A(f"s_lshl_b32 s{sBase}, s{sBase}, 1")
    A(f"s_add_u32 s{sBase}, s{sBase}, s{S_B}")
    A(f"s_lshl_b32 s{sBase}, s{sBase}, 1")
    A(f"s_bfe_u32 s{sT}, s{S_S}, 0x10002")
    A(f"s_add_u32 s{sBase}, s{sBase}, s{sT}")
    A(f"s_lshl_b32 s{sBase}, s{sBase}, 17")
    A(f"s_mov_b32 s{sO1}, s{sBase}")
    A("s_mov_b32 s42, 0x8000000")
    A(f"s_mov_b64 s[40:41], s[{P_K}:{P_K+1}]")
    A(f"s_mov_b32 s{sN}, 0")
    A(f"s_mov_b32 s{sTt}, 0")
    A("s_mov_b32 m0, 0")
    A(f"s_mov_b32 s{sEv}, 2")
    A(f"s_mov_b32 s{sNc}, 2")
    A(f"s_mov_b32 s{sIdx}, {idxS}")
    A(f"s_mov_b64 s[44:45], s[{P_WS}:{P_WS+1}]")
    A(f"s_mov_b32 s46, {hex(WS_BYTES)}")
    A("v_lshlrev_b32 v14, 3, v0")
    A("v_mov_b32 v22, 0")
    A(f"ds_read_b128 v[16:19], v8 offset:{F_DONE}")
    NV = len(NLS)
    extra = {
        0: [f"s_add_u32 s{sO2}, s{sO1}, 0x8000"],
        1: [f"s_or_b32 s{sTt}, s{sTt}, 0x8000", f"s_add_u32 s{sTt}, s{sTt}, 0x1000"],
        2: [f"s_and_b32 s{sTt}, s{sTt}, 0x77000"],
        3: ["s_add_u32 m0, m0, 0x1000"],
        4: [f"s_xor_b32 s{sO1}, s{sTt}, s{sBase}"],
        5: [f"s_add_u32 s{sN}, s{sN}, 1"],
        6: [f"s_add_u32 s{sT}, m0, 0x1000"],
        7: [f"s_and_b32 m0, s{sT}, 0x1ffff"],
    }

    def body(k):
        NL = NLS[k]
        pub_i = (NL - 1) % 8
        pub_d = (pub_i - NL + 1) // 8
        A(f"v_add_u32 v21, {pub_d + LB - 1}, v22")
        A(f"L_body{k}:")
        for i in range(8):
            A(f"s_waitcnt vmcnt({NL-1})")
            A(f"buffer_load_dwordx4 v{4+(i&3)}, s[40:43], s{sO1 if i < 4 else sO2} offen offset:{(i&3)*1024} {pK} lds")
            if i == 0:
                A("v_add_u32 v21, 1, v21")
            if i == pub_i:
                A(f"ds_max_i32 v9, v21 offset:{F_LANDED}")
            for e in extra.get(i, []):
                A(e)
        A(f"s_cmp_lg_u32 s{sN}, s{sEv}")
        A(f"s_cbranch_scc1 L_body{k}")

    A("L_def:")
    body(idx0)
    A("L_event:")
    if stamps:
        A(f"s_and_b32 s{sT}, s{sN}, 15"); A("s_cbranch_scc0 L_ldst")
        A("L_ldst_back:")
    A(f"s_bitcmp1_b32 s{sN}, 7")
    A("s_cbranch_scc1 L_drain")
    A(f"s_cmp_eq_u32 s{sN}, s{sNc}")
    A("s_cbranch_scc1 L_ctl")
    A("L_event2:")
    A("s_waitcnt lgkmcnt(0)")
    A("v_min3_i32 v20, v16, v17, v18")
    A("v_min_i32 v20, v20, v19")
    A(f"s_bitcmp1_b32 s{sN}, 6")
    A(f"v_readfirstlane_b32 s{sT}, v20")
    A("L_event3:")
    A(f"ds_read_b128 v[16:19], v8 offset:{F_DONE}")
    A(f"s_cselect_b64 s[40:41], s[{P_V}:{P_V+1}], s[40:41]")
    A(f"s_cmp_eq_u32 s{sT}, 0")
    A(f"s_cselect_b32 s{sEv}, {12 if wearly else 14}, 16")
    A(f"s_add_u32 s{sT}, s{sT}, s{sEv}")
    A(f"s_or_b32 s{sEv}, s{sN}, {15 if stamps else 63}")
    A(f"s_add_u32 s{sEv}, s{sEv}, 1")
    A(f"s_min_u32 s{sEv}, s{sEv}, s{sT}")
    A(f"s_min_u32 s{sEv}, s{sEv}, s{sNc}")
    A(f"v_mov_b32 v22, s{sN}")
    A(f"s_cmp_le_u32 s{sEv}, s{sN}")
    A("s_cbranch_scc1 L_full")
    A(f"s_cmp_eq_u32 s{sIdx}, 0")
    A("s_cbranch_scc1 L_def")
    A("s_branch L_var")
    A("L_full:")
    spin_guard()
    A("s_branch L_event2")
    A("L_roles:")
    A("s_cmp_lg_u32 s3, 1")
    A("s_cbranch_scc1 L_roles2")
    A(f"s_mov_b64 s[44:45], s[{P_X}:{P_X+1}]")
    A("s_setprio 2")
    A("buffer_load_dwordx4 v[16:19], v10, s[44:47], 0 offen")
    A("buffer_load_dwordx4 v[20:23], v10, s[44:47], 0 offen offset:1024")
    A("L_roles2:")
    A("s_barrier")
    A("s_cbranch_scc1 L_other")
    A("s_branch L_aux")
    A("L_drain:")

    def iss(k):
        if TRIG == 0:
            A(f"s_cmp_ge_i32 s{sIdx}, {k}")
            A("s_cselect_b64 exec, 1, 0")
            A(f"ds_write_b32 v8, v21 offset:{F_ISS}")
            A("s_mov_b64 exec, -1")
    iss(thr[0])
    stamp(1)
    for x in range(125, 129):
        A(f"v_mov_b32 v21, {x + LB}")
        if gate and x == 128 and MARK_AT:
            A("v_mov_b32 v24, 200")
            A("s_mov_b64 exec, 1")
            A(f"s_waitcnt vmcnt({MARK_AT})")
            A(f"buffer_store_dword v24, v11, s[44:47], s{sPs} offen")
            A("s_waitcnt vmcnt(1)")
        else:
            A(f"s_waitcnt vmcnt({(128 - x) * 8})")
        A(f"ds_max_i32 v9, v21 offset:{F_LANDED}")
        if x >= 126:
            iss((thr[1], thr[2], -9)[x - 126])
    if gate and not MARK_AT:
        A("v_mov_b32 v24, 200")
        A("s_mov_b64 exec, 1")
        A(f"buffer_store_dword v24, v11, s[44:47], s{sPs} offen")
    if xdev is not None:
        A("s_memrealtime s[98:99]"); A("s_lshl_b32 s97, s2, 2"); A(f"s_add_u32 s97, s97, {hex(W_STAMP)}")
        A("s_waitcnt lgkmcnt(0)")
        A("L_xd0:"); A("s_memrealtime s[94:95]"); A("s_waitcnt lgkmcnt(0)"); A("s_sub_u32 s94, s94, s90"); A("s_cmp_lt_u32 s94, 5000"); A("s_cbranch_scc1 L_xd0")
        A("v_mov_b32 v24, s98"); A("s_mov_b64 exec, 1"); A("buffer_store_dword v24, v11, s[44:47], s97 offen sc1")
    stamp(2)
    stamp_flush()
    A("s_endpgm")

    if stamps:
        A("L_ldst:")
        for n, k in ((16, 4), (32, 5), (64, 6), (96, 7)):
            l = lab("st")
            A(f"s_cmp_lg_u32 s{sN}, {n}"); A(f"s_cbranch_scc1 {l}"); stamp(k); A(f"{l}:")
        A("s_branch L_ldst_back")

    def loader_rest():
        A("L_ctl:")
        A(f"s_cmp_eq_u32 s{sN}, 2")
        A("s_cbranch_scc1 L_ctl_init")
        if curve:
            A("s_memrealtime s[98:99]")
            A(f"s_lshr_b32 s97, s{sN}, 2")
            A("s_add_u32 s97, s97, 20")
            A("s_mov_b32 s96, m0")
            A("s_mov_b32 m0, s97")
        A("s_waitcnt lgkmcnt(0)")
        if curve:
            A(f"v_writelane_b32 v{VST}, s98, m0")
            A("s_mov_b32 m0, s96")
        A("v_add_u32 v15, v12, v13")
        A(f"v_mov_b32 v24, s{sN}")
        A("v_readfirstlane_b32 s78, v23")
        A("s_mov_b64 exec, 1")
        A(f"buffer_store_dword v24, v11, s[44:47], s{sPs} offen")
        A("s_mov_b64 exec, 0xffff")
        A("v_add_u32_dpp v15, v15, v15 quad_perm:[1,0,3,2] row_mask:0xf bank_mask:0xf")
        A(f"buffer_load_dwordx2 v[12:13], v14, s[44:47], s{sPl} offen sc1")
        A(f"ds_read_b32 v23, v8 offset:{F_CTL}")
        A("v_add_u32_dpp v15, v15, v15 quad_perm:[2,3,0,1] row_mask:0xf bank_mask:0xf")
        A("v_min3_i32 v20, v16, v17, v18")
        A(f"s_add_u32 s{sNc}, s{sNc}, 4")
        A("v_add_u32_dpp v15, v15, v15 row_half_mirror row_mask:0xf bank_mask:0xf")
        A("v_min_i32 v20, v20, v19")
        A(f"s_add_u32 s{sSmp}, s{sSmp}, {4*32*int(gain*256)}")
        A("v_add_u32_dpp v15, v15, v15 row_mirror row_mask:0xf bank_mask:0xf")
        A(f"v_readfirstlane_b32 s{sT}, v20")
        A("v_readfirstlane_b32 s76, v15")
        A("s_mov_b64 exec, -1")
        A(f"s_mul_i32 s76, s76, {int(gain*256)}")
        A(f"s_sub_i32 s76, s76, s{sSmp}")
        A("s_ashr_i32 s76, s76, 13")
        if endn:
            A(f"s_cmp_ge_u32 s{sN}, {endn}")
            A(f"s_cselect_b32 s77, {endadd}, 0")
            A("s_add_i32 s76, s76, s77")
        A(f"s_max_i32 s76, s76, {-idx0}")
        A(f"s_min_i32 s76, s76, {NV-1-idx0}")
        A(f"s_cmp_eq_u32 s{sPrevF}, {2 if ctl else 3}")
        A(f"s_cselect_b32 s{sIdx}, s76, s{sIdx}")
        A(f"s_mov_b32 s{sPrevF}, s78")
        A(f"s_bitcmp1_b32 s{sN}, 6")
        A("s_branch L_event3")
        A("L_ctl_init:")
        if fine:
            stamp(9)
        prog_addr(sPs, sPl)
        A(f"s_and_b32 s{sPl}, s{sPs}, 0xffffff80")
        A(f"s_lshr_b32 s{sNc}, s{S_J}, 2")
        A(f"s_add_u32 s{sNc}, s{sNc}, s{S_J}")
        A(f"s_and_b32 s{sNc}, s{sNc}, 3")
        A(f"s_add_u32 s{sNc}, s{sNc}, 3")
        A(f"s_mov_b32 s{sPrevF}, 0")
        A(f"s_sub_u32 s{sSmp}, s{sNc}, 8")
        A(f"s_mul_i32 s{sSmp}, s{sSmp}, {32*int(gain*256)}")
        if any(gb):
            tab = sum((g + 8) << (4 * i) for i, g in enumerate(gb))
            A(f"s_and_b32 s{sCen}, s2, 7")
            A(f"s_lshl_b32 s{sCen}, s{sCen}, 2")
            A(f"s_lshr_b32 s{sCen}, {hex(tab)}, s{sCen}")
            A(f"s_and_b32 s{sCen}, s{sCen}, 15")
            A(f"s_sub_u32 s{sCen}, s{sCen}, 8")
            A(f"s_lshl_b32 s{sCen}, s{sCen}, 8")
        else:
            A(f"s_cmp_eq_u32 s{S_KVH}, 7")
            A(f"s_cselect_b32 s{sCen}, {int(boost7 * 256 * 32)}, 0")
        A(f"s_add_u32 s{sCen}, s{sCen}, {int((0.5 + bias * gain) * 256 * 32)}")
        A(f"s_sub_u32 s{sSmp}, s{sSmp}, s{sCen}")
        if boostE:
            A(f"s_getreg_b32 s{sCen}, hwreg(HW_REG_XCC_ID, 0, 1)")
            A(f"s_mul_i32 s{sCen}, s{sCen}, {int(boostE * 256 * 32)}")
            A(f"s_add_u32 s{sSmp}, s{sSmp}, s{sCen}")
        A("v_mov_b32 v12, 0"); A("v_mov_b32 v13, 0"); A("v_mov_b32 v23, 0")
        A("s_branch L_event2")
        A("L_var:")
        others = [i for i in range(NV) if i != idx0]

        def tree(lst):
            if len(lst) == 1:
                body(lst[0])
                A("s_branch L_event")
                return
            mid = len(lst) // 2
            l = lab("tr")
            A(f"s_cmp_ge_i32 s{sIdx}, {lst[mid] - idx0}")
            A(f"s_cbranch_scc1 {l}")
            tree(lst[:mid])
            A(f"{l}:")
            tree(lst[mid:])
        tree(others)

    role[0] = "aux"
    SWQ, SX, SWS, SG, SU, SOUT = 40, 44, 48, 52, 56, 60
    sO, sTag, sA, sB2, sThr, sLoc = 64, 65, 66, 67, 75, 84
    XB, TF = 64, 96
    A("L_aux:")
    A(f"s_lshr_b32 s{sB2}, s{S_J}, 3")
    srd(SWS, P_WS, WS_BYTES)
    A(f"buffer_load_dword v24, v11, s[{SWS}:{SWS+3}], 0 offen sc1")
    prog_addr(76, 77)
    A("s_mov_b64 exec, 1")
    A(f"buffer_store_dword v11, v11, s[{SWS}:{SWS+3}], s76 offen")
    A("s_mov_b64 exec, -1")
    stamp(1)
    A(f"v_add_u32 v25, {hex(L_XN)}, v10")
    A("v_bfe_u32 v15, v0, 3, 1")
    A("v_lshlrev_b32 v26, 10, v15")
    A("v_lshl_add_u32 v26, v1, 3, v26")
    A(f"v_add_u32 v26, {hex(L_XN)}, v26")
    A(f"s_lshl_b32 s{sA}, s{sB2}, 8")
    A(f"v_add_u32 v28, s{sA}, v26")
    A(f"s_and_b32 s{sA}, s{S_J}, 7")
    A(f"s_lshl_b32 s{sA}, s{sA}, 7")
    A(f"v_add_u32 v26, s{sA}, v26")
    A("v_lshrrev_b32 v29, 2, v0")
    A("v_lshlrev_b32 v29, 7, v29")
    A("v_bfe_u32 v30, v0, 3, 2")
    A("v_lshl_or_b32 v29, v30, 5, v29")
    A("v_and_b32 v30, 3, v0")
    A("v_lshl_or_b32 v29, v30, 3, v29")
    A(f"v_add_u32 v160, {hex(L_TILE)}, v29")
    for T in range(1, 4):
        A(f"v_xor_b32 v{160+T}, {32*T}, v160")
    A("v_lshlrev_b32 v27, 6, v30")
    A("v_lshl_or_b32 v27, v1, 4, v27")
    A("v_bfe_u32 v30, v0, 1, 2")
    A("v_lshlrev_b32 v31, 7, v30")
    A("v_lshl_or_b32 v31, v1, 5, v31")
    A("v_and_b32 v30, 1, v0")
    A("v_lshl_or_b32 v31, v30, 4, v31")
    A("v_lshl_or_b32 v31, v15, 9, v31")
    A(f"s_lshl_b32 s{sO}, s{S_W}, 11")
    A(f"s_add_u32 s{sO}, s{sO}, {hex(W_Q)}")
    for i in range(4):
        A(f"s_mov_b32 s{78+i}, {hex(0x07060500 + i)}")
    if True:
        A(f"buffer_load_dword v89, v31, s[{SWS}:{SWS+3}], s{sO} offen sc1")
    A("s_mov_b32 s68, 0xaaaaaaaa"); A("s_mov_b32 s69, s68")
    A("s_mov_b32 s70, 0xcccccccc"); A("s_mov_b32 s71, s70")
    A("s_mov_b32 s72, 0xf0f0f0f0"); A("s_mov_b32 s73, s72")
    A(f"s_waitcnt vmcnt(3)")
    stamp(2)
    XF = 32
    for b in range(2):
        for i in range(4):
            unpack(XF + 8 * b + 2 * i, 16 + 4 * b + i)
    for b in range(2):
        A(f"v_add_f32 v{48+b}, v{XF+8*b}, v{XF+8*b+1}")
    for i in range(2, 8):
        for b in range(2):
            A(f"v_add_f32 v{48+b}, v{48+b}, v{XF+8*b+i}")
    allreduce([48, 49], "v_add_f32", [50, 51])
    for b in range(2):
        A(f"v_mul_f32 v{48+b}, 0x3b000000, v{48+b}")
    for i in range(8):
        for b in range(2):
            A(f"v_sub_f32 v{52+b}, v{XF+8*b+i}, v{48+b}")
        for b in range(2):
            A(f"{'v_mul_f32' if i == 0 else 'v_fmac_f32'} v{54+b}, v{52+b}, v{52+b}")
    allreduce([54, 55], "v_add_f32", [50, 51])
    for b in range(2):
        A(f"v_mul_f32 v{54+b}, 0x3b000000, v{54+b}")
    A("v_cvt_pk_bf16_f32 v50, v48, v49")
    A("v_cvt_pk_bf16_f32 v51, v54, v55")
    unpack(48, 50)
    unpack(54, 51)
    A("v_add_f32 v54, 0x3727c5ac, v54"); A("v_add_f32 v55, 0x3727c5ac, v55")
    A("v_cvt_pk_bf16_f32 v51, v54, v55")
    unpack(54, 51)
    A("v_sqrt_f32 v54, v54"); A("v_sqrt_f32 v55, v55")
    nop(1)
    A("v_cvt_pk_bf16_f32 v51, v54, v55")
    unpack(54, 51)
    A("v_rcp_f32 v54, v54"); A("v_rcp_f32 v55, v55")
    for b in range(2):
        for i in range(8):
            A(f"v_sub_f32 v{XF+8*b+i}, v{XF+8*b+i}, v{48+b}")
        for i in range(4):
            A(f"v_cvt_pk_bf16_f32 v{56+4*b+i}, v{XF+8*b+2*i}, v{XF+8*b+2*i+1}")
        for i in range(4):
            unpack(XF + 8 * b + 2 * i, 56 + 4 * b + i)
        for i in range(8):
            A(f"v_mul_f32 v{XF+8*b+i}, v{XF+8*b+i}, v{54+b}")
        for i in range(4):
            A(f"v_cvt_pk_bf16_f32 v{56+4*b+i}, v{XF+8*b+2*i}, v{XF+8*b+2*i+1}")
        A(f"ds_write_b128 v25, v[{56+4*b}:{59+4*b}] offset:{1024*b}")
    A("s_waitcnt lgkmcnt(0)")
    for s in range(4):
        A(f"ds_read2_b64 v[{XB+4*s}:{XB+4*s+3}], v28 offset0:{8*s} offset1:{8*s+4}")
    for s in range(2):
        A(f"ds_read2_b64 v[{XB+16+4*s}:{XB+16+4*s+3}], v26 offset0:{8*s} offset1:{8*s+4}")
    stamp(3)
    lds_wait(F_LANDED, 2, 44, sA)
    A("s_waitcnt vmcnt(0)")
    stamp(4)

    def tile_mfma(acc_of, b_of, first):
        for hf in range(2):
            for s in range(2 * hf, 2 * hf + 2):
                for T in range(4):
                    r = TF + 16 * s + 4 * T
                    A(f"ds_read_b64_tr_b16 v[{r}:{r+1}], v{160+T} offset:{s*4096}")
                    A(f"ds_read_b64_tr_b16 v[{r+2}:{r+3}], v{160+T} offset:{s*4096+2048}")
                if s == 2 * hf:
                    A("s_waitcnt lgkmcnt(4)")
            A("s_waitcnt lgkmcnt(0)")
            for s in range(2 * hf, 2 * hf + 2):
                for T in range(4):
                    r = TF + 16 * s + 4 * T
                    d = acc_of(s, T)
                    c = "0" if first(s) else f"v[{d}:{d+3}]"
                    A(f"v_mfma_f32_16x16x32_bf16 v[{d}:{d+3}], v[{r}:{r+3}], v[{b_of(s)}:{b_of(s)+3}], {c}")

    def select_quad(D, out):
        for T in (0, 2):
            for r in range(4):
                A(f"v_cndmask_b32 v{D+4*T+r}, v{D+4*T+r}, v{D+4*T+4+r}, s[68:69]")
        for r in range(4):
            A(f"v_cndmask_b32 v{out+r}, v{D+r}, v{D+8+r}, s[70:71]")
        for r in range(4):
            A(f"v_add_u32 v{out+r}, 0x80, v{out+r}")

    def select_granule(D, out):
        for T in range(4):
            A(f"v_cndmask_b32 v{D+4*T}, v{D+4*T}, v{D+2+4*T}, s[68:69]")
            A(f"v_cndmask_b32 v{D+1+4*T}, v{D+1+4*T}, v{D+3+4*T}, s[68:69]")
        for T in (0, 2):
            A(f"v_cndmask_b32 v{D+4*T}, v{D+4*T}, v{D+4+4*T}, s[70:71]")
            A(f"v_cndmask_b32 v{D+1+4*T}, v{D+1+4*T}, v{D+5+4*T}, s[70:71]")
        A(f"v_cndmask_b32 v{out}, v{D}, v{D+8}, s[72:73]")
        A(f"v_cndmask_b32 v{out+2}, v{D+1}, v{D+9}, s[72:73]")

    def put_tag(dst, src, vtag):
        for r in range(4):
            A(f"v_perm_b32 v{dst+r}, v{src+r}, v{vtag}, s{78+r}")

    tile_mfma(lambda s, T: 32 + 4 * T, lambda s: XB + 4 * s, lambda s: s == 0)
    make_tag(sTag, 24)
    local_tag(sA, sTag)
    A(f"v_mov_b32 v17, s{sA}")
    A(f"v_mov_b32 v19, s{sA}")
    select_granule(32, 16)
    A(f"buffer_store_dwordx4 v[16:19], v31, s[{SWS}:{SWS+3}], s{sO} offen")
    A("v_mov_b32 v88, 1")
    A("s_setprio 0")
    A(f"s_add_u32 s{sO}, s{sO}, {hex(W_QB - W_Q)}")
    A(f"v_mov_b32 v17, s{sTag}")
    A(f"v_mov_b32 v19, s{sTag}")
    A(f"s_mov_b32 s{sB2}, 1")
    stamp(5)
    for T in range(4):
        A(f"v_add_u32 v{160+T}, {L_T2 - L_TILE}, v{160+T}")
    lds_wait(F_LANDED, 4, 44, sA)
    tile_mfma(lambda s, T: 32 + 16 * (s >> 1) + 4 * T, lambda s: XB + 16 + 4 * (s & 1), lambda s: s in (0, 2))
    lds_set(8, F_TILE, 88)
    nop(2)
    for i in range(16):
        A(f"v_cndmask_b32 v{32+i}, v{32+i}, v{48+i}, s[72:73]")
    select_quad(32, 92)
    put_tag(92, 92, 17)
    stamp(6)
    A("L_qserve:")
    A(f"ds_read_b128 v[44:47], v8 offset:{F_QRDY}")
    A(f"ds_read_b32 v48, v8 offset:{F_BREQ}")
    spin_guard()
    A("s_waitcnt lgkmcnt(0)")
    A("v_min3_i32 v44, v44, v45, v46")
    A("v_min_i32 v44, v44, v47")
    A(f"v_readfirstlane_b32 s{sA}, v48")
    A(f"v_readfirstlane_b32 s{sLoc}, v44")
    A(f"s_and_b32 s{sA}, s{sA}, s{sB2}")
    A("s_cbranch_scc0 L_qnob")
    A(f"buffer_store_dwordx4 v[16:19], v31, s[{SWS}:{SWS+3}], s{sO} offen sc1")
    A(f"s_mov_b32 s{sB2}, 0")
    A("L_qnob:")
    A(f"s_cmp_eq_u32 s{sLoc}, 0")
    A("s_cbranch_scc1 L_qserve")
    A(f"s_cmp_ge_u32 s{S_KVH}, {0 if noffn else 7}")
    A("s_cbranch_scc1 L_noffn1")
    A("v_lshl_or_b32 v30, v15, 8, v27")
    A("v_bfe_u32 v29, v0, 2, 1")
    A("v_lshl_or_b32 v30, v29, 9, v30")
    A(f"s_lshl_b32 s{sO}, s{S_W}, 11")
    A(f"s_add_u32 s{sO}, s{sO}, {hex(W_F)}")
    store_by(sLoc, [f"buffer_store_dwordx4 v[92:95], v30, s[{SWS}:{SWS+3}], s{sO} offen"])
    A("L_noffn1:")
    stamp(7)
    stamp_flush()
    A("s_endpgm")

    role[0] = "cons"
    SWS = 48
    sC, sLd, sTg, sL2E, sSc, sA, sB2, sTag, sLoc = 60, 61, 62, 63, 64, 65, 66, 67, 84
    AV, VDN, AK = 6, 9, 144
    S, O, KF, Q, SV = 16, 24, 32, 64, 128
    VF, PF = 32, 40
    vM, vNM, vL, vT, vT2, vPW, vPR = 152, 153, 154, 155, 156, 157, 158
    A("L_other:")
    srd(SWS, P_WS, WS_BYTES)
    A(f"buffer_load_dword v164, v11, s[{SWS}:{SWS+3}], 0 offen sc1")
    A("s_cmp_ge_u32 s3, 6")
    A("s_cbranch_scc1 L_tail")
    if pads:
        A("s_mov_b64 exec, 0")
        A("s_branch L_vlast")
        A("L_cpad:")
        A("s_mov_b64 exec, -1")
    A("s_setprio 1")
    A(f"s_sub_u32 s{sC}, s3, 2")
    A(f"s_lshl_b32 s69, s{S_KVH}, 4")
    A(f"s_add_u32 s69, s69, s{sC}")
    A("s_lshl_b32 s69, s69, 3")
    A(f"s_add_u32 s69, s69, s{S_B}")
    A("s_lshl_b32 s69, s69, 9")
    A(f"s_add_u32 s69, s69, {hex(W_Q)}")
    for kb in range(1, 4):
        A(f"s_add_u32 s{69+kb}, s69, {kb*0x4000}")
    A("v_lshrrev_b32 v12, 5, v0")
    A("v_and_b32 v165, 0x1f0, v10")
    A("v_lshl_or_b32 v165, v12, 11, v165")
    A(f"s_mov_b32 s{sL2E}, {hex(LOG2E)}")
    A(f"s_mov_b32 s{sSc}, {hex(SCALE)}")
    A("v_and_b32 v15, 3, v0")
    A("v_lshlrev_b32 v160, 9, v15")
    A(f"v_bfe_u32 v{vT2}, v0, 2, 1")
    A(f"v_lshl_or_b32 v160, v{vT2}, 6, v160")
    A("v_lshl_or_b32 v160, v1, 4, v160")
    A(f"s_lshl_b32 s68, s{S_W}, 11")
    A(f"s_lshl_b32 s{sA}, s{sC}, 7")
    A(f"s_add_u32 s68, s68, s{sA}")
    A(f"s_add_u32 s68, s68, {hex(W_O)}")
    A(f"s_lshl_b32 s73, s{S_KVH}, 2")
    A(f"s_add_u32 s73, s73, s{sC}")
    A("s_lshl_b32 s73, s73, 1")
    A(f"s_add_u32 s73, s73, s{S_B}")
    A("s_lshl_b32 s73, s73, 2")
    A(f"s_and_b32 s{sA}, s{S_S}, 3")
    A(f"s_add_u32 s73, s73, s{sA}")
    A("s_lshl_b32 s73, s73, 2")
    A(f"s_lshr_b32 s{sA}, s{S_S}, 2")
    A(f"s_add_u32 s73, s73, s{sA}")
    A("s_lshl_b32 s73, s73, 4")
    A(f"s_add_u32 s73, s73, {hex(W_ML)}")
    A(f"v_lshlrev_b32 v{vPR}, 4, v15")
    A(f"v_lshl_or_b32 v{vPR}, v1, 6, v{vPR}")
    A(f"v_add_u32 v{vPR}, {hex(L_TILE)}, v{vPR}")
    A(f"v_bfe_u32 v{vT}, v0, 2, 2")
    A(f"v_lshl_add_u32 v{vPW}, v{vT}, 10, v{vPR}")
    A(f"s_lshl_b32 s{sA}, s{sC}, 8")
    A(f"v_add_u32 v{vPW}, s{sA}, v{vPW}")
    A(f"s_add_u32 s{sA}, s{sA}, {hex(L_Q)}")
    A(f"v_lshl_add_u32 v2, v0, 2, s{sA}")
    A("v_lshlrev_b32 v3, 8, v15")
    A("v_lshl_add_u32 v3, v1, 6, v3")
    A(f"v_add_u32 v3, {hex(L_Q)}, v3")
    A("v_lshl_add_u32 v4, v15, 4, v8")
    A(f"s_lshl_b32 s{sA}, s{sC}, 2")
    A(f"v_add_u32 v5, s{sA}, v4")
    A(f"v_add_u32 v{VDN}, s{sA}, v8")
    A("v_and_b32 v14, 15, v0")
    A("v_and_b32 v12, 7, v0")
    A("v_lshlrev_b32 v12, 1, v12")
    A("v_bfe_u32 v13, v0, 3, 1")
    A("v_or_b32 v12, v12, v13")
    A("v_lshlrev_b32 v13, 2, v1")
    A("v_xor_b32 v12, v12, v13")
    A("v_lshlrev_b32 v12, 4, v12")
    A("v_lshl_or_b32 v12, v14, 8, v12")
    A(f"s_lshl_b32 s{sA}, s{sC}, 13")
    A(f"v_or_b32 v{AK}, s{sA}, v12")
    for s in range(1, 8):
        A(f"v_xor_b32 v{AK+s}, {hex(16*(s&3) + 0x10000*(s>>2))}, v{AK}")
    vaddr_T0(13, 12, 14, 15)
    A(f"s_lshl_b32 s{sA}, s{sC}, 6")
    A(f"v_xor_b32 v{AV}, s{sA}, v13")
    A(f"v_xor_b32 v{AV+1}, 32, v{AV}")
    A(f"s_mov_b32 s{sLd}, 0")
    A(f"s_sub_u32 s{sTg}, s{sC}, 3")
    A(f"v_mov_b32 v{vM}, 0xff800000")
    A(f"v_mov_b32 v{vL}, 0")
    for i in range(8):
        A(f"v_mov_b32 v{O+i}, 0")
    A("s_mov_b32 s76, 0x000f000f"); A("s_mov_b32 s77, s76")
    for g in range(1, 4):
        A(f"s_lshl_b64 s[{76+2*g}:{77+2*g}], s[76:77], {4*g}")
    A("v_mov_b32 v159, 1")
    if diag is not None:
        A("s_mov_b32 s88, s90")
    SX, SOUT = 40, 44
    vYA = 153
    srd(SX, P_X, 2048)
    srd(SOUT, P_OUT, 2048)
    A(f"s_lshl_b32 s85, s{S_J}, 2")
    A(f"s_add_u32 s85, s85, s{sC}")
    A("s_lshl_b32 s85, s85, 4")
    A("v_and_b32 v12, 1, v0")
    A("v_bfe_u32 v13, v0, 2, 2")
    A("v_lshlrev_b32 v13, 1, v13")
    A("v_lshl_or_b32 v161, v12, 3, v13")
    A("v_lshrrev_b32 v13, 1, v0")
    A("v_lshlrev_b32 v13, 11, v13")
    A(f"v_lshl_or_b32 v{vYA}, v12, 4, v13")
    A("v_lshrrev_b32 v163, 3, v0")
    A("v_lshlrev_b32 v163, 7, v163")
    A(f"s_lshl_b32 s52, s{S_B}, 16")
    A("s_and_b32 s53, s85, 0x3ff")
    A("s_lshl_b32 s53, s53, 1")
    A("s_add_u32 s52, s52, s53")
    A(f"s_add_u32 s52, s52, {hex(W_Y)}")
    A(f"s_mov_b32 s59, {hex(W_IND)}")
    A(f"s_cmp_lg_u32 s{S_KVH}, {FX}")
    A("s_cbranch_scc1 L_nofin")
    A(f"buffer_load_ushort v162, v161, s[{SX}:{SX+3}], s85 offen")
    A("s_mov_b64 exec, 1")
    A(f"buffer_store_short v11, v161, s[{SOUT}:{SOUT+3}], s85 offen")
    A("s_mov_b64 exec, -1")
    A("L_nofin:")
    A("s_waitcnt vmcnt(0)")
    make_tag(sTag, 164)
    local_tag(74, sTag)
    for i in range(4):
        A(f"s_bfe_u32 s{54+i}, s{sTag}, {hex(0x80000 + 8*i)}")
    A("v_lshlrev_b32 v162, 16, v162")
    A(f"v_mov_b32 v164, s{sTag}")
    stamp(1)
    lds_wait(F_TILE, 1, vT, sA)
    stamp(5)
    A("s_mov_b64 vcc, -1")
    A(f"s_mov_b32 s{sB2}, 0")
    A("L_qpoll:")
    A(f"s_add_u32 s{sB2}, s{sB2}, 1")
    A(f"s_and_b32 s{sA}, s{sB2}, {(QB_EVERY - 1) if fast else 0}")
    A(f"s_cselect_b32 s{sA}, 0, {hex(W_QB - W_Q)}")
    A(f"s_cselect_b32 s75, s74, s{sTag}")
    A("s_cselect_b64 exec, 0, 1")
    A(f"ds_write_b32 v8, v159 offset:{F_BREQ}")
    A("s_mov_b64 exec, vcc")
    A(f"v_add_u32 v15, s{sA}, v165")
    for kb in range(4):
        A(f"buffer_load_dwordx4 v[{KF+4*kb}:{KF+4*kb+3}], v15, s[{SWS}:{SWS+3}], s{69+kb} offen sc1")
    spin_guard()
    A("s_waitcnt vmcnt(0)")
    tag_check(KF, 8, 75, vT, vT2)
    A("s_cbranch_vccnz L_qpoll")
    A("s_mov_b64 exec, -1")
    stamp(6)
    for kb in range(1, 4):
        A(f"v_add_f32 v{KF}, v{KF}, v{KF+4*kb}")
        A(f"v_add_f32 v{KF+2}, v{KF+2}, v{KF+4*kb+2}")
    A(f"v_cvt_pk_bf16_f32 v{vT}, v{KF}, v{KF+2}")
    A(f"ds_write_b32 v2, v{vT}")
    A(f"s_cmp_lt_u32 s{sB2}, {QB_EVERY if fast else 0}")
    A(f"s_cselect_b32 s{sA}, 2, 1")
    if mix:
        A(f"s_and_b32 s{sB2}, s{S_J}, {mix}")
        A(f"s_cselect_b32 s{sA}, 1, s{sA}")
    A(f"v_mov_b32 v{vT2}, s{sA}")
    lds_set(VDN, F_QRDY, vT2)
    lds_wait4(F_QRDY, 1, S, [f"ds_read_b128 v[{KF+4*s}:{KF+4*s+3}], v3 offset:{16*s}" for s in range(4)])
    A(f"v_readfirstlane_b32 s{sLoc}, v{S}")
    lds_set(8, F_CTL, S)
    if wearly:
        lds_wait4(F_WRDY, 2, S)
    for g in range(4):
        for i in range(16):
            A(f"v_cndmask_b32 v{Q+16*g+i}, 0, v{KF+i}, s[{76+2*g}:{77+2*g}]")
    stamp(2)

    def wait_landed(tgt):
        lo, ls = lab("lo"), lab("ls")
        A(f"s_cmp_ge_i32 s{sLd}, {tgt}")
        A(f"s_cbranch_scc1 {lo}")
        A(f"{ls}:")
        if slpc:
            A(f"s_sleep {slpc}")
        A(f"ds_read_b32 v{vT}, v8 offset:{F_LANDED}")
        spin_guard()
        A("s_waitcnt lgkmcnt(0)")
        A(f"v_readfirstlane_b32 s{sLd}, v{vT}")
        A(f"s_sub_u32 s{sLd}, s{sLd}, {LB}")
        A(f"s_cmp_ge_i32 s{sLd}, {tgt}")
        A(f"s_cbranch_scc0 {ls}")
        A(f"{lo}:")

    A("L_kwin:")
    for g in range(4):
        A(f"s_add_u32 s{sTg}, s{sTg}, 4")
        wait_landed(f"s{sTg}")
        for t in range(2):
            for s in range(4):
                r = KF + 16 * t + 4 * s
                A(f"ds_read_b128 v[{r}:{r+3}], v{AK + 4*(g>>1) + s} offset:{(g&1)*32768 + t*4096}")
        A(f"s_add_u32 s{sA}, s{sTg}, 3")
        A(f"s_min_u32 s{sA}, s{sA}, 64")
        A(f"v_mov_b32 v{vT2}, s{sA}")
        for t in range(2):
            A(f"s_waitcnt lgkmcnt({4 if t == 0 else 0})")
            if t == 1:
                lds_set(VDN, F_DONE, vT2)
            for s in range(4):
                r = KF + 16 * t + 4 * s
                c = "0" if (g == 0 and s == 0) else f"v[{S+4*t}:{S+4*t+3}]"
                q = Q + 16 * g + 4 * s
                A(f"v_mfma_f32_16x16x32_bf16 v[{S+4*t}:{S+4*t+3}], v[{r}:{r+3}], v[{q}:{q+3}], {c}")
    for i in range(12):
        A(f"v_mov_b32 v{SV+i}, v{SV+4+i}")
    for i in range(4):
        A(f"v_cvt_pk_bf16_f32 v{SV+12+i}, v{S+2*i}, v{S+2*i+1}")
    for i in range(4):
        unpack(S + 2 * i, SV + 12 + i)
    for i in range(8):
        A(f"v_mul_f32 v{S+i}, s{sSc}, v{S+i}")
    for i in range(4):
        A(f"v_cvt_pk_bf16_f32 v{SV+12+i}, v{S+2*i}, v{S+2*i+1}")
    A(f"v_max3_f32 v{vM}, v{vM}, v{S}, v{S+1}")
    A(f"v_max3_f32 v{vT}, v{S+2}, v{S+3}, v{S+4}")
    A(f"v_max3_f32 v{vM}, v{vM}, v{S+5}, v{S+6}")
    A(f"v_max3_f32 v{vM}, v{vM}, v{vT}, v{S+7}")
    A(f"s_cmp_lt_u32 s{sTg}, 60")
    A("s_cbranch_scc1 L_kwin")
    stamp(3)
    allreduce([vM], "v_max_f32", [vT], steps=("r4", "r8", "p16", "p32"))
    A("s_mov_b64 exec, 15")
    A(f"ds_write_b32 v5, v{vM} offset:{L_M - L_FLAG}")
    lds_set(VDN, F_MRDY, 159)
    lds_wait4(F_HRDY, 1, S)
    lds_wait4(F_MRDY, 1, S, [f"ds_read_b128 v[{S+4}:{S+7}], v4 offset:{L_M - L_FLAG}"])
    A(f"v_max3_f32 v{vM}, v{S+4}, v{S+5}, v{S+6}")
    A(f"v_max_f32 v{vM}, v{vM}, v{S+7}")
    A(f"v_cvt_pk_bf16_f32 v{vM}, v{vM}, v{vM}")
    A(f"v_and_b32 v{vM}, 0xffff0000, v{vM}")
    A(f"v_mul_f32 v{vM}, s{sL2E}, v{vM}")
    A(f"s_mov_b32 s{sA}, 4")
    A("L_pwin:")
    for i in range(4):
        unpack(S + 2 * i, SV + i)
    for i in range(8):
        A(f"v_fma_f32 v{S+i}, v{S+i}, s{sL2E}, -v{vM}")
    for i in range(8):
        A(f"v_exp_f32 v{S+i}, v{S+i}")
    for i in range(12):
        A(f"v_mov_b32 v{SV+i}, v{SV+4+i}")
    A("s_waitcnt lgkmcnt(0)")
    for i in range(4):
        A(f"v_cvt_pk_bf16_f32 v{KF+i}, v{S+2*i}, v{S+2*i+1}")
    A(f"ds_write_b128 v{vPW}, v[{KF}:{KF+3}]")
    for i in range(8):
        A(f"v_add_f32 v{vL}, v{vL}, v{S+i}")
    A(f"v_add_u32 v{vPW}, 0x1000, v{vPW}")
    A(f"s_sub_u32 s{sA}, s{sA}, 1")
    A(f"s_cmp_lg_u32 s{sA}, 0")
    A("s_cbranch_scc1 L_pwin")
    allreduce([vL], "v_add_f32", [vT], steps=("r4", "r8", "p16", "p32"))
    A("s_mov_b64 exec, 15")
    A(f"ds_write_b32 v5, v{vL} offset:{L_L - L_FLAG}")
    lds_set(VDN, F_PRDY, 159)
    lds_wait4(F_PRDY, 1, S, [f"ds_read_b128 v[{S+4}:{S+7}], v4 offset:{L_L - L_FLAG}"])
    A(f"v_add_f32 v{S+4}, v{S+4}, v{S+5}")
    A(f"v_add_f32 v{S+6}, v{S+6}, v{S+7}")
    A(f"v_mov_b32 v{S}, v{vM}")
    A(f"v_mov_b32 v{S+1}, s{sTag}")
    A(f"v_add_f32 v{S+2}, v{S+4}, v{S+6}")
    A(f"v_mov_b32 v{S+3}, s{sTag}")
    A(f"s_lshl_b64 exec, 1, s{sC}")
    store_by(sLoc, [f"buffer_store_dwordx4 v[{S}:{S+3}], v11, s[{SWS}:{SWS+3}], s73 offen"])
    A("s_mov_b64 exec, -1")
    A(f"s_mov_b32 s{sTg}, 64")
    stamp(7)
    def v_reads(g):
        return [f"ds_read_b64_tr_b16 v[{VF+4*tt+2*h}:{VF+4*tt+2*h+1}], v{AV+tt} offset:{g*8192 + h*4096}" for tt in range(2) for h in range(2)]

    def v_mfma(tt):
        A(f"v_mfma_f32_16x16x32_bf16 v[{O+4*tt}:{O+4*tt+3}], v[{VF+4*tt}:{VF+4*tt+3}], v[{PF}:{PF+3}], v[{O+4*tt}:{O+4*tt+3}]")

    A("L_vwin:")
    for g in range(4):
        A(f"ds_read_b128 v[{PF}:{PF+3}], v{vPR} offset:{g*256}")
        A(f"s_add_u32 s{sTg}, s{sTg}, 1")
        if g == 3:
            A(f"s_cmp_eq_u32 s{sTg}, 128")
            A("s_cbranch_scc1 L_vlast")
        wait_landed(f"s{sTg}")
        for r in v_reads(g):
            A(r)
        A(f"v_mov_b32 v{vT2}, s{sTg}")
        for tt in range(2):
            A(f"s_waitcnt lgkmcnt({2 if tt == 0 else 0})")
            v_mfma(tt)
        lds_set(VDN, F_DONE, vT2)
    for tt in range(2):
        A(f"v_add_u32 v{AV+tt}, 0x8000, v{AV+tt}")
        A(f"v_and_b32 v{AV+tt}, 0x1ffff, v{AV+tt}")
    A(f"v_add_u32 v{vPR}, 0x400, v{vPR}")
    A(f"s_cmp_lg_u32 s{sTg}, 120")
    A("s_cbranch_scc1 L_vwin")
    lds_wait4(F_HRDY, 2, S)
    A("s_branch L_vwin")
    A(".p2align 6")
    A("L_vlast:")
    if pads:
        A("s_cbranch_execz L_cpad")
    if spec:
        A("L_vl2:")
        A(f"ds_read_b32 v{vT}, v8 offset:{F_LANDED}")
        for r in v_reads(3):
            A(r)
        spin_guard()
        A("s_waitcnt lgkmcnt(4)")
        A(f"v_cmp_gt_i32 vcc, {128 + LB}, v{vT}")
        A("s_cbranch_vccnz L_vl2")
    else:
        wait_landed(128)
        for r in v_reads(3):
            A(r)
    for tt in range(2):
        A(f"s_waitcnt lgkmcnt({2 if tt == 0 else 0})")
        v_mfma(tt)
    A(f"s_cmp_eq_u32 s{sLoc}, 2")
    A("s_mov_b32 s86, 0x00ff00ff")
    A("s_mov_b32 s87, s86")
    nop(5)
    for i in range(4):
        A(f"v_mov_b32_dpp v{O+i}, v{O+4+i} row_shr:4 row_mask:0xf bank_mask:0x2")
    A("s_mov_b64 exec, s[86:87]")
    A("s_cbranch_scc0 L_o_far")
    A(f"buffer_store_dwordx4 v[{O}:{O+3}], v160, s[{SWS}:{SWS+3}], s68 offen")
    A("L_o_pub:")
    if opre == 3:
        A(f"v_mov_b32 v{vT2}, 128")
        lds_set(VDN, F_DONE, vT2)
    stamp(4)
    if early:
        A(f"s_cmp_lg_u32 s{sC}, 0")
        A("s_cbranch_scc1 L_o_end")
        A("s_mov_b64 exec, 1")
        A(f"buffer_store_dword v164, v11, s[{SWS}:{SWS+3}], s58 offen")
        A("s_mov_b64 exec, 0xff")
        A(f"buffer_load_dwordx4 v[{S}:{S+3}], v10, s[{SWS}:{SWS+3}], s53 offen sc1")
        A(f"s_lshl_b32 s{sA}, s{S_KVH}, 7")
        A(f"s_add_u32 s{sA}, s{sA}, s59")
        A("s_waitcnt vmcnt(0)")
        A(f"v_min3_u32 v{vT}, v{S}, v{S+1}, v{S+2}")
        A(f"v_max3_u32 v{vT2}, v{S}, v{S+1}, v{S+2}")
        A(f"v_min_u32 v{vT}, v{vT}, v{S+3}")
        A(f"v_max_u32 v{vT2}, v{vT2}, v{S+3}")
        A(f"v_cmp_ne_u32 vcc, v164, v{vT}")
        A(f"v_cmp_ne_u32 s[86:87], v164, v{vT2}")
        A("s_or_b64 vcc, vcc, s[86:87]")
        A("s_cbranch_scc1 L_o_end")
        A("s_mov_b64 exec, 1")
        A(f"buffer_store_dword v164, v11, s[{SWS}:{SWS+3}], s{sA} offen sc1")
        stamp(12)
    A("L_o_end:")
    A(f"s_cmp_lg_u32 s{S_KVH}, {FX}")
    A("s_cbranch_scc1 L_c_end")
    A("s_mov_b64 exec, -1")
    lds_wait4(F_ORDY, 1, S)
    stamp(9)
    YG = 32
    A("s_mov_b64 s[86:87], -1")
    if not ind:
        A("s_branch L_ypoll")
    A("v_not_b32 v13, v164")
    A("L_ipoll:")
    if not yall:
        A("s_mov_b64 exec, s[86:87]")
    A(f"buffer_load_dword v13, v163, s[{SWS}:{SWS+3}], s59 offen sc1")
    spin_guard()
    A(f"s_waitcnt vmcnt({icap})")
    if yall:
        A("v_cmp_ne_u32 vcc, v164, v13")
        A("s_cbranch_vccnz L_ipoll")
        stamp(13)
        A("L_ypoll:")
    else:
        A("v_cmp_eq_u32 vcc, v164, v13")
        A("s_and_b64 exec, exec, vcc")
        A("s_cbranch_execz L_ipoll")
    A(f"buffer_load_dwordx4 v[{YG}:{YG+3}], v{vYA}, s[{SWS}:{SWS+3}], s52 offen sc1")
    if ycopy:
        A("s_or_b32 s52, s52, 0x20800")
    spin_guard()
    A("s_waitcnt vmcnt(0)")
    for k in range(4):
        A(f"v_xor_b32 v{YG+k}, s{54+k}, v{YG+k}")
    A(f"v_or3_b32 v{vT}, v{YG}, v{YG+1}, v{YG+2}")
    A(f"v_or_b32 v{vT}, v{vT}, v{YG+3}")
    A(f"v_and_b32 v{vT}, 0xff, v{vT}")
    if yall:
        A(f"v_cmp_ne_u32 vcc, 0, v{vT}")
        A("s_and_b64 exec, exec, vcc")
        A("s_cbranch_scc1 L_ypoll")
    else:
        A(f"v_cmp_eq_u32 vcc, 0, v{vT}")
        A("s_andn2_b64 s[86:87], s[86:87], vcc")
        A("s_cbranch_scc1 L_ipoll")
    A("s_mov_b64 exec, -1")
    stamp(10)
    A(f"v_add_f32_dpp v{YG+4}, v{YG}, v{YG} row_ror:12 row_mask:0xf bank_mask:0x5")
    A(f"v_add_f32_dpp v{YG+5}, v{YG+2}, v{YG+2} row_ror:12 row_mask:0xf bank_mask:0x5")
    nop(1)
    A(f"v_add_f32_dpp v{YG+4}, v{YG+1}, v{YG+1} row_ror:4 row_mask:0xf bank_mask:0xa")
    A(f"v_add_f32_dpp v{YG+5}, v{YG+3}, v{YG+3} row_ror:4 row_mask:0xf bank_mask:0xa")
    nop(1)
    A(f"v_add_f32_dpp v{YG+6}, v{YG+4}, v{YG+4} row_ror:8 row_mask:0xf bank_mask:0x3")
    nop(2)
    A(f"v_add_f32_dpp v{YG+6}, v{YG+5}, v{YG+5} row_ror:8 row_mask:0xf bank_mask:0xc")
    allreduce([YG + 6], "v_add_f32", [YG + 7], steps=("x2", "p16", "p32"))
    A(f"v_add_f32 v{YG+6}, v{YG+6}, v162")
    A("s_mov_b64 exec, 0x3333")
    A(f"v_cvt_pk_bf16_f32 v{YG+6}, v{YG+6}, v{YG+6}")
    A(f"buffer_store_short v{YG+6}, v161, s[{SOUT}:{SOUT+3}], s85 offen")
    A("s_cmp_lg_u32 s85, 0")
    A("s_cbranch_scc1 L_c_st")
    A("s_mov_b64 exec, 1")
    A(f"buffer_store_dword v164, v11, s[{SWS}:{SWS+3}], 0 offen")
    A("L_c_st:")
    stamp(11)
    A("L_c_end:")
    stamp_flush()
    if diag is not None:
        A("s_sub_u32 s88, s88, s90")
        if amp:
            A(f"s_sub_i32 s88, s88, {amp}"); A("s_max_i32 s88, s88, 0"); A("s_mul_i32 s88, s88, 10")
        if xdev is not None:
            A("s_cmp_lg_u32 s2, 1"); A("s_cbranch_scc1 L_abort")
            A("L_xd1:"); A("s_memrealtime s[86:87]"); A("s_waitcnt lgkmcnt(0)"); A("s_sub_u32 s86, s86, s90"); A("s_cmp_lt_u32 s86, 7000"); A("s_cbranch_scc1 L_xd1")
            A("s_mov_b64 exec, -1"); A(f"s_mov_b32 s87, {hex(W_STAMP)}"); A("v_lshlrev_b32 v44, 2, v0")
            for i in range(4): A(f"buffer_load_dword v{45+i}, v44, s[{SWS}:{SWS+3}], s87 offen offset:{256*i} sc1")
            A("s_waitcnt vmcnt(0)")
            for i in range(4): A(f"v_subrev_u32 v{45+i}, s90, v{45+i}")
            A("v_max3_i32 v52, v45, v46, v47"); A("v_max_i32 v52, v52, v48")
            A("v_add_u32 v45, v45, v46"); A("v_add_u32 v47, v47, v48"); A("v_add_u32 v45, v45, v47")
            allreduce([45], "v_add_u32", [50], steps=("r8", "p16", "p32"))
            A("v_mov_b32 v46, v45"); A("v_mov_b32 v51, v45")
            allreduce([46], "v_add_u32", [50], steps=("x1", "x2", "hm"))
            allreduce([51], "v_max_i32", [50], steps=("x1", "x2", "hm"))
            allreduce([52], "v_max_i32", [50])
            nop(1)
            if xdev < 8: A(f"v_readlane_b32 s86, v45, {xdev}")
            elif xdev == 8: A("v_readlane_b32 s86, v51, 0")
            else: A("v_readlane_b32 s86, v52, 0"); A("s_lshl_b32 s86, s86, 5")
            A("v_readlane_b32 s87, v46, 0")
            A("s_lshl_b32 s86, s86, 3"); A("s_sub_i32 s86, s86, s87"); A("s_mul_i32 s86, s86, 20"); A("s_ashr_i32 s88, s86, 8")
        A("s_add_u32 s88, s88, 10000")
        A("L_diag:")
        A("s_memrealtime s[86:87]")
        A("s_waitcnt lgkmcnt(0)")
        A("s_sub_u32 s86, s86, s90")
        A("s_cmp_lt_u32 s86, s88")
        A("s_cbranch_scc1 L_diag")
    A("s_endpgm")
    A("L_o_far:")
    A(f"buffer_store_dwordx4 v[{O}:{O+3}], v160, s[{SWS}:{SWS+3}], s68 offen sc1")
    A("s_branch L_o_pub")

    role[0] = "tail"
    SWO, SD = 40, 44
    sTw, sA, sB2, sTag, sWo, sDo, sO = 60, 65, 66, 67, 63, 64, 61
    GA, GB, WF, DF, HB, Y, R, W = 64, 80, 96, 112, 120, 128, 132, 136
    A("L_tail:")
    if pads:
        A("s_mov_b64 exec, 0")
        A("s_branch L_tend")
        A("L_tpad:")
        A("s_mov_b64 exec, -1")
    A(f"s_sub_u32 s{sTw}, s3, 6")
    srd(SWO, P_WO, 0 if nowt else 4096 * 512 * 2)
    srd(SD, P_D, 0 if nowt else 1792 * 512 * 2)
    A("v_lshl_or_b32 v4, v12, 10, v13")
    for i in range(1, 4):
        A(f"v_add_u32 v{4+i}, {i*(8192-1024)}, v4")
    A(f"s_lshr_b32 s{sO}, s{S_W}, 3")
    A(f"s_lshl_b32 s{sDo}, s{sO}, 2")
    A(f"s_add_u32 s{sDo}, s{sDo}, s{sTw}")
    A(f"s_lshl_b32 s{sWo}, s{sDo}, 15")
    A(f"s_lshl_b32 s{sDo}, s{sDo}, 14")
    A(f"s_and_b32 s{sB2}, s{S_J}, 7")
    A(f"s_lshl_b32 s{sA}, s{sB2}, 7")
    A(f"s_add_u32 s{sWo}, s{sWo}, s{sA}")
    A(f"s_add_u32 s{sDo}, s{sDo}, s{sA}")
    A(f"s_cmp_lt_u32 s{S_KVH}, 7")
    A(f"s_cselect_b32 s{sDo}, s{sDo}, 0")
    A(f"s_cselect_b32 s{SD+2}, s{SD+2}, 0")
    A(f"s_lshl_b32 s83, s{sTw}, 12")
    A(f"s_lshl_b32 s84, s{sTw}, 11")
    A(f"s_add_u32 m0, s84, {hex(L_DN)}")
    A(f"s_lshl_b32 s69, s{sO}, 9")
    if tdelay:
        lds_wait(F_LANDED, tdelay, 20, sA)
    for i in range(2):
        A(f"buffer_load_dwordx4 v{4+i}, s[{SD}:{SD+3}], s{sDo} offen offset:{i*1024} {pW} lds")
    if wearly:
        A("s_add_u32 m0, s83, 0x18000")
        nop(1)
        for i in range(4):
            A(f"buffer_load_dwordx4 v{4+i}, s[{SWO}:{SWO+3}], s{sWo} offen offset:{i*1024} {pW} lds")
    A(f"s_add_u32 s69, s69, {hex(W_ML)}")
    A("v_lshlrev_b32 v14, 7, v0")
    l1, l2, l3 = lab("tt"), lab("tt"), lab("tt")
    A(f"s_lshl_b32 s96, s{S_KVH}, 2")
    A(f"s_add_u32 s96, s96, s{sTw}")
    A("s_lshl_b32 s96, s96, 7")
    A(f"s_add_u32 s96, s96, {hex(W_MARK)}")
    A("s_mov_b64 exec, 1")
    A(f"buffer_load_dword v16, v11, s[{SWS}:{SWS+3}], s96 offen sc1")
    A(f"s_cmp_eq_u32 s{sTw}, 0")
    A(f"s_cbranch_scc1 {l3}")
    A(f"s_cmp_ge_u32 s{sTw}, 2")
    A(f"s_cbranch_scc1 {l1}")
    A(f"s_lshl_b32 s{sA}, s{S_W}, 11")
    A(f"s_add_u32 s{sA}, s{sA}, {hex(W_F)}")
    A("s_mov_b64 exec, 0xff")
    A(f"buffer_load_dword v17, v14, s[{SWS}:{SWS+3}], s{sA} offen sc1")
    A(f"s_branch {l3}")
    A(f"{l1}:")
    A(f"s_cmp_eq_u32 s{sTw}, 2")
    A(f"s_cbranch_scc0 {l2}")
    A("s_mov_b64 exec, 15")
    A(f"buffer_load_dword v17, v14, s[{SWS}:{SWS+3}], s69 offen sc1")
    A(f"s_branch {l3}")
    A(f"{l2}:")
    A("s_mov_b64 exec, 1")
    A(f"buffer_load_dword v17, v11, s[{SWO}:{SWO+3}], s{sWo} offen {pW}")
    if kvtouch:
        srd(52, P_K, 0x8000000)
        srd(56, P_V, 0x8000000)
        A(f"s_lshl_b32 s{sA}, s{S_B}, 3")
        A(f"s_add_u32 s{sA}, s{sA}, s{S_KVH}")
        A(f"s_lshl_b32 s{sA}, s{sA}, 4")
        A(f"s_add_u32 s{sA}, s{sA}, s{S_S}")
        A(f"s_lshl_b32 s{sA}, s{sA}, 19")
        A(f"buffer_load_dword v18, v11, s[52:55], s{sA} offen nt")
        A(f"buffer_load_dword v19, v11, s[56:59], s{sA} offen nt")
    A(f"{l3}:")
    A("s_mov_b64 exec, -1")
    A("v_lshrrev_b32 v144, 2, v0")
    A("v_lshlrev_b32 v144, 7, v144")
    A("v_bfe_u32 v14, v0, 3, 2")
    A(f"v_xor_b32 v14, s{sTw}, v14")
    A("v_lshl_or_b32 v144, v14, 5, v144")
    A("v_and_b32 v2, 3, v0")
    A("v_lshl_or_b32 v144, v2, 3, v144")
    A(f"v_add_u32 v145, {hex(L_DN)}, v144")
    A("v_bfe_u32 v15, v0, 3, 1")
    A("v_lshlrev_b32 v161, 6, v12")
    A("v_lshrrev_b32 v14, 5, v0")
    A("v_bfe_u32 v3, v0, 3, 2")
    A("v_and_b32 v162, 7, v0")
    A("v_lshlrev_b32 v162, 4, v162")
    A("v_lshl_or_b32 v162, v3, 11, v162")
    A("v_lshl_or_b32 v162, v14, 15, v162")
    A(f"s_lshl_b32 s70, s{S_KVH}, 7")
    A(f"s_lshr_b32 s{sA}, s{S_J}, 3")
    A(f"s_add_u32 s70, s70, s{sA}")
    A("s_lshl_b32 s70, s70, 2")
    A(f"s_add_u32 s70, s70, s{sTw}")
    A("s_lshl_b32 s70, s70, 7")
    A(f"s_add_u32 s70, s70, {hex(W_O)}")
    for i in range(1, 4):
        A(f"s_add_u32 s{70+i}, s70, {i*8192}")
    A("v_lshlrev_b32 v146, 6, v15")
    A("v_lshl_or_b32 v146, v1, 4, v146")
    A(f"v_add_u32 v146, {hex(L_OX)}, v146")
    A("v_lshlrev_b32 v147, 6, v14")
    A("v_lshl_or_b32 v147, v2, 4, v147")
    A("v_bfe_u32 v14, v0, 2, 1")
    A("v_lshl_or_b32 v147, v14, 3, v147")
    A("v_bfe_u32 v14, v0, 4, 1")
    A("v_lshl_or_b32 v147, v14, 2, v147")
    A(f"s_lshl_b32 s{sA}, s{sTw}, 7")
    A(f"v_add_u32 v147, s{sA}, v147")
    A(f"v_add_u32 v147, {hex(L_OX)}, v147")
    A("v_and_b32 v30, 7, v0")
    A("v_lshlrev_b32 v154, 4, v30")
    A("v_lshl_or_b32 v154, v12, 9, v154")
    A("v_lshlrev_b32 v30, 11, v30")
    A("v_lshl_or_b32 v30, v15, 8, v30")
    A("v_lshl_or_b32 v30, v1, 4, v30")
    A(f"s_lshl_b32 s75, s{sO}, 8")
    A(f"s_add_u32 s75, s75, s{sTw}")
    A("s_lshl_b32 s75, s75, 6")
    A(f"s_add_u32 s75, s75, {hex(W_F)}")
    A("v_lshlrev_b32 v163, 16, v15")
    A("v_lshl_or_b32 v163, v1, 4, v163")
    A(f"s_lshl_b32 s74, s{S_W}, 2")
    A(f"s_add_u32 s74, s74, s{sTw}")
    A("s_lshl_b32 s74, s74, 6")
    A(f"s_add_u32 s74, s74, {hex(W_Y)}")
    A("v_lshlrev_b32 v148, 3, v0")
    A(f"v_add_u32 v148, {hex(L_XN)}, v148")
    A(f"s_lshl_b32 s{sA}, s{sTw}, 9")
    A(f"v_add_u32 v149, s{sA}, v148")
    A(f"s_lshl_b32 s{sA}, s{sTw}, 2")
    A(f"v_add_u32 v9, s{sA}, v8")
    A("v_mov_b32 v23, 1")
    A("s_waitcnt vmcnt(0)")
    make_tag(sTag, 164)
    A("s_mov_b32 s85, 0xffffff00")
    A(f"v_mov_b32 v164, s{sTag}")
    A(f"s_lshl_b32 s78, s{S_KVH}, 7")
    A(f"s_add_u32 s78, s78, {hex(W_IND)}")
    for i in range(4):
        A(f"v_bfe_u32 v{150+i}, s{sTag}, {8*i}, 8")
    if wearly:
        lds_set(9, F_WRDY, 23)
        A("v_add_u32 v144, 0x18000, v144")
        lds_wait4(F_WRDY, 1, 16, [f"ds_read_b64_tr_b16 v[{WF+2*i}:{WF+2*i+1}], v144 offset:{2048*i}" for i in range(8)])
        A("v_mov_b32 v20, 2")
        lds_set(9, F_WRDY, 20)
    stamp(1)
    A(f"s_lshl_b32 s{sB2}, s{sTw}, 2")
    A(f"s_add_u32 s{sB2}, s{sB2}, {GATH_AT}")
    lds_wait(F_DONE, f"s{sB2}", 20, sA)
    A("v_mov_b32 v40, 0")
    A("v_mov_b32 v41, 0")
    A(f"s_cmp_ge_u32 s{S_KVH}, {0 if noffn else 7}")
    A("s_cbranch_scc1 L_noffn2")
    for i in range(4):
        A(f"s_bfe_u32 s{86+i}, s{sTag}, {hex(0x80000 + 8*i)}")
    lq = lab("fpoll")
    A(f"{lq}:")
    for i in range(2):
        A(f"buffer_load_dwordx4 v[{44+4*i}:{47+4*i}], v30, s[{SWS}:{SWS+3}], s75 offen offset:{512*i} sc1")
    spin_guard()
    A("s_waitcnt vmcnt(0)")
    byte_check(44, 8, 86, 60)
    A(f"s_cbranch_vccnz {lq}")
    allreduce([44 + i for i in range(8)], "v_add_f32", [], steps=("x1", "x2", "hm"))
    for i in range(4):
        A(f"v_cvt_pk_bf16_f32 v40, v{44+2*i}, v{45+2*i}")
        unpack(32 + 2 * i, 40)
    A("s_mov_b32 s80, 0x3d372713")
    A("s_mov_b32 s81, 0xc0135761")
    for i in range(4):
        A(f"v_mul_f32 v{44+i}, v{32+i}, v{32+i}")
        A(f"v_fma_f32 v{44+i}, v{44+i}, s80, 1.0")
        A(f"v_mul_f32 v{44+i}, v{44+i}, v{32+i}")
        A(f"v_mul_f32 v{44+i}, s81, v{44+i}")
        A(f"v_exp_f32 v{44+i}, v{44+i}")
    nop(1)
    for i in range(4):
        A(f"v_add_f32 v{44+i}, 1.0, v{44+i}")
    for i in range(4):
        A(f"v_rcp_f32 v{44+i}, v{44+i}")
    nop(1)
    for i in range(4):
        A(f"v_mul_f32 v{32+i}, v{32+i}, v{44+i}")
    for r in (32, 34):
        A(f"v_cvt_pk_bf16_f32 v40, v{r}, v{r+1}")
        unpack(r, 40)
    for i in range(4):
        A(f"v_mul_f32 v{32+i}, v{32+i}, v{36+i}")
    A("v_cvt_pk_bf16_f32 v40, v32, v33")
    A("v_cvt_pk_bf16_f32 v41, v34, v35")
    A("L_noffn2:")
    A("ds_write_b64 v149, v[40:41]")
    lds_set(9, F_HRDY, 23)
    lds_wait4(F_HRDY, 1, 28, [f"ds_read_b64 v[{HB+2*i}:{HB+2*i+1}], v148 offset:{512*i}" for i in range(4)] +
              [f"ds_read_b64_tr_b16 v[{DF+2*i}:{DF+2*i+1}], v145 offset:{2048*i}" for i in range(4)])
    A(f"v_mfma_f32_16x16x32_bf16 v[{Y}:{Y+3}], v[{DF}:{DF+3}], v[{HB}:{HB+3}], 0")
    A(f"v_mfma_f32_16x16x32_bf16 v[{Y}:{Y+3}], v[{DF+4}:{DF+7}], v[{HB+4}:{HB+7}], v[{Y}:{Y+3}]")
    stamp(2)
    lds_wait(F_DONE, ML_AT, 20, sA)
    lds_wait(F_CTL, 1, 20, 79)
    A("s_mov_b32 s62, s79")
    lq = lab("mlpoll")
    A(f"{lq}:")
    for i in range(4):
        A(f"buffer_load_dwordx4 v[{44+4*i}:{47+4*i}], v161, s[{SWS}:{SWS+3}], s69 offen offset:{16*i} sc1")
    spin_guard()
    A("s_waitcnt vmcnt(0)")
    tag_check(44, 8, sTag, 60, 61)
    A(f"s_cbranch_vccnz {lq}")
    for i in range(4):
        A(f"v_mov_b32 v{16+i}, -1")
    A(f"s_lshl_b32 s{sA}, s{S_W}, 4")
    A(f"s_add_u32 s{sA}, s{sA}, s{sTw}")
    A(f"s_lshl_b32 s{sA}, s{sA}, 7")
    A(f"s_add_u32 s{sA}, s{sA}, {hex(W_O)}")
    A("s_mov_b32 exec_hi, 0")
    store_by(62, [f"buffer_store_dwordx4 v[16:19], v154, s[{SWS}:{SWS+3}], s{sA} offen"])
    A(f"s_lshl_b32 s{sA}, s{S_J}, 2")
    A(f"s_add_u32 s{sA}, s{sA}, s96")
    A("s_mov_b64 exec, 1")
    A("v_mov_b32 v20, 2")
    A("s_waitcnt vmcnt(0)")
    store_by(62, [f"buffer_store_dword v164, v11, s[{SWS}:{SWS+3}], s{sA} offen"])
    lds_set(9, F_HRDY, 20)
    A("v_max3_f32 v26, v44, v48, v52")
    A("v_max_f32 v26, v26, v56")
    allreduce([26], "v_max_f32", [27], steps=("r8", "p16"))
    for i in range(4):
        A(f"v_sub_f32 v{W+i}, v{44+4*i}, v26")
    for i in range(4):
        A(f"v_exp_f32 v{W+i}, v{W+i}")
    A(f"v_mul_f32 v27, v{W}, v46")
    for i in range(1, 4):
        A(f"v_fmac_f32 v27, v{W+i}, v{46+4*i}")
    allreduce([27], "v_add_f32", [26], steps=("r8", "p16"))
    A("v_rcp_f32 v27, v27")
    A(f"s_add_u32 s76, s{S_J}, s{sTw}")
    if early:
        A("s_lshr_b32 s79, s79, 1")
        A("s_add_u32 s76, s76, s79")
    A("s_cmp_eq_u32 s76, 0")
    A("s_cselect_b64 s[76:77], 1, 0")
    for i in range(4):
        A(f"v_mul_f32 v{W+i}, v{W+i}, v27")
    A("s_mov_b32 m0, s83")
    A("s_mov_b32 s80, 0x00ff00ff"); A("s_mov_b32 s81, s80")
    A("s_mov_b32 s82, 0x01010101"); A("s_mov_b32 s83, s82")
    lds_wait(F_DONE, CLR_CHK, 20, sA)
    A("v_lshlrev_b32 v14, 2, v0")
    A("s_mov_b32 exec_hi, 0")
    lq = lab("cpoll")
    A(f"{lq}:")
    A(f"buffer_load_dword v17, v14, s[{SWS}:{SWS+3}], s96 offen sc1")
    spin_guard()
    A("s_waitcnt vmcnt(0)")
    A("v_cmp_ne_u32 vcc, v164, v17")
    A(f"s_cbranch_vccnz {lq}")
    A("s_mov_b32 exec_hi, -1")
    if retouch:
        lds_wait(F_DONE, retouch, 20, sA)
        A(f"s_lshl_b32 s{sA}, s{S_W}, 2")
        A(f"s_add_u32 s{sA}, s{sA}, s{sTw}")
        A(f"s_lshl_b32 s{sA}, s{sA}, 9")
        A(f"s_add_u32 s{sA}, s{sA}, {hex(W_O)}")
        A("v_lshlrev_b32 v14, 7, v0")
        A("s_mov_b64 exec, 15")
        A(f"buffer_load_dword v17, v14, s[{SWS}:{SWS+3}], s{sA} offen sc1")
        A("s_mov_b64 exec, -1")
    if gate:
        A("v_lshlrev_b32 v155, 4, v12")
        A(f"s_lshl_b32 s68, s{S_KVH}, 7")
        A(f"s_add_u32 s68, s68, {hex(W_PROG)}")
        A("s_cmp_eq_u32 s62, 2")
        A("s_cselect_b32 s62, 200, 0")
    if slp:
        lds_wait(F_DONE, 120, 20, sA)
    stamp(5)
    A("s_branch L_tend")
    A(".p2align 6")
    A("L_tend:")
    if pads:
        A("s_cbranch_execz L_tpad")
    if TRIG == 0:
        lds_wait4(F_DONE, 114, 28)
        lds_wait(F_ISS, 1, 28, sA)
    elif TRIG < 128:
        lds_wait4(F_DONE, TRIG, 28)
    else:
        lds_wait(F_LANDED, 128 + LB, 28, sA)
    A("s_setprio 2")
    stamp(3)
    for i in range(0 if wearly else 4):
        A(f"buffer_load_dwordx4 v{4+i}, s[{SWO}:{SWO+3}], s{sWo} offen offset:{i*1024} {pW} lds")

    def o_load(i):
        A(f"buffer_load_dwordx4 v[{GA+4*i}:{GA+4*i+3}], v162, s[{SWS}:{SWS+3}], s{70+i} offen sc1")

    def m_load():
        A(f"buffer_load_dwordx4 v[156:159], v155, s[{SWS}:{SWS+3}], s68 offen sc1")

    if gate:
        m_load()
        for i in range(16):
            A(f"v_mov_b32 v{GA+i}, -1")
        A("s_waitcnt vmcnt(1)")
    else:
        if opre == 2:
            lds_wait(F_LANDED, 128 + LB, 28, sA)
        elif opre == 3:
            lds_wait4(F_DONE, 128, 28)
        elif opre in (4, 5, 6):
            A(f"s_waitcnt vmcnt({opre - 3})")
        if not opre:
            A("s_waitcnt vmcnt(0)")
        for i in range(4):
            o_load(i)
        if opre:
            A("s_waitcnt vmcnt(4)")
    if not wearly:
        lds_set(9, F_WRDY, 23)
    stamp(4)
    wfrag = [f"ds_read_b64_tr_b16 v[{WF+2*i}:{WF+2*i+1}], v144 offset:{2048*i}" for i in range(8)]
    if gate:
        A("s_waitcnt vmcnt(0)")
        for i in range(4):
            A(f"v_cmp_le_u32 vcc, s62, v{156+i}")
            A("s_mov_b64 exec, vcc")
            o_load(i)
            A("s_mov_b64 exec, -1")
        m_load()
    if not wearly:
        lds_wait4(F_WRDY, 1, 28, wfrag)
    stamp(6)
    if ocap:
        A("s_waitcnt vmcnt(0)")
    A("s_branch L_ob")
    A("L_oa:")
    if gate:
        A("s_waitcnt vmcnt(0)")
        for i in range(4):
            A(f"v_cmp_le_u32 s[{52+2*i}:{53+2*i}], s62, v{156+i}")
    for i in range(4):
        if gate:
            A(f"s_and_b64 exec, s[{86+2*i}:{87+2*i}], s[{52+2*i}:{53+2*i}]")
        else:
            A(f"s_mov_b64 exec, s[{86+2*i}:{87+2*i}]")
        o_load(i)
    A("s_mov_b64 exec, -1")
    if gate:
        m_load()
    spin_guard()
    A("L_ob:")
    for i in range(4):
        if ocap:
            if i == 0:
                A(f"s_waitcnt vmcnt({ocap})")
        elif cw:
            A(f"s_waitcnt vmcnt({3-i+(1 if gate else 0)})")
        elif i == 0:
            A(f"s_waitcnt vmcnt({1 if gate else 0})")
        A(f"v_max3_u32 v20, v{GA+4*i}, v{GA+4*i+1}, v{GA+4*i+2}")
        A(f"v_max_u32 v20, v20, v{GA+4*i+3}")
        A(f"v_cmp_eq_u32 s[{86+2*i}:{87+2*i}], -1, v20")
    A("s_or_b64 s[94:95], s[86:87], s[88:89]")
    A("s_or_b64 s[94:95], s[94:95], s[90:91]")
    A("s_or_b64 s[94:95], s[94:95], s[92:93]")
    A("s_cbranch_scc1 L_oa")

    def send_ind():
        A("s_mov_b64 exec, s[76:77]")
        A("s_cbranch_execnz L_ind")
        A("L_noind:")
    if indpos == 0:
        send_ind()
        A("s_mov_b64 exec, -1")
    stamp(7)
    for k in range(4):
        A(f"v_mul_f32 v{R+k}, v{GA+k}, v{W}")
    for i in range(1, 4):
        for k in (0, 2, 1, 3):
            A(f"v_fmac_f32 v{R+k}, v{GA+4*i+k}, v{W+i}")
    A(f"v_permlane16_swap_b32 v{R}, v{R+2}")
    nop(1)
    A(f"v_permlane16_swap_b32 v{R+1}, v{R+3}")
    A(f"v_add_f32 v{R}, v{R}, v{R+2}")
    A(f"v_add_f32 v{R+1}, v{R+1}, v{R+3}")
    allreduce([R, R + 1], "v_add_f32", [], steps=("r8",))
    A("s_mov_b64 exec, s[80:81]")
    A(f"v_cvt_pk_bf16_f32 v24, v{R}, v{R+1}")
    A("ds_write_b32 v147, v24")
    lds_set(9, F_ORDY, 23)
    if indpos == 1:
        send_ind()
        A("s_mov_b64 exec, -1")
    lds_wait4(F_ORDY, 1, 28, [f"ds_read_b128 v[{32+4*i}:{35+4*i}], v146 offset:{128*i}" for i in range(4)])
    for i in range(4):
        A(f"v_mfma_f32_16x16x32_bf16 v[{Y}:{Y+3}], v[{WF+4*i}:{WF+4*i+3}], v[{32+4*i}:{35+4*i}], v[{Y}:{Y+3}]")
    if indpos == 2:
        nop(5)
        send_ind()
    else:
        nop(7)
    A("s_mov_b64 exec, s[82:83]")
    for i in range(4):
        A(f"v_and_or_b32 v{Y+i}, v{Y+i}, s85, v{150+i}")
    A(f"buffer_store_dwordx4 v[{Y}:{Y+3}], v163, s[{SWS}:{SWS+3}], s74 offen sc1")
    if ycopy:
        A("s_add_u32 s74, s74, 0x20800")
        A(f"buffer_store_dwordx4 v[{Y}:{Y+3}], v163, s[{SWS}:{SWS+3}], s74 offen sc1")
    if indpos == 3:
        send_ind()
    if wb in (1, 2):
        A(f"s_lshl_b32 s{sA}, s{sTw}, 8")
        A(f"s_add_u32 s{sA}, s{sA}, s{S_W}")
        A(f"s_cmp_lg_u32 s{sA}, {32*FX}")
        A("s_cbranch_scc1 L_nowb")
        if wb == 2:
            A("s_waitcnt vmcnt(0)")
        A("buffer_wbl2 sc1")
        A("s_waitcnt vmcnt(0)")
        A("L_nowb:")
    stamp(8)
    stamp_flush()
    A("s_endpgm")
    A("L_ind:")
    A(f"buffer_store_dword v164, v11, s[{SWS}:{SWS+3}], s78 offen sc1")
    if wb == 3:
        A("buffer_wbl2 sc1")
    A("s_branch L_noind")
    A("L_abort:")
    A("s_endpgm")
    sT = 66
    loader_rest()
    A("L_end:")
    nv = 168
    A('.section .rodata,"a"')
    A(".p2align 6")
    A(f".amdhsa_kernel {KNAME}")
    A(f"  .amdhsa_next_free_vgpr {nv}")
    A("  .amdhsa_next_free_sgpr 102")
    A(f"  .amdhsa_accum_offset {nv}")
    A("  .amdhsa_group_segment_fixed_size 0")
    A("  .amdhsa_kernarg_size 96")
    A("  .amdhsa_user_sgpr_count 2")
    A("  .amdhsa_user_sgpr_kernarg_segment_ptr 1")
    A("  .amdhsa_system_sgpr_workgroup_id_x 1")
    A(".end_amdhsa_kernel")
    out = []
    for ln in L:
        if ln.startswith((";", ".", " ")) or ln.endswith(":") or "\n" in ln:
            out.append(ln)
        else:
            out.append("    " + ln)
    return "\n".join(out) + "\n"


if __name__ == "__main__":
    kw = eval("dict(" + (sys.argv[2] if len(sys.argv) > 2 else "") + ")")
    open(sys.argv[1], "w").write(gen(**kw))
FINAL_WAVE = 2
```

```python
import sys
from gen_kernel import HEADER, KNAME

L_TILE = 0x20000
L_T2 = 0x1C000
L_DN = 0x24000
L_XN = 0x26000
L_Q = 0x26800
L_OX = 0x26C00
L_FLAG = 0x26E00
F_ORDY, F_DONE, F_QRDY, F_MRDY, F_PRDY, F_TILE, F_BREQ, F_CTL, F_HRDY, F_WRDY = 0, 16, 32, 48, 64, 80, 84, 88, 96, 112
L_M = L_FLAG + 128
L_L = L_FLAG + 192
F_LANDED = 256
F_ISS = 92
LB = 4
LDS_BYTES = 0x27000
W_EPOCH = 0x0
W_PROG = 0x1000
W_SYNC = 0x1A0000
W_MARK = 0x3000
W_IND = 0x2000
W_ML = 0x4000
W_O = 0x10000
W_Y = 0xC0000
W_Q = W_O
W_F = W_O + 1024
W_QB = 0x110000
W_STAMP = 0x200000
WS_BYTES = 0x300000

LOG2E = 0x3FB8AA3B
SCALE = 0x3DB504F3
SPIN_MAX = 1 << 20


def gen(NLS=(16, 18, 20, 22, 24, 26), idx0=2, gain=1.0, bias=2.37, ctl=True, NL0=24, stamps=False, pK="nt", pW="nt", diag=None, TRIG=126,
        codepf=True, fast=True, QB_EVERY=8, GATH_AT=24, ML_AT=88, noffn=False, nowt=False,
        FX=0, boost7=0, touch=True, early=False, indpos=1, ind=True, opre=False, boostE=0.15, thr=(-9, -9, -9), slp=0, slpc=0, endn=0, endadd=0, rot=7, wb=0, wearly=False, ocap=0, icap=0, curve=False, idxS=0, tdelay=0, fine=False, retouch=0, gate=False, MARK_AT=0, CLR_CHK=104, xdev=None, xg=True, C0=16, CP=24, NCP=4, G2=0.2, G2L=0.3, GI=0.07, PRE=5, XW=6, amp=0, mix=0, ycopy=False, pt=False, gb=(0, 0, 0, 0, 0, 0, 0, 0), cw=True, pads=True, spec=True, kvtouch=True, yall=True):
    L = []
    A = L.append
    uid = [0]
    role = ["pro"]

    def lab(p):
        uid[0] += 1
        return f"L_{p}_{uid[0]}"

    def nop(n):
        while n > 0:
            k = min(n, 16)
            A(f"s_nop {k-1}")
            n -= k

    def srd(r, p, nbytes):
        A(f"s_mov_b32 s{r}, s{p}")
        A(f"s_mov_b32 s{r+1}, s{p+1}")
        A(f"s_mov_b32 s{r+2}, {hex(nbytes)}")
        A(f"s_mov_b32 s{r+3}, 0x20000")

    VST = 166

    def stamp(i):
        if diag is not None and role[0] == "cons" and diag == i:
            A("s_memrealtime s[88:89]")
            A("s_waitcnt lgkmcnt(0)")
        if not stamps:
            return
        A("s_memrealtime s[98:99]")
        A("s_waitcnt lgkmcnt(0)")
        A(f"v_writelane_b32 v{VST}, s98, {i}")

    def stamp_flush():
        if not stamps:
            return
        A("s_mov_b64 exec, -1")
        A(f"s_sub_u32 s97, {hex(SPIN_MAX)}, s15")
        A(f"v_writelane_b32 v{VST}, s97, 16")
        srd(92, P_WS, WS_BYTES)
        A("s_lshl_b32 s97, s2, 4")
        A("s_add_u32 s97, s97, s3")
        A("s_lshl_b32 s97, s97, 8")
        A(f"s_add_u32 s97, s97, {hex(W_STAMP)}")
        A(f"v_lshlrev_b32 v{VST+1}, 2, v0")
        A(f"buffer_store_dword v{VST}, v{VST+1}, s[92:95], s97 offen")
        A("s_waitcnt vmcnt(0)")

    def spin_guard():
        A("s_sub_u32 s15, s15, 1")
        A("s_cbranch_scc1 L_abort")

    def lds_wait(off, thr, vt, st):
        l = lab("w")
        A(f"{l}:")
        if slp and role[0] == "tail":
            A(f"s_sleep {slp}")
        A(f"ds_read_b32 v{vt}, v8 offset:{off}")
        spin_guard()
        A("s_waitcnt lgkmcnt(0)")
        A(f"v_readfirstlane_b32 s{st}, v{vt}")
        A(f"s_cmp_ge_i32 s{st}, {thr}")
        A(f"s_cbranch_scc0 {l}")

    def lds_wait4(off, thr, vq, extra=()):
        l = lab("w4")
        A(f"{l}:")
        A(f"ds_read_b128 v[{vq}:{vq+3}], v8 offset:{off}")
        for e in extra:
            A(e)
        spin_guard()
        A(f"s_waitcnt lgkmcnt({len(extra)})")
        A(f"v_min3_i32 v{vq}, v{vq}, v{vq+1}, v{vq+2}")
        A(f"v_min_i32 v{vq}, v{vq}, v{vq+3}")
        A(f"v_cmp_gt_i32 vcc, {thr}, v{vq}")
        if extra:
            A("s_waitcnt lgkmcnt(0)")
        A(f"s_cbranch_vccnz {l}")

    def lds_set(addr_v, off, val_v):
        A("s_mov_b64 exec, 1")
        A(f"ds_write_b32 v{addr_v}, v{val_v} offset:{off}")
        A("s_mov_b64 exec, -1")

    def allreduce(regs, op, tmps, steps=("x1", "x2", "hm", "m", "p16", "p32")):
        dpp = {"x1": "quad_perm:[1,0,3,2]", "x2": "quad_perm:[2,3,0,1]", "hm": "row_half_mirror", "m": "row_mirror",
               "r4": "row_ror:4", "r8": "row_ror:8"}
        for st in steps:
            if st in dpp:
                nop(max(0, 3 - len(regs)))
                for r in regs:
                    A(f"{op}_dpp v{r}, v{r}, v{r} {dpp[st]} row_mask:0xf bank_mask:0xf")
            else:
                ins = "v_permlane16_swap_b32" if st == "p16" else "v_permlane32_swap_b32"
                for r, t in zip(regs, tmps):
                    A(f"v_mov_b32 v{t}, v{r}")
                nop(max(0, 3 - len(regs)))
                for r, t in zip(regs, tmps):
                    A(f"{ins} v{r}, v{t}")
                nop(1)
                for r, t in zip(regs, tmps):
                    A(f"{op} v{r}, v{r}, v{t}")

    def make_tag(s, v):
        A(f"v_readfirstlane_b32 s{s}, v{v}")
        A(f"s_add_u32 s{s}, s{s}, 0x4d2b7f35")

    def local_tag(dst, tag):
        A(f"s_getreg_b32 s{dst}, hwreg(HW_REG_XCC_ID, 0, 4)")
        A(f"s_mul_i32 s{dst}, s{dst}, 0x10001")
        A(f"s_xor_b32 s{dst}, s{dst}, s{tag}")

    def store_by(sloc, ins):
        l1, l2 = lab("far"), lab("st")
        A(f"s_cmp_eq_u32 s{sloc}, 2")
        A(f"s_cbranch_scc0 {l1}")
        for i in ins:
            A(i)
        A(f"s_branch {l2}")
        A(f"{l1}:")
        for i in ins:
            A(i + " sc1")
        A(f"{l2}:")

    def tag_check(base, n, stag, t1, t2):
        for i in range(n):
            A(f"v_xor_b32 v{base+1+2*i}, s{stag}, v{base+1+2*i}")
        r = [base + 1 + 2 * i for i in range(n)]
        if n == 8:
            A(f"v_or3_b32 v{t1}, v{r[0]}, v{r[1]}, v{r[2]}")
            A(f"v_or3_b32 v{t2}, v{r[3]}, v{r[4]}, v{r[5]}")
            A(f"v_or3_b32 v{t1}, v{t1}, v{r[6]}, v{r[7]}")
            A(f"v_or_b32 v{t1}, v{t1}, v{t2}")
        else:
            A(f"v_or3_b32 v{t1}, v{r[0]}, v{r[1]}, v{r[2]}")
            A(f"v_or_b32 v{t1}, v{t1}, v{r[3]}")
        A(f"v_cmp_ne_u32 vcc, 0, v{t1}")

    def byte_check(base, n, sb, t):
        for i in range(n):
            A(f"v_xor_b32 v{base+i}, s{sb+(i&3)}, v{base+i}")
        A(f"v_or3_b32 v{t}, v{base}, v{base+1}, v{base+2}")
        for i in range(3, n - 1, 2):
            A(f"v_or3_b32 v{t}, v{t}, v{base+i}, v{base+i+1}")
        A(f"v_or_b32 v{t}, v{t}, v{base+n-1}")
        A(f"v_and_b32 v{t}, 0xff, v{t}")
        A(f"v_cmp_ne_u32 vcc, 0, v{t}")

    def vaddr_T0(dst, t1, t2, t3):
        A(f"v_lshrrev_b32 v{t1}, 2, v0")
        A(f"v_and_b32 v{t2}, 7, v{t1}")
        A(f"v_lshlrev_b32 v{t2}, 1, v{t2}")
        A(f"v_lshrrev_b32 v{t3}, 5, v0")
        A(f"v_or_b32 v{t2}, v{t2}, v{t3}")
        A(f"v_bfe_u32 v{t3}, v0, 1, 1")
        A(f"v_xor_b32 v{t2}, v{t2}, v{t3}")
        A(f"v_lshlrev_b32 v{t2}, 4, v{t2}")
        A(f"v_lshl_or_b32 v{dst}, v{t1}, 8, v{t2}")
        A(f"v_and_b32 v{t3}, 1, v0")
        A(f"v_lshl_or_b32 v{dst}, v{t3}, 3, v{dst}")

    def prog_addr(d, t):
        A(f"s_lshr_b32 s{d}, s{S_W}, 4")
        A(f"s_lshl_b32 s{d}, s{d}, 2")
        A(f"s_and_b32 s{t}, s{S_S}, 3")
        A(f"s_add_u32 s{d}, s{d}, s{t}")
        A(f"s_lshl_b32 s{d}, s{d}, 4")
        A(f"s_and_b32 s{t}, s{S_S}, 12")
        A(f"s_add_u32 s{d}, s{d}, s{t}")
        A(f"s_lshl_b32 s{t}, s{S_KVH}, 7")
        A(f"s_add_u32 s{d}, s{d}, s{t}")
        A(f"s_add_u32 s{d}, s{d}, {hex(W_PROG)}")

    def unpack(dst, src):
        A(f"v_lshlrev_b32 v{dst}, 16, v{src}")
        A(f"v_and_b32 v{dst+1}, 0xffff0000, v{src}")

    P_X, P_K, P_V, P_WQ, P_WO, P_BX, P_G, P_U, P_D, P_OUT, P_DBG, P_WS = range(16, 40, 2)
    S_KVH, S_J, S_B, S_S, S_RB, S_CH, S_W = 4, 5, 6, 7, 8, 9, 10

    A(HEADER)
    A(f"; @launch grid=(256,1,1) block=(640,1,1) lds={LDS_BYTES}")
    A('.amdgcn_target "amdgcn-amd-amdhsa--gfx950"')
    A(".text")
    A(f".globl {KNAME}")
    A(".p2align 8")
    A(f".type {KNAME},@function")
    A(f"{KNAME}:")
    A("s_cmp_ge_u32 s2, 256")
    A("s_cbranch_scc1 L_abort")
    A("s_load_dwordx16 s[16:31], s[0:1], 0")
    A("s_load_dwordx8 s[32:39], s[0:1], 64")
    if stamps:
        A("s_memrealtime s[98:99]")
        A(f"v_mov_b32 v{VST}, 0")
    if diag is not None:
        A("s_memrealtime s[90:91]")
    if pt:
        A("s_memtime s[84:85]")
    A(f"s_lshr_b32 s{S_J}, s2, 3")
    if codepf:
        A("s_getpc_b64 s[80:81]")
        A(f"s_lshl_b32 s6, s{S_J}, 9")
        A("v_subrev_u32 v2, 448, v0")
        A("v_cmp_gt_u32 vcc, 4, v2")
        A("v_lshl_add_u32 v2, v2, 7, s6")
        A(f"v_min_u32 v2, L_end-{KNAME}-64, v2")
        A("s_and_b64 exec, exec, vcc")
        A("s_cbranch_execz L_nopf")
        A("v_mov_b32 v3, 0")
        A("v_lshl_add_u64 v[2:3], v[2:3], 0, s[80:81]")
        A("global_load_dword v165, v[2:3], off")
        A("L_nopf:")
        A("s_mov_b64 exec, -1")
    A("v_lshrrev_b32 v1, 6, v0")
    A("v_and_b32 v0, 63, v0")
    A("v_readfirstlane_b32 s3, v1")
    A(f"v_mov_b32 v8, {hex(L_FLAG)}")
    A("v_lshl_add_u32 v9, v0, 2, v8")
    A("v_mov_b32 v11, 0")
    A("ds_write_b32 v9, v11")
    A(f"ds_write_b32 v9, v11 offset:{F_LANDED}")
    if rot:
        A(f"s_add_u32 s{S_KVH}, s2, {rot}")
        A(f"s_and_b32 s{S_KVH}, s{S_KVH}, 7")
    else:
        A(f"s_and_b32 s{S_KVH}, s2, 7")
    A(f"s_lshr_b32 s{S_B}, s{S_J}, 4")
    A(f"s_and_b32 s{S_S}, s{S_J}, 15")
    A(f"s_lshl_b32 s{S_W}, s{S_KVH}, 5")
    A(f"s_add_u32 s{S_W}, s{S_W}, s{S_J}")
    A(f"s_mov_b32 s15, {hex(SPIN_MAX)}")
    A("v_lshrrev_b32 v1, 4, v0")
    A("v_lshlrev_b32 v3, 1, v1")
    A("v_lshlrev_b32 v10, 4, v0")
    sO1, sO2, sN, sNc, sBase, sTt, sT, sIdx, sEv = 60, 61, 62, 63, 64, 65, 66, 68, 69
    sSmp, sPrevF, sPs, sPl, sCen = 70, 71, 72, 73, 74
    A("v_lshrrev_b32 v12, 3, v0")
    A("v_and_b32 v13, 7, v0")
    A("v_xor_b32 v13, v13, v3")
    A("v_lshlrev_b32 v13, 4, v13")
    A("v_lshl_or_b32 v4, v12, 13, v13")
    for i in range(1, 4):
        A(f"v_add_u32 v{4+i}, {i*(0x10000-1024)}, v4")
    A(f"s_lshr_b32 s{sT}, s{S_J}, 3")
    A(f"s_lshl_b32 s{sO1}, s{sT}, 10")
    A(f"s_add_u32 s{sO1}, s{sO1}, s{S_KVH}")
    A(f"s_lshl_b32 s{sO1}, s{sO1}, 3")
    A(f"s_and_b32 s{sT}, s{S_J}, 7")
    A(f"s_add_u32 s{sO1}, s{sO1}, s{sT}")
    A(f"s_lshl_b32 s{sO1}, s{sO1}, 7")
    A(f"s_mov_b32 s42, {hex(512*4096*2)}")
    A("s_mov_b32 s43, 0x20000")
    A("s_mov_b32 s46, 2048")
    A("s_mov_b32 s47, 0x20000")
    A(f"s_mov_b32 m0, {hex(L_TILE)}")
    A("s_cmp_lg_u32 s3, 0")
    if pt:
        A("s_memtime s[86:87]")
    A("s_waitcnt lgkmcnt(0)")
    if stamps:
        A(f"v_writelane_b32 v{VST}, s98, 0")
    A("s_cbranch_scc1 L_roles")

    role[0] = "ld"
    A(f"s_mov_b64 s[40:41], s[{P_WQ}:{P_WQ+1}]")
    A("s_setprio 3")
    if pt:
        A("s_memtime s[88:89]")
    A("L_ldq:")
    for i in range(4):
        A(f"buffer_load_dwordx4 v{4+i}, s[40:43], s{sO1} offen offset:{i*1024} {pW} lds")
    A("s_add_u32 m0, m0, 0x1000")
    A(f"s_add_u32 s{sO1}, s{sO1}, 0x40000")
    A(f"s_cmp_lt_u32 m0, {hex(L_TILE + 0x4000)}")
    A("s_cbranch_scc1 L_ldq")
    if pt:
        A("s_memtime s[90:91]")
    A("s_barrier")
    if pt:
        A("s_memtime s[92:93]")
        A("s_waitcnt lgkmcnt(0)")
        for i in range(4):
            A(f"s_sub_u32 s{86+2*i}, s{86+2*i}, s84")
            A(f"v_writelane_b32 v{VST}, s{86+2*i}, {56+i}")
    if fine:
        stamp(3)
    A("v_mul_u32_u24 v4, 3584, v12")
    A("v_add_u32 v4, v4, v13")
    for i in range(1, 4):
        A(f"v_add_u32 v{4+i}, {i*(8*3584-1024)}, v4")
    A(f"s_mul_i32 s{sO2}, s{sT}, {64*3584}")
    A(f"s_lshr_b32 s{sT}, s{S_W}, 3")
    A(f"s_lshl_b32 s{sT}, s{sT}, 7")
    A(f"s_add_u32 s{sO2}, s{sO2}, s{sT}")
    A(f"s_cmp_lt_u32 s{S_KVH}, {0 if noffn else 7}")
    A(f"s_cselect_b32 s42, {hex(512*1792*2)}, 0")
    A(f"s_mov_b64 s[40:41], s[{P_G}:{P_G+1}]")
    A(f"s_mov_b32 m0, {hex(L_T2)}")
    A("L_ldf2:")
    A(f"s_mov_b32 s{sO1}, s{sO2}")
    A("L_ldf:")
    for i in range(4):
        A(f"s_waitcnt vmcnt({NL0-1})")
        A(f"buffer_load_dwordx4 v{4+i}, s[40:43], s{sO1} offen offset:{i*1024} {pW} lds")
    A("s_add_u32 m0, m0, 0x1000")
    A(f"s_add_u32 s{sO1}, s{sO1}, {32*3584}")
    A("s_bitcmp1_b32 m0, 12")
    A("s_cbranch_scc1 L_ldf")
    A(f"s_mov_b64 s[40:41], s[{P_U}:{P_U+1}]")
    A("s_bitcmp1_b32 m0, 13")
    A("s_cbranch_scc1 L_ldf2")
    if fine:
        stamp(8)
    A("v_and_b32 v2, 15, v0")
    A("v_xor_b32 v2, v2, v3")
    A("v_lshlrev_b32 v2, 4, v2")
    A("v_lshl_or_b32 v4, v1, 8, v2")
    A("v_xor_b32 v5, 0x80, v4")
    A("v_xor_b32 v6, 16, v4")
    A("v_xor_b32 v7, 0x90, v4")
    A(f"s_lshl_b32 s{sBase}, s{S_B}, 3")
    A(f"s_add_u32 s{sBase}, s{sBase}, s{S_KVH}")
    A(f"s_lshl_b32 s{sBase}, s{sBase}, 4")
    A(f"s_add_u32 s{sBase}, s{sBase}, s{S_S}")
    A(f"s_lshl_b32 s{sBase}, s{sBase}, 1")
    A(f"s_add_u32 s{sBase}, s{sBase}, s{S_B}")
    A(f"s_lshl_b32 s{sBase}, s{sBase}, 1")
    A(f"s_bfe_u32 s{sT}, s{S_S}, 0x10002")
    A(f"s_add_u32 s{sBase}, s{sBase}, s{sT}")
    A(f"s_lshl_b32 s{sBase}, s{sBase}, 17")
    A(f"s_mov_b32 s{sO1}, s{sBase}")
    A("s_mov_b32 s42, 0x8000000")
    A(f"s_mov_b64 s[40:41], s[{P_K}:{P_K+1}]")
    A(f"s_mov_b32 s{sN}, 0")
    A(f"s_mov_b32 s{sTt}, 0")
    A("s_mov_b32 m0, 0")
    A(f"s_mov_b32 s{sEv}, 2")
    A(f"s_mov_b32 s{sNc}, 2")
    A(f"s_mov_b32 s{sIdx}, {idxS}")
    A(f"s_mov_b64 s[44:45], s[{P_WS}:{P_WS+1}]")
    A(f"s_mov_b32 s46, {hex(WS_BYTES)}")
    A("v_lshlrev_b32 v14, 3, v0")
    A("v_mov_b32 v22, 0")
    A(f"ds_read_b128 v[16:19], v8 offset:{F_DONE}")
    NV = len(NLS)
    extra = {
        0: [f"s_add_u32 s{sO2}, s{sO1}, 0x8000"],
        1: [f"s_or_b32 s{sTt}, s{sTt}, 0x8000", f"s_add_u32 s{sTt}, s{sTt}, 0x1000"],
        2: [f"s_and_b32 s{sTt}, s{sTt}, 0x77000"],
        3: ["s_add_u32 m0, m0, 0x1000"],
        4: [f"s_xor_b32 s{sO1}, s{sTt}, s{sBase}"],
        5: [f"s_add_u32 s{sN}, s{sN}, 1"],
        6: [f"s_add_u32 s{sT}, m0, 0x1000"],
        7: [f"s_and_b32 m0, s{sT}, 0x1ffff"],
    }

    def body(k):
        NL = NLS[k]
        pub_i = (NL - 1) % 8
        pub_d = (pub_i - NL + 1) // 8
        A(f"v_add_u32 v21, {pub_d + LB - 1}, v22")
        A(f"L_body{k}:")
        for i in range(8):
            A(f"s_waitcnt vmcnt({NL-1})")
            A(f"buffer_load_dwordx4 v{4+(i&3)}, s[40:43], s{sO1 if i < 4 else sO2} offen offset:{(i&3)*1024} {pK} lds")
            if i == 0:
                A("v_add_u32 v21, 1, v21")
            if i == pub_i:
                A(f"ds_max_i32 v9, v21 offset:{F_LANDED}")
            for e in extra.get(i, []):
                A(e)
        A(f"s_cmp_lg_u32 s{sN}, s{sEv}")
        A(f"s_cbranch_scc1 L_body{k}")

    A("L_def:")
    body(idx0)
    A("L_event:")
    if stamps:
        A(f"s_and_b32 s{sT}, s{sN}, 15"); A("s_cbranch_scc0 L_ldst")
        A("L_ldst_back:")
    A(f"s_bitcmp1_b32 s{sN}, 7")
    A("s_cbranch_scc1 L_drain")
    A(f"s_cmp_eq_u32 s{sN}, s{sNc}")
    A("s_cbranch_scc1 L_ctl")
    A("L_event2:")
    A("s_waitcnt lgkmcnt(0)")
    A("v_min3_i32 v20, v16, v17, v18")
    A("v_min_i32 v20, v20, v19")
    A(f"s_bitcmp1_b32 s{sN}, 6")
    A(f"v_readfirstlane_b32 s{sT}, v20")
    A("L_event3:")
    A(f"ds_read_b128 v[16:19], v8 offset:{F_DONE}")
    A(f"s_cselect_b64 s[40:41], s[{P_V}:{P_V+1}], s[40:41]")
    A(f"s_cmp_eq_u32 s{sT}, 0")
    A(f"s_cselect_b32 s{sEv}, {12 if wearly else 14}, 16")
    A(f"s_add_u32 s{sT}, s{sT}, s{sEv}")
    A(f"s_or_b32 s{sEv}, s{sN}, {15 if stamps else 63}")
    A(f"s_add_u32 s{sEv}, s{sEv}, 1")
    A(f"s_min_u32 s{sEv}, s{sEv}, s{sT}")
    A(f"s_min_u32 s{sEv}, s{sEv}, s{sNc}")
    A(f"v_mov_b32 v22, s{sN}")
    A(f"s_cmp_le_u32 s{sEv}, s{sN}")
    A("s_cbranch_scc1 L_full")
    A(f"s_cmp_eq_u32 s{sIdx}, 0")
    A("s_cbranch_scc1 L_def")
    A("s_branch L_var")
    A("L_full:")
    spin_guard()
    A("s_branch L_event2")
    A("L_roles:")
    A("s_cmp_lg_u32 s3, 1")
    A("s_cbranch_scc1 L_roles2")
    A(f"s_mov_b64 s[44:45], s[{P_X}:{P_X+1}]")
    A("s_setprio 2")
    A("buffer_load_dwordx4 v[16:19], v10, s[44:47], 0 offen")
    A("buffer_load_dwordx4 v[20:23], v10, s[44:47], 0 offen offset:1024")
    A("L_roles2:")
    A("s_barrier")
    A("s_cbranch_scc1 L_other")
    A("s_branch L_aux")
    A("L_drain:")

    def iss(k):
        if TRIG == 0:
            A(f"s_cmp_ge_i32 s{sIdx}, {k}")
            A("s_cselect_b64 exec, 1, 0")
            A(f"ds_write_b32 v8, v21 offset:{F_ISS}")
            A("s_mov_b64 exec, -1")
    iss(thr[0])
    stamp(1)
    for x in range(125, 129):
        A(f"v_mov_b32 v21, {x + LB}")
        if gate and x == 128 and MARK_AT:
            A("v_mov_b32 v24, 200")
            A("s_mov_b64 exec, 1")
            A(f"s_waitcnt vmcnt({MARK_AT})")
            A(f"buffer_store_dword v24, v11, s[44:47], s{sPs} offen")
            A("s_waitcnt vmcnt(1)")
        else:
            A(f"s_waitcnt vmcnt({(128 - x) * 8})")
        A(f"ds_max_i32 v9, v21 offset:{F_LANDED}")
        if x >= 126:
            iss((thr[1], thr[2], -9)[x - 126])
    if gate and not MARK_AT:
        A("v_mov_b32 v24, 200")
        A("s_mov_b64 exec, 1")
        A(f"buffer_store_dword v24, v11, s[44:47], s{sPs} offen")
    if xdev is not None:
        A("s_memrealtime s[98:99]"); A("s_lshl_b32 s97, s2, 2"); A(f"s_add_u32 s97, s97, {hex(W_STAMP)}")
        A("s_waitcnt lgkmcnt(0)")
        A("L_xd0:"); A("s_memrealtime s[94:95]"); A("s_waitcnt lgkmcnt(0)"); A("s_sub_u32 s94, s94, s90"); A("s_cmp_lt_u32 s94, 5000"); A("s_cbranch_scc1 L_xd0")
        A("v_mov_b32 v24, s98"); A("s_mov_b64 exec, 1"); A("buffer_store_dword v24, v11, s[44:47], s97 offen sc1")
    stamp(2)
    stamp_flush()
    A("s_endpgm")

    if stamps:
        A("L_ldst:")
        for n, k in ((16, 4), (32, 5), (64, 6), (96, 7)):
            l = lab("st")
            A(f"s_cmp_lg_u32 s{sN}, {n}"); A(f"s_cbranch_scc1 {l}"); stamp(k); A(f"{l}:")
        A("s_branch L_ldst_back")

    def loader_rest():
        A("L_ctl:")
        A(f"s_cmp_eq_u32 s{sN}, 2")
        A("s_cbranch_scc1 L_ctl_init")
        if curve:
            A("s_memrealtime s[98:99]")
            A(f"s_lshr_b32 s97, s{sN}, 2")
            A("s_add_u32 s97, s97, 20")
            A("s_mov_b32 s96, m0")
            A("s_mov_b32 m0, s97")
        A("s_waitcnt lgkmcnt(0)")
        if curve:
            A(f"v_writelane_b32 v{VST}, s98, m0")
            A("s_mov_b32 m0, s96")
        A("v_add_u32 v15, v12, v13")
        A("v_readlane_b32 s79, v12, 16")
        A(f"v_mov_b32 v24, s{sN}")
        A("v_readfirstlane_b32 s78, v23")
        A("s_mov_b64 exec, 1")
        A(f"buffer_store_dword v24, v11, s[44:47], s{sPs} offen")
        A("s_mov_b64 exec, 0x1ffff")
        A("v_add_u32_dpp v15, v15, v15 quad_perm:[1,0,3,2] row_mask:0xf bank_mask:0xf")
        A(f"buffer_load_dwordx2 v[12:13], v14, s[44:47], s{sPl} offen sc1")
        A(f"ds_read_b32 v23, v8 offset:{F_CTL}")
        A("v_add_u32_dpp v15, v15, v15 quad_perm:[2,3,0,1] row_mask:0xf bank_mask:0xf")
        A("v_min3_i32 v20, v16, v17, v18")
        A(f"s_add_u32 s{sNc}, s{sNc}, 4")
        A("v_add_u32_dpp v15, v15, v15 row_half_mirror row_mask:0xf bank_mask:0xf")
        A("v_min_i32 v20, v20, v19")
        A(f"s_add_u32 s{sSmp}, s{sSmp}, {4*32*int(gain*256)}")
        A("v_add_u32_dpp v15, v15, v15 row_mirror row_mask:0xf bank_mask:0xf")
        A(f"v_readfirstlane_b32 s{sT}, v20")
        A("v_readfirstlane_b32 s76, v15")
        A("s_mov_b64 exec, -1")
        A(f"s_mul_i32 s76, s76, {int(gain*256)}")
        A(f"s_sub_i32 s76, s76, s{sSmp}")
        A("s_add_i32 s76, s76, s79")
        A("s_ashr_i32 s76, s76, 13")
        if endn:
            A(f"s_cmp_ge_u32 s{sN}, {endn}")
            A(f"s_cselect_b32 s77, {endadd}, 0")
            A("s_add_i32 s76, s76, s77")
        A(f"s_max_i32 s76, s76, {-idx0}")
        A(f"s_min_i32 s76, s76, {NV-1-idx0}")
        A(f"s_cmp_eq_u32 s{sPrevF}, {2 if ctl else 3}")
        A(f"s_cselect_b32 s{sIdx}, s76, s{sIdx}")
        A(f"s_mov_b32 s{sPrevF}, s78")
        A(f"s_bitcmp1_b32 s{sN}, 6")
        A("s_branch L_event3")
        A("L_ctl_init:")
        if fine:
            stamp(9)
        prog_addr(sPs, sPl)
        A(f"s_and_b32 s{sPl}, s{sPs}, 0xffffff80")
        A(f"s_lshr_b32 s{sNc}, s{S_J}, 2")
        A(f"s_add_u32 s{sNc}, s{sNc}, s{S_J}")
        A(f"s_and_b32 s{sNc}, s{sNc}, 3")
        A(f"s_add_u32 s{sNc}, s{sNc}, 3")
        A(f"s_mov_b32 s{sPrevF}, 0")
        A(f"s_sub_u32 s{sSmp}, s{sNc}, 8")
        A(f"s_mul_i32 s{sSmp}, s{sSmp}, {32*int(gain*256)}")
        if any(gb):
            tab = sum((g + 8) << (4 * i) for i, g in enumerate(gb))
            A(f"s_and_b32 s{sCen}, s2, 7")
            A(f"s_lshl_b32 s{sCen}, s{sCen}, 2")
            A(f"s_lshr_b32 s{sCen}, {hex(tab)}, s{sCen}")
            A(f"s_and_b32 s{sCen}, s{sCen}, 15")
            A(f"s_sub_u32 s{sCen}, s{sCen}, 8")
            A(f"s_lshl_b32 s{sCen}, s{sCen}, 8")
        else:
            A(f"s_cmp_eq_u32 s{S_KVH}, 7")
            A(f"s_cselect_b32 s{sCen}, {int(boost7 * 256 * 32)}, 0")
        A(f"s_add_u32 s{sCen}, s{sCen}, {int((0.5 + bias * gain) * 256 * 32)}")
        A(f"s_sub_u32 s{sSmp}, s{sSmp}, s{sCen}")
        if boostE:
            A(f"s_getreg_b32 s{sCen}, hwreg(HW_REG_XCC_ID, 0, 1)")
            A(f"s_mul_i32 s{sCen}, s{sCen}, {int(boostE * 256 * 32)}")
            A(f"s_add_u32 s{sSmp}, s{sSmp}, s{sCen}")
        A("v_mov_b32 v12, 0"); A("v_mov_b32 v13, 0"); A("v_mov_b32 v23, 0")
        A("s_branch L_event2")
        A("L_var:")
        others = [i for i in range(NV) if i != idx0]

        def tree(lst):
            if len(lst) == 1:
                body(lst[0])
                A("s_branch L_event")
                return
            mid = len(lst) // 2
            l = lab("tr")
            A(f"s_cmp_ge_i32 s{sIdx}, {lst[mid] - idx0}")
            A(f"s_cbranch_scc1 {l}")
            tree(lst[:mid])
            A(f"{l}:")
            tree(lst[mid:])
        tree(others)

    role[0] = "aux"
    SWQ, SX, SWS, SG, SU, SOUT = 40, 44, 48, 52, 56, 60
    sO, sTag, sA, sB2, sThr, sLoc = 64, 65, 66, 67, 75, 84
    XB, TF = 64, 96
    A("L_aux:")
    A(f"s_lshr_b32 s{sB2}, s{S_J}, 3")
    srd(SWS, P_WS, WS_BYTES)
    A(f"buffer_load_dword v24, v11, s[{SWS}:{SWS+3}], 0 offen sc1")
    prog_addr(76, 77)
    A("v_lshlrev_b32 v25, 7, v0")
    A(f"s_cmp_eq_u32 s{S_J}, 0")
    A("s_cselect_b64 exec, 3, 1")
    A(f"buffer_store_dword v11, v25, s[{SWS}:{SWS+3}], s76 offen")
    A("s_mov_b64 exec, -1")
    stamp(1)
    A(f"v_add_u32 v25, {hex(L_XN)}, v10")
    A("v_bfe_u32 v15, v0, 3, 1")
    A("v_lshlrev_b32 v26, 10, v15")
    A("v_lshl_add_u32 v26, v1, 3, v26")
    A(f"v_add_u32 v26, {hex(L_XN)}, v26")
    A(f"s_lshl_b32 s{sA}, s{sB2}, 8")
    A(f"v_add_u32 v28, s{sA}, v26")
    A(f"s_and_b32 s{sA}, s{S_J}, 7")
    A(f"s_lshl_b32 s{sA}, s{sA}, 7")
    A(f"v_add_u32 v26, s{sA}, v26")
    A("v_lshrrev_b32 v29, 2, v0")
    A("v_lshlrev_b32 v29, 7, v29")
    A("v_bfe_u32 v30, v0, 3, 2")
    A("v_lshl_or_b32 v29, v30, 5, v29")
    A("v_and_b32 v30, 3, v0")
    A("v_lshl_or_b32 v29, v30, 3, v29")
    A(f"v_add_u32 v160, {hex(L_TILE)}, v29")
    for T in range(1, 4):
        A(f"v_xor_b32 v{160+T}, {32*T}, v160")
    A("v_lshlrev_b32 v27, 6, v30")
    A("v_lshl_or_b32 v27, v1, 4, v27")
    A("v_bfe_u32 v30, v0, 1, 2")
    A("v_lshlrev_b32 v31, 7, v30")
    A("v_lshl_or_b32 v31, v1, 5, v31")
    A("v_and_b32 v30, 1, v0")
    A("v_lshl_or_b32 v31, v30, 4, v31")
    A("v_lshl_or_b32 v31, v15, 9, v31")
    A(f"s_lshl_b32 s{sO}, s{S_W}, 11")
    A(f"s_add_u32 s{sO}, s{sO}, {hex(W_Q)}")
    for i in range(4):
        A(f"s_mov_b32 s{78+i}, {hex(0x07060500 + i)}")
    if True:
        A(f"buffer_load_dword v89, v31, s[{SWS}:{SWS+3}], s{sO} offen sc1")
    A("s_mov_b32 s68, 0xaaaaaaaa"); A("s_mov_b32 s69, s68")
    A("s_mov_b32 s70, 0xcccccccc"); A("s_mov_b32 s71, s70")
    A("s_mov_b32 s72, 0xf0f0f0f0"); A("s_mov_b32 s73, s72")
    A(f"s_waitcnt vmcnt(3)")
    stamp(2)
    XF = 32
    for b in range(2):
        for i in range(4):
            unpack(XF + 8 * b + 2 * i, 16 + 4 * b + i)
    for b in range(2):
        A(f"v_add_f32 v{48+b}, v{XF+8*b}, v{XF+8*b+1}")
    for i in range(2, 8):
        for b in range(2):
            A(f"v_add_f32 v{48+b}, v{48+b}, v{XF+8*b+i}")
    allreduce([48, 49], "v_add_f32", [50, 51])
    for b in range(2):
        A(f"v_mul_f32 v{48+b}, 0x3b000000, v{48+b}")
    for i in range(8):
        for b in range(2):
            A(f"v_sub_f32 v{52+b}, v{XF+8*b+i}, v{48+b}")
        for b in range(2):
            A(f"{'v_mul_f32' if i == 0 else 'v_fmac_f32'} v{54+b}, v{52+b}, v{52+b}")
    allreduce([54, 55], "v_add_f32", [50, 51])
    for b in range(2):
        A(f"v_mul_f32 v{54+b}, 0x3b000000, v{54+b}")
    A("v_cvt_pk_bf16_f32 v50, v48, v49")
    A("v_cvt_pk_bf16_f32 v51, v54, v55")
    unpack(48, 50)
    unpack(54, 51)
    A("v_add_f32 v54, 0x3727c5ac, v54"); A("v_add_f32 v55, 0x3727c5ac, v55")
    A("v_cvt_pk_bf16_f32 v51, v54, v55")
    unpack(54, 51)
    A("v_sqrt_f32 v54, v54"); A("v_sqrt_f32 v55, v55")
    nop(1)
    A("v_cvt_pk_bf16_f32 v51, v54, v55")
    unpack(54, 51)
    A("v_rcp_f32 v54, v54"); A("v_rcp_f32 v55, v55")
    for b in range(2):
        for i in range(8):
            A(f"v_sub_f32 v{XF+8*b+i}, v{XF+8*b+i}, v{48+b}")
        for i in range(4):
            A(f"v_cvt_pk_bf16_f32 v{56+4*b+i}, v{XF+8*b+2*i}, v{XF+8*b+2*i+1}")
        for i in range(4):
            unpack(XF + 8 * b + 2 * i, 56 + 4 * b + i)
        for i in range(8):
            A(f"v_mul_f32 v{XF+8*b+i}, v{XF+8*b+i}, v{54+b}")
        for i in range(4):
            A(f"v_cvt_pk_bf16_f32 v{56+4*b+i}, v{XF+8*b+2*i}, v{XF+8*b+2*i+1}")
        A(f"ds_write_b128 v25, v[{56+4*b}:{59+4*b}] offset:{1024*b}")
    A("s_waitcnt lgkmcnt(0)")
    for s in range(4):
        A(f"ds_read2_b64 v[{XB+4*s}:{XB+4*s+3}], v28 offset0:{8*s} offset1:{8*s+4}")
    for s in range(2):
        A(f"ds_read2_b64 v[{XB+16+4*s}:{XB+16+4*s+3}], v26 offset0:{8*s} offset1:{8*s+4}")
    stamp(3)
    lds_wait(F_LANDED, 2, 44, sA)
    A("s_waitcnt vmcnt(0)")
    stamp(4)

    def tile_mfma(acc_of, b_of, first):
        for hf in range(2):
            for s in range(2 * hf, 2 * hf + 2):
                for T in range(4):
                    r = TF + 16 * s + 4 * T
                    A(f"ds_read_b64_tr_b16 v[{r}:{r+1}], v{160+T} offset:{s*4096}")
                    A(f"ds_read_b64_tr_b16 v[{r+2}:{r+3}], v{160+T} offset:{s*4096+2048}")
                if s == 2 * hf:
                    A("s_waitcnt lgkmcnt(4)")
            A("s_waitcnt lgkmcnt(0)")
            for s in range(2 * hf, 2 * hf + 2):
                for T in range(4):
                    r = TF + 16 * s + 4 * T
                    d = acc_of(s, T)
                    c = "0" if first(s) else f"v[{d}:{d+3}]"
                    A(f"v_mfma_f32_16x16x32_bf16 v[{d}:{d+3}], v[{r}:{r+3}], v[{b_of(s)}:{b_of(s)+3}], {c}")

    def select_quad(D, out):
        for T in (0, 2):
            for r in range(4):
                A(f"v_cndmask_b32 v{D+4*T+r}, v{D+4*T+r}, v{D+4*T+4+r}, s[68:69]")
        for r in range(4):
            A(f"v_cndmask_b32 v{out+r}, v{D+r}, v{D+8+r}, s[70:71]")
        for r in range(4):
            A(f"v_add_u32 v{out+r}, 0x80, v{out+r}")

    def select_granule(D, out):
        for T in range(4):
            A(f"v_cndmask_b32 v{D+4*T}, v{D+4*T}, v{D+2+4*T}, s[68:69]")
            A(f"v_cndmask_b32 v{D+1+4*T}, v{D+1+4*T}, v{D+3+4*T}, s[68:69]")
        for T in (0, 2):
            A(f"v_cndmask_b32 v{D+4*T}, v{D+4*T}, v{D+4+4*T}, s[70:71]")
            A(f"v_cndmask_b32 v{D+1+4*T}, v{D+1+4*T}, v{D+5+4*T}, s[70:71]")
        A(f"v_cndmask_b32 v{out}, v{D}, v{D+8}, s[72:73]")
        A(f"v_cndmask_b32 v{out+2}, v{D+1}, v{D+9}, s[72:73]")

    def put_tag(dst, src, vtag):
        for r in range(4):
            A(f"v_perm_b32 v{dst+r}, v{src+r}, v{vtag}, s{78+r}")

    tile_mfma(lambda s, T: 32 + 4 * T, lambda s: XB + 4 * s, lambda s: s == 0)
    make_tag(sTag, 24)
    local_tag(sA, sTag)
    A(f"v_mov_b32 v17, s{sA}")
    A(f"v_mov_b32 v19, s{sA}")
    select_granule(32, 16)
    A(f"buffer_store_dwordx4 v[16:19], v31, s[{SWS}:{SWS+3}], s{sO} offen")
    A("v_mov_b32 v88, 1")
    A("s_setprio 0")
    A(f"s_add_u32 s{sO}, s{sO}, {hex(W_QB - W_Q)}")
    A(f"v_mov_b32 v17, s{sTag}")
    A(f"v_mov_b32 v19, s{sTag}")
    A(f"s_mov_b32 s{sB2}, 1")
    stamp(5)
    for T in range(4):
        A(f"v_add_u32 v{160+T}, {L_T2 - L_TILE}, v{160+T}")
    lds_wait(F_LANDED, 4, 44, sA)
    tile_mfma(lambda s, T: 32 + 16 * (s >> 1) + 4 * T, lambda s: XB + 16 + 4 * (s & 1), lambda s: s in (0, 2))
    lds_set(8, F_TILE, 88)
    nop(2)
    for i in range(16):
        A(f"v_cndmask_b32 v{32+i}, v{32+i}, v{48+i}, s[72:73]")
    select_quad(32, 92)
    put_tag(92, 92, 17)
    stamp(6)
    A("L_qserve:")
    A(f"ds_read_b128 v[44:47], v8 offset:{F_QRDY}")
    A(f"ds_read_b32 v48, v8 offset:{F_BREQ}")
    spin_guard()
    A("s_waitcnt lgkmcnt(0)")
    A("v_min3_i32 v44, v44, v45, v46")
    A("v_min_i32 v44, v44, v47")
    A(f"v_readfirstlane_b32 s{sA}, v48")
    A(f"v_readfirstlane_b32 s{sLoc}, v44")
    A(f"s_and_b32 s{sA}, s{sA}, s{sB2}")
    A("s_cbranch_scc0 L_qnob")
    A(f"buffer_store_dwordx4 v[16:19], v31, s[{SWS}:{SWS+3}], s{sO} offen sc1")
    A(f"s_mov_b32 s{sB2}, 0")
    A("L_qnob:")
    A(f"s_cmp_eq_u32 s{sLoc}, 0")
    A("s_cbranch_scc1 L_qserve")
    A(f"s_cmp_ge_u32 s{S_KVH}, {0 if noffn else 7}")
    A("s_cbranch_scc1 L_noffn1")
    A("v_lshl_or_b32 v30, v15, 8, v27")
    A("v_bfe_u32 v29, v0, 2, 1")
    A("v_lshl_or_b32 v30, v29, 9, v30")
    A(f"s_lshl_b32 s{sO}, s{S_W}, 11")
    A(f"s_add_u32 s{sO}, s{sO}, {hex(W_F)}")
    store_by(sLoc, [f"buffer_store_dwordx4 v[92:95], v30, s[{SWS}:{SWS+3}], s{sO} offen"])
    A("L_noffn1:")
    stamp(7)
    if xg:
        sK, sCk, sNx, sCur, sSend, sInt, sBs = 52, 53, 54, 55, 56, 57, 58
        A(f"s_lshl_b32 s{sA}, s{S_J}, 2")
        A(f"s_add_u32 s{sA}, s{sA}, s{sLoc}")
        A(f"s_cmp_lg_u32 s{sA}, 2")
        A("s_cbranch_scc1 L_aux_end")
        A("v_lshl_add_u32 v30, v0, 3, s76")
        A("v_mul_u32_u24 v31, 0x1100, v0")
        A(f"s_mov_b32 s{sK}, 1")
        A(f"s_mov_b32 s{sCk}, {C0 + LB}")
        A(f"s_mov_b32 s{sInt}, 0")
        A(f"s_mov_b32 s{sBs}, {hex(W_SYNC)}")
        A("L_xg:")
        A(f"s_add_u32 s{sO}, s{sBs}, 0x9900")
        A(f"v_writelane_b32 v30, s{sO}, 16")
        A(f"s_and_b32 s{sSend}, s{sK}, 7")
        A(f"s_cmp_eq_u32 s{sSend}, s{S_KVH}")
        A(f"s_cselect_b32 s{sSend}, s{sCk}, -1")
        for q in range(4):
            A(f"v_not_b32 v{32+2*q}, v17")
        A(f"s_sub_u32 s{sNx}, s{sCk}, {PRE}")
        A("L_xg_poll:")
        for q in range(4):
            lds_wait(F_LANDED, f"s{sNx}", 44, sCur)
            A(f"s_add_u32 s{sNx}, s{sCur}, 1")
            A(f"s_cmp_ge_u32 s{sCur}, {116 + LB}")
            A("s_cbranch_scc1 L_aux_end")
            l = lab("ns")
            A(f"s_cmp_ge_u32 s{sCur}, s{sSend}")
            A(f"s_cbranch_scc0 {l}")
            A(f"s_mov_b32 s{sSend}, -1")
            A("s_mov_b64 exec, 1")
            A(f"buffer_store_dword v17, v11, s[{SWS}:{SWS+3}], s{sO} offen sc1")
            A(f"{l}:")
            A("s_mov_b64 exec, 0x1ffff")
            A(f"buffer_load_dwordx2 v[{32+2*q}:{33+2*q}], v30, s[{SWS}:{SWS+3}], 0 offen sc1")
            A("s_mov_b64 exec, -1")
            A("s_waitcnt vmcnt(3)")
            o = 32 + 2 * ((q + 1) & 3)
            A(f"v_readlane_b32 s{sA}, v{o}, 16")
            A(f"v_add_u32 v45, v{o}, v{o+1}")
            A(f"s_cmp_eq_u32 s{sA}, s{sTag}")
            A("s_cbranch_scc1 L_xg_got")
        A("s_branch L_xg_poll")
        A("L_xg_got:")
        allreduce([45], "v_add_u32", [], steps=("x1", "x2", "hm", "m"))
        A(f"s_mul_i32 s{sO}, s{S_KVH}, 0x1100")
        A(f"s_add_u32 s{sO}, s{sO}, s{sBs}")
        A(f"v_readfirstlane_b32 s{sB2}, v45")
        A("v_xor_b32 v45, v45, v17")
        A("s_mov_b64 exec, 1")
        A(f"buffer_store_dword v45, v11, s[{SWS}:{SWS+3}], s{sO} offen sc1")
        A("s_mov_b64 exec, -1")
        A(f"s_add_u32 s{sNx}, s{sCur}, {XW}")
        lds_wait(F_LANDED, f"s{sNx}", 44, sCur)
        A("s_mov_b64 exec, 0xff")
        A(f"buffer_load_dword v46, v31, s[{SWS}:{SWS+3}], s{sBs} offen sc1")
        A(f"s_lshl_b32 s{sB2}, s{sB2}, 3")
        A("s_waitcnt vmcnt(0)")
        A("v_xor_b32 v46, v46, v17")
        A("v_cmp_lt_u32 vcc, 0x2000, v46")
        allreduce([46], "v_add_u32", [], steps=("x1", "x2", "hm"))
        A("s_mov_b64 exec, 1")
        A(f"v_readfirstlane_b32 s{sA}, v46")
        A(f"s_sub_i32 s{sA}, s{sA}, s{sB2}")
        A("s_cmp_eq_u64 vcc, 0")
        A(f"s_cselect_b32 s{sA}, s{sA}, 0")
        A(f"s_mul_i32 s{sB2}, s{sA}, {round(GI*128)}")
        A(f"s_add_i32 s{sInt}, s{sInt}, s{sB2}")
        A(f"s_add_u32 s{sCk}, s{sCk}, {CP}")
        A(f"s_cmp_lt_u32 s{sCk}, {C0 + LB + NCP*CP}")
        A(f"s_cselect_b32 s{sB2}, {round(G2*128)}, {round(G2L*128)}")
        A(f"s_mul_i32 s{sA}, s{sA}, s{sB2}")
        A(f"s_add_i32 s{sA}, s{sA}, s{sInt}")
        A(f"s_ashr_i32 s{sA}, s{sA}, 2")
        A(f"v_mov_b32 v46, s{sA}")
        A(f"buffer_store_dword v46, v11, s[{SWS}:{SWS+3}], s76 offen offset:128")
        A("s_mov_b64 exec, -1")
        A(f"s_add_u32 s{sK}, s{sK}, 3")
        A(f"s_add_u32 s{sBs}, s{sBs}, 0x10300")
        A(f"s_cmp_lt_u32 s{sCk}, {C0 + LB + NCP*CP}")
        A("s_cbranch_scc1 L_xg")
        A("L_aux_end:")
    stamp_flush()
    A("s_endpgm")

    role[0] = "cons"
    SWS = 48
    sC, sLd, sTg, sL2E, sSc, sA, sB2, sTag, sLoc = 60, 61, 62, 63, 64, 65, 66, 67, 84
    AV, VDN, AK = 6, 9, 144
    S, O, KF, Q, SV = 16, 24, 32, 64, 128
    VF, PF = 32, 40
    vM, vNM, vL, vT, vT2, vPW, vPR = 152, 153, 154, 155, 156, 157, 158
    A("L_other:")
    srd(SWS, P_WS, WS_BYTES)
    A(f"buffer_load_dword v164, v11, s[{SWS}:{SWS+3}], 0 offen sc1")
    A("s_cmp_ge_u32 s3, 6")
    A("s_cbranch_scc1 L_tail")
    if pads:
        A("s_mov_b64 exec, 0")
        A("s_branch L_vlast")
        A("L_cpad:")
        A("s_mov_b64 exec, -1")
    A("s_setprio 1")
    A(f"s_sub_u32 s{sC}, s3, 2")
    A(f"s_lshl_b32 s69, s{S_KVH}, 4")
    A(f"s_add_u32 s69, s69, s{sC}")
    A("s_lshl_b32 s69, s69, 3")
    A(f"s_add_u32 s69, s69, s{S_B}")
    A("s_lshl_b32 s69, s69, 9")
    A(f"s_add_u32 s69, s69, {hex(W_Q)}")
    for kb in range(1, 4):
        A(f"s_add_u32 s{69+kb}, s69, {kb*0x4000}")
    A("v_lshrrev_b32 v12, 5, v0")
    A("v_and_b32 v165, 0x1f0, v10")
    A("v_lshl_or_b32 v165, v12, 11, v165")
    A(f"s_mov_b32 s{sL2E}, {hex(LOG2E)}")
    A(f"s_mov_b32 s{sSc}, {hex(SCALE)}")
    A("v_and_b32 v15, 3, v0")
    A("v_lshlrev_b32 v160, 9, v15")
    A(f"v_bfe_u32 v{vT2}, v0, 2, 1")
    A(f"v_lshl_or_b32 v160, v{vT2}, 6, v160")
    A("v_lshl_or_b32 v160, v1, 4, v160")
    A(f"s_lshl_b32 s68, s{S_W}, 11")
    A(f"s_lshl_b32 s{sA}, s{sC}, 7")
    A(f"s_add_u32 s68, s68, s{sA}")
    A(f"s_add_u32 s68, s68, {hex(W_O)}")
    A(f"s_lshl_b32 s73, s{S_KVH}, 2")
    A(f"s_add_u32 s73, s73, s{sC}")
    A("s_lshl_b32 s73, s73, 1")
    A(f"s_add_u32 s73, s73, s{S_B}")
    A("s_lshl_b32 s73, s73, 2")
    A(f"s_and_b32 s{sA}, s{S_S}, 3")
    A(f"s_add_u32 s73, s73, s{sA}")
    A("s_lshl_b32 s73, s73, 2")
    A(f"s_lshr_b32 s{sA}, s{S_S}, 2")
    A(f"s_add_u32 s73, s73, s{sA}")
    A("s_lshl_b32 s73, s73, 4")
    A(f"s_add_u32 s73, s73, {hex(W_ML)}")
    A(f"v_lshlrev_b32 v{vPR}, 4, v15")
    A(f"v_lshl_or_b32 v{vPR}, v1, 6, v{vPR}")
    A(f"v_add_u32 v{vPR}, {hex(L_TILE)}, v{vPR}")
    A(f"v_bfe_u32 v{vT}, v0, 2, 2")
    A(f"v_lshl_add_u32 v{vPW}, v{vT}, 10, v{vPR}")
    A(f"s_lshl_b32 s{sA}, s{sC}, 8")
    A(f"v_add_u32 v{vPW}, s{sA}, v{vPW}")
    A(f"s_add_u32 s{sA}, s{sA}, {hex(L_Q)}")
    A(f"v_lshl_add_u32 v2, v0, 2, s{sA}")
    A("v_lshlrev_b32 v3, 8, v15")
    A("v_lshl_add_u32 v3, v1, 6, v3")
    A(f"v_add_u32 v3, {hex(L_Q)}, v3")
    A("v_lshl_add_u32 v4, v15, 4, v8")
    A(f"s_lshl_b32 s{sA}, s{sC}, 2")
    A(f"v_add_u32 v5, s{sA}, v4")
    A(f"v_add_u32 v{VDN}, s{sA}, v8")
    A("v_and_b32 v14, 15, v0")
    A("v_and_b32 v12, 7, v0")
    A("v_lshlrev_b32 v12, 1, v12")
    A("v_bfe_u32 v13, v0, 3, 1")
    A("v_or_b32 v12, v12, v13")
    A("v_lshlrev_b32 v13, 2, v1")
    A("v_xor_b32 v12, v12, v13")
    A("v_lshlrev_b32 v12, 4, v12")
    A("v_lshl_or_b32 v12, v14, 8, v12")
    A(f"s_lshl_b32 s{sA}, s{sC}, 13")
    A(f"v_or_b32 v{AK}, s{sA}, v12")
    for s in range(1, 8):
        A(f"v_xor_b32 v{AK+s}, {hex(16*(s&3) + 0x10000*(s>>2))}, v{AK}")
    vaddr_T0(13, 12, 14, 15)
    A(f"s_lshl_b32 s{sA}, s{sC}, 6")
    A(f"v_xor_b32 v{AV}, s{sA}, v13")
    A(f"v_xor_b32 v{AV+1}, 32, v{AV}")
    A(f"s_mov_b32 s{sLd}, 0")
    A(f"s_sub_u32 s{sTg}, s{sC}, 3")
    A(f"v_mov_b32 v{vM}, 0xff800000")
    A(f"v_mov_b32 v{vL}, 0")
    for i in range(8):
        A(f"v_mov_b32 v{O+i}, 0")
    A("s_mov_b32 s76, 0x000f000f"); A("s_mov_b32 s77, s76")
    for g in range(1, 4):
        A(f"s_lshl_b64 s[{76+2*g}:{77+2*g}], s[76:77], {4*g}")
    A("v_mov_b32 v159, 1")
    if diag is not None:
        A("s_mov_b32 s88, s90")
    SX, SOUT = 40, 44
    vYA = 153
    srd(SX, P_X, 2048)
    srd(SOUT, P_OUT, 2048)
    A(f"s_lshl_b32 s85, s{S_J}, 2")
    A(f"s_add_u32 s85, s85, s{sC}")
    A("s_lshl_b32 s85, s85, 4")
    A("v_and_b32 v12, 1, v0")
    A("v_bfe_u32 v13, v0, 2, 2")
    A("v_lshlrev_b32 v13, 1, v13")
    A("v_lshl_or_b32 v161, v12, 3, v13")
    A("v_lshrrev_b32 v13, 1, v0")
    A("v_lshlrev_b32 v13, 11, v13")
    A(f"v_lshl_or_b32 v{vYA}, v12, 4, v13")
    A("v_lshrrev_b32 v163, 3, v0")
    A("v_lshlrev_b32 v163, 7, v163")
    A(f"s_lshl_b32 s52, s{S_B}, 16")
    A("s_and_b32 s53, s85, 0x3ff")
    A("s_lshl_b32 s53, s53, 1")
    A("s_add_u32 s52, s52, s53")
    A(f"s_add_u32 s52, s52, {hex(W_Y)}")
    A(f"s_mov_b32 s59, {hex(W_IND)}")
    A(f"s_cmp_lg_u32 s{S_KVH}, {FX}")
    A("s_cbranch_scc1 L_nofin")
    A(f"buffer_load_ushort v162, v161, s[{SX}:{SX+3}], s85 offen")
    A("s_mov_b64 exec, 1")
    A(f"buffer_store_short v11, v161, s[{SOUT}:{SOUT+3}], s85 offen")
    A("s_mov_b64 exec, -1")
    A("L_nofin:")
    A("s_waitcnt vmcnt(0)")
    make_tag(sTag, 164)
    local_tag(74, sTag)
    for i in range(4):
        A(f"s_bfe_u32 s{54+i}, s{sTag}, {hex(0x80000 + 8*i)}")
    A("v_lshlrev_b32 v162, 16, v162")
    A(f"v_mov_b32 v164, s{sTag}")
    stamp(1)
    lds_wait(F_TILE, 1, vT, sA)
    stamp(5)
    A("s_mov_b64 vcc, -1")
    A(f"s_mov_b32 s{sB2}, 0")
    A("L_qpoll:")
    A(f"s_add_u32 s{sB2}, s{sB2}, 1")
    A(f"s_and_b32 s{sA}, s{sB2}, {(QB_EVERY - 1) if fast else 0}")
    A(f"s_cselect_b32 s{sA}, 0, {hex(W_QB - W_Q)}")
    A(f"s_cselect_b32 s75, s74, s{sTag}")
    A("s_cselect_b64 exec, 0, 1")
    A(f"ds_write_b32 v8, v159 offset:{F_BREQ}")
    A("s_mov_b64 exec, vcc")
    A(f"v_add_u32 v15, s{sA}, v165")
    for kb in range(4):
        A(f"buffer_load_dwordx4 v[{KF+4*kb}:{KF+4*kb+3}], v15, s[{SWS}:{SWS+3}], s{69+kb} offen sc1")
    spin_guard()
    A("s_waitcnt vmcnt(0)")
    tag_check(KF, 8, 75, vT, vT2)
    A("s_cbranch_vccnz L_qpoll")
    A("s_mov_b64 exec, -1")
    stamp(6)
    for kb in range(1, 4):
        A(f"v_add_f32 v{KF}, v{KF}, v{KF+4*kb}")
        A(f"v_add_f32 v{KF+2}, v{KF+2}, v{KF+4*kb+2}")
    A(f"v_cvt_pk_bf16_f32 v{vT}, v{KF}, v{KF+2}")
    A(f"ds_write_b32 v2, v{vT}")
    A(f"s_cmp_lt_u32 s{sB2}, {QB_EVERY if fast else 0}")
    A(f"s_cselect_b32 s{sA}, 2, 1")
    if mix:
        A(f"s_and_b32 s{sB2}, s{S_J}, {mix}")
        A(f"s_cselect_b32 s{sA}, 1, s{sA}")
    A(f"v_mov_b32 v{vT2}, s{sA}")
    lds_set(VDN, F_QRDY, vT2)
    lds_wait4(F_QRDY, 1, S, [f"ds_read_b128 v[{KF+4*s}:{KF+4*s+3}], v3 offset:{16*s}" for s in range(4)])
    A(f"v_readfirstlane_b32 s{sLoc}, v{S}")
    lds_set(8, F_CTL, S)
    if wearly:
        lds_wait4(F_WRDY, 2, S)
    for g in range(4):
        for i in range(16):
            A(f"v_cndmask_b32 v{Q+16*g+i}, 0, v{KF+i}, s[{76+2*g}:{77+2*g}]")
    stamp(2)

    def wait_landed(tgt):
        lo, ls = lab("lo"), lab("ls")
        A(f"s_cmp_ge_i32 s{sLd}, {tgt}")
        A(f"s_cbranch_scc1 {lo}")
        A(f"{ls}:")
        if slpc:
            A(f"s_sleep {slpc}")
        A(f"ds_read_b32 v{vT}, v8 offset:{F_LANDED}")
        spin_guard()
        A("s_waitcnt lgkmcnt(0)")
        A(f"v_readfirstlane_b32 s{sLd}, v{vT}")
        A(f"s_sub_u32 s{sLd}, s{sLd}, {LB}")
        A(f"s_cmp_ge_i32 s{sLd}, {tgt}")
        A(f"s_cbranch_scc0 {ls}")
        A(f"{lo}:")

    A("L_kwin:")
    for g in range(4):
        A(f"s_add_u32 s{sTg}, s{sTg}, 4")
        wait_landed(f"s{sTg}")
        for t in range(2):
            for s in range(4):
                r = KF + 16 * t + 4 * s
                A(f"ds_read_b128 v[{r}:{r+3}], v{AK + 4*(g>>1) + s} offset:{(g&1)*32768 + t*4096}")
        A(f"s_add_u32 s{sA}, s{sTg}, 3")
        A(f"s_min_u32 s{sA}, s{sA}, 64")
        A(f"v_mov_b32 v{vT2}, s{sA}")
        for t in range(2):
            A(f"s_waitcnt lgkmcnt({4 if t == 0 else 0})")
            if t == 1:
                lds_set(VDN, F_DONE, vT2)
            for s in range(4):
                r = KF + 16 * t + 4 * s
                c = "0" if (g == 0 and s == 0) else f"v[{S+4*t}:{S+4*t+3}]"
                q = Q + 16 * g + 4 * s
                A(f"v_mfma_f32_16x16x32_bf16 v[{S+4*t}:{S+4*t+3}], v[{r}:{r+3}], v[{q}:{q+3}], {c}")
    for i in range(12):
        A(f"v_mov_b32 v{SV+i}, v{SV+4+i}")
    for i in range(4):
        A(f"v_cvt_pk_bf16_f32 v{SV+12+i}, v{S+2*i}, v{S+2*i+1}")
    for i in range(4):
        unpack(S + 2 * i, SV + 12 + i)
    for i in range(8):
        A(f"v_mul_f32 v{S+i}, s{sSc}, v{S+i}")
    for i in range(4):
        A(f"v_cvt_pk_bf16_f32 v{SV+12+i}, v{S+2*i}, v{S+2*i+1}")
    A(f"v_max3_f32 v{vM}, v{vM}, v{S}, v{S+1}")
    A(f"v_max3_f32 v{vT}, v{S+2}, v{S+3}, v{S+4}")
    A(f"v_max3_f32 v{vM}, v{vM}, v{S+5}, v{S+6}")
    A(f"v_max3_f32 v{vM}, v{vM}, v{vT}, v{S+7}")
    A(f"s_cmp_lt_u32 s{sTg}, 60")
    A("s_cbranch_scc1 L_kwin")
    stamp(3)
    allreduce([vM], "v_max_f32", [vT], steps=("r4", "r8", "p16", "p32"))
    A("s_mov_b64 exec, 15")
    A(f"ds_write_b32 v5, v{vM} offset:{L_M - L_FLAG}")
    lds_set(VDN, F_MRDY, 159)
    lds_wait4(F_HRDY, 1, S)
    lds_wait4(F_MRDY, 1, S, [f"ds_read_b128 v[{S+4}:{S+7}], v4 offset:{L_M - L_FLAG}"])
    A(f"v_max3_f32 v{vM}, v{S+4}, v{S+5}, v{S+6}")
    A(f"v_max_f32 v{vM}, v{vM}, v{S+7}")
    A(f"v_cvt_pk_bf16_f32 v{vM}, v{vM}, v{vM}")
    A(f"v_and_b32 v{vM}, 0xffff0000, v{vM}")
    A(f"v_mul_f32 v{vM}, s{sL2E}, v{vM}")
    A(f"s_mov_b32 s{sA}, 4")
    A("L_pwin:")
    for i in range(4):
        unpack(S + 2 * i, SV + i)
    for i in range(8):
        A(f"v_fma_f32 v{S+i}, v{S+i}, s{sL2E}, -v{vM}")
    for i in range(8):
        A(f"v_exp_f32 v{S+i}, v{S+i}")
    for i in range(12):
        A(f"v_mov_b32 v{SV+i}, v{SV+4+i}")
    A("s_waitcnt lgkmcnt(0)")
    for i in range(4):
        A(f"v_cvt_pk_bf16_f32 v{KF+i}, v{S+2*i}, v{S+2*i+1}")
    A(f"ds_write_b128 v{vPW}, v[{KF}:{KF+3}]")
    for i in range(8):
        A(f"v_add_f32 v{vL}, v{vL}, v{S+i}")
    A(f"v_add_u32 v{vPW}, 0x1000, v{vPW}")
    A(f"s_sub_u32 s{sA}, s{sA}, 1")
    A(f"s_cmp_lg_u32 s{sA}, 0")
    A("s_cbranch_scc1 L_pwin")
    allreduce([vL], "v_add_f32", [vT], steps=("r4", "r8", "p16", "p32"))
    A("s_mov_b64 exec, 15")
    A(f"ds_write_b32 v5, v{vL} offset:{L_L - L_FLAG}")
    lds_set(VDN, F_PRDY, 159)
    lds_wait4(F_PRDY, 1, S, [f"ds_read_b128 v[{S+4}:{S+7}], v4 offset:{L_L - L_FLAG}"])
    A(f"v_add_f32 v{S+4}, v{S+4}, v{S+5}")
    A(f"v_add_f32 v{S+6}, v{S+6}, v{S+7}")
    A(f"v_mov_b32 v{S}, v{vM}")
    A(f"v_mov_b32 v{S+1}, s{sTag}")
    A(f"v_add_f32 v{S+2}, v{S+4}, v{S+6}")
    A(f"v_mov_b32 v{S+3}, s{sTag}")
    A(f"s_lshl_b64 exec, 1, s{sC}")
    store_by(sLoc, [f"buffer_store_dwordx4 v[{S}:{S+3}], v11, s[{SWS}:{SWS+3}], s73 offen"])
    A("s_mov_b64 exec, -1")
    A(f"s_mov_b32 s{sTg}, 64")
    stamp(7)
    def v_reads(g):
        return [f"ds_read_b64_tr_b16 v[{VF+4*tt+2*h}:{VF+4*tt+2*h+1}], v{AV+tt} offset:{g*8192 + h*4096}" for tt in range(2) for h in range(2)]

    def v_mfma(tt):
        A(f"v_mfma_f32_16x16x32_bf16 v[{O+4*tt}:{O+4*tt+3}], v[{VF+4*tt}:{VF+4*tt+3}], v[{PF}:{PF+3}], v[{O+4*tt}:{O+4*tt+3}]")

    A("L_vwin:")
    for g in range(4):
        A(f"ds_read_b128 v[{PF}:{PF+3}], v{vPR} offset:{g*256}")
        A(f"s_add_u32 s{sTg}, s{sTg}, 1")
        if g == 3:
            A(f"s_cmp_eq_u32 s{sTg}, 128")
            A("s_cbranch_scc1 L_vlast")
        wait_landed(f"s{sTg}")
        for r in v_reads(g):
            A(r)
        A(f"v_mov_b32 v{vT2}, s{sTg}")
        for tt in range(2):
            A(f"s_waitcnt lgkmcnt({2 if tt == 0 else 0})")
            v_mfma(tt)
        lds_set(VDN, F_DONE, vT2)
    for tt in range(2):
        A(f"v_add_u32 v{AV+tt}, 0x8000, v{AV+tt}")
        A(f"v_and_b32 v{AV+tt}, 0x1ffff, v{AV+tt}")
    A(f"v_add_u32 v{vPR}, 0x400, v{vPR}")
    A(f"s_cmp_lg_u32 s{sTg}, 120")
    A("s_cbranch_scc1 L_vwin")
    lds_wait4(F_HRDY, 2, S)
    A("s_branch L_vwin")
    A(".p2align 6")
    A("L_vlast:")
    if pads:
        A("s_cbranch_execz L_cpad")
    if spec:
        A("L_vl2:")
        A(f"ds_read_b32 v{vT}, v8 offset:{F_LANDED}")
        for r in v_reads(3):
            A(r)
        spin_guard()
        A("s_waitcnt lgkmcnt(4)")
        A(f"v_cmp_gt_i32 vcc, {128 + LB}, v{vT}")
        A("s_cbranch_vccnz L_vl2")
    else:
        wait_landed(128)
        for r in v_reads(3):
            A(r)
    for tt in range(2):
        A(f"s_waitcnt lgkmcnt({2 if tt == 0 else 0})")
        v_mfma(tt)
    A(f"s_cmp_eq_u32 s{sLoc}, 2")
    A("s_mov_b32 s86, 0x00ff00ff")
    A("s_mov_b32 s87, s86")
    nop(5)
    for i in range(4):
        A(f"v_mov_b32_dpp v{O+i}, v{O+4+i} row_shr:4 row_mask:0xf bank_mask:0x2")
    A("s_mov_b64 exec, s[86:87]")
    A("s_cbranch_scc0 L_o_far")
    A(f"buffer_store_dwordx4 v[{O}:{O+3}], v160, s[{SWS}:{SWS+3}], s68 offen")
    A("L_o_pub:")
    if opre in (3, 7):
        A(f"v_mov_b32 v{vT2}, 128")
        lds_set(VDN, F_DONE, vT2)
    stamp(4)
    if early:
        A(f"s_cmp_lg_u32 s{sC}, 0")
        A("s_cbranch_scc1 L_o_end")
        A("s_mov_b64 exec, 1")
        A(f"buffer_store_dword v164, v11, s[{SWS}:{SWS+3}], s58 offen")
        A("s_mov_b64 exec, 0xff")
        A(f"buffer_load_dwordx4 v[{S}:{S+3}], v10, s[{SWS}:{SWS+3}], s53 offen sc1")
        A(f"s_lshl_b32 s{sA}, s{S_KVH}, 7")
        A(f"s_add_u32 s{sA}, s{sA}, s59")
        A("s_waitcnt vmcnt(0)")
        A(f"v_min3_u32 v{vT}, v{S}, v{S+1}, v{S+2}")
        A(f"v_max3_u32 v{vT2}, v{S}, v{S+1}, v{S+2}")
        A(f"v_min_u32 v{vT}, v{vT}, v{S+3}")
        A(f"v_max_u32 v{vT2}, v{vT2}, v{S+3}")
        A(f"v_cmp_ne_u32 vcc, v164, v{vT}")
        A(f"v_cmp_ne_u32 s[86:87], v164, v{vT2}")
        A("s_or_b64 vcc, vcc, s[86:87]")
        A("s_cbranch_scc1 L_o_end")
        A("s_mov_b64 exec, 1")
        A(f"buffer_store_dword v164, v11, s[{SWS}:{SWS+3}], s{sA} offen sc1")
        stamp(12)
    A("L_o_end:")
    A(f"s_cmp_lg_u32 s{S_KVH}, {FX}")
    A("s_cbranch_scc1 L_c_end")
    A("s_mov_b64 exec, -1")
    lds_wait4(F_ORDY, 1, S)
    stamp(9)
    YG = 32
    A("s_mov_b64 s[86:87], -1")
    if not ind:
        A("s_branch L_ypoll")
    A("v_not_b32 v13, v164")
    A("L_ipoll:")
    if not yall:
        A("s_mov_b64 exec, s[86:87]")
    A(f"buffer_load_dword v13, v163, s[{SWS}:{SWS+3}], s59 offen sc1")
    spin_guard()
    A(f"s_waitcnt vmcnt({icap})")
    if yall:
        A("v_cmp_ne_u32 vcc, v164, v13")
        A("s_cbranch_vccnz L_ipoll")
        stamp(13)
        A("L_ypoll:")
    else:
        A("v_cmp_eq_u32 vcc, v164, v13")
        A("s_and_b64 exec, exec, vcc")
        A("s_cbranch_execz L_ipoll")
    A(f"buffer_load_dwordx4 v[{YG}:{YG+3}], v{vYA}, s[{SWS}:{SWS+3}], s52 offen sc1")
    if ycopy:
        A("s_or_b32 s52, s52, 0x20800")
    spin_guard()
    A("s_waitcnt vmcnt(0)")
    for k in range(4):
        A(f"v_xor_b32 v{YG+k}, s{54+k}, v{YG+k}")
    A(f"v_or3_b32 v{vT}, v{YG}, v{YG+1}, v{YG+2}")
    A(f"v_or_b32 v{vT}, v{vT}, v{YG+3}")
    A(f"v_and_b32 v{vT}, 0xff, v{vT}")
    if yall:
        A(f"v_cmp_ne_u32 vcc, 0, v{vT}")
        A("s_and_b64 exec, exec, vcc")
        A("s_cbranch_scc1 L_ypoll")
    else:
        A(f"v_cmp_eq_u32 vcc, 0, v{vT}")
        A("s_andn2_b64 s[86:87], s[86:87], vcc")
        A("s_cbranch_scc1 L_ipoll")
    A("s_mov_b64 exec, -1")
    stamp(10)
    A(f"v_add_f32_dpp v{YG+4}, v{YG}, v{YG} row_ror:12 row_mask:0xf bank_mask:0x5")
    A(f"v_add_f32_dpp v{YG+5}, v{YG+2}, v{YG+2} row_ror:12 row_mask:0xf bank_mask:0x5")
    nop(1)
    A(f"v_add_f32_dpp v{YG+4}, v{YG+1}, v{YG+1} row_ror:4 row_mask:0xf bank_mask:0xa")
    A(f"v_add_f32_dpp v{YG+5}, v{YG+3}, v{YG+3} row_ror:4 row_mask:0xf bank_mask:0xa")
    nop(1)
    A(f"v_add_f32_dpp v{YG+6}, v{YG+4}, v{YG+4} row_ror:8 row_mask:0xf bank_mask:0x3")
    nop(2)
    A(f"v_add_f32_dpp v{YG+6}, v{YG+5}, v{YG+5} row_ror:8 row_mask:0xf bank_mask:0xc")
    allreduce([YG + 6], "v_add_f32", [YG + 7], steps=("x2", "p16", "p32"))
    A(f"v_add_f32 v{YG+6}, v{YG+6}, v162")
    A("s_mov_b64 exec, 0x3333")
    A(f"v_cvt_pk_bf16_f32 v{YG+6}, v{YG+6}, v{YG+6}")
    A(f"buffer_store_short v{YG+6}, v161, s[{SOUT}:{SOUT+3}], s85 offen")
    A("s_cmp_lg_u32 s85, 0")
    A("s_cbranch_scc1 L_c_st")
    A("s_mov_b64 exec, 1")
    A(f"buffer_store_dword v164, v11, s[{SWS}:{SWS+3}], 0 offen")
    A("L_c_st:")
    stamp(11)
    A("L_c_end:")
    stamp_flush()
    if diag is not None:
        A("s_sub_u32 s88, s88, s90")
        if amp:
            A(f"s_sub_i32 s88, s88, {amp}"); A("s_max_i32 s88, s88, 0"); A("s_mul_i32 s88, s88, 10")
        if xdev is not None:
            A("s_cmp_lg_u32 s2, 1"); A("s_cbranch_scc1 L_abort")
            A("L_xd1:"); A("s_memrealtime s[86:87]"); A("s_waitcnt lgkmcnt(0)"); A("s_sub_u32 s86, s86, s90"); A("s_cmp_lt_u32 s86, 7000"); A("s_cbranch_scc1 L_xd1")
            A("s_mov_b64 exec, -1"); A(f"s_mov_b32 s87, {hex(W_STAMP)}"); A("v_lshlrev_b32 v44, 2, v0")
            for i in range(4): A(f"buffer_load_dword v{45+i}, v44, s[{SWS}:{SWS+3}], s87 offen offset:{256*i} sc1")
            A("s_waitcnt vmcnt(0)")
            for i in range(4): A(f"v_subrev_u32 v{45+i}, s90, v{45+i}")
            A("v_max3_i32 v52, v45, v46, v47"); A("v_max_i32 v52, v52, v48")
            A("v_add_u32 v45, v45, v46"); A("v_add_u32 v47, v47, v48"); A("v_add_u32 v45, v45, v47")
            allreduce([45], "v_add_u32", [50], steps=("r8", "p16", "p32"))
            A("v_mov_b32 v46, v45"); A("v_mov_b32 v51, v45")
            allreduce([46], "v_add_u32", [50], steps=("x1", "x2", "hm"))
            allreduce([51], "v_max_i32", [50], steps=("x1", "x2", "hm"))
            allreduce([52], "v_max_i32", [50])
            nop(1)
            if xdev < 8: A(f"v_readlane_b32 s86, v45, {xdev}")
            elif xdev == 8: A("v_readlane_b32 s86, v51, 0")
            else: A("v_readlane_b32 s86, v52, 0"); A("s_lshl_b32 s86, s86, 5")
            A("v_readlane_b32 s87, v46, 0")
            A("s_lshl_b32 s86, s86, 3"); A("s_sub_i32 s86, s86, s87"); A("s_mul_i32 s86, s86, 20"); A("s_ashr_i32 s88, s86, 8")
        A("s_add_u32 s88, s88, 10000")
        A("L_diag:")
        A("s_memrealtime s[86:87]")
        A("s_waitcnt lgkmcnt(0)")
        A("s_sub_u32 s86, s86, s90")
        A("s_cmp_lt_u32 s86, s88")
        A("s_cbranch_scc1 L_diag")
    A("s_endpgm")
    A("L_o_far:")
    A(f"buffer_store_dwordx4 v[{O}:{O+3}], v160, s[{SWS}:{SWS+3}], s68 offen sc1")
    A("s_branch L_o_pub")

    role[0] = "tail"
    SWO, SD = 40, 44
    sTw, sA, sB2, sTag, sWo, sDo, sO = 60, 65, 66, 67, 63, 64, 61
    GA, GB, WF, DF, HB, Y, R, W = 64, 80, 96, 112, 120, 128, 132, 136
    A("L_tail:")
    if pads:
        A("s_mov_b64 exec, 0")
        A("s_branch L_tend")
        A("L_tpad:")
        A("s_mov_b64 exec, -1")
    A(f"s_sub_u32 s{sTw}, s3, 6")
    srd(SWO, P_WO, 0 if nowt else 4096 * 512 * 2)
    srd(SD, P_D, 0 if nowt else 1792 * 512 * 2)
    A("v_lshl_or_b32 v4, v12, 10, v13")
    for i in range(1, 4):
        A(f"v_add_u32 v{4+i}, {i*(8192-1024)}, v4")
    A(f"s_lshr_b32 s{sO}, s{S_W}, 3")
    A(f"s_lshl_b32 s{sDo}, s{sO}, 2")
    A(f"s_add_u32 s{sDo}, s{sDo}, s{sTw}")
    A(f"s_lshl_b32 s{sWo}, s{sDo}, 15")
    A(f"s_lshl_b32 s{sDo}, s{sDo}, 14")
    A(f"s_and_b32 s{sB2}, s{S_J}, 7")
    A(f"s_lshl_b32 s{sA}, s{sB2}, 7")
    A(f"s_add_u32 s{sWo}, s{sWo}, s{sA}")
    A(f"s_add_u32 s{sDo}, s{sDo}, s{sA}")
    A(f"s_cmp_lt_u32 s{S_KVH}, 7")
    A(f"s_cselect_b32 s{sDo}, s{sDo}, 0")
    A(f"s_cselect_b32 s{SD+2}, s{SD+2}, 0")
    A(f"s_lshl_b32 s83, s{sTw}, 12")
    A(f"s_lshl_b32 s84, s{sTw}, 11")
    A(f"s_add_u32 m0, s84, {hex(L_DN)}")
    A(f"s_lshl_b32 s69, s{sO}, 9")
    if tdelay:
        lds_wait(F_LANDED, tdelay, 20, sA)
    for i in range(2):
        A(f"buffer_load_dwordx4 v{4+i}, s[{SD}:{SD+3}], s{sDo} offen offset:{i*1024} {pW} lds")
    if wearly:
        A("s_add_u32 m0, s83, 0x18000")
        nop(1)
        for i in range(4):
            A(f"buffer_load_dwordx4 v{4+i}, s[{SWO}:{SWO+3}], s{sWo} offen offset:{i*1024} {pW} lds")
    A(f"s_add_u32 s69, s69, {hex(W_ML)}")
    A("v_lshlrev_b32 v14, 7, v0")
    l1, l2, l3 = lab("tt"), lab("tt"), lab("tt")
    A(f"s_lshl_b32 s96, s{S_KVH}, 2")
    A(f"s_add_u32 s96, s96, s{sTw}")
    A("s_lshl_b32 s96, s96, 7")
    A(f"s_add_u32 s96, s96, {hex(W_MARK)}")
    A("s_mov_b64 exec, 1")
    A(f"buffer_load_dword v16, v11, s[{SWS}:{SWS+3}], s96 offen sc1")
    A(f"s_cmp_eq_u32 s{sTw}, 0")
    A(f"s_cbranch_scc1 {l3}")
    A(f"s_cmp_ge_u32 s{sTw}, 2")
    A(f"s_cbranch_scc1 {l1}")
    A(f"s_lshl_b32 s{sA}, s{S_W}, 11")
    A(f"s_add_u32 s{sA}, s{sA}, {hex(W_F)}")
    A("s_mov_b64 exec, 0xff")
    A(f"buffer_load_dword v17, v14, s[{SWS}:{SWS+3}], s{sA} offen sc1")
    A(f"s_branch {l3}")
    A(f"{l1}:")
    A(f"s_cmp_eq_u32 s{sTw}, 2")
    A(f"s_cbranch_scc0 {l2}")
    A("s_mov_b64 exec, 15")
    A(f"buffer_load_dword v17, v14, s[{SWS}:{SWS+3}], s69 offen sc1")
    A(f"s_branch {l3}")
    A(f"{l2}:")
    A("s_mov_b64 exec, 1")
    A(f"buffer_load_dword v17, v11, s[{SWO}:{SWO+3}], s{sWo} offen {pW}")
    if kvtouch:
        srd(52, P_K, 0x8000000)
        srd(56, P_V, 0x8000000)
        A(f"s_lshl_b32 s{sA}, s{S_B}, 3")
        A(f"s_add_u32 s{sA}, s{sA}, s{S_KVH}")
        A(f"s_lshl_b32 s{sA}, s{sA}, 4")
        A(f"s_add_u32 s{sA}, s{sA}, s{S_S}")
        A(f"s_lshl_b32 s{sA}, s{sA}, 19")
        A(f"buffer_load_dword v18, v11, s[52:55], s{sA} offen nt")
        A(f"buffer_load_dword v19, v11, s[56:59], s{sA} offen nt")
    A(f"{l3}:")
    A("s_mov_b64 exec, -1")
    A("v_lshrrev_b32 v144, 2, v0")
    A("v_lshlrev_b32 v144, 7, v144")
    A("v_bfe_u32 v14, v0, 3, 2")
    A(f"v_xor_b32 v14, s{sTw}, v14")
    A("v_lshl_or_b32 v144, v14, 5, v144")
    A("v_and_b32 v2, 3, v0")
    A("v_lshl_or_b32 v144, v2, 3, v144")
    A(f"v_add_u32 v145, {hex(L_DN)}, v144")
    A("v_bfe_u32 v15, v0, 3, 1")
    A("v_lshlrev_b32 v161, 6, v12")
    A("v_lshrrev_b32 v14, 5, v0")
    A("v_bfe_u32 v3, v0, 3, 2")
    A("v_and_b32 v162, 7, v0")
    A("v_lshlrev_b32 v162, 4, v162")
    A("v_lshl_or_b32 v162, v3, 11, v162")
    A("v_lshl_or_b32 v162, v14, 15, v162")
    A(f"s_lshl_b32 s70, s{S_KVH}, 7")
    A(f"s_lshr_b32 s{sA}, s{S_J}, 3")
    A(f"s_add_u32 s70, s70, s{sA}")
    A("s_lshl_b32 s70, s70, 2")
    A(f"s_add_u32 s70, s70, s{sTw}")
    A("s_lshl_b32 s70, s70, 7")
    A(f"s_add_u32 s70, s70, {hex(W_O)}")
    for i in range(1, 4):
        A(f"s_add_u32 s{70+i}, s70, {i*8192}")
    A("v_lshlrev_b32 v146, 6, v15")
    A("v_lshl_or_b32 v146, v1, 4, v146")
    A(f"v_add_u32 v146, {hex(L_OX)}, v146")
    A("v_lshlrev_b32 v147, 6, v14")
    A("v_lshl_or_b32 v147, v2, 4, v147")
    A("v_bfe_u32 v14, v0, 2, 1")
    A("v_lshl_or_b32 v147, v14, 3, v147")
    A("v_bfe_u32 v14, v0, 4, 1")
    A("v_lshl_or_b32 v147, v14, 2, v147")
    A(f"s_lshl_b32 s{sA}, s{sTw}, 7")
    A(f"v_add_u32 v147, s{sA}, v147")
    A(f"v_add_u32 v147, {hex(L_OX)}, v147")
    A("v_and_b32 v30, 7, v0")
    A("v_lshlrev_b32 v154, 4, v30")
    A("v_lshl_or_b32 v154, v12, 9, v154")
    A("v_lshlrev_b32 v30, 11, v30")
    A("v_lshl_or_b32 v30, v15, 8, v30")
    A("v_lshl_or_b32 v30, v1, 4, v30")
    A(f"s_lshl_b32 s75, s{sO}, 8")
    A(f"s_add_u32 s75, s75, s{sTw}")
    A("s_lshl_b32 s75, s75, 6")
    A(f"s_add_u32 s75, s75, {hex(W_F)}")
    A("v_lshlrev_b32 v163, 16, v15")
    A("v_lshl_or_b32 v163, v1, 4, v163")
    A(f"s_lshl_b32 s74, s{S_W}, 2")
    A(f"s_add_u32 s74, s74, s{sTw}")
    A("s_lshl_b32 s74, s74, 6")
    A(f"s_add_u32 s74, s74, {hex(W_Y)}")
    A("v_lshlrev_b32 v148, 3, v0")
    A(f"v_add_u32 v148, {hex(L_XN)}, v148")
    A(f"s_lshl_b32 s{sA}, s{sTw}, 9")
    A(f"v_add_u32 v149, s{sA}, v148")
    A(f"s_lshl_b32 s{sA}, s{sTw}, 2")
    A(f"v_add_u32 v9, s{sA}, v8")
    A("v_mov_b32 v23, 1")
    A("s_waitcnt vmcnt(0)")
    make_tag(sTag, 164)
    A("s_mov_b32 s85, 0xffffff00")
    A(f"v_mov_b32 v164, s{sTag}")
    A(f"s_lshl_b32 s78, s{S_KVH}, 7")
    A(f"s_add_u32 s78, s78, {hex(W_IND)}")
    for i in range(4):
        A(f"v_bfe_u32 v{150+i}, s{sTag}, {8*i}, 8")
    if wearly:
        lds_set(9, F_WRDY, 23)
        A("v_add_u32 v144, 0x18000, v144")
        lds_wait4(F_WRDY, 1, 16, [f"ds_read_b64_tr_b16 v[{WF+2*i}:{WF+2*i+1}], v144 offset:{2048*i}" for i in range(8)])
        A("v_mov_b32 v20, 2")
        lds_set(9, F_WRDY, 20)
    stamp(1)
    A(f"s_lshl_b32 s{sB2}, s{sTw}, 2")
    A(f"s_add_u32 s{sB2}, s{sB2}, {GATH_AT}")
    lds_wait(F_DONE, f"s{sB2}", 20, sA)
    A("v_mov_b32 v40, 0")
    A("v_mov_b32 v41, 0")
    A(f"s_cmp_ge_u32 s{S_KVH}, {0 if noffn else 7}")
    A("s_cbranch_scc1 L_noffn2")
    for i in range(4):
        A(f"s_bfe_u32 s{86+i}, s{sTag}, {hex(0x80000 + 8*i)}")
    lq = lab("fpoll")
    A(f"{lq}:")
    for i in range(2):
        A(f"buffer_load_dwordx4 v[{44+4*i}:{47+4*i}], v30, s[{SWS}:{SWS+3}], s75 offen offset:{512*i} sc1")
    spin_guard()
    A("s_waitcnt vmcnt(0)")
    byte_check(44, 8, 86, 60)
    A(f"s_cbranch_vccnz {lq}")
    allreduce([44 + i for i in range(8)], "v_add_f32", [], steps=("x1", "x2", "hm"))
    for i in range(4):
        A(f"v_cvt_pk_bf16_f32 v40, v{44+2*i}, v{45+2*i}")
        unpack(32 + 2 * i, 40)
    A("s_mov_b32 s80, 0x3d372713")
    A("s_mov_b32 s81, 0xc0135761")
    for i in range(4):
        A(f"v_mul_f32 v{44+i}, v{32+i}, v{32+i}")
        A(f"v_fma_f32 v{44+i}, v{44+i}, s80, 1.0")
        A(f"v_mul_f32 v{44+i}, v{44+i}, v{32+i}")
        A(f"v_mul_f32 v{44+i}, s81, v{44+i}")
        A(f"v_exp_f32 v{44+i}, v{44+i}")
    nop(1)
    for i in range(4):
        A(f"v_add_f32 v{44+i}, 1.0, v{44+i}")
    for i in range(4):
        A(f"v_rcp_f32 v{44+i}, v{44+i}")
    nop(1)
    for i in range(4):
        A(f"v_mul_f32 v{32+i}, v{32+i}, v{44+i}")
    for r in (32, 34):
        A(f"v_cvt_pk_bf16_f32 v40, v{r}, v{r+1}")
        unpack(r, 40)
    for i in range(4):
        A(f"v_mul_f32 v{32+i}, v{32+i}, v{36+i}")
    A("v_cvt_pk_bf16_f32 v40, v32, v33")
    A("v_cvt_pk_bf16_f32 v41, v34, v35")
    A("L_noffn2:")
    A("ds_write_b64 v149, v[40:41]")
    lds_set(9, F_HRDY, 23)
    lds_wait4(F_HRDY, 1, 28, [f"ds_read_b64 v[{HB+2*i}:{HB+2*i+1}], v148 offset:{512*i}" for i in range(4)] +
              [f"ds_read_b64_tr_b16 v[{DF+2*i}:{DF+2*i+1}], v145 offset:{2048*i}" for i in range(4)])
    A(f"v_mfma_f32_16x16x32_bf16 v[{Y}:{Y+3}], v[{DF}:{DF+3}], v[{HB}:{HB+3}], 0")
    A(f"v_mfma_f32_16x16x32_bf16 v[{Y}:{Y+3}], v[{DF+4}:{DF+7}], v[{HB+4}:{HB+7}], v[{Y}:{Y+3}]")
    stamp(2)
    lds_wait(F_DONE, ML_AT, 20, sA)
    lds_wait(F_CTL, 1, 20, 79)
    A("s_mov_b32 s62, s79")
    lq = lab("mlpoll")
    A(f"{lq}:")
    for i in range(4):
        A(f"buffer_load_dwordx4 v[{44+4*i}:{47+4*i}], v161, s[{SWS}:{SWS+3}], s69 offen offset:{16*i} sc1")
    spin_guard()
    A("s_waitcnt vmcnt(0)")
    tag_check(44, 8, sTag, 60, 61)
    A(f"s_cbranch_vccnz {lq}")
    for i in range(4):
        A(f"v_mov_b32 v{16+i}, -1")
    A(f"s_lshl_b32 s{sA}, s{S_W}, 4")
    A(f"s_add_u32 s{sA}, s{sA}, s{sTw}")
    A(f"s_lshl_b32 s{sA}, s{sA}, 7")
    A(f"s_add_u32 s{sA}, s{sA}, {hex(W_O)}")
    A("s_mov_b32 exec_hi, 0")
    store_by(62, [f"buffer_store_dwordx4 v[16:19], v154, s[{SWS}:{SWS+3}], s{sA} offen"])
    A(f"s_lshl_b32 s{sA}, s{S_J}, 2")
    A(f"s_add_u32 s{sA}, s{sA}, s96")
    A("s_mov_b64 exec, 1")
    A("v_mov_b32 v20, 2")
    A("s_waitcnt vmcnt(0)")
    store_by(62, [f"buffer_store_dword v164, v11, s[{SWS}:{SWS+3}], s{sA} offen"])
    lds_set(9, F_HRDY, 20)
    A("v_max3_f32 v26, v44, v48, v52")
    A("v_max_f32 v26, v26, v56")
    allreduce([26], "v_max_f32", [27], steps=("r8", "p16"))
    for i in range(4):
        A(f"v_sub_f32 v{W+i}, v{44+4*i}, v26")
    for i in range(4):
        A(f"v_exp_f32 v{W+i}, v{W+i}")
    A(f"v_mul_f32 v27, v{W}, v46")
    for i in range(1, 4):
        A(f"v_fmac_f32 v27, v{W+i}, v{46+4*i}")
    allreduce([27], "v_add_f32", [26], steps=("r8", "p16"))
    A("v_rcp_f32 v27, v27")
    A(f"s_add_u32 s76, s{S_J}, s{sTw}")
    if early:
        A("s_lshr_b32 s79, s79, 1")
        A("s_add_u32 s76, s76, s79")
    A("s_cmp_eq_u32 s76, 0")
    A("s_cselect_b64 s[76:77], 1, 0")
    for i in range(4):
        A(f"v_mul_f32 v{W+i}, v{W+i}, v27")
    A("s_mov_b32 m0, s83")
    A("s_mov_b32 s80, 0x00ff00ff"); A("s_mov_b32 s81, s80")
    A("s_mov_b32 s82, 0x01010101"); A("s_mov_b32 s83, s82")
    lds_wait(F_DONE, CLR_CHK, 20, sA)
    A("v_lshlrev_b32 v14, 2, v0")
    A("s_mov_b32 exec_hi, 0")
    lq = lab("cpoll")
    A(f"{lq}:")
    A(f"buffer_load_dword v17, v14, s[{SWS}:{SWS+3}], s96 offen sc1")
    spin_guard()
    A("s_waitcnt vmcnt(0)")
    A("v_cmp_ne_u32 vcc, v164, v17")
    A(f"s_cbranch_vccnz {lq}")
    A("s_mov_b32 exec_hi, -1")
    if retouch:
        lds_wait(F_DONE, retouch, 20, sA)
        A(f"s_lshl_b32 s{sA}, s{S_W}, 2")
        A(f"s_add_u32 s{sA}, s{sA}, s{sTw}")
        A(f"s_lshl_b32 s{sA}, s{sA}, 9")
        A(f"s_add_u32 s{sA}, s{sA}, {hex(W_O)}")
        A("v_lshlrev_b32 v14, 7, v0")
        A("s_mov_b64 exec, 15")
        A(f"buffer_load_dword v17, v14, s[{SWS}:{SWS+3}], s{sA} offen sc1")
        A("s_mov_b64 exec, -1")
    if gate:
        A("v_lshlrev_b32 v155, 4, v12")
        A(f"s_lshl_b32 s68, s{S_KVH}, 7")
        A(f"s_add_u32 s68, s68, {hex(W_PROG)}")
        A("s_cmp_eq_u32 s62, 2")
        A("s_cselect_b32 s62, 200, 0")
    if slp:
        lds_wait(F_DONE, 120, 20, sA)
    stamp(5)
    A("s_branch L_tend")
    A(".p2align 6")
    A("L_tend:")
    if pads:
        A("s_cbranch_execz L_tpad")
    if TRIG == 0:
        lds_wait4(F_DONE, 114, 28)
        lds_wait(F_ISS, 1, 28, sA)
    elif TRIG < 128:
        lds_wait4(F_DONE, TRIG, 28)
    else:
        lds_wait(F_LANDED, 128 + LB, 28, sA)
    A("s_setprio 2")
    stamp(3)
    for i in range(0 if wearly else 4):
        A(f"buffer_load_dwordx4 v{4+i}, s[{SWO}:{SWO+3}], s{sWo} offen offset:{i*1024} {pW} lds")

    def o_load(i):
        A(f"buffer_load_dwordx4 v[{GA+4*i}:{GA+4*i+3}], v162, s[{SWS}:{SWS+3}], s{70+i} offen sc1")

    def m_load():
        A(f"buffer_load_dwordx4 v[156:159], v155, s[{SWS}:{SWS+3}], s68 offen sc1")

    if gate:
        m_load()
        for i in range(16):
            A(f"v_mov_b32 v{GA+i}, -1")
        A("s_waitcnt vmcnt(1)")
    else:
        if opre == 2:
            lds_wait(F_LANDED, 128 + LB, 28, sA)
        elif opre == 3:
            lds_wait4(F_DONE, 128, 28)
        elif opre in (4, 5, 6):
            A(f"s_waitcnt vmcnt({opre - 3})")
        if not opre or opre == 7:
            A("s_waitcnt vmcnt(0)")
        for i in range(0 if opre == 7 else 4):
            o_load(i)
        if opre and opre != 7:
            A("s_waitcnt vmcnt(4)")
    if not wearly:
        lds_set(9, F_WRDY, 23)
    stamp(4)
    wfrag = [f"ds_read_b64_tr_b16 v[{WF+2*i}:{WF+2*i+1}], v144 offset:{2048*i}" for i in range(8)]
    if gate:
        A("s_waitcnt vmcnt(0)")
        for i in range(4):
            A(f"v_cmp_le_u32 vcc, s62, v{156+i}")
            A("s_mov_b64 exec, vcc")
            o_load(i)
            A("s_mov_b64 exec, -1")
        m_load()
    if not wearly:
        lds_wait4(F_WRDY, 1, 28, wfrag)
    if opre == 7:
        lds_wait4(F_DONE, 128, 28)
        for i in range(4):
            o_load(i)
    stamp(6)
    if ocap:
        A("s_waitcnt vmcnt(0)")
    A("s_branch L_ob")
    A("L_oa:")
    if gate:
        A("s_waitcnt vmcnt(0)")
        for i in range(4):
            A(f"v_cmp_le_u32 s[{52+2*i}:{53+2*i}], s62, v{156+i}")
    for i in range(4):
        if gate:
            A(f"s_and_b64 exec, s[{86+2*i}:{87+2*i}], s[{52+2*i}:{53+2*i}]")
        else:
            A(f"s_mov_b64 exec, s[{86+2*i}:{87+2*i}]")
        o_load(i)
    A("s_mov_b64 exec, -1")
    if gate:
        m_load()
    spin_guard()
    A("L_ob:")
    for i in range(4):
        if ocap:
            if i == 0:
                A(f"s_waitcnt vmcnt({ocap})")
        elif cw:
            A(f"s_waitcnt vmcnt({3-i+(1 if gate else 0)})")
        elif i == 0:
            A(f"s_waitcnt vmcnt({1 if gate else 0})")
        A(f"v_max3_u32 v20, v{GA+4*i}, v{GA+4*i+1}, v{GA+4*i+2}")
        A(f"v_max_u32 v20, v20, v{GA+4*i+3}")
        A(f"v_cmp_eq_u32 s[{86+2*i}:{87+2*i}], -1, v20")
    A("s_or_b64 s[94:95], s[86:87], s[88:89]")
    A("s_or_b64 s[94:95], s[94:95], s[90:91]")
    A("s_or_b64 s[94:95], s[94:95], s[92:93]")
    A("s_cbranch_scc1 L_oa")

    def send_ind():
        A("s_mov_b64 exec, s[76:77]")
        A("s_cbranch_execnz L_ind")
        A("L_noind:")
    if indpos == 0:
        send_ind()
        A("s_mov_b64 exec, -1")
    stamp(7)
    for k in range(4):
        A(f"v_mul_f32 v{R+k}, v{GA+k}, v{W}")
    for i in range(1, 4):
        for k in (0, 2, 1, 3):
            A(f"v_fmac_f32 v{R+k}, v{GA+4*i+k}, v{W+i}")
    A(f"v_permlane16_swap_b32 v{R}, v{R+2}")
    nop(1)
    A(f"v_permlane16_swap_b32 v{R+1}, v{R+3}")
    A(f"v_add_f32 v{R}, v{R}, v{R+2}")
    A(f"v_add_f32 v{R+1}, v{R+1}, v{R+3}")
    allreduce([R, R + 1], "v_add_f32", [], steps=("r8",))
    A("s_mov_b64 exec, s[80:81]")
    A(f"v_cvt_pk_bf16_f32 v24, v{R}, v{R+1}")
    A("ds_write_b32 v147, v24")
    lds_set(9, F_ORDY, 23)
    if indpos == 1:
        send_ind()
        A("s_mov_b64 exec, -1")
    lds_wait4(F_ORDY, 1, 28, [f"ds_read_b128 v[{32+4*i}:{35+4*i}], v146 offset:{128*i}" for i in range(4)])
    for i in range(4):
        A(f"v_mfma_f32_16x16x32_bf16 v[{Y}:{Y+3}], v[{WF+4*i}:{WF+4*i+3}], v[{32+4*i}:{35+4*i}], v[{Y}:{Y+3}]")
    if indpos == 2:
        nop(5)
        send_ind()
    else:
        nop(7)
    A("s_mov_b64 exec, s[82:83]")
    for i in range(4):
        A(f"v_and_or_b32 v{Y+i}, v{Y+i}, s85, v{150+i}")
    A(f"buffer_store_dwordx4 v[{Y}:{Y+3}], v163, s[{SWS}:{SWS+3}], s74 offen sc1")
    if ycopy:
        A("s_add_u32 s74, s74, 0x20800")
        A(f"buffer_store_dwordx4 v[{Y}:{Y+3}], v163, s[{SWS}:{SWS+3}], s74 offen sc1")
    if indpos == 3:
        send_ind()
    if wb in (1, 2):
        A(f"s_lshl_b32 s{sA}, s{sTw}, 8")
        A(f"s_add_u32 s{sA}, s{sA}, s{S_W}")
        A(f"s_cmp_lg_u32 s{sA}, {32*FX}")
        A("s_cbranch_scc1 L_nowb")
        if wb == 2:
            A("s_waitcnt vmcnt(0)")
        A("buffer_wbl2 sc1")
        A("s_waitcnt vmcnt(0)")
        A("L_nowb:")
    stamp(8)
    stamp_flush()
    A("s_endpgm")
    A("L_ind:")
    A(f"buffer_store_dword v164, v11, s[{SWS}:{SWS+3}], s78 offen sc1")
    if wb == 3:
        A("buffer_wbl2 sc1")
    A("s_branch L_noind")
    A("L_abort:")
    A("s_endpgm")
    sT = 66
    loader_rest()
    A("L_end:")
    nv = 168
    A('.section .rodata,"a"')
    A(".p2align 6")
    A(f".amdhsa_kernel {KNAME}")
    A(f"  .amdhsa_next_free_vgpr {nv}")
    A("  .amdhsa_next_free_sgpr 102")
    A(f"  .amdhsa_accum_offset {nv}")
    A("  .amdhsa_group_segment_fixed_size 0")
    A("  .amdhsa_kernarg_size 96")
    A("  .amdhsa_user_sgpr_count 2")
    A("  .amdhsa_user_sgpr_kernarg_segment_ptr 1")
    A("  .amdhsa_system_sgpr_workgroup_id_x 1")
    A(".end_amdhsa_kernel")
    out = []
    for ln in L:
        if ln.startswith((";", ".", " ")) or ln.endswith(":") or "\n" in ln:
            out.append(ln)
        else:
            out.append("    " + ln)
    return "\n".join(out) + "\n"


if __name__ == "__main__":
    kw = eval("dict(" + (sys.argv[2] if len(sys.argv) > 2 else "") + ")")
    open(sys.argv[1], "w").write(gen(**kw))
FINAL_WAVE = 2
```

```python
import sys
from gen_kernel import HEADER, KNAME

L_TILE = 0x20000
L_T2 = 0x1C000
L_DN = 0x24000
L_XN = 0x26000
L_Q = 0x26800
L_OX = 0x26C00
L_FLAG = 0x26E00
F_ORDY, F_DONE, F_QRDY, F_MRDY, F_PRDY, F_TILE, F_BREQ, F_CTL, F_HRDY, F_WRDY = 0, 16, 32, 48, 64, 80, 84, 88, 96, 112
L_M = L_FLAG + 128
L_L = L_FLAG + 192
F_LANDED = 256
F_ISS = 92
LB = 4
LDS_BYTES = 0x27000
W_EPOCH = 0x0
W_PROG = 0x1000
W_MARK = 0x3000
W_IND = 0x2000
W_ML = 0x4000
W_O = 0x10000
W_Y = 0xC0000
W_Q = W_O
W_F = W_O + 1024
W_QB = 0x110000
W_STAMP = 0x200000
WS_BYTES = 0x300000

LOG2E = 0x3FB8AA3B
SCALE = 0x3DB504F3
SPIN_MAX = 1 << 20


def gen(NLS=(16, 18, 20, 22, 24, 26), idx0=2, gain=1.0, bias=2.37, ctl=True, NL0=24, stamps=False, pK="nt", pW="nt", diag=None, TRIG=126,
        codepf=True, fast=True, QB_EVERY=8, GATH_AT=24, ML_AT=88, noffn=False, nowt=False,
        FX=0, boost7=0, touch=True, early=False, indpos=1, ind=True, opre=False, boostE=0.15, thr=(-9, -9, -9), slp=0, slpc=0, endn=0, endadd=0, rot=7, wb=0, wearly=False, ocap=0, icap=0, curve=False, idxS=0, tdelay=0, fine=False, retouch=0, gate=False, MARK_AT=0, CLR_CHK=104, xdev=None, amp=0, mix=0, ycopy=False, pt=False, gb=(0, 0, 0, 0, 0, 0, 0, 0), cw=True, pads=True, spec=True, kvtouch=True, yall=True):
    L = []
    A = L.append
    uid = [0]
    role = ["pro"]

    def lab(p):
        uid[0] += 1
        return f"L_{p}_{uid[0]}"

    def nop(n):
        while n > 0:
            k = min(n, 16)
            A(f"s_nop {k-1}")
            n -= k

    def srd(r, p, nbytes):
        A(f"s_mov_b32 s{r}, s{p}")
        A(f"s_mov_b32 s{r+1}, s{p+1}")
        A(f"s_mov_b32 s{r+2}, {hex(nbytes)}")
        A(f"s_mov_b32 s{r+3}, 0x20000")

    VST = 166

    def stamp(i):
        if diag is not None and role[0] == "cons" and diag == i:
            A("s_memrealtime s[88:89]")
            A("s_waitcnt lgkmcnt(0)")
        if not stamps:
            return
        A("s_memrealtime s[98:99]")
        A("s_waitcnt lgkmcnt(0)")
        A(f"v_writelane_b32 v{VST}, s98, {i}")

    def stamp_flush():
        if not stamps:
            return
        A("s_mov_b64 exec, -1")
        A(f"s_sub_u32 s97, {hex(SPIN_MAX)}, s15")
        A(f"v_writelane_b32 v{VST}, s97, 16")
        srd(92, P_WS, WS_BYTES)
        A("s_lshl_b32 s97, s2, 4")
        A("s_add_u32 s97, s97, s3")
        A("s_lshl_b32 s97, s97, 8")
        A(f"s_add_u32 s97, s97, {hex(W_STAMP)}")
        A(f"v_lshlrev_b32 v{VST+1}, 2, v0")
        A(f"buffer_store_dword v{VST}, v{VST+1}, s[92:95], s97 offen")
        A("s_waitcnt vmcnt(0)")

    def spin_guard():
        A("s_sub_u32 s15, s15, 1")
        A("s_cbranch_scc1 L_abort")

    def lds_wait(off, thr, vt, st):
        l = lab("w")
        A(f"{l}:")
        if slp and role[0] == "tail":
            A(f"s_sleep {slp}")
        A(f"ds_read_b32 v{vt}, v8 offset:{off}")
        spin_guard()
        A("s_waitcnt lgkmcnt(0)")
        A(f"v_readfirstlane_b32 s{st}, v{vt}")
        A(f"s_cmp_ge_i32 s{st}, {thr}")
        A(f"s_cbranch_scc0 {l}")

    def lds_wait4(off, thr, vq, extra=()):
        l = lab("w4")
        A(f"{l}:")
        A(f"ds_read_b128 v[{vq}:{vq+3}], v8 offset:{off}")
        for e in extra:
            A(e)
        spin_guard()
        A(f"s_waitcnt lgkmcnt({len(extra)})")
        A(f"v_min3_i32 v{vq}, v{vq}, v{vq+1}, v{vq+2}")
        A(f"v_min_i32 v{vq}, v{vq}, v{vq+3}")
        A(f"v_cmp_gt_i32 vcc, {thr}, v{vq}")
        if extra:
            A("s_waitcnt lgkmcnt(0)")
        A(f"s_cbranch_vccnz {l}")

    def lds_set(addr_v, off, val_v):
        A("s_mov_b64 exec, 1")
        A(f"ds_write_b32 v{addr_v}, v{val_v} offset:{off}")
        A("s_mov_b64 exec, -1")

    def allreduce(regs, op, tmps, steps=("x1", "x2", "hm", "m", "p16", "p32")):
        dpp = {"x1": "quad_perm:[1,0,3,2]", "x2": "quad_perm:[2,3,0,1]", "hm": "row_half_mirror", "m": "row_mirror",
               "r4": "row_ror:4", "r8": "row_ror:8"}
        for st in steps:
            if st in dpp:
                nop(max(0, 3 - len(regs)))
                for r in regs:
                    A(f"{op}_dpp v{r}, v{r}, v{r} {dpp[st]} row_mask:0xf bank_mask:0xf")
            else:
                ins = "v_permlane16_swap_b32" if st == "p16" else "v_permlane32_swap_b32"
                for r, t in zip(regs, tmps):
                    A(f"v_mov_b32 v{t}, v{r}")
                nop(max(0, 3 - len(regs)))
                for r, t in zip(regs, tmps):
                    A(f"{ins} v{r}, v{t}")
                nop(1)
                for r, t in zip(regs, tmps):
                    A(f"{op} v{r}, v{r}, v{t}")

    def make_tag(s, v):
        A(f"v_readfirstlane_b32 s{s}, v{v}")
        A(f"s_add_u32 s{s}, s{s}, 0x4d2b7f35")

    def local_tag(dst, tag):
        A(f"s_getreg_b32 s{dst}, hwreg(HW_REG_XCC_ID, 0, 4)")
        A(f"s_mul_i32 s{dst}, s{dst}, 0x10001")
        A(f"s_xor_b32 s{dst}, s{dst}, s{tag}")

    def store_by(sloc, ins):
        l1, l2 = lab("far"), lab("st")
        A(f"s_cmp_eq_u32 s{sloc}, 2")
        A(f"s_cbranch_scc0 {l1}")
        for i in ins:
            A(i)
        A(f"s_branch {l2}")
        A(f"{l1}:")
        for i in ins:
            A(i + " sc1")
        A(f"{l2}:")

    def tag_check(base, n, stag, t1, t2):
        for i in range(n):
            A(f"v_xor_b32 v{base+1+2*i}, s{stag}, v{base+1+2*i}")
        r = [base + 1 + 2 * i for i in range(n)]
        if n == 8:
            A(f"v_or3_b32 v{t1}, v{r[0]}, v{r[1]}, v{r[2]}")
            A(f"v_or3_b32 v{t2}, v{r[3]}, v{r[4]}, v{r[5]}")
            A(f"v_or3_b32 v{t1}, v{t1}, v{r[6]}, v{r[7]}")
            A(f"v_or_b32 v{t1}, v{t1}, v{t2}")
        else:
            A(f"v_or3_b32 v{t1}, v{r[0]}, v{r[1]}, v{r[2]}")
            A(f"v_or_b32 v{t1}, v{t1}, v{r[3]}")
        A(f"v_cmp_ne_u32 vcc, 0, v{t1}")

    def byte_check(base, n, sb, t):
        for i in range(n):
            A(f"v_xor_b32 v{base+i}, s{sb+(i&3)}, v{base+i}")
        A(f"v_or3_b32 v{t}, v{base}, v{base+1}, v{base+2}")
        for i in range(3, n - 1, 2):
            A(f"v_or3_b32 v{t}, v{t}, v{base+i}, v{base+i+1}")
        A(f"v_or_b32 v{t}, v{t}, v{base+n-1}")
        A(f"v_and_b32 v{t}, 0xff, v{t}")
        A(f"v_cmp_ne_u32 vcc, 0, v{t}")

    def vaddr_T0(dst, t1, t2, t3):
        A(f"v_lshrrev_b32 v{t1}, 2, v0")
        A(f"v_and_b32 v{t2}, 7, v{t1}")
        A(f"v_lshlrev_b32 v{t2}, 1, v{t2}")
        A(f"v_lshrrev_b32 v{t3}, 5, v0")
        A(f"v_or_b32 v{t2}, v{t2}, v{t3}")
        A(f"v_bfe_u32 v{t3}, v0, 1, 1")
        A(f"v_xor_b32 v{t2}, v{t2}, v{t3}")
        A(f"v_lshlrev_b32 v{t2}, 4, v{t2}")
        A(f"v_lshl_or_b32 v{dst}, v{t1}, 8, v{t2}")
        A(f"v_and_b32 v{t3}, 1, v0")
        A(f"v_lshl_or_b32 v{dst}, v{t3}, 3, v{dst}")

    def prog_addr(d, t):
        A(f"s_lshr_b32 s{d}, s{S_W}, 4")
        A(f"s_lshl_b32 s{d}, s{d}, 2")
        A(f"s_and_b32 s{t}, s{S_S}, 3")
        A(f"s_add_u32 s{d}, s{d}, s{t}")
        A(f"s_lshl_b32 s{d}, s{d}, 4")
        A(f"s_and_b32 s{t}, s{S_S}, 12")
        A(f"s_add_u32 s{d}, s{d}, s{t}")
        A(f"s_add_u32 s{d}, s{d}, {hex(W_PROG)}")

    def unpack(dst, src):
        A(f"v_lshlrev_b32 v{dst}, 16, v{src}")
        A(f"v_and_b32 v{dst+1}, 0xffff0000, v{src}")

    P_X, P_K, P_V, P_WQ, P_WO, P_BX, P_G, P_U, P_D, P_OUT, P_DBG, P_WS = range(16, 40, 2)
    S_KVH, S_J, S_B, S_S, S_RB, S_CH, S_W = 4, 5, 6, 7, 8, 9, 10

    A(HEADER)
    A(f"; @launch grid=(256,1,1) block=(640,1,1) lds={LDS_BYTES}")
    A('.amdgcn_target "amdgcn-amd-amdhsa--gfx950"')
    A(".text")
    A(f".globl {KNAME}")
    A(".p2align 8")
    A(f".type {KNAME},@function")
    A(f"{KNAME}:")
    A("s_cmp_ge_u32 s2, 256")
    A("s_cbranch_scc1 L_abort")
    A("s_load_dwordx16 s[16:31], s[0:1], 0")
    A("s_load_dwordx8 s[32:39], s[0:1], 64")
    if stamps:
        A("s_memrealtime s[98:99]")
        A(f"v_mov_b32 v{VST}, 0")
    if diag is not None:
        A("s_memrealtime s[90:91]")
    if pt:
        A("s_memtime s[84:85]")
    A(f"s_lshr_b32 s{S_J}, s2, 3")
    if codepf:
        A("s_getpc_b64 s[80:81]")
        A(f"s_lshl_b32 s6, s{S_J}, 9")
        A("v_subrev_u32 v2, 448, v0")
        A("v_cmp_gt_u32 vcc, 4, v2")
        A("v_lshl_add_u32 v2, v2, 7, s6")
        A(f"v_min_u32 v2, L_end-{KNAME}-64, v2")
        A("s_and_b64 exec, exec, vcc")
        A("s_cbranch_execz L_nopf")
        A("v_mov_b32 v3, 0")
        A("v_lshl_add_u64 v[2:3], v[2:3], 0, s[80:81]")
        A("global_load_dword v165, v[2:3], off")
        A("L_nopf:")
        A("s_mov_b64 exec, -1")
    A("v_lshrrev_b32 v1, 6, v0")
    A("v_and_b32 v0, 63, v0")
    A("v_readfirstlane_b32 s3, v1")
    A(f"v_mov_b32 v8, {hex(L_FLAG)}")
    A("v_lshl_add_u32 v9, v0, 2, v8")
    A("v_mov_b32 v11, 0")
    A("ds_write_b32 v9, v11")
    A(f"ds_write_b32 v9, v11 offset:{F_LANDED}")
    if rot:
        A(f"s_add_u32 s{S_KVH}, s2, {rot}")
        A(f"s_and_b32 s{S_KVH}, s{S_KVH}, 7")
    else:
        A(f"s_and_b32 s{S_KVH}, s2, 7")
    A(f"s_lshr_b32 s{S_B}, s{S_J}, 4")
    A(f"s_and_b32 s{S_S}, s{S_J}, 15")
    A(f"s_lshl_b32 s{S_W}, s{S_KVH}, 5")
    A(f"s_add_u32 s{S_W}, s{S_W}, s{S_J}")
    A(f"s_mov_b32 s15, {hex(SPIN_MAX)}")
    A("v_lshrrev_b32 v1, 4, v0")
    A("v_lshlrev_b32 v3, 1, v1")
    A("v_lshlrev_b32 v10, 4, v0")
    sO1, sO2, sN, sNc, sBase, sTt, sT, sIdx, sEv = 60, 61, 62, 63, 64, 65, 66, 68, 69
    sSmp, sPrevF, sPs, sPl, sCen = 70, 71, 72, 73, 74
    A("v_lshrrev_b32 v12, 3, v0")
    A("v_and_b32 v13, 7, v0")
    A("v_xor_b32 v13, v13, v3")
    A("v_lshlrev_b32 v13, 4, v13")
    A("v_lshl_or_b32 v4, v12, 13, v13")
    for i in range(1, 4):
        A(f"v_add_u32 v{4+i}, {i*(0x10000-1024)}, v4")
    A(f"s_lshr_b32 s{sT}, s{S_J}, 3")
    A(f"s_lshl_b32 s{sO1}, s{sT}, 10")
    A(f"s_add_u32 s{sO1}, s{sO1}, s{S_KVH}")
    A(f"s_lshl_b32 s{sO1}, s{sO1}, 3")
    A(f"s_and_b32 s{sT}, s{S_J}, 7")
    A(f"s_add_u32 s{sO1}, s{sO1}, s{sT}")
    A(f"s_lshl_b32 s{sO1}, s{sO1}, 7")
    A(f"s_mov_b32 s42, {hex(512*4096*2)}")
    A("s_mov_b32 s43, 0x20000")
    A("s_mov_b32 s46, 2048")
    A("s_mov_b32 s47, 0x20000")
    A(f"s_mov_b32 m0, {hex(L_TILE)}")
    A("s_cmp_lg_u32 s3, 0")
    if pt:
        A("s_memtime s[86:87]")
    A("s_waitcnt lgkmcnt(0)")
    if stamps:
        A(f"v_writelane_b32 v{VST}, s98, 0")
    A("s_cbranch_scc1 L_roles")

    role[0] = "ld"
    A(f"s_mov_b64 s[40:41], s[{P_WQ}:{P_WQ+1}]")
    A("s_setprio 3")
    if pt:
        A("s_memtime s[88:89]")
    A("L_ldq:")
    for i in range(4):
        A(f"buffer_load_dwordx4 v{4+i}, s[40:43], s{sO1} offen offset:{i*1024} {pW} lds")
    A("s_add_u32 m0, m0, 0x1000")
    A(f"s_add_u32 s{sO1}, s{sO1}, 0x40000")
    A(f"s_cmp_lt_u32 m0, {hex(L_TILE + 0x4000)}")
    A("s_cbranch_scc1 L_ldq")
    if pt:
        A("s_memtime s[90:91]")
    A("s_barrier")
    if pt:
        A("s_memtime s[92:93]")
        A("s_waitcnt lgkmcnt(0)")
        for i in range(4):
            A(f"s_sub_u32 s{86+2*i}, s{86+2*i}, s84")
            A(f"v_writelane_b32 v{VST}, s{86+2*i}, {56+i}")
    if fine:
        stamp(3)
    A("v_mul_u32_u24 v4, 3584, v12")
    A("v_add_u32 v4, v4, v13")
    for i in range(1, 4):
        A(f"v_add_u32 v{4+i}, {i*(8*3584-1024)}, v4")
    A(f"s_mul_i32 s{sO2}, s{sT}, {64*3584}")
    A(f"s_lshr_b32 s{sT}, s{S_W}, 3")
    A(f"s_lshl_b32 s{sT}, s{sT}, 7")
    A(f"s_add_u32 s{sO2}, s{sO2}, s{sT}")
    A(f"s_cmp_lt_u32 s{S_KVH}, {0 if noffn else 7}")
    A(f"s_cselect_b32 s42, {hex(512*1792*2)}, 0")
    A(f"s_mov_b64 s[40:41], s[{P_G}:{P_G+1}]")
    A(f"s_mov_b32 m0, {hex(L_T2)}")
    A("L_ldf2:")
    A(f"s_mov_b32 s{sO1}, s{sO2}")
    A("L_ldf:")
    for i in range(4):
        A(f"s_waitcnt vmcnt({NL0-1})")
        A(f"buffer_load_dwordx4 v{4+i}, s[40:43], s{sO1} offen offset:{i*1024} {pW} lds")
    A("s_add_u32 m0, m0, 0x1000")
    A(f"s_add_u32 s{sO1}, s{sO1}, {32*3584}")
    A("s_bitcmp1_b32 m0, 12")
    A("s_cbranch_scc1 L_ldf")
    A(f"s_mov_b64 s[40:41], s[{P_U}:{P_U+1}]")
    A("s_bitcmp1_b32 m0, 13")
    A("s_cbranch_scc1 L_ldf2")
    if fine:
        stamp(8)
    A("v_and_b32 v2, 15, v0")
    A("v_xor_b32 v2, v2, v3")
    A("v_lshlrev_b32 v2, 4, v2")
    A("v_lshl_or_b32 v4, v1, 8, v2")
    A("v_xor_b32 v5, 0x80, v4")
    A("v_xor_b32 v6, 16, v4")
    A("v_xor_b32 v7, 0x90, v4")
    A(f"s_lshl_b32 s{sBase}, s{S_B}, 3")
    A(f"s_add_u32 s{sBase}, s{sBase}, s{S_KVH}")
    A(f"s_lshl_b32 s{sBase}, s{sBase}, 4")
    A(f"s_add_u32 s{sBase}, s{sBase}, s{S_S}")
    A(f"s_lshl_b32 s{sBase}, s{sBase}, 1")
    A(f"s_add_u32 s{sBase}, s{sBase}, s{S_B}")
    A(f"s_lshl_b32 s{sBase}, s{sBase}, 1")
    A(f"s_bfe_u32 s{sT}, s{S_S}, 0x10002")
    A(f"s_add_u32 s{sBase}, s{sBase}, s{sT}")
    A(f"s_lshl_b32 s{sBase}, s{sBase}, 17")
    A(f"s_mov_b32 s{sO1}, s{sBase}")
    A("s_mov_b32 s42, 0x8000000")
    A(f"s_mov_b64 s[40:41], s[{P_K}:{P_K+1}]")
    A(f"s_mov_b32 s{sN}, 0")
    A(f"s_mov_b32 s{sTt}, 0")
    A("s_mov_b32 m0, 0")
    A(f"s_mov_b32 s{sEv}, 2")
    A(f"s_mov_b32 s{sNc}, 2")
    A(f"s_mov_b32 s{sIdx}, {idxS}")
    A(f"s_mov_b64 s[44:45], s[{P_WS}:{P_WS+1}]")
    A(f"s_mov_b32 s46, {hex(WS_BYTES)}")
    A("v_lshlrev_b32 v14, 3, v0")
    A("v_mov_b32 v22, 0")
    A(f"ds_read_b128 v[16:19], v8 offset:{F_DONE}")
    NV = len(NLS)
    extra = {
        0: [f"s_add_u32 s{sO2}, s{sO1}, 0x8000"],
        1: [f"s_or_b32 s{sTt}, s{sTt}, 0x8000", f"s_add_u32 s{sTt}, s{sTt}, 0x1000"],
        2: [f"s_and_b32 s{sTt}, s{sTt}, 0x77000"],
        3: ["s_add_u32 m0, m0, 0x1000"],
        4: [f"s_xor_b32 s{sO1}, s{sTt}, s{sBase}"],
        5: [f"s_add_u32 s{sN}, s{sN}, 1"],
        6: [f"s_add_u32 s{sT}, m0, 0x1000"],
        7: [f"s_and_b32 m0, s{sT}, 0x1ffff"],
    }

    def body(k):
        NL = NLS[k]
        pub_i = (NL - 1) % 8
        pub_d = (pub_i - NL + 1) // 8
        A(f"v_add_u32 v21, {pub_d + LB - 1}, v22")
        A(f"L_body{k}:")
        for i in range(8):
            A(f"s_waitcnt vmcnt({NL-1})")
            A(f"buffer_load_dwordx4 v{4+(i&3)}, s[40:43], s{sO1 if i < 4 else sO2} offen offset:{(i&3)*1024} {pK} lds")
            if i == 0:
                A("v_add_u32 v21, 1, v21")
            if i == pub_i:
                A(f"ds_max_i32 v9, v21 offset:{F_LANDED}")
            for e in extra.get(i, []):
                A(e)
        A(f"s_cmp_lg_u32 s{sN}, s{sEv}")
        A(f"s_cbranch_scc1 L_body{k}")

    A("L_def:")
    body(idx0)
    A("L_event:")
    if stamps:
        A(f"s_and_b32 s{sT}, s{sN}, 15"); A("s_cbranch_scc0 L_ldst")
        A("L_ldst_back:")
    A(f"s_bitcmp1_b32 s{sN}, 7")
    A("s_cbranch_scc1 L_drain")
    A(f"s_cmp_eq_u32 s{sN}, s{sNc}")
    A("s_cbranch_scc1 L_ctl")
    A("L_event2:")
    A("s_waitcnt lgkmcnt(0)")
    A("v_min3_i32 v20, v16, v17, v18")
    A("v_min_i32 v20, v20, v19")
    A(f"s_bitcmp1_b32 s{sN}, 6")
    A(f"v_readfirstlane_b32 s{sT}, v20")
    A("L_event3:")
    A(f"ds_read_b128 v[16:19], v8 offset:{F_DONE}")
    A(f"s_cselect_b64 s[40:41], s[{P_V}:{P_V+1}], s[40:41]")
    A(f"s_cmp_eq_u32 s{sT}, 0")
    A(f"s_cselect_b32 s{sEv}, {12 if wearly else 14}, 16")
    A(f"s_add_u32 s{sT}, s{sT}, s{sEv}")
    A(f"s_or_b32 s{sEv}, s{sN}, {15 if stamps else 63}")
    A(f"s_add_u32 s{sEv}, s{sEv}, 1")
    A(f"s_min_u32 s{sEv}, s{sEv}, s{sT}")
    A(f"s_min_u32 s{sEv}, s{sEv}, s{sNc}")
    A(f"v_mov_b32 v22, s{sN}")
    A(f"s_cmp_le_u32 s{sEv}, s{sN}")
    A("s_cbranch_scc1 L_full")
    A(f"s_cmp_eq_u32 s{sIdx}, 0")
    A("s_cbranch_scc1 L_def")
    A("s_branch L_var")
    A("L_full:")
    spin_guard()
    A("s_branch L_event2")
    A("L_roles:")
    A("s_cmp_lg_u32 s3, 1")
    A("s_cbranch_scc1 L_roles2")
    A(f"s_mov_b64 s[44:45], s[{P_X}:{P_X+1}]")
    A("s_setprio 2")
    A("buffer_load_dwordx4 v[16:19], v10, s[44:47], 0 offen")
    A("buffer_load_dwordx4 v[20:23], v10, s[44:47], 0 offen offset:1024")
    A("L_roles2:")
    A("s_barrier")
    A("s_cbranch_scc1 L_other")
    A("s_branch L_aux")
    A("L_drain:")

    def iss(k):
        if TRIG == 0:
            A(f"s_cmp_ge_i32 s{sIdx}, {k}")
            A("s_cselect_b64 exec, 1, 0")
            A(f"ds_write_b32 v8, v21 offset:{F_ISS}")
            A("s_mov_b64 exec, -1")
    iss(thr[0])
    stamp(1)
    for x in range(125, 129):
        A(f"v_mov_b32 v21, {x + LB}")
        if gate and x == 128 and MARK_AT:
            A("v_mov_b32 v24, 200")
            A("s_mov_b64 exec, 1")
            A(f"s_waitcnt vmcnt({MARK_AT})")
            A(f"buffer_store_dword v24, v11, s[44:47], s{sPs} offen")
            A("s_waitcnt vmcnt(1)")
        else:
            A(f"s_waitcnt vmcnt({(128 - x) * 8})")
        A(f"ds_max_i32 v9, v21 offset:{F_LANDED}")
        if x >= 126:
            iss((thr[1], thr[2], -9)[x - 126])
    if gate and not MARK_AT:
        A("v_mov_b32 v24, 200")
        A("s_mov_b64 exec, 1")
        A(f"buffer_store_dword v24, v11, s[44:47], s{sPs} offen")
    if xdev is not None:
        A("s_memrealtime s[98:99]"); A("s_lshl_b32 s97, s2, 2"); A(f"s_add_u32 s97, s97, {hex(W_STAMP)}")
        A("s_waitcnt lgkmcnt(0)")
        A("L_xd0:"); A("s_memrealtime s[94:95]"); A("s_waitcnt lgkmcnt(0)"); A("s_sub_u32 s94, s94, s90"); A("s_cmp_lt_u32 s94, 5000"); A("s_cbranch_scc1 L_xd0")
        A("v_mov_b32 v24, s98"); A("s_mov_b64 exec, 1"); A("buffer_store_dword v24, v11, s[44:47], s97 offen sc1")
    stamp(2)
    stamp_flush()
    A("s_endpgm")

    if stamps:
        A("L_ldst:")
        for n, k in ((16, 4), (32, 5), (64, 6), (96, 7)):
            l = lab("st")
            A(f"s_cmp_lg_u32 s{sN}, {n}"); A(f"s_cbranch_scc1 {l}"); stamp(k); A(f"{l}:")
        A("s_branch L_ldst_back")

    def loader_rest():
        A("L_ctl:")
        A(f"s_cmp_eq_u32 s{sN}, 2")
        A("s_cbranch_scc1 L_ctl_init")
        if curve:
            A("s_memrealtime s[98:99]")
            A(f"s_lshr_b32 s97, s{sN}, 2")
            A("s_add_u32 s97, s97, 20")
            A("s_mov_b32 s96, m0")
            A("s_mov_b32 m0, s97")
        A("s_waitcnt lgkmcnt(0)")
        if curve:
            A(f"v_writelane_b32 v{VST}, s98, m0")
            A("s_mov_b32 m0, s96")
        A("v_add_u32 v15, v12, v13")
        A(f"v_mov_b32 v24, s{sN}")
        A("v_readfirstlane_b32 s78, v23")
        A("s_mov_b64 exec, 1")
        A(f"buffer_store_dword v24, v11, s[44:47], s{sPs} offen")
        A("s_mov_b64 exec, 0xffff")
        A("v_add_u32_dpp v15, v15, v15 quad_perm:[1,0,3,2] row_mask:0xf bank_mask:0xf")
        A(f"buffer_load_dwordx2 v[12:13], v14, s[44:47], s{sPl} offen sc1")
        A(f"ds_read_b32 v23, v8 offset:{F_CTL}")
        A("v_add_u32_dpp v15, v15, v15 quad_perm:[2,3,0,1] row_mask:0xf bank_mask:0xf")
        A("v_min3_i32 v20, v16, v17, v18")
        A(f"s_add_u32 s{sNc}, s{sNc}, 4")
        A("v_add_u32_dpp v15, v15, v15 row_half_mirror row_mask:0xf bank_mask:0xf")
        A("v_min_i32 v20, v20, v19")
        A(f"s_add_u32 s{sSmp}, s{sSmp}, {4*32*int(gain*256)}")
        A("v_add_u32_dpp v15, v15, v15 row_mirror row_mask:0xf bank_mask:0xf")
        A(f"v_readfirstlane_b32 s{sT}, v20")
        A("v_readfirstlane_b32 s76, v15")
        A("s_mov_b64 exec, -1")
        A(f"s_mul_i32 s76, s76, {int(gain*256)}")
        A(f"s_sub_i32 s76, s76, s{sSmp}")
        A("s_ashr_i32 s76, s76, 13")
        if endn:
            A(f"s_cmp_ge_u32 s{sN}, {endn}")
            A(f"s_cselect_b32 s77, {endadd}, 0")
            A("s_add_i32 s76, s76, s77")
        A(f"s_max_i32 s76, s76, {-idx0}")
        A(f"s_min_i32 s76, s76, {NV-1-idx0}")
        A(f"s_cmp_eq_u32 s{sPrevF}, {2 if ctl else 3}")
        A(f"s_cselect_b32 s{sIdx}, s76, s{sIdx}")
        A(f"s_mov_b32 s{sPrevF}, s78")
        A(f"s_bitcmp1_b32 s{sN}, 6")
        A("s_branch L_event3")
        A("L_ctl_init:")
        if fine:
            stamp(9)
        prog_addr(sPs, sPl)
        A(f"s_and_b32 s{sPl}, s{sPs}, 0xffffff80")
        A(f"s_lshr_b32 s{sNc}, s{S_J}, 2")
        A(f"s_add_u32 s{sNc}, s{sNc}, s{S_J}")
        A(f"s_and_b32 s{sNc}, s{sNc}, 3")
        A(f"s_add_u32 s{sNc}, s{sNc}, 3")
        A(f"s_mov_b32 s{sPrevF}, 0")
        A(f"s_sub_u32 s{sSmp}, s{sNc}, 8")
        A(f"s_mul_i32 s{sSmp}, s{sSmp}, {32*int(gain*256)}")
        if any(gb):
            tab = sum((g + 8) << (4 * i) for i, g in enumerate(gb))
            A(f"s_and_b32 s{sCen}, s2, 7")
            A(f"s_lshl_b32 s{sCen}, s{sCen}, 2")
            A(f"s_lshr_b32 s{sCen}, {hex(tab)}, s{sCen}")
            A(f"s_and_b32 s{sCen}, s{sCen}, 15")
            A(f"s_sub_u32 s{sCen}, s{sCen}, 8")
            A(f"s_lshl_b32 s{sCen}, s{sCen}, 8")
        else:
            A(f"s_cmp_eq_u32 s{S_KVH}, 7")
            A(f"s_cselect_b32 s{sCen}, {int(boost7 * 256 * 32)}, 0")
        A(f"s_add_u32 s{sCen}, s{sCen}, {int((0.5 + bias * gain) * 256 * 32)}")
        A(f"s_sub_u32 s{sSmp}, s{sSmp}, s{sCen}")
        if boostE:
            A(f"s_getreg_b32 s{sCen}, hwreg(HW_REG_XCC_ID, 0, 1)")
            A(f"s_mul_i32 s{sCen}, s{sCen}, {int(boostE * 256 * 32)}")
            A(f"s_add_u32 s{sSmp}, s{sSmp}, s{sCen}")
        A("v_mov_b32 v12, 0"); A("v_mov_b32 v13, 0"); A("v_mov_b32 v23, 0")
        A("s_branch L_event2")
        A("L_var:")
        others = [i for i in range(NV) if i != idx0]

        def tree(lst):
            if len(lst) == 1:
                body(lst[0])
                A("s_branch L_event")
                return
            mid = len(lst) // 2
            l = lab("tr")
            A(f"s_cmp_ge_i32 s{sIdx}, {lst[mid] - idx0}")
            A(f"s_cbranch_scc1 {l}")
            tree(lst[:mid])
            A(f"{l}:")
            tree(lst[mid:])
        tree(others)

    role[0] = "aux"
    SWQ, SX, SWS, SG, SU, SOUT = 40, 44, 48, 52, 56, 60
    sO, sTag, sA, sB2, sThr, sLoc = 64, 65, 66, 67, 75, 84
    XB, TF = 64, 96
    A("L_aux:")
    A(f"s_lshr_b32 s{sB2}, s{S_J}, 3")
    srd(SWS, P_WS, WS_BYTES)
    A(f"buffer_load_dword v24, v11, s[{SWS}:{SWS+3}], 0 offen sc1")
    prog_addr(76, 77)
    A("s_mov_b64 exec, 1")
    A(f"buffer_store_dword v11, v11, s[{SWS}:{SWS+3}], s76 offen")
    A("s_mov_b64 exec, -1")
    stamp(1)
    A(f"v_add_u32 v25, {hex(L_XN)}, v10")
    A("v_bfe_u32 v15, v0, 3, 1")
    A("v_lshlrev_b32 v26, 10, v15")
    A("v_lshl_add_u32 v26, v1, 3, v26")
    A(f"v_add_u32 v26, {hex(L_XN)}, v26")
    A(f"s_lshl_b32 s{sA}, s{sB2}, 8")
    A(f"v_add_u32 v28, s{sA}, v26")
    A(f"s_and_b32 s{sA}, s{S_J}, 7")
    A(f"s_lshl_b32 s{sA}, s{sA}, 7")
    A(f"v_add_u32 v26, s{sA}, v26")
    A("v_lshrrev_b32 v29, 2, v0")
    A("v_lshlrev_b32 v29, 7, v29")
    A("v_bfe_u32 v30, v0, 3, 2")
    A("v_lshl_or_b32 v29, v30, 5, v29")
    A("v_and_b32 v30, 3, v0")
    A("v_lshl_or_b32 v29, v30, 3, v29")
    A(f"v_add_u32 v160, {hex(L_TILE)}, v29")
    for T in range(1, 4):
        A(f"v_xor_b32 v{160+T}, {32*T}, v160")
    A("v_lshlrev_b32 v27, 6, v30")
    A("v_lshl_or_b32 v27, v1, 4, v27")
    A("v_bfe_u32 v30, v0, 1, 2")
    A("v_lshlrev_b32 v31, 7, v30")
    A("v_lshl_or_b32 v31, v1, 5, v31")
    A("v_and_b32 v30, 1, v0")
    A("v_lshl_or_b32 v31, v30, 4, v31")
    A("v_lshl_or_b32 v31, v15, 9, v31")
    A(f"s_lshl_b32 s{sO}, s{S_W}, 11")
    A(f"s_add_u32 s{sO}, s{sO}, {hex(W_Q)}")
    for i in range(4):
        A(f"s_mov_b32 s{78+i}, {hex(0x07060500 + i)}")
    if True:
        A(f"buffer_load_dword v89, v31, s[{SWS}:{SWS+3}], s{sO} offen sc1")
    A("s_mov_b32 s68, 0xaaaaaaaa"); A("s_mov_b32 s69, s68")
    A("s_mov_b32 s70, 0xcccccccc"); A("s_mov_b32 s71, s70")
    A("s_mov_b32 s72, 0xf0f0f0f0"); A("s_mov_b32 s73, s72")
    A(f"s_waitcnt vmcnt(3)")
    stamp(2)
    XF = 32
    for b in range(2):
        for i in range(4):
            unpack(XF + 8 * b + 2 * i, 16 + 4 * b + i)
    for b in range(2):
        A(f"v_add_f32 v{48+b}, v{XF+8*b}, v{XF+8*b+1}")
    for i in range(2, 8):
        for b in range(2):
            A(f"v_add_f32 v{48+b}, v{48+b}, v{XF+8*b+i}")
    allreduce([48, 49], "v_add_f32", [50, 51])
    for b in range(2):
        A(f"v_mul_f32 v{48+b}, 0x3b000000, v{48+b}")
    for i in range(8):
        for b in range(2):
            A(f"v_sub_f32 v{52+b}, v{XF+8*b+i}, v{48+b}")
        for b in range(2):
            A(f"{'v_mul_f32' if i == 0 else 'v_fmac_f32'} v{54+b}, v{52+b}, v{52+b}")
    allreduce([54, 55], "v_add_f32", [50, 51])
    for b in range(2):
        A(f"v_mul_f32 v{54+b}, 0x3b000000, v{54+b}")
    A("v_cvt_pk_bf16_f32 v50, v48, v49")
    A("v_cvt_pk_bf16_f32 v51, v54, v55")
    unpack(48, 50)
    unpack(54, 51)
    A("v_add_f32 v54, 0x3727c5ac, v54"); A("v_add_f32 v55, 0x3727c5ac, v55")
    A("v_cvt_pk_bf16_f32 v51, v54, v55")
    unpack(54, 51)
    A("v_sqrt_f32 v54, v54"); A("v_sqrt_f32 v55, v55")
    nop(1)
    A("v_cvt_pk_bf16_f32 v51, v54, v55")
    unpack(54, 51)
    A("v_rcp_f32 v54, v54"); A("v_rcp_f32 v55, v55")
    for b in range(2):
        for i in range(8):
            A(f"v_sub_f32 v{XF+8*b+i}, v{XF+8*b+i}, v{48+b}")
        for i in range(4):
            A(f"v_cvt_pk_bf16_f32 v{56+4*b+i}, v{XF+8*b+2*i}, v{XF+8*b+2*i+1}")
        for i in range(4):
            unpack(XF + 8 * b + 2 * i, 56 + 4 * b + i)
        for i in range(8):
            A(f"v_mul_f32 v{XF+8*b+i}, v{XF+8*b+i}, v{54+b}")
        for i in range(4):
            A(f"v_cvt_pk_bf16_f32 v{56+4*b+i}, v{XF+8*b+2*i}, v{XF+8*b+2*i+1}")
        A(f"ds_write_b128 v25, v[{56+4*b}:{59+4*b}] offset:{1024*b}")
    A("s_waitcnt lgkmcnt(0)")
    for s in range(4):
        A(f"ds_read2_b64 v[{XB+4*s}:{XB+4*s+3}], v28 offset0:{8*s} offset1:{8*s+4}")
    for s in range(2):
        A(f"ds_read2_b64 v[{XB+16+4*s}:{XB+16+4*s+3}], v26 offset0:{8*s} offset1:{8*s+4}")
    stamp(3)
    lds_wait(F_LANDED, 2, 44, sA)
    A("s_waitcnt vmcnt(0)")
    stamp(4)

    def tile_mfma(acc_of, b_of, first):
        for hf in range(2):
            for s in range(2 * hf, 2 * hf + 2):
                for T in range(4):
                    r = TF + 16 * s + 4 * T
                    A(f"ds_read_b64_tr_b16 v[{r}:{r+1}], v{160+T} offset:{s*4096}")
                    A(f"ds_read_b64_tr_b16 v[{r+2}:{r+3}], v{160+T} offset:{s*4096+2048}")
                if s == 2 * hf:
                    A("s_waitcnt lgkmcnt(4)")
            A("s_waitcnt lgkmcnt(0)")
            for s in range(2 * hf, 2 * hf + 2):
                for T in range(4):
                    r = TF + 16 * s + 4 * T
                    d = acc_of(s, T)
                    c = "0" if first(s) else f"v[{d}:{d+3}]"
                    A(f"v_mfma_f32_16x16x32_bf16 v[{d}:{d+3}], v[{r}:{r+3}], v[{b_of(s)}:{b_of(s)+3}], {c}")

    def select_quad(D, out):
        for T in (0, 2):
            for r in range(4):
                A(f"v_cndmask_b32 v{D+4*T+r}, v{D+4*T+r}, v{D+4*T+4+r}, s[68:69]")
        for r in range(4):
            A(f"v_cndmask_b32 v{out+r}, v{D+r}, v{D+8+r}, s[70:71]")
        for r in range(4):
            A(f"v_add_u32 v{out+r}, 0x80, v{out+r}")

    def select_granule(D, out):
        for T in range(4):
            A(f"v_cndmask_b32 v{D+4*T}, v{D+4*T}, v{D+2+4*T}, s[68:69]")
            A(f"v_cndmask_b32 v{D+1+4*T}, v{D+1+4*T}, v{D+3+4*T}, s[68:69]")
        for T in (0, 2):
            A(f"v_cndmask_b32 v{D+4*T}, v{D+4*T}, v{D+4+4*T}, s[70:71]")
            A(f"v_cndmask_b32 v{D+1+4*T}, v{D+1+4*T}, v{D+5+4*T}, s[70:71]")
        A(f"v_cndmask_b32 v{out}, v{D}, v{D+8}, s[72:73]")
        A(f"v_cndmask_b32 v{out+2}, v{D+1}, v{D+9}, s[72:73]")

    def put_tag(dst, src, vtag):
        for r in range(4):
            A(f"v_perm_b32 v{dst+r}, v{src+r}, v{vtag}, s{78+r}")

    tile_mfma(lambda s, T: 32 + 4 * T, lambda s: XB + 4 * s, lambda s: s == 0)
    make_tag(sTag, 24)
    local_tag(sA, sTag)
    A(f"v_mov_b32 v17, s{sA}")
    A(f"v_mov_b32 v19, s{sA}")
    select_granule(32, 16)
    A(f"buffer_store_dwordx4 v[16:19], v31, s[{SWS}:{SWS+3}], s{sO} offen")
    A("v_mov_b32 v88, 1")
    A("s_setprio 0")
    A(f"s_add_u32 s{sO}, s{sO}, {hex(W_QB - W_Q)}")
    A(f"v_mov_b32 v17, s{sTag}")
    A(f"v_mov_b32 v19, s{sTag}")
    A(f"s_mov_b32 s{sB2}, 1")
    stamp(5)
    for T in range(4):
        A(f"v_add_u32 v{160+T}, {L_T2 - L_TILE}, v{160+T}")
    lds_wait(F_LANDED, 4, 44, sA)
    tile_mfma(lambda s, T: 32 + 16 * (s >> 1) + 4 * T, lambda s: XB + 16 + 4 * (s & 1), lambda s: s in (0, 2))
    lds_set(8, F_TILE, 88)
    nop(2)
    for i in range(16):
        A(f"v_cndmask_b32 v{32+i}, v{32+i}, v{48+i}, s[72:73]")
    select_quad(32, 92)
    put_tag(92, 92, 17)
    stamp(6)
    A("L_qserve:")
    A(f"ds_read_b128 v[44:47], v8 offset:{F_QRDY}")
    A(f"ds_read_b32 v48, v8 offset:{F_BREQ}")
    spin_guard()
    A("s_waitcnt lgkmcnt(0)")
    A("v_min3_i32 v44, v44, v45, v46")
    A("v_min_i32 v44, v44, v47")
    A(f"v_readfirstlane_b32 s{sA}, v48")
    A(f"v_readfirstlane_b32 s{sLoc}, v44")
    A(f"s_and_b32 s{sA}, s{sA}, s{sB2}")
    A("s_cbranch_scc0 L_qnob")
    A(f"buffer_store_dwordx4 v[16:19], v31, s[{SWS}:{SWS+3}], s{sO} offen sc1")
    A(f"s_mov_b32 s{sB2}, 0")
    A("L_qnob:")
    A(f"s_cmp_eq_u32 s{sLoc}, 0")
    A("s_cbranch_scc1 L_qserve")
    A(f"s_cmp_ge_u32 s{S_KVH}, {0 if noffn else 7}")
    A("s_cbranch_scc1 L_noffn1")
    A("v_lshl_or_b32 v30, v15, 8, v27")
    A("v_bfe_u32 v29, v0, 2, 1")
    A("v_lshl_or_b32 v30, v29, 9, v30")
    A(f"s_lshl_b32 s{sO}, s{S_W}, 11")
    A(f"s_add_u32 s{sO}, s{sO}, {hex(W_F)}")
    store_by(sLoc, [f"buffer_store_dwordx4 v[92:95], v30, s[{SWS}:{SWS+3}], s{sO} offen"])
    A("L_noffn1:")
    stamp(7)
    stamp_flush()
    A("s_endpgm")

    role[0] = "cons"
    SWS = 48
    sC, sLd, sTg, sL2E, sSc, sA, sB2, sTag, sLoc = 60, 61, 62, 63, 64, 65, 66, 67, 84
    AV, VDN, AK = 6, 9, 144
    S, O, KF, Q, SV = 16, 24, 32, 64, 128
    VF, PF = 32, 40
    vM, vNM, vL, vT, vT2, vPW, vPR = 152, 153, 154, 155, 156, 157, 158
    A("L_other:")
    srd(SWS, P_WS, WS_BYTES)
    A(f"buffer_load_dword v164, v11, s[{SWS}:{SWS+3}], 0 offen sc1")
    A("s_cmp_ge_u32 s3, 6")
    A("s_cbranch_scc1 L_tail")
    if pads:
        A("s_mov_b64 exec, 0")
        A("s_branch L_vlast")
        A("L_cpad:")
        A("s_mov_b64 exec, -1")
    A("s_setprio 1")
    A(f"s_sub_u32 s{sC}, s3, 2")
    A(f"s_lshl_b32 s69, s{S_KVH}, 4")
    A(f"s_add_u32 s69, s69, s{sC}")
    A("s_lshl_b32 s69, s69, 3")
    A(f"s_add_u32 s69, s69, s{S_B}")
    A("s_lshl_b32 s69, s69, 9")
    A(f"s_add_u32 s69, s69, {hex(W_Q)}")
    for kb in range(1, 4):
        A(f"s_add_u32 s{69+kb}, s69, {kb*0x4000}")
    A("v_lshrrev_b32 v12, 5, v0")
    A("v_and_b32 v165, 0x1f0, v10")
    A("v_lshl_or_b32 v165, v12, 11, v165")
    A(f"s_mov_b32 s{sL2E}, {hex(LOG2E)}")
    A(f"s_mov_b32 s{sSc}, {hex(SCALE)}")
    A("v_and_b32 v15, 3, v0")
    A("v_lshlrev_b32 v160, 9, v15")
    A(f"v_bfe_u32 v{vT2}, v0, 2, 1")
    A(f"v_lshl_or_b32 v160, v{vT2}, 6, v160")
    A("v_lshl_or_b32 v160, v1, 4, v160")
    A(f"s_lshl_b32 s68, s{S_W}, 11")
    A(f"s_lshl_b32 s{sA}, s{sC}, 7")
    A(f"s_add_u32 s68, s68, s{sA}")
    A(f"s_add_u32 s68, s68, {hex(W_O)}")
    A(f"s_lshl_b32 s73, s{S_KVH}, 2")
    A(f"s_add_u32 s73, s73, s{sC}")
    A("s_lshl_b32 s73, s73, 1")
    A(f"s_add_u32 s73, s73, s{S_B}")
    A("s_lshl_b32 s73, s73, 2")
    A(f"s_and_b32 s{sA}, s{S_S}, 3")
    A(f"s_add_u32 s73, s73, s{sA}")
    A("s_lshl_b32 s73, s73, 2")
    A(f"s_lshr_b32 s{sA}, s{S_S}, 2")
    A(f"s_add_u32 s73, s73, s{sA}")
    A("s_lshl_b32 s73, s73, 4")
    A(f"s_add_u32 s73, s73, {hex(W_ML)}")
    A(f"v_lshlrev_b32 v{vPR}, 4, v15")
    A(f"v_lshl_or_b32 v{vPR}, v1, 6, v{vPR}")
    A(f"v_add_u32 v{vPR}, {hex(L_TILE)}, v{vPR}")
    A(f"v_bfe_u32 v{vT}, v0, 2, 2")
    A(f"v_lshl_add_u32 v{vPW}, v{vT}, 10, v{vPR}")
    A(f"s_lshl_b32 s{sA}, s{sC}, 8")
    A(f"v_add_u32 v{vPW}, s{sA}, v{vPW}")
    A(f"s_add_u32 s{sA}, s{sA}, {hex(L_Q)}")
    A(f"v_lshl_add_u32 v2, v0, 2, s{sA}")
    A("v_lshlrev_b32 v3, 8, v15")
    A("v_lshl_add_u32 v3, v1, 6, v3")
    A(f"v_add_u32 v3, {hex(L_Q)}, v3")
    A("v_lshl_add_u32 v4, v15, 4, v8")
    A(f"s_lshl_b32 s{sA}, s{sC}, 2")
    A(f"v_add_u32 v5, s{sA}, v4")
    A(f"v_add_u32 v{VDN}, s{sA}, v8")
    A("v_and_b32 v14, 15, v0")
    A("v_and_b32 v12, 7, v0")
    A("v_lshlrev_b32 v12, 1, v12")
    A("v_bfe_u32 v13, v0, 3, 1")
    A("v_or_b32 v12, v12, v13")
    A("v_lshlrev_b32 v13, 2, v1")
    A("v_xor_b32 v12, v12, v13")
    A("v_lshlrev_b32 v12, 4, v12")
    A("v_lshl_or_b32 v12, v14, 8, v12")
    A(f"s_lshl_b32 s{sA}, s{sC}, 13")
    A(f"v_or_b32 v{AK}, s{sA}, v12")
    for s in range(1, 8):
        A(f"v_xor_b32 v{AK+s}, {hex(16*(s&3) + 0x10000*(s>>2))}, v{AK}")
    vaddr_T0(13, 12, 14, 15)
    A(f"s_lshl_b32 s{sA}, s{sC}, 6")
    A(f"v_xor_b32 v{AV}, s{sA}, v13")
    A(f"v_xor_b32 v{AV+1}, 32, v{AV}")
    A(f"s_mov_b32 s{sLd}, 0")
    A(f"s_sub_u32 s{sTg}, s{sC}, 3")
    A(f"v_mov_b32 v{vM}, 0xff800000")
    A(f"v_mov_b32 v{vL}, 0")
    for i in range(8):
        A(f"v_mov_b32 v{O+i}, 0")
    A("s_mov_b32 s76, 0x000f000f"); A("s_mov_b32 s77, s76")
    for g in range(1, 4):
        A(f"s_lshl_b64 s[{76+2*g}:{77+2*g}], s[76:77], {4*g}")
    A("v_mov_b32 v159, 1")
    if diag is not None:
        A("s_mov_b32 s88, s90")
    SX, SOUT = 40, 44
    vYA = 153
    srd(SX, P_X, 2048)
    srd(SOUT, P_OUT, 2048)
    A(f"s_lshl_b32 s85, s{S_J}, 2")
    A(f"s_add_u32 s85, s85, s{sC}")
    A("s_lshl_b32 s85, s85, 4")
    A("v_and_b32 v12, 1, v0")
    A("v_bfe_u32 v13, v0, 2, 2")
    A("v_lshlrev_b32 v13, 1, v13")
    A("v_lshl_or_b32 v161, v12, 3, v13")
    A("v_lshrrev_b32 v13, 1, v0")
    A("v_lshlrev_b32 v13, 11, v13")
    A(f"v_lshl_or_b32 v{vYA}, v12, 4, v13")
    A("v_lshrrev_b32 v163, 3, v0")
    A("v_lshlrev_b32 v163, 7, v163")
    A(f"s_lshl_b32 s52, s{S_B}, 16")
    A("s_and_b32 s53, s85, 0x3ff")
    A("s_lshl_b32 s53, s53, 1")
    A("s_add_u32 s52, s52, s53")
    A(f"s_add_u32 s52, s52, {hex(W_Y)}")
    A(f"s_mov_b32 s59, {hex(W_IND)}")
    A(f"s_cmp_lg_u32 s{S_KVH}, {FX}")
    A("s_cbranch_scc1 L_nofin")
    A(f"buffer_load_ushort v162, v161, s[{SX}:{SX+3}], s85 offen")
    A("s_mov_b64 exec, 1")
    A(f"buffer_store_short v11, v161, s[{SOUT}:{SOUT+3}], s85 offen")
    A("s_mov_b64 exec, -1")
    A("L_nofin:")
    A("s_waitcnt vmcnt(0)")
    make_tag(sTag, 164)
    local_tag(74, sTag)
    for i in range(4):
        A(f"s_bfe_u32 s{54+i}, s{sTag}, {hex(0x80000 + 8*i)}")
    A("v_lshlrev_b32 v162, 16, v162")
    A(f"v_mov_b32 v164, s{sTag}")
    stamp(1)
    lds_wait(F_TILE, 1, vT, sA)
    stamp(5)
    A("s_mov_b64 vcc, -1")
    A(f"s_mov_b32 s{sB2}, 0")
    A("L_qpoll:")
    A(f"s_add_u32 s{sB2}, s{sB2}, 1")
    A(f"s_and_b32 s{sA}, s{sB2}, {(QB_EVERY - 1) if fast else 0}")
    A(f"s_cselect_b32 s{sA}, 0, {hex(W_QB - W_Q)}")
    A(f"s_cselect_b32 s75, s74, s{sTag}")
    A("s_cselect_b64 exec, 0, 1")
    A(f"ds_write_b32 v8, v159 offset:{F_BREQ}")
    A("s_mov_b64 exec, vcc")
    A(f"v_add_u32 v15, s{sA}, v165")
    for kb in range(4):
        A(f"buffer_load_dwordx4 v[{KF+4*kb}:{KF+4*kb+3}], v15, s[{SWS}:{SWS+3}], s{69+kb} offen sc1")
    spin_guard()
    A("s_waitcnt vmcnt(0)")
    tag_check(KF, 8, 75, vT, vT2)
    A("s_cbranch_vccnz L_qpoll")
    A("s_mov_b64 exec, -1")
    stamp(6)
    for kb in range(1, 4):
        A(f"v_add_f32 v{KF}, v{KF}, v{KF+4*kb}")
        A(f"v_add_f32 v{KF+2}, v{KF+2}, v{KF+4*kb+2}")
    A(f"v_cvt_pk_bf16_f32 v{vT}, v{KF}, v{KF+2}")
    A(f"ds_write_b32 v2, v{vT}")
    A(f"s_cmp_lt_u32 s{sB2}, {QB_EVERY if fast else 0}")
    A(f"s_cselect_b32 s{sA}, 2, 1")
    if mix:
        A(f"s_and_b32 s{sB2}, s{S_J}, {mix}")
        A(f"s_cselect_b32 s{sA}, 1, s{sA}")
    A(f"v_mov_b32 v{vT2}, s{sA}")
    lds_set(VDN, F_QRDY, vT2)
    lds_wait4(F_QRDY, 1, S, [f"ds_read_b128 v[{KF+4*s}:{KF+4*s+3}], v3 offset:{16*s}" for s in range(4)])
    A(f"v_readfirstlane_b32 s{sLoc}, v{S}")
    lds_set(8, F_CTL, S)
    if wearly:
        lds_wait4(F_WRDY, 2, S)
    for g in range(4):
        for i in range(16):
            A(f"v_cndmask_b32 v{Q+16*g+i}, 0, v{KF+i}, s[{76+2*g}:{77+2*g}]")
    stamp(2)

    def wait_landed(tgt):
        lo, ls = lab("lo"), lab("ls")
        A(f"s_cmp_ge_i32 s{sLd}, {tgt}")
        A(f"s_cbranch_scc1 {lo}")
        A(f"{ls}:")
        if slpc:
            A(f"s_sleep {slpc}")
        A(f"ds_read_b32 v{vT}, v8 offset:{F_LANDED}")
        spin_guard()
        A("s_waitcnt lgkmcnt(0)")
        A(f"v_readfirstlane_b32 s{sLd}, v{vT}")
        A(f"s_sub_u32 s{sLd}, s{sLd}, {LB}")
        A(f"s_cmp_ge_i32 s{sLd}, {tgt}")
        A(f"s_cbranch_scc0 {ls}")
        A(f"{lo}:")

    A("L_kwin:")
    for g in range(4):
        A(f"s_add_u32 s{sTg}, s{sTg}, 4")
        wait_landed(f"s{sTg}")
        for t in range(2):
            for s in range(4):
                r = KF + 16 * t + 4 * s
                A(f"ds_read_b128 v[{r}:{r+3}], v{AK + 4*(g>>1) + s} offset:{(g&1)*32768 + t*4096}")
        A(f"s_add_u32 s{sA}, s{sTg}, 3")
        A(f"s_min_u32 s{sA}, s{sA}, 64")
        A(f"v_mov_b32 v{vT2}, s{sA}")
        for t in range(2):
            A(f"s_waitcnt lgkmcnt({4 if t == 0 else 0})")
            if t == 1:
                lds_set(VDN, F_DONE, vT2)
            for s in range(4):
                r = KF + 16 * t + 4 * s
                c = "0" if (g == 0 and s == 0) else f"v[{S+4*t}:{S+4*t+3}]"
                q = Q + 16 * g + 4 * s
                A(f"v_mfma_f32_16x16x32_bf16 v[{S+4*t}:{S+4*t+3}], v[{r}:{r+3}], v[{q}:{q+3}], {c}")
    for i in range(12):
        A(f"v_mov_b32 v{SV+i}, v{SV+4+i}")
    for i in range(4):
        A(f"v_cvt_pk_bf16_f32 v{SV+12+i}, v{S+2*i}, v{S+2*i+1}")
    for i in range(4):
        unpack(S + 2 * i, SV + 12 + i)
    for i in range(8):
        A(f"v_mul_f32 v{S+i}, s{sSc}, v{S+i}")
    for i in range(4):
        A(f"v_cvt_pk_bf16_f32 v{SV+12+i}, v{S+2*i}, v{S+2*i+1}")
    A(f"v_max3_f32 v{vM}, v{vM}, v{S}, v{S+1}")
    A(f"v_max3_f32 v{vT}, v{S+2}, v{S+3}, v{S+4}")
    A(f"v_max3_f32 v{vM}, v{vM}, v{S+5}, v{S+6}")
    A(f"v_max3_f32 v{vM}, v{vM}, v{vT}, v{S+7}")
    A(f"s_cmp_lt_u32 s{sTg}, 60")
    A("s_cbranch_scc1 L_kwin")
    stamp(3)
    allreduce([vM], "v_max_f32", [vT], steps=("r4", "r8", "p16", "p32"))
    A("s_mov_b64 exec, 15")
    A(f"ds_write_b32 v5, v{vM} offset:{L_M - L_FLAG}")
    lds_set(VDN, F_MRDY, 159)
    lds_wait4(F_HRDY, 1, S)
    lds_wait4(F_MRDY, 1, S, [f"ds_read_b128 v[{S+4}:{S+7}], v4 offset:{L_M - L_FLAG}"])
    A(f"v_max3_f32 v{vM}, v{S+4}, v{S+5}, v{S+6}")
    A(f"v_max_f32 v{vM}, v{vM}, v{S+7}")
    A(f"v_cvt_pk_bf16_f32 v{vM}, v{vM}, v{vM}")
    A(f"v_and_b32 v{vM}, 0xffff0000, v{vM}")
    A(f"v_mul_f32 v{vM}, s{sL2E}, v{vM}")
    A(f"s_mov_b32 s{sA}, 4")
    A("L_pwin:")
    for i in range(4):
        unpack(S + 2 * i, SV + i)
    for i in range(8):
        A(f"v_fma_f32 v{S+i}, v{S+i}, s{sL2E}, -v{vM}")
    for i in range(8):
        A(f"v_exp_f32 v{S+i}, v{S+i}")
    for i in range(12):
        A(f"v_mov_b32 v{SV+i}, v{SV+4+i}")
    A("s_waitcnt lgkmcnt(0)")
    for i in range(4):
        A(f"v_cvt_pk_bf16_f32 v{KF+i}, v{S+2*i}, v{S+2*i+1}")
    A(f"ds_write_b128 v{vPW}, v[{KF}:{KF+3}]")
    for i in range(8):
        A(f"v_add_f32 v{vL}, v{vL}, v{S+i}")
    A(f"v_add_u32 v{vPW}, 0x1000, v{vPW}")
    A(f"s_sub_u32 s{sA}, s{sA}, 1")
    A(f"s_cmp_lg_u32 s{sA}, 0")
    A("s_cbranch_scc1 L_pwin")
    allreduce([vL], "v_add_f32", [vT], steps=("r4", "r8", "p16", "p32"))
    A("s_mov_b64 exec, 15")
    A(f"ds_write_b32 v5, v{vL} offset:{L_L - L_FLAG}")
    lds_set(VDN, F_PRDY, 159)
    lds_wait4(F_PRDY, 1, S, [f"ds_read_b128 v[{S+4}:{S+7}], v4 offset:{L_L - L_FLAG}"])
    A(f"v_add_f32 v{S+4}, v{S+4}, v{S+5}")
    A(f"v_add_f32 v{S+6}, v{S+6}, v{S+7}")
    A(f"v_mov_b32 v{S}, v{vM}")
    A(f"v_mov_b32 v{S+1}, s{sTag}")
    A(f"v_add_f32 v{S+2}, v{S+4}, v{S+6}")
    A(f"v_mov_b32 v{S+3}, s{sTag}")
    A(f"s_lshl_b64 exec, 1, s{sC}")
    store_by(sLoc, [f"buffer_store_dwordx4 v[{S}:{S+3}], v11, s[{SWS}:{SWS+3}], s73 offen"])
    A("s_mov_b64 exec, -1")
    A(f"s_mov_b32 s{sTg}, 64")
    stamp(7)
    def v_reads(g):
        return [f"ds_read_b64_tr_b16 v[{VF+4*tt+2*h}:{VF+4*tt+2*h+1}], v{AV+tt} offset:{g*8192 + h*4096}" for tt in range(2) for h in range(2)]

    def v_mfma(tt):
        A(f"v_mfma_f32_16x16x32_bf16 v[{O+4*tt}:{O+4*tt+3}], v[{VF+4*tt}:{VF+4*tt+3}], v[{PF}:{PF+3}], v[{O+4*tt}:{O+4*tt+3}]")

    A("L_vwin:")
    for g in range(4):
        A(f"ds_read_b128 v[{PF}:{PF+3}], v{vPR} offset:{g*256}")
        A(f"s_add_u32 s{sTg}, s{sTg}, 1")
        if g == 3:
            A(f"s_cmp_eq_u32 s{sTg}, 128")
            A("s_cbranch_scc1 L_vlast")
        wait_landed(f"s{sTg}")
        for r in v_reads(g):
            A(r)
        A(f"v_mov_b32 v{vT2}, s{sTg}")
        for tt in range(2):
            A(f"s_waitcnt lgkmcnt({2 if tt == 0 else 0})")
            v_mfma(tt)
        lds_set(VDN, F_DONE, vT2)
    for tt in range(2):
        A(f"v_add_u32 v{AV+tt}, 0x8000, v{AV+tt}")
        A(f"v_and_b32 v{AV+tt}, 0x1ffff, v{AV+tt}")
    A(f"v_add_u32 v{vPR}, 0x400, v{vPR}")
    A(f"s_cmp_lg_u32 s{sTg}, 120")
    A("s_cbranch_scc1 L_vwin")
    lds_wait4(F_HRDY, 2, S)
    A("s_branch L_vwin")
    A(".p2align 6")
    A("L_vlast:")
    if pads:
        A("s_cbranch_execz L_cpad")
    if spec:
        A("L_vl2:")
        A(f"ds_read_b32 v{vT}, v8 offset:{F_LANDED}")
        for r in v_reads(3):
            A(r)
        spin_guard()
        A("s_waitcnt lgkmcnt(4)")
        A(f"v_cmp_gt_i32 vcc, {128 + LB}, v{vT}")
        A("s_cbranch_vccnz L_vl2")
    else:
        wait_landed(128)
        for r in v_reads(3):
            A(r)
    for tt in range(2):
        A(f"s_waitcnt lgkmcnt({2 if tt == 0 else 0})")
        v_mfma(tt)
    A(f"s_cmp_eq_u32 s{sLoc}, 2")
    A("s_mov_b32 s86, 0x00ff00ff")
    A("s_mov_b32 s87, s86")
    nop(5)
    for i in range(4):
        A(f"v_mov_b32_dpp v{O+i}, v{O+4+i} row_shr:4 row_mask:0xf bank_mask:0x2")
    A("s_mov_b64 exec, s[86:87]")
    A("s_cbranch_scc0 L_o_far")
    A(f"buffer_store_dwordx4 v[{O}:{O+3}], v160, s[{SWS}:{SWS+3}], s68 offen")
    A("L_o_pub:")
    if opre in (3, 7):
        A(f"v_mov_b32 v{vT2}, 128")
        lds_set(VDN, F_DONE, vT2)
    stamp(4)
    if early:
        A(f"s_cmp_lg_u32 s{sC}, 0")
        A("s_cbranch_scc1 L_o_end")
        A("s_mov_b64 exec, 1")
        A(f"buffer_store_dword v164, v11, s[{SWS}:{SWS+3}], s58 offen")
        A("s_mov_b64 exec, 0xff")
        A(f"buffer_load_dwordx4 v[{S}:{S+3}], v10, s[{SWS}:{SWS+3}], s53 offen sc1")
        A(f"s_lshl_b32 s{sA}, s{S_KVH}, 7")
        A(f"s_add_u32 s{sA}, s{sA}, s59")
        A("s_waitcnt vmcnt(0)")
        A(f"v_min3_u32 v{vT}, v{S}, v{S+1}, v{S+2}")
        A(f"v_max3_u32 v{vT2}, v{S}, v{S+1}, v{S+2}")
        A(f"v_min_u32 v{vT}, v{vT}, v{S+3}")
        A(f"v_max_u32 v{vT2}, v{vT2}, v{S+3}")
        A(f"v_cmp_ne_u32 vcc, v164, v{vT}")
        A(f"v_cmp_ne_u32 s[86:87], v164, v{vT2}")
        A("s_or_b64 vcc, vcc, s[86:87]")
        A("s_cbranch_scc1 L_o_end")
        A("s_mov_b64 exec, 1")
        A(f"buffer_store_dword v164, v11, s[{SWS}:{SWS+3}], s{sA} offen sc1")
        stamp(12)
    A("L_o_end:")
    A(f"s_cmp_lg_u32 s{S_KVH}, {FX}")
    A("s_cbranch_scc1 L_c_end")
    A("s_mov_b64 exec, -1")
    lds_wait4(F_ORDY, 1, S)
    stamp(9)
    YG = 32
    A("s_mov_b64 s[86:87], -1")
    if not ind:
        A("s_branch L_ypoll")
    A("v_not_b32 v13, v164")
    A("L_ipoll:")
    if not yall:
        A("s_mov_b64 exec, s[86:87]")
    A(f"buffer_load_dword v13, v163, s[{SWS}:{SWS+3}], s59 offen sc1")
    spin_guard()
    A(f"s_waitcnt vmcnt({icap})")
    if yall:
        A("v_cmp_ne_u32 vcc, v164, v13")
        A("s_cbranch_vccnz L_ipoll")
        stamp(13)
        A("L_ypoll:")
    else:
        A("v_cmp_eq_u32 vcc, v164, v13")
        A("s_and_b64 exec, exec, vcc")
        A("s_cbranch_execz L_ipoll")
    A(f"buffer_load_dwordx4 v[{YG}:{YG+3}], v{vYA}, s[{SWS}:{SWS+3}], s52 offen sc1")
    if ycopy:
        A("s_or_b32 s52, s52, 0x20800")
    spin_guard()
    A("s_waitcnt vmcnt(0)")
    for k in range(4):
        A(f"v_xor_b32 v{YG+k}, s{54+k}, v{YG+k}")
    A(f"v_or3_b32 v{vT}, v{YG}, v{YG+1}, v{YG+2}")
    A(f"v_or_b32 v{vT}, v{vT}, v{YG+3}")
    A(f"v_and_b32 v{vT}, 0xff, v{vT}")
    if yall:
        A(f"v_cmp_ne_u32 vcc, 0, v{vT}")
        A("s_and_b64 exec, exec, vcc")
        A("s_cbranch_scc1 L_ypoll")
    else:
        A(f"v_cmp_eq_u32 vcc, 0, v{vT}")
        A("s_andn2_b64 s[86:87], s[86:87], vcc")
        A("s_cbranch_scc1 L_ipoll")
    A("s_mov_b64 exec, -1")
    stamp(10)
    A(f"v_add_f32_dpp v{YG+4}, v{YG}, v{YG} row_ror:12 row_mask:0xf bank_mask:0x5")
    A(f"v_add_f32_dpp v{YG+5}, v{YG+2}, v{YG+2} row_ror:12 row_mask:0xf bank_mask:0x5")
    nop(1)
    A(f"v_add_f32_dpp v{YG+4}, v{YG+1}, v{YG+1} row_ror:4 row_mask:0xf bank_mask:0xa")
    A(f"v_add_f32_dpp v{YG+5}, v{YG+3}, v{YG+3} row_ror:4 row_mask:0xf bank_mask:0xa")
    nop(1)
    A(f"v_add_f32_dpp v{YG+6}, v{YG+4}, v{YG+4} row_ror:8 row_mask:0xf bank_mask:0x3")
    nop(2)
    A(f"v_add_f32_dpp v{YG+6}, v{YG+5}, v{YG+5} row_ror:8 row_mask:0xf bank_mask:0xc")
    allreduce([YG + 6], "v_add_f32", [YG + 7], steps=("x2", "p16", "p32"))
    A(f"v_add_f32 v{YG+6}, v{YG+6}, v162")
    A("s_mov_b64 exec, 0x3333")
    A(f"v_cvt_pk_bf16_f32 v{YG+6}, v{YG+6}, v{YG+6}")
    A(f"buffer_store_short v{YG+6}, v161, s[{SOUT}:{SOUT+3}], s85 offen")
    A("s_cmp_lg_u32 s85, 0")
    A("s_cbranch_scc1 L_c_st")
    A("s_mov_b64 exec, 1")
    A(f"buffer_store_dword v164, v11, s[{SWS}:{SWS+3}], 0 offen")
    A("L_c_st:")
    stamp(11)
    A("L_c_end:")
    stamp_flush()
    if diag is not None:
        A("s_sub_u32 s88, s88, s90")
        if amp:
            A(f"s_sub_i32 s88, s88, {amp}"); A("s_max_i32 s88, s88, 0"); A("s_mul_i32 s88, s88, 10")
        if xdev is not None:
            A("s_cmp_lg_u32 s2, 1"); A("s_cbranch_scc1 L_abort")
            A("L_xd1:"); A("s_memrealtime s[86:87]"); A("s_waitcnt lgkmcnt(0)"); A("s_sub_u32 s86, s86, s90"); A("s_cmp_lt_u32 s86, 7000"); A("s_cbranch_scc1 L_xd1")
            A("s_mov_b64 exec, -1"); A(f"s_mov_b32 s87, {hex(W_STAMP)}"); A("v_lshlrev_b32 v44, 2, v0")
            for i in range(4): A(f"buffer_load_dword v{45+i}, v44, s[{SWS}:{SWS+3}], s87 offen offset:{256*i} sc1")
            A("s_waitcnt vmcnt(0)")
            for i in range(4): A(f"v_subrev_u32 v{45+i}, s90, v{45+i}")
            A("v_max3_i32 v52, v45, v46, v47"); A("v_max_i32 v52, v52, v48")
            A("v_add_u32 v45, v45, v46"); A("v_add_u32 v47, v47, v48"); A("v_add_u32 v45, v45, v47")
            allreduce([45], "v_add_u32", [50], steps=("r8", "p16", "p32"))
            A("v_mov_b32 v46, v45"); A("v_mov_b32 v51, v45")
            allreduce([46], "v_add_u32", [50], steps=("x1", "x2", "hm"))
            allreduce([51], "v_max_i32", [50], steps=("x1", "x2", "hm"))
            allreduce([52], "v_max_i32", [50])
            nop(1)
            if xdev < 8: A(f"v_readlane_b32 s86, v45, {xdev}")
            elif xdev == 8: A("v_readlane_b32 s86, v51, 0")
            else: A("v_readlane_b32 s86, v52, 0"); A("s_lshl_b32 s86, s86, 5")
            A("v_readlane_b32 s87, v46, 0")
            A("s_lshl_b32 s86, s86, 3"); A("s_sub_i32 s86, s86, s87"); A("s_mul_i32 s86, s86, 20"); A("s_ashr_i32 s88, s86, 8")
        A("s_add_u32 s88, s88, 10000")
        A("L_diag:")
        A("s_memrealtime s[86:87]")
        A("s_waitcnt lgkmcnt(0)")
        A("s_sub_u32 s86, s86, s90")
        A("s_cmp_lt_u32 s86, s88")
        A("s_cbranch_scc1 L_diag")
    A("s_endpgm")
    A("L_o_far:")
    A(f"buffer_store_dwordx4 v[{O}:{O+3}], v160, s[{SWS}:{SWS+3}], s68 offen sc1")
    A("s_branch L_o_pub")

    role[0] = "tail"
    SWO, SD = 40, 44
    sTw, sA, sB2, sTag, sWo, sDo, sO = 60, 65, 66, 67, 63, 64, 61
    GA, GB, WF, DF, HB, Y, R, W = 64, 80, 96, 112, 120, 128, 132, 136
    A("L_tail:")
    if pads:
        A("s_mov_b64 exec, 0")
        A("s_branch L_tend")
        A("L_tpad:")
        A("s_mov_b64 exec, -1")
    A(f"s_sub_u32 s{sTw}, s3, 6")
    srd(SWO, P_WO, 0 if nowt else 4096 * 512 * 2)
    srd(SD, P_D, 0 if nowt else 1792 * 512 * 2)
    A("v_lshl_or_b32 v4, v12, 10, v13")
    for i in range(1, 4):
        A(f"v_add_u32 v{4+i}, {i*(8192-1024)}, v4")
    A(f"s_lshr_b32 s{sO}, s{S_W}, 3")
    A(f"s_lshl_b32 s{sDo}, s{sO}, 2")
    A(f"s_add_u32 s{sDo}, s{sDo}, s{sTw}")
    A(f"s_lshl_b32 s{sWo}, s{sDo}, 15")
    A(f"s_lshl_b32 s{sDo}, s{sDo}, 14")
    A(f"s_and_b32 s{sB2}, s{S_J}, 7")
    A(f"s_lshl_b32 s{sA}, s{sB2}, 7")
    A(f"s_add_u32 s{sWo}, s{sWo}, s{sA}")
    A(f"s_add_u32 s{sDo}, s{sDo}, s{sA}")
    A(f"s_cmp_lt_u32 s{S_KVH}, 7")
    A(f"s_cselect_b32 s{sDo}, s{sDo}, 0")
    A(f"s_cselect_b32 s{SD+2}, s{SD+2}, 0")
    A(f"s_lshl_b32 s83, s{sTw}, 12")
    A(f"s_lshl_b32 s84, s{sTw}, 11")
    A(f"s_add_u32 m0, s84, {hex(L_DN)}")
    A(f"s_lshl_b32 s69, s{sO}, 9")
    if tdelay:
        lds_wait(F_LANDED, tdelay, 20, sA)
    for i in range(2):
        A(f"buffer_load_dwordx4 v{4+i}, s[{SD}:{SD+3}], s{sDo} offen offset:{i*1024} {pW} lds")
    if wearly:
        A("s_add_u32 m0, s83, 0x18000")
        nop(1)
        for i in range(4):
            A(f"buffer_load_dwordx4 v{4+i}, s[{SWO}:{SWO+3}], s{sWo} offen offset:{i*1024} {pW} lds")
    A(f"s_add_u32 s69, s69, {hex(W_ML)}")
    A("v_lshlrev_b32 v14, 7, v0")
    l1, l2, l3 = lab("tt"), lab("tt"), lab("tt")
    A(f"s_lshl_b32 s96, s{S_KVH}, 2")
    A(f"s_add_u32 s96, s96, s{sTw}")
    A("s_lshl_b32 s96, s96, 7")
    A(f"s_add_u32 s96, s96, {hex(W_MARK)}")
    A("s_mov_b64 exec, 1")
    A(f"buffer_load_dword v16, v11, s[{SWS}:{SWS+3}], s96 offen sc1")
    A(f"s_cmp_eq_u32 s{sTw}, 0")
    A(f"s_cbranch_scc1 {l3}")
    A(f"s_cmp_ge_u32 s{sTw}, 2")
    A(f"s_cbranch_scc1 {l1}")
    A(f"s_lshl_b32 s{sA}, s{S_W}, 11")
    A(f"s_add_u32 s{sA}, s{sA}, {hex(W_F)}")
    A("s_mov_b64 exec, 0xff")
    A(f"buffer_load_dword v17, v14, s[{SWS}:{SWS+3}], s{sA} offen sc1")
    A(f"s_branch {l3}")
    A(f"{l1}:")
    A(f"s_cmp_eq_u32 s{sTw}, 2")
    A(f"s_cbranch_scc0 {l2}")
    A("s_mov_b64 exec, 15")
    A(f"buffer_load_dword v17, v14, s[{SWS}:{SWS+3}], s69 offen sc1")
    A(f"s_branch {l3}")
    A(f"{l2}:")
    A("s_mov_b64 exec, 1")
    A(f"buffer_load_dword v17, v11, s[{SWO}:{SWO+3}], s{sWo} offen {pW}")
    if kvtouch:
        srd(52, P_K, 0x8000000)
        srd(56, P_V, 0x8000000)
        A(f"s_lshl_b32 s{sA}, s{S_B}, 3")
        A(f"s_add_u32 s{sA}, s{sA}, s{S_KVH}")
        A(f"s_lshl_b32 s{sA}, s{sA}, 4")
        A(f"s_add_u32 s{sA}, s{sA}, s{S_S}")
        A(f"s_lshl_b32 s{sA}, s{sA}, 19")
        A(f"buffer_load_dword v18, v11, s[52:55], s{sA} offen nt")
        A(f"buffer_load_dword v19, v11, s[56:59], s{sA} offen nt")
    A(f"{l3}:")
    A("s_mov_b64 exec, -1")
    A("v_lshrrev_b32 v144, 2, v0")
    A("v_lshlrev_b32 v144, 7, v144")
    A("v_bfe_u32 v14, v0, 3, 2")
    A(f"v_xor_b32 v14, s{sTw}, v14")
    A("v_lshl_or_b32 v144, v14, 5, v144")
    A("v_and_b32 v2, 3, v0")
    A("v_lshl_or_b32 v144, v2, 3, v144")
    A(f"v_add_u32 v145, {hex(L_DN)}, v144")
    A("v_bfe_u32 v15, v0, 3, 1")
    A("v_lshlrev_b32 v161, 6, v12")
    A("v_lshrrev_b32 v14, 5, v0")
    A("v_bfe_u32 v3, v0, 3, 2")
    A("v_and_b32 v162, 7, v0")
    A("v_lshlrev_b32 v162, 4, v162")
    A("v_lshl_or_b32 v162, v3, 11, v162")
    A("v_lshl_or_b32 v162, v14, 15, v162")
    A(f"s_lshl_b32 s70, s{S_KVH}, 7")
    A(f"s_lshr_b32 s{sA}, s{S_J}, 3")
    A(f"s_add_u32 s70, s70, s{sA}")
    A("s_lshl_b32 s70, s70, 2")
    A(f"s_add_u32 s70, s70, s{sTw}")
    A("s_lshl_b32 s70, s70, 7")
    A(f"s_add_u32 s70, s70, {hex(W_O)}")
    for i in range(1, 4):
        A(f"s_add_u32 s{70+i}, s70, {i*8192}")
    A("v_lshlrev_b32 v146, 6, v15")
    A("v_lshl_or_b32 v146, v1, 4, v146")
    A(f"v_add_u32 v146, {hex(L_OX)}, v146")
    A("v_lshlrev_b32 v147, 6, v14")
    A("v_lshl_or_b32 v147, v2, 4, v147")
    A("v_bfe_u32 v14, v0, 2, 1")
    A("v_lshl_or_b32 v147, v14, 3, v147")
    A("v_bfe_u32 v14, v0, 4, 1")
    A("v_lshl_or_b32 v147, v14, 2, v147")
    A(f"s_lshl_b32 s{sA}, s{sTw}, 7")
    A(f"v_add_u32 v147, s{sA}, v147")
    A(f"v_add_u32 v147, {hex(L_OX)}, v147")
    A("v_and_b32 v30, 7, v0")
    A("v_lshlrev_b32 v154, 4, v30")
    A("v_lshl_or_b32 v154, v12, 9, v154")
    A("v_lshlrev_b32 v30, 11, v30")
    A("v_lshl_or_b32 v30, v15, 8, v30")
    A("v_lshl_or_b32 v30, v1, 4, v30")
    A(f"s_lshl_b32 s75, s{sO}, 8")
    A(f"s_add_u32 s75, s75, s{sTw}")
    A("s_lshl_b32 s75, s75, 6")
    A(f"s_add_u32 s75, s75, {hex(W_F)}")
    A("v_lshlrev_b32 v163, 16, v15")
    A("v_lshl_or_b32 v163, v1, 4, v163")
    A(f"s_lshl_b32 s74, s{S_W}, 2")
    A(f"s_add_u32 s74, s74, s{sTw}")
    A("s_lshl_b32 s74, s74, 6")
    A(f"s_add_u32 s74, s74, {hex(W_Y)}")
    A("v_lshlrev_b32 v148, 3, v0")
    A(f"v_add_u32 v148, {hex(L_XN)}, v148")
    A(f"s_lshl_b32 s{sA}, s{sTw}, 9")
    A(f"v_add_u32 v149, s{sA}, v148")
    A(f"s_lshl_b32 s{sA}, s{sTw}, 2")
    A(f"v_add_u32 v9, s{sA}, v8")
    A("v_mov_b32 v23, 1")
    A("s_waitcnt vmcnt(0)")
    make_tag(sTag, 164)
    A("s_mov_b32 s85, 0xffffff00")
    A(f"v_mov_b32 v164, s{sTag}")
    A(f"s_lshl_b32 s78, s{S_KVH}, 7")
    A(f"s_add_u32 s78, s78, {hex(W_IND)}")
    for i in range(4):
        A(f"v_bfe_u32 v{150+i}, s{sTag}, {8*i}, 8")
    if wearly:
        lds_set(9, F_WRDY, 23)
        A("v_add_u32 v144, 0x18000, v144")
        lds_wait4(F_WRDY, 1, 16, [f"ds_read_b64_tr_b16 v[{WF+2*i}:{WF+2*i+1}], v144 offset:{2048*i}" for i in range(8)])
        A("v_mov_b32 v20, 2")
        lds_set(9, F_WRDY, 20)
    stamp(1)
    A(f"s_lshl_b32 s{sB2}, s{sTw}, 2")
    A(f"s_add_u32 s{sB2}, s{sB2}, {GATH_AT}")
    lds_wait(F_DONE, f"s{sB2}", 20, sA)
    A("v_mov_b32 v40, 0")
    A("v_mov_b32 v41, 0")
    A(f"s_cmp_ge_u32 s{S_KVH}, {0 if noffn else 7}")
    A("s_cbranch_scc1 L_noffn2")
    for i in range(4):
        A(f"s_bfe_u32 s{86+i}, s{sTag}, {hex(0x80000 + 8*i)}")
    lq = lab("fpoll")
    A(f"{lq}:")
    for i in range(2):
        A(f"buffer_load_dwordx4 v[{44+4*i}:{47+4*i}], v30, s[{SWS}:{SWS+3}], s75 offen offset:{512*i} sc1")
    spin_guard()
    A("s_waitcnt vmcnt(0)")
    byte_check(44, 8, 86, 60)
    A(f"s_cbranch_vccnz {lq}")
    allreduce([44 + i for i in range(8)], "v_add_f32", [], steps=("x1", "x2", "hm"))
    for i in range(4):
        A(f"v_cvt_pk_bf16_f32 v40, v{44+2*i}, v{45+2*i}")
        unpack(32 + 2 * i, 40)
    A("s_mov_b32 s80, 0x3d372713")
    A("s_mov_b32 s81, 0xc0135761")
    for i in range(4):
        A(f"v_mul_f32 v{44+i}, v{32+i}, v{32+i}")
        A(f"v_fma_f32 v{44+i}, v{44+i}, s80, 1.0")
        A(f"v_mul_f32 v{44+i}, v{44+i}, v{32+i}")
        A(f"v_mul_f32 v{44+i}, s81, v{44+i}")
        A(f"v_exp_f32 v{44+i}, v{44+i}")
    nop(1)
    for i in range(4):
        A(f"v_add_f32 v{44+i}, 1.0, v{44+i}")
    for i in range(4):
        A(f"v_rcp_f32 v{44+i}, v{44+i}")
    nop(1)
    for i in range(4):
        A(f"v_mul_f32 v{32+i}, v{32+i}, v{44+i}")
    for r in (32, 34):
        A(f"v_cvt_pk_bf16_f32 v40, v{r}, v{r+1}")
        unpack(r, 40)
    for i in range(4):
        A(f"v_mul_f32 v{32+i}, v{32+i}, v{36+i}")
    A("v_cvt_pk_bf16_f32 v40, v32, v33")
    A("v_cvt_pk_bf16_f32 v41, v34, v35")
    A("L_noffn2:")
    A("ds_write_b64 v149, v[40:41]")
    lds_set(9, F_HRDY, 23)
    lds_wait4(F_HRDY, 1, 28, [f"ds_read_b64 v[{HB+2*i}:{HB+2*i+1}], v148 offset:{512*i}" for i in range(4)] +
              [f"ds_read_b64_tr_b16 v[{DF+2*i}:{DF+2*i+1}], v145 offset:{2048*i}" for i in range(4)])
    A(f"v_mfma_f32_16x16x32_bf16 v[{Y}:{Y+3}], v[{DF}:{DF+3}], v[{HB}:{HB+3}], 0")
    A(f"v_mfma_f32_16x16x32_bf16 v[{Y}:{Y+3}], v[{DF+4}:{DF+7}], v[{HB+4}:{HB+7}], v[{Y}:{Y+3}]")
    stamp(2)
    lds_wait(F_DONE, ML_AT, 20, sA)
    lds_wait(F_CTL, 1, 20, 79)
    A("s_mov_b32 s62, s79")
    lq = lab("mlpoll")
    A(f"{lq}:")
    for i in range(4):
        A(f"buffer_load_dwordx4 v[{44+4*i}:{47+4*i}], v161, s[{SWS}:{SWS+3}], s69 offen offset:{16*i} sc1")
    spin_guard()
    A("s_waitcnt vmcnt(0)")
    tag_check(44, 8, sTag, 60, 61)
    A(f"s_cbranch_vccnz {lq}")
    for i in range(4):
        A(f"v_mov_b32 v{16+i}, -1")
    A(f"s_lshl_b32 s{sA}, s{S_W}, 4")
    A(f"s_add_u32 s{sA}, s{sA}, s{sTw}")
    A(f"s_lshl_b32 s{sA}, s{sA}, 7")
    A(f"s_add_u32 s{sA}, s{sA}, {hex(W_O)}")
    A("s_mov_b32 exec_hi, 0")
    store_by(62, [f"buffer_store_dwordx4 v[16:19], v154, s[{SWS}:{SWS+3}], s{sA} offen"])
    A(f"s_lshl_b32 s{sA}, s{S_J}, 2")
    A(f"s_add_u32 s{sA}, s{sA}, s96")
    A("s_mov_b64 exec, 1")
    A("v_mov_b32 v20, 2")
    A("s_waitcnt vmcnt(0)")
    store_by(62, [f"buffer_store_dword v164, v11, s[{SWS}:{SWS+3}], s{sA} offen"])
    lds_set(9, F_HRDY, 20)
    A("v_max3_f32 v26, v44, v48, v52")
    A("v_max_f32 v26, v26, v56")
    allreduce([26], "v_max_f32", [27], steps=("r8", "p16"))
    for i in range(4):
        A(f"v_sub_f32 v{W+i}, v{44+4*i}, v26")
    for i in range(4):
        A(f"v_exp_f32 v{W+i}, v{W+i}")
    A(f"v_mul_f32 v27, v{W}, v46")
    for i in range(1, 4):
        A(f"v_fmac_f32 v27, v{W+i}, v{46+4*i}")
    allreduce([27], "v_add_f32", [26], steps=("r8", "p16"))
    A("v_rcp_f32 v27, v27")
    A(f"s_add_u32 s76, s{S_J}, s{sTw}")
    if early:
        A("s_lshr_b32 s79, s79, 1")
        A("s_add_u32 s76, s76, s79")
    A("s_cmp_eq_u32 s76, 0")
    A("s_cselect_b64 s[76:77], 1, 0")
    for i in range(4):
        A(f"v_mul_f32 v{W+i}, v{W+i}, v27")
    A("s_mov_b32 m0, s83")
    A("s_mov_b32 s80, 0x00ff00ff"); A("s_mov_b32 s81, s80")
    A("s_mov_b32 s82, 0x01010101"); A("s_mov_b32 s83, s82")
    lds_wait(F_DONE, CLR_CHK, 20, sA)
    A("v_lshlrev_b32 v14, 2, v0")
    A("s_mov_b32 exec_hi, 0")
    lq = lab("cpoll")
    A(f"{lq}:")
    A(f"buffer_load_dword v17, v14, s[{SWS}:{SWS+3}], s96 offen sc1")
    spin_guard()
    A("s_waitcnt vmcnt(0)")
    A("v_cmp_ne_u32 vcc, v164, v17")
    A(f"s_cbranch_vccnz {lq}")
    A("s_mov_b32 exec_hi, -1")
    if retouch:
        lds_wait(F_DONE, retouch, 20, sA)
        A(f"s_lshl_b32 s{sA}, s{S_W}, 2")
        A(f"s_add_u32 s{sA}, s{sA}, s{sTw}")
        A(f"s_lshl_b32 s{sA}, s{sA}, 9")
        A(f"s_add_u32 s{sA}, s{sA}, {hex(W_O)}")
        A("v_lshlrev_b32 v14, 7, v0")
        A("s_mov_b64 exec, 15")
        A(f"buffer_load_dword v17, v14, s[{SWS}:{SWS+3}], s{sA} offen sc1")
        A("s_mov_b64 exec, -1")
    if gate:
        A("v_lshlrev_b32 v155, 4, v12")
        A(f"s_lshl_b32 s68, s{S_KVH}, 7")
        A(f"s_add_u32 s68, s68, {hex(W_PROG)}")
        A("s_cmp_eq_u32 s62, 2")
        A("s_cselect_b32 s62, 200, 0")
    if slp:
        lds_wait(F_DONE, 120, 20, sA)
    stamp(5)
    A("s_branch L_tend")
    A(".p2align 6")
    A("L_tend:")
    if pads:
        A("s_cbranch_execz L_tpad")
    if TRIG == 0:
        lds_wait4(F_DONE, 114, 28)
        lds_wait(F_ISS, 1, 28, sA)
    elif TRIG < 128:
        lds_wait4(F_DONE, TRIG, 28)
    else:
        lds_wait(F_LANDED, 128 + LB, 28, sA)
    A("s_setprio 2")
    stamp(3)
    for i in range(0 if wearly else 4):
        A(f"buffer_load_dwordx4 v{4+i}, s[{SWO}:{SWO+3}], s{sWo} offen offset:{i*1024} {pW} lds")

    def o_load(i):
        A(f"buffer_load_dwordx4 v[{GA+4*i}:{GA+4*i+3}], v162, s[{SWS}:{SWS+3}], s{70+i} offen sc1")

    def m_load():
        A(f"buffer_load_dwordx4 v[156:159], v155, s[{SWS}:{SWS+3}], s68 offen sc1")

    if gate:
        m_load()
        for i in range(16):
            A(f"v_mov_b32 v{GA+i}, -1")
        A("s_waitcnt vmcnt(1)")
    else:
        if opre == 2:
            lds_wait(F_LANDED, 128 + LB, 28, sA)
        elif opre == 3:
            lds_wait4(F_DONE, 128, 28)
        elif opre in (4, 5, 6):
            A(f"s_waitcnt vmcnt({opre - 3})")
        if not opre or opre == 7:
            A("s_waitcnt vmcnt(0)")
        for i in range(0 if opre == 7 else 4):
            o_load(i)
        if opre and opre != 7:
            A("s_waitcnt vmcnt(4)")
    if not wearly:
        lds_set(9, F_WRDY, 23)
    stamp(4)
    wfrag = [f"ds_read_b64_tr_b16 v[{WF+2*i}:{WF+2*i+1}], v144 offset:{2048*i}" for i in range(8)]
    if gate:
        A("s_waitcnt vmcnt(0)")
        for i in range(4):
            A(f"v_cmp_le_u32 vcc, s62, v{156+i}")
            A("s_mov_b64 exec, vcc")
            o_load(i)
            A("s_mov_b64 exec, -1")
        m_load()
    if not wearly:
        lds_wait4(F_WRDY, 1, 28, wfrag)
    if opre == 7:
        lds_wait4(F_DONE, 128, 28)
        for i in range(4):
            o_load(i)
    stamp(6)
    if ocap:
        A("s_waitcnt vmcnt(0)")
    A("s_branch L_ob")
    A("L_oa:")
    if gate:
        A("s_waitcnt vmcnt(0)")
        for i in range(4):
            A(f"v_cmp_le_u32 s[{52+2*i}:{53+2*i}], s62, v{156+i}")
    for i in range(4):
        if gate:
            A(f"s_and_b64 exec, s[{86+2*i}:{87+2*i}], s[{52+2*i}:{53+2*i}]")
        else:
            A(f"s_mov_b64 exec, s[{86+2*i}:{87+2*i}]")
        o_load(i)
    A("s_mov_b64 exec, -1")
    if gate:
        m_load()
    spin_guard()
    A("L_ob:")
    for i in range(4):
        if ocap:
            if i == 0:
                A(f"s_waitcnt vmcnt({ocap})")
        elif cw:
            A(f"s_waitcnt vmcnt({3-i+(1 if gate else 0)})")
        elif i == 0:
            A(f"s_waitcnt vmcnt({1 if gate else 0})")
        A(f"v_max3_u32 v20, v{GA+4*i}, v{GA+4*i+1}, v{GA+4*i+2}")
        A(f"v_max_u32 v20, v20, v{GA+4*i+3}")
        A(f"v_cmp_eq_u32 s[{86+2*i}:{87+2*i}], -1, v20")
    A("s_or_b64 s[94:95], s[86:87], s[88:89]")
    A("s_or_b64 s[94:95], s[94:95], s[90:91]")
    A("s_or_b64 s[94:95], s[94:95], s[92:93]")
    A("s_cbranch_scc1 L_oa")

    def send_ind():
        A("s_mov_b64 exec, s[76:77]")
        A("s_cbranch_execnz L_ind")
        A("L_noind:")
    if indpos == 0:
        send_ind()
        A("s_mov_b64 exec, -1")
    stamp(7)
    for k in range(4):
        A(f"v_mul_f32 v{R+k}, v{GA+k}, v{W}")
    for i in range(1, 4):
        for k in (0, 2, 1, 3):
            A(f"v_fmac_f32 v{R+k}, v{GA+4*i+k}, v{W+i}")
    A(f"v_permlane16_swap_b32 v{R}, v{R+2}")
    nop(1)
    A(f"v_permlane16_swap_b32 v{R+1}, v{R+3}")
    A(f"v_add_f32 v{R}, v{R}, v{R+2}")
    A(f"v_add_f32 v{R+1}, v{R+1}, v{R+3}")
    allreduce([R, R + 1], "v_add_f32", [], steps=("r8",))
    A("s_mov_b64 exec, s[80:81]")
    A(f"v_cvt_pk_bf16_f32 v24, v{R}, v{R+1}")
    A("ds_write_b32 v147, v24")
    lds_set(9, F_ORDY, 23)
    if indpos == 1:
        send_ind()
        A("s_mov_b64 exec, -1")
    lds_wait4(F_ORDY, 1, 28, [f"ds_read_b128 v[{32+4*i}:{35+4*i}], v146 offset:{128*i}" for i in range(4)])
    for i in range(4):
        A(f"v_mfma_f32_16x16x32_bf16 v[{Y}:{Y+3}], v[{WF+4*i}:{WF+4*i+3}], v[{32+4*i}:{35+4*i}], v[{Y}:{Y+3}]")
    if indpos == 2:
        nop(5)
        send_ind()
    else:
        nop(7)
    A("s_mov_b64 exec, s[82:83]")
    for i in range(4):
        A(f"v_and_or_b32 v{Y+i}, v{Y+i}, s85, v{150+i}")
    A(f"buffer_store_dwordx4 v[{Y}:{Y+3}], v163, s[{SWS}:{SWS+3}], s74 offen sc1")
    if ycopy:
        A("s_add_u32 s74, s74, 0x20800")
        A(f"buffer_store_dwordx4 v[{Y}:{Y+3}], v163, s[{SWS}:{SWS+3}], s74 offen sc1")
    if indpos == 3:
        send_ind()
    if wb in (1, 2):
        A(f"s_lshl_b32 s{sA}, s{sTw}, 8")
        A(f"s_add_u32 s{sA}, s{sA}, s{S_W}")
        A(f"s_cmp_lg_u32 s{sA}, {32*FX}")
        A("s_cbranch_scc1 L_nowb")
        if wb == 2:
            A("s_waitcnt vmcnt(0)")
        A("buffer_wbl2 sc1")
        A("s_waitcnt vmcnt(0)")
        A("L_nowb:")
    stamp(8)
    stamp_flush()
    A("s_endpgm")
    A("L_ind:")
    A(f"buffer_store_dword v164, v11, s[{SWS}:{SWS+3}], s78 offen sc1")
    if wb == 3:
        A("buffer_wbl2 sc1")
    A("s_branch L_noind")
    A("L_abort:")
    A("s_endpgm")
    sT = 66
    loader_rest()
    A("L_end:")
    nv = 168
    A('.section .rodata,"a"')
    A(".p2align 6")
    A(f".amdhsa_kernel {KNAME}")
    A(f"  .amdhsa_next_free_vgpr {nv}")
    A("  .amdhsa_next_free_sgpr 102")
    A(f"  .amdhsa_accum_offset {nv}")
    A("  .amdhsa_group_segment_fixed_size 0")
    A("  .amdhsa_kernarg_size 96")
    A("  .amdhsa_user_sgpr_count 2")
    A("  .amdhsa_user_sgpr_kernarg_segment_ptr 1")
    A("  .amdhsa_system_sgpr_workgroup_id_x 1")
    A(".end_amdhsa_kernel")
    out = []
    for ln in L:
        if ln.startswith((";", ".", " ")) or ln.endswith(":") or "\n" in ln:
            out.append(ln)
        else:
            out.append("    " + ln)
    return "\n".join(out) + "\n"


if __name__ == "__main__":
    kw = eval("dict(" + (sys.argv[2] if len(sys.argv) > 2 else "") + ")")
    open(sys.argv[1], "w").write(gen(**kw))
FINAL_WAVE = 2
```
